```python
import torch

def _softmax(x, axis=-1):
    return torch.softmax(x, dim=axis)
def _gelu(x):
    return torch.nn.functional.gelu(x, approximate="tanh")
def _silu(x):
    return torch.nn.functional.silu(x)
def _sigmoid(x):
    return torch.sigmoid(x)
def _layernorm(x, axis=-1, eps=1e-5):
    m = x.mean(dim=axis, keepdim=True)
    v = x.var(dim=axis, keepdim=True, unbiased=False)
    return (x - m) / torch.sqrt(v + eps)
def _scatter_add(tgt, idx, src, axis=0):
    return tgt.clone().index_add_(axis, idx, src)
def _segment_sum(src, seg, n):
    out = torch.zeros((n,) + src.shape[1:], dtype=src.dtype)
    return out.index_add_(0, seg, src)
def _pad(x, pw):
    flat = tuple(v for pair in reversed(pw) for v in pair)
    return torch.nn.functional.pad(x, flat)

kernel_name = 'sequential_preLN__ssm_conv_s4d__geglu_ffn__prompt'

def setup_inputs():

    _w = (lambda a: (lambda t: t.to(torch.bfloat16) if t.is_floating_point() else t)(torch.as_tensor(a)))
    def _A_setup():
        Bsz, L, D, N = 1, 2048, 1024, 128
        return {
            "u": _w((lambda *s: torch.randn(*s, dtype=torch.bfloat16) * 0.05)(Bsz, L, D)),
            "log_A_real": _w((lambda *s: torch.randn(*s, dtype=torch.bfloat16) * 6.4)(D, N) * 0.5),
            "A_imag": _w((lambda *s: torch.randn(*s, dtype=torch.bfloat16) * 0.05)(D, N) * 3.14),
            "C_real": _w((lambda *s: torch.randn(*s, dtype=torch.bfloat16) * 0.05)(D, N) / N ** 0.5),
            "C_imag": _w((lambda *s: torch.randn(*s, dtype=torch.bfloat16) * 0.05)(D, N) / N ** 0.5),
            "log_dt": _w((lambda *s: torch.randn(*s, dtype=torch.bfloat16) * 0.05)(D) * 0.5 - 4.0),
            "D_skip": _w((lambda *s: torch.randn(*s, dtype=torch.bfloat16) * 0.05)(D)),
        }
    _A_in = _A_setup()

    def _B_setup():
        B, S, D, F = 1, 2048, 1024, 3584
        return {
            "x": _w((lambda *s: torch.randn(*s, dtype=torch.bfloat16) * 0.05)(B, S, D)),
            "w_gate": _w((lambda *s: torch.randn(*s, dtype=torch.bfloat16) * 0.05)(D, F)),
            "w_up": _w((lambda *s: torch.randn(*s, dtype=torch.bfloat16) * 0.05)(D, F)),
            "w_down": _w((lambda *s: torch.randn(*s, dtype=torch.bfloat16) * 0.05)(F, D)),
        }
    _B_in = _B_setup()

    return {
        "A_u": _A_in["u"],
        "A_log_A_real": _A_in["log_A_real"],
        "A_A_imag": _A_in["A_imag"],
        "A_C_real": _A_in["C_real"],
        "A_C_imag": _A_in["C_imag"],
        "A_log_dt": _A_in["log_dt"],
        "A_D_skip": _A_in["D_skip"],
        "B_x": _B_in["x"],
        "B_w_gate": _B_in["w_gate"],
        "B_w_up": _B_in["w_up"],
        "B_w_down": _B_in["w_down"],
    }

def reference(A_u, A_log_A_real, A_A_imag, A_C_real, A_C_imag, A_log_dt, A_D_skip, B_x, B_w_gate, B_w_up, B_w_down):
    def _A_ref(u, log_A_real, A_imag, C_real, C_imag, log_dt, D_skip):
        L = u.shape[1]
        dt = torch.exp(log_dt)
        A = -torch.exp(log_A_real) + 1j * A_imag
        C = (C_real + 1j * C_imag) * dt[:, None]
        pos = (lambda x, dt: x.to(dt))(torch.arange(L), log_dt.dtype)
        P = torch.exp((A * dt[:, None])[:, :, None] * pos[None, None, :])
        K = 2.0 * torch.einsum("dn,dnl->dl", C, P).real
        L2 = 2 * L
        u_t = (lambda x, *d: x.permute(*d))(u, 0, 2, 1)
        Kf = (lambda x, *a, **k: torch.fft.rfft(x.float(), *a, **k))(K, L2)
        Uf = (lambda x, *a, **k: torch.fft.rfft(x.float(), *a, **k))(u_t, L2)
        y = (lambda x, *a, **k: torch.fft.irfft(x, *a, **k).to(torch.bfloat16))(Uf * Kf[None, :, :], L2)[:, :, :L]
        y = (lambda x, *d: x.permute(*d))(y, 0, 2, 1)
        return y + u * D_skip[None, None, :]

    def _B_ref(x, w_gate, w_up, w_down):
        return (_gelu(x @ w_gate) * (x @ w_up)) @ w_down

    x = A_u
    h = x + _A_ref(_layernorm(x, axis=-1), A_log_A_real, A_A_imag, A_C_real, A_C_imag, A_log_dt, A_D_skip)
    h2 = h + _B_ref(_layernorm(h, axis=-1), B_w_gate, B_w_up, B_w_down)
    return h2
```

```python
import sys
from common import *
HDR = open("sequential_preLN__ssm_conv_s4d__geglu_ffn__prompt.s.ref").read().split("; Override launch")[0]
def assemble(parts, path):
    s = HDR + "".join(p[0] for p in parts)
    s += '.amdgcn_target "amdgcn-amd-amdhsa--gfx950"\n.text\n'
    s += "".join(p[1] for p in parts)
    s += '.section .rodata,"a"\n'
    s += "".join(p[2] for p in parts)
    open(path, "w").write(s)
```

```python
import struct

WS_H8  = 0x0000000
WS_ACT = 0x0400000
WS_ST1 = 0x1200000
WS_ST2 = 0x1210000
WS_CS  = 0x1220000
WS_DBG = 0x1280000
WS_KT  = 0x1300000
WS_UX  = 0x1500000
WS_END = 0x1d00000
SZ_H8 = 4 << 20
SZ_ACT = 448 * 2048 * 16
SZ_W = 1024 * 3584 * 2

KA_U, KA_LOGA, KA_AIM, KA_CRE, KA_CIM, KA_LOGDT, KA_DSKIP, KA_BX, KA_WG, KA_WU, KA_WD, KA_OUT, KA_DBG, KA_WS = [8*i for i in range(14)]

def f32(x):
    return "0x%08x" % struct.unpack("<I", struct.pack("<f", x))[0]

class Asm:
    def __init__(self, name):
        self.name = name
        self.L = []
        self.nlab = 0
    def __call__(self, s):
        for ln in s.split("\n"):
            ln = ln.strip()
            if ln:
                self.L.append(ln)
    def label(self, base):
        self.nlab += 1
        return f"L_{self.name}_{base}_{self.nlab}"
    def c(self, s):
        self.L.append("; " + s)
    def text(self):
        out = []
        for ln in self.L:
            out.append(ln if ln.endswith(":") else "    " + ln)
        return "\n".join(out) + "\n"

def vr(b, n=1, p="v"):
    return f"{p}{b}" if n == 1 else f"{p}[{b}:{b+n-1}]"
def ar(b, n=1):
    return vr(b, n, "a")
def sr(b, n=1):
    return vr(b, n, "s")

def srd(a, d, base, nbytes, off=0):
    if off:
        a(f"s_add_u32 s{d}, s{base}, {off}")
        a(f"s_addc_u32 s{d+1}, s{base+1}, 0")
    else:
        a(f"s_mov_b32 s{d}, s{base}")
        a(f"s_mov_b32 s{d+1}, s{base+1}")
    a(f"s_mov_b32 s{d+2}, {nbytes}")
    a(f"s_mov_b32 s{d+3}, 0x20000")

def kernel_header(name):
    return f".globl {name}\n.p2align 8\n.type {name},@function\n{name}:\n"

def kernel_desc(name, nvgpr, accum, nsgpr=102):
    return f""".p2align 6
.amdhsa_kernel {name}
  .amdhsa_next_free_vgpr {nvgpr}
  .amdhsa_next_free_sgpr {nsgpr}
  .amdhsa_accum_offset {accum}
  .amdhsa_group_segment_fixed_size 0
  .amdhsa_kernarg_size 112
  .amdhsa_user_sgpr_count 2
  .amdhsa_user_sgpr_kernarg_segment_ptr 1
  .amdhsa_system_sgpr_workgroup_id_x 1
  .amdhsa_float_denorm_mode_32 3
  .amdhsa_float_denorm_mode_16_64 3
.end_amdhsa_kernel
"""

def wave_sum(a, v, t, start=1):
    d = start
    while d <= 32:
        if d == 1:
            a("s_nop 1"); a(f"v_add_f32_dpp v{v}, v{v}, v{v} quad_perm:[1,0,3,2] row_mask:0xf bank_mask:0xf")
        elif d == 2:
            a("s_nop 1"); a(f"v_add_f32_dpp v{v}, v{v}, v{v} quad_perm:[2,3,0,1] row_mask:0xf bank_mask:0xf")
        elif d == 4:
            a("s_nop 1"); a(f"v_add_f32_dpp v{v}, v{v}, v{v} row_ror:4 row_mask:0xf bank_mask:0xf")
        elif d == 8:
            a("s_nop 1"); a(f"v_add_f32_dpp v{v}, v{v}, v{v} row_ror:8 row_mask:0xf bank_mask:0xf")
        elif d == 16:
            a(f"v_mov_b32 v{t}, v{v}"); a("s_nop 1")
            a(f"v_permlane16_swap_b32 v{t}, v{v}"); a("s_nop 1")
            a(f"v_add_f32 v{v}, v{v}, v{t}")
        elif d == 32:
            a(f"v_mov_b32 v{t}, v{v}"); a("s_nop 1")
            a(f"v_permlane32_swap_b32 v{t}, v{v}"); a("s_nop 1")
            a(f"v_add_f32 v{v}, v{v}, v{t}")
        d *= 2
```

```python
from common import *

def ln_stats_from_regs(a, data, nd, vsum, vt, t0, start, inv_n):
    for i in range(nd):
        a(f"v_lshlrev_b32 v{t0+2*i}, 16, v{data+i}")
        a(f"v_and_b32 v{t0+2*i+1}, 0xffff0000, v{data+i}")
    a(f"v_pk_add_f32 {vr(vsum,2)}, {vr(t0,2)}, {vr(t0+2,2)}")
    for i in range(2, nd):
        a(f"v_pk_add_f32 {vr(vsum,2)}, {vr(vsum,2)}, {vr(t0+2*i,2)}")
    a(f"v_add_f32 v{vsum}, v{vsum}, v{vsum+1}")
    wave_sum(a, vsum, vt, start)
    a(f"v_mul_f32 v{vsum}, {f32(inv_n)}, v{vsum}")
    for i in range(nd):
        a(f"v_pk_add_f32 {vr(t0+2*i,2)}, {vr(t0+2*i,2)}, {vr(vsum,2)} op_sel_hi:[1,0] neg_lo:[0,1] neg_hi:[0,1]")
    a(f"v_pk_mul_f32 {vr(data,2)}, {vr(t0,2)}, {vr(t0,2)}")
    for i in range(1, nd):
        a(f"v_pk_fma_f32 {vr(data,2)}, {vr(t0+2*i,2)}, {vr(t0+2*i,2)}, {vr(data,2)}")
    a(f"v_add_f32 v{vsum+1}, v{data}, v{data+1}")
    wave_sum(a, vsum+1, vt, start)
    a(f"v_mul_f32 v{vsum+1}, {f32(inv_n)}, v{vsum+1}")
    a(f"v_cvt_pk_bf16_f32 v{vt}, v{vsum}, v{vsum+1}")
    a(f"v_lshlrev_b32 v{vsum}, 16, v{vt}")
    a(f"v_and_b32 v{vsum+1}, 0xffff0000, v{vt}")
    a(f"v_add_f32 v{vsum+1}, {f32(1e-5)}, v{vsum+1}")
    a(f"v_cvt_pk_bf16_f32 v{vt}, v{vsum+1}, v{vsum+1}")
    a(f"v_lshlrev_b32 v{vt}, 16, v{vt}")
    a(f"v_sqrt_f32 v{vt}, v{vt}")
    a("s_nop 0")
    a(f"v_cvt_pk_bf16_f32 v{vt}, v{vt}, v{vt}")
    a(f"v_lshlrev_b32 v{vsum+1}, 16, v{vt}")

def gen_gemm1(name="gemm1_kernel", dbg_time=False):
    a = Asm(name)
    SLOT = 28800; UPOFF = 14464
    ACC = 32
    def acc(j, t): return ACC + (j*7 + t)*16
    XR = 0
    WF = 64
    CSF = 120
    vDMA = 1
    vX = 8; vW = 9; vWc = 10; vWn = 11; vST = 12
    vS = 14
    vL = 18
    vO = 19
    vT = 20
    sWS = 4; sWp = 6
    sX = 8; sWsrd = 12; sACT = 16; sST = 20; sCS = 24
    sOX = 28; sOW = 29; sBase = 30; sM0 = 31; sIt = 32; sWave = 33; sM = 34; sF = 35; sT = 36
    end = a.label("end")
    a(f"s_cmp_ge_u32 s2, 256"); a(f"s_cbranch_scc1 {end}")
    a(f"s_load_dwordx2 {sr(sWS,2)}, s[0:1], {KA_WS}")
    a(f"s_load_dwordx4 {sr(40,4)}, s[0:1], {KA_WG}")
    if dbg_time:
        a(f"s_load_dwordx2 {sr(48,2)}, s[0:1], {KA_WS}")
        a(f"s_memtime {sr(50,2)}"); a(f"s_memrealtime {sr(70,2)}")
    a(f"v_lshrrev_b32 v{vT}, 6, v0")
    a(f"v_and_b32 v{vL}, 63, v0")
    a(f"v_readfirstlane_b32 s{sWave}, v{vT}")
    a(f"s_and_b32 s{sT}, s2, 7")
    a(f"s_bfe_u32 s{sM}, s2, 0x30003")
    a(f"s_lshl_b32 s{sF}, s{sT}, 2")
    a(f"s_lshr_b32 s{sT+2}, s2, 6")
    a(f"s_add_u32 s{sF}, s{sF}, s{sT+2}")
    a(f"s_lshl_b32 s{sT}, s{sF}, 3")
    a(f"s_lshl_b32 s{sM}, s{sM}, 8")
    a(f"s_add_u32 s{sT}, s{sT}, s{sM}")
    a(f"s_lshl_b32 s{sT+1}, s{sWave}, 1")
    a(f"s_add_u32 s{sT}, s{sT}, s{sT+1}")
    a(f"s_mul_i32 s{sF}, s{sF}, 112")
    a(f"v_and_b32 v{vT}, 1, v{vL}")
    a(f"v_add_u32 v{vT}, s{sT}, v{vT}")
    a(f"v_lshlrev_b32 v{vT+2}, 3, v{vT}")
    a(f"v_lshlrev_b32 v{vT}, 4, v{vT}")
    a(f"v_lshrrev_b32 v{vT+1}, 1, v{vL}")
    a(f"v_lshl_add_u32 v{vT}, v{vT+1}, 15, v{vT}")
    a("s_waitcnt lgkmcnt(0)")
    if dbg_time: a("s_memtime s[80:81]")
    srd(a, sX, sWS, SZ_H8, WS_H8)
    srd(a, sACT, sWS, SZ_ACT, WS_ACT)
    srd(a, sST, sWS, 2048*8, WS_ST2)
    srd(a, sCS, sWS, 2*3584*16, WS_CS)
    a(f"s_cmp_ge_u32 s{sWave}, 2")
    a(f"s_cselect_b32 s{sWp}, s42, s40")
    a(f"s_cselect_b32 s{sWp+1}, s43, s41")
    srd(a, sWsrd, sWp, SZ_W)
    SD = 64
    for i in range(4):
        a(f"s_mov_b32 s{sT+1}, {i*32*32768}")
        a(f"buffer_load_dwordx4 {vr(SD+4*i,4)}, v{vT}, {sr(sX,4)}, s{sT+1} offen")
    a(f"s_and_b32 s{sT}, s{sWave}, 1")
    a(f"s_mul_i32 s{sT+1}, s{sT}, 448")
    a(f"s_lshl_b32 s{sT+2}, s{sF}, 1")
    for i in range(7):
        imm = (i & 3) * 1024
        a(f"v_add_u32 v{vT+3}, s{sT+1}, v{vL}")
        if i: a(f"v_add_u32 v{vT+3}, {64*i}, v{vT+3}")
        a(f"v_mul_u32_u24 v{vT+4}, 4682, v{vT+3}")
        a(f"v_lshrrev_b32 v{vT+4}, 16, v{vT+4}")
        a(f"v_mul_u32_u24 v{vT+5}, 14, v{vT+4}")
        a(f"v_sub_u32 v{vT+5}, v{vT+3}, v{vT+5}")
        a(f"v_mul_u32_u24 v{vT+4}, 7168, v{vT+4}")
        a(f"v_lshl_add_u32 v{vT+4}, v{vT+5}, 4, v{vT+4}")
        a(f"v_add_u32 v{vDMA+i}, s{sT+2}, v{vT+4}")
        if imm: a(f"v_subrev_u32 v{vDMA+i}, {imm}, v{vDMA+i}")
    a(f"s_mul_i32 s{sM0}, s{sT}, 7168")
    a(f"s_lshr_b32 s{sT}, s{sWave}, 1")
    a(f"s_mul_i32 s{sT}, s{sT}, {UPOFF}")
    a(f"s_add_u32 s{sM0}, s{sM0}, s{sT}")
    a(f"s_lshl_b32 s{sT}, s{sWave}, 6")
    a(f"s_add_u32 s{sM}, s{sM}, s{sT}")
    a(f"v_and_b32 v{vT+3}, 31, v{vL}")
    a(f"v_add_u32 v{vT+3}, s{sM}, v{vT+3}")
    a(f"v_lshlrev_b32 v{vST}, 3, v{vT+3}")
    a(f"v_lshrrev_b32 v{vT+4}, 5, v{vL}")
    a(f"v_lshl_add_u32 v{vT+3}, v{vT+4}, 11, v{vT+3}")
    a(f"v_lshlrev_b32 v{vX}, 4, v{vT+3}")
    a(f"s_lshl_b32 s{sT}, s{sF}, 12")
    a(f"v_add_u32 v{vO}, s{sT}, v{vX}")
    a(f"v_bfe_u32 v{vT+3}, v{vL}, 2, 2")
    a(f"v_lshl_add_u32 v{vT+3}, v{vT+4}, 3, v{vT+3}")
    a(f"v_mul_u32_u24 v{vW}, 224, v{vT+3}")
    a(f"v_bfe_u32 v{vT+3}, v{vL}, 1, 1")
    a(f"v_mul_u32_u24 v{vT+3}, {UPOFF}, v{vT+3}")
    a(f"v_add_u32 v{vW}, v{vW}, v{vT+3}")
    a(f"v_and_b32 v{vT+3}, 1, v{vL}")
    a(f"v_lshl_add_u32 v{vW}, v{vT+3}, 4, v{vW}")
    a(f"v_bfe_u32 v{vT+3}, v{vL}, 4, 1")
    a(f"v_lshl_add_u32 v{vW}, v{vT+3}, 3, v{vW}")
    a(f"v_bfe_u32 v{vT+3}, v{vL}, 3, 1")
    a(f"v_mul_u32_u24 v{vT+5}, 3584, v{vT+3}")
    a(f"v_bfe_u32 v{vT+3}, v{vL}, 2, 1")
    a(f"v_lshl_add_u32 v{vT+5}, v{vT+3}, 3, v{vT+5}")
    a(f"v_bfe_u32 v{vT+3}, v{vL}, 4, 1")
    a(f"v_lshl_add_u32 v{vT+5}, v{vT+3}, 2, v{vT+5}")
    a(f"v_and_b32 v{vT+3}, 3, v{vL}")
    a(f"v_add_u32 v{vT+5}, v{vT+5}, v{vT+3}")
    a(f"v_add_u32 v{vT+5}, s{sF}, v{vT+5}")
    a(f"v_lshlrev_b32 v{vT+5}, 4, v{vT+5}")

    def dma(i, slot_expr_setup):
        out = []
        if i in (0, 4):
            out.append(slot_expr_setup(4096 if i == 4 else 0))
        imm = (i & 3) * 1024
        o = f" offset:{imm}" if imm else ""
        out.append(f"buffer_load_dwordx4 v{vDMA+i}, {sr(sWsrd,4)}, s{sOW} offen{o} lds")
        return out
    def xload(slot, j):
        o = f" offset:{512*j}" if j else ""
        return f"buffer_load_dwordx4 {ar(XR+slot*8+j*4,4)}, v{vX}, {sr(sX,4)}, s{sOX} offen{o}"

    DM = {3: [0, 1], 0: [2, 3], 1: [4, 5], 2: [6]}
    a(f"s_mov_b32 s{sOW}, 0"); a(f"s_mov_b32 s{sOX}, 0")
    def pro_dma(stage, idxs):
        for i in idxs:
            ins = dma(i, lambda e: f"s_add_u32 m0, s{sM0}, {stage*SLOT + e}")
            if len(ins) == 2:
                a(ins[0]); a("s_nop 0"); a(ins[1])
            else:
                a(ins[0])
            if i == 6: a(f"s_add_u32 s{sOW}, s{sOW}, {64*7168}")
    def pro_x(step):
        a(xload(step, 0)); a(xload(step, 1)); a(f"s_add_u32 s{sOX}, s{sOX}, 65536")
    pro_dma(0, range(7))
    pro_x(0)
    for g in range(-9, 0):
        if g + 7 >= 1: pro_x(g + 7)
        s = g % 4
        stage = (g - 3) // 4 + 4
        pro_dma(stage, DM[s])
    n_pro = 7*3 + 2 + 14
    for t in range(7):
        o = f" offset:{256*t}" if t else ""
        a(f"buffer_load_dwordx4 {ar(CSF+4*t,4)}, v{vT+5}, {sr(sCS,4)}, 0 offen{o}")
    n_pro += 7
    if dbg_time: a("s_memtime s[82:83]")
    a(f"s_waitcnt vmcnt({n_pro})")
    if dbg_time: a("s_memtime s[84:85]")
    ln_stats_from_regs(a, SD, 16, 96, 98, 100, 2, 1.0/1024)
    a(f"v_rcp_f32 v97, v97")
    a("s_mov_b64 exec, 3")
    a(f"buffer_store_dwordx2 v[96:97], v{vT+2}, {sr(sST,4)}, 0 offen sc0 sc1")
    a("s_mov_b64 exec, -1")
    n_extra = 8
    a("s_nop 1")
    for r in range(ACC, 256): a(f"v_mov_b32 v{r}, 0")
    a(f"s_mov_b32 s{sBase}, 0")
    a(f"v_mov_b32 v{vWc}, v{vW}")
    a(f"v_add_u32 v{vWn}, {2*SLOT}, v{vW}")
    a(f"s_mov_b32 s{sIt}, 0")
    if dbg_time: a("s_memtime s[86:87]")
    a(f"s_waitcnt vmcnt({n_pro + 1 - 7})")
    a("s_barrier")
    def wread(st, t, j, reg, imm0):
        return f"ds_read_b64_tr_b16 {ar(WF+st*28+t*4+j*2,2)}, v{reg} offset:{imm0 + 4*j*224 + 32*t}"
    for t in range(7):
        for j in range(2): a(wread(0, t, j, vWc, 0))
    if dbg_time:
        a(f"s_memtime {sr(52,2)}"); a(f"s_memrealtime {sr(72,2)}"); a("s_waitcnt lgkmcnt(0)")

    def seq(u):
        s = ["X", "X"] + ["D"] * len(DM[u % 4])
        if u == 2: s += ["S", "S"]
        return s
    def vm_wait(u):
        n = len(seq((u - 7) % 8)) - 2
        for k in range(6, 0, -1): n += len(seq((u - k) % 8))
        return n
    loop = a.label("loop")
    a(f"{loop}:")
    for u in range(8):
        s = u % 4; p = u // 4
        st = u & 1
        a(f"s_waitcnt vmcnt({vm_wait(u)}) lgkmcnt(0)")
        if s == 3: a("s_barrier")
        gaps = {g: [] for g in range(14)}
        nu = (u + 1) % 8
        reg = vWn if u == 7 else vWc
        imm0 = (nu // 4) * SLOT + (nu % 4) * 16 * 224
        k = 0
        for t in range(7):
            for j in range(2):
                gaps[k // 2].append(wread(1 - st, t, j, reg, imm0)); k += 1
        xs = (u - 1) % 8
        gaps[7].append(xload(xs, 0))
        gaps[8].append(xload(xs, 1))
        gaps[9].append(f"s_add_u32 s{sOX}, s{sOX}, 65536")
        gi = 10
        for i in DM[s]:
            if u in (3, 4, 5, 6):
                setup = lambda e: f"s_add_u32 m0, s{sT}, {e}"
            elif u == 7:
                setup = lambda e: f"s_add_u32 m0, s{sT}, {SLOT + e}"
            else:
                setup = lambda e: f"s_add_u32 m0, s{sT+1}, {SLOT + e}"
            ins = dma(i, setup)
            if len(ins) == 2:
                gaps[gi - 1].append(ins[0])
            gaps[gi].append(ins[-1])
            if i == 6: gaps[gi + 1].append(f"s_add_u32 s{sOW}, s{sOW}, {64*7168}")
            gi += 2
        if u == 0:
            gaps[0].insert(0, f"s_add_u32 s{sT}, s{sM0}, s{sBase}")
            gaps[1].insert(0, f"s_sub_u32 s{sBase}, {2*SLOT}, s{sBase}")
            gaps[2].insert(0, f"s_add_u32 s{sT+1}, s{sM0}, s{sBase}")
        if u == 2:
            gaps[12].append(f"buffer_load_dwordx2 {vr(vS,2)}, v{vST}, {sr(sST,4)}, 0 offen sc0 sc1")
            gaps[13].append(f"buffer_load_dwordx2 {vr(vS+2,2)}, v{vST}, {sr(sST,4)}, 0 offen offset:256 sc0 sc1")
        if u == 7:
            gaps[8].append(f"v_swap_b32 v{vWc}, v{vWn}")
            gaps[13].append(f"s_add_u32 s{sIt}, s{sIt}, 1")
            gaps[13].append(f"s_cmp_lt_u32 s{sIt}, 8")
        k = 0
        for t in range(7):
            for j in range(2):
                a(f"v_mfma_f32_32x32x16_bf16 {vr(acc(j,t),16)}, {ar(WF+st*28+t*4,4)}, {ar(XR+u*8+j*4,4)}, {vr(acc(j,t),16)}")
                for ins in gaps[k]: a(ins)
                k += 1
    a(f"s_cbranch_scc1 {loop}")
    if dbg_time:
        a(f"s_memtime {sr(54,2)}"); a(f"s_memrealtime {sr(74,2)}")
    a("s_waitcnt vmcnt(0) lgkmcnt(0)")
    poll = a.label("poll"); ok = a.label("ok")
    a(f"{poll}:")
    a(f"v_and_b32 v{vT}, v{vS}, v{vS+1}")
    a(f"v_or_b32 v{vT+1}, v{vS}, v{vS+2}")
    a(f"v_and_b32 v{vT+1}, 0xffff, v{vT+1}")
    a(f"v_cmp_ne_u32 vcc, 0, v{vT+1}")
    a(f"v_cmp_eq_u32 {sr(sT,2)}, -1, v{vS+1}")
    a(f"s_or_b64 vcc, vcc, {sr(sT,2)}")
    a(f"v_cmp_eq_u32 {sr(sT,2)}, -1, v{vS+3}")
    a(f"s_or_b64 vcc, vcc, {sr(sT,2)}")
    a(f"s_cbranch_vccz {ok}")
    a("s_sleep 2")
    a(f"buffer_load_dwordx2 {vr(vS,2)}, v{vST}, {sr(sST,4)}, 0 offen sc0 sc1")
    a(f"buffer_load_dwordx2 {vr(vS+2,2)}, v{vST}, {sr(sST,4)}, 0 offen offset:256 sc0 sc1")
    a("s_waitcnt vmcnt(0)")
    a(f"s_branch {poll}")
    a(f"{ok}:")
    a(f"v_cmp_gt_u32 vcc, 32, v{vL}")
    for j in range(2):
        b = 20 + 4*j
        a(f"v_xor_b32 v{b+2}, 0x80000000, v{vS+2*j}")
        a(f"v_cndmask_b32 v{b+2}, 0, v{b+2}, vcc")
        a(f"v_lshrrev_b32 v{b+1}, 16, v{b+2}")
        a(f"v_or_b32 v{b}, v{b+1}, v{b+2}")
        a(f"v_mov_b32 v{b+2}, v{b}"); a(f"v_mov_b32 v{b+3}, v{b+1}")
    a("s_nop 1")
    for j in range(2):
        for t in range(7):
            a(f"v_mfma_f32_32x32x16_bf16 {vr(acc(j,t),16)}, {ar(CSF+t*4,4)}, {vr(20+4*j,4)}, {vr(acc(j,t),16)}")
    K0 = -2.0 * 0.7978845608028654 * 1.4426950408889634
    K1 = K0 * 0.044715
    C = {0: 2, 1: 6}
    for j in range(2):
        s_ = vS + 2*j + 1; c = C[j]
        a(f"v_mul_f32 v{c}, {f32(K0)}, v{s_}")
        a(f"v_mul_f32 v{c+2}, v{s_}, v{s_}")
        a(f"v_mul_f32 v{c+1}, v{c+2}, v{s_}")
        a(f"v_mul_f32 v{c+1}, {f32(K1)}, v{c+1}")
        a(f"v_rcp_f32 v{c+2}, v{c+2}")
    a("s_nop 7")
    T = 20
    nst = 0
    for j in range(2):
        c = C[j]
        for t in range(7):
            b = acc(j, t)
            prs = [(b, b+4), (b+2, b+6), (b+8, b+12), (b+10, b+14)]
            for i, (g, u_) in enumerate(prs):
                a(f"v_pk_mul_f32 {vr(T+2*i,2)}, {vr(g,2)}, {vr(g,2)}")
            for i, (g, u_) in enumerate(prs):
                a(f"v_pk_fma_f32 {vr(T+2*i,2)}, {vr(T+2*i,2)}, {vr(c,2)}, {vr(c,2)} op_sel:[0,1,0] op_sel_hi:[1,1,0]")
            for i, (g, u_) in enumerate(prs):
                a(f"v_pk_mul_f32 {vr(T+2*i,2)}, {vr(T+2*i,2)}, {vr(g,2)}")
            for i in range(8):
                a(f"v_exp_f32 v{T+i}, v{T+i}")
            for i, (g, u_) in enumerate(prs):
                a(f"v_pk_mul_f32 {vr(u_,2)}, {vr(u_,2)}, {vr(g,2)}")
            for i, (g, u_) in enumerate(prs):
                a(f"v_pk_fma_f32 {vr(T+2*i,2)}, {vr(T+2*i,2)}, {vr(c+2,2)}, {vr(c+2,2)} op_sel_hi:[1,0,0]")
            for i in range(8):
                a(f"v_rcp_f32 v{T+i}, v{T+i}")
            a("s_nop 0")
            for i, (g, u_) in enumerate(prs):
                a(f"v_pk_mul_f32 {vr(u_,2)}, {vr(u_,2)}, {vr(T+2*i,2)}")
            for i, (g, u_) in enumerate(prs):
                a(f"v_cvt_pk_bf16_f32 v{b+i}, v{u_}, v{u_+1}")
            a(f"s_mov_b32 s{sT}, {t*65536}")
            o = f" offset:{512*j}" if j else ""
            a(f"buffer_store_dwordx4 {vr(b,4)}, v{vO}, {sr(sACT,4)}, s{sT} offen{o}")
    if dbg_time:
        a("s_waitcnt vmcnt(0)")
        a(f"s_memtime {sr(56,2)}"); a(f"s_memrealtime {sr(76,2)}")
        a("s_waitcnt lgkmcnt(0)")
        srd(a, 60, 48, 1 << 20, WS_DBG + 0x40000)
        a("s_sub_u32 s52, s52, s50"); a("s_sub_u32 s54, s54, s50"); a("s_sub_u32 s56, s56, s50")
        a("v_mov_b32 v20, s52"); a("v_mov_b32 v21, s54"); a("v_mov_b32 v22, s56"); a("v_mov_b32 v23, s50")
        a(f"s_lshl_b32 s{sT}, s2, 2"); a(f"s_add_u32 s{sT}, s{sT}, s{sWave}"); a(f"s_lshl_b32 s{sT}, s{sT}, 6")
        a(f"v_mov_b32 v24, s{sT}")
        a("v_mov_b32 v28, s70"); a("v_mov_b32 v29, s72"); a("v_mov_b32 v30, s74"); a("v_mov_b32 v31, s76")
        a("s_sub_u32 s80, s80, s50"); a("s_sub_u32 s82, s82, s50"); a("s_sub_u32 s84, s84, s50"); a("s_sub_u32 s86, s86, s50")
        a("v_mov_b32 v32, s80"); a("v_mov_b32 v33, s82"); a("v_mov_b32 v34, s84"); a("v_mov_b32 v35, s86")
        a("s_mov_b64 exec, 1")
        a("buffer_store_dwordx4 v[20:23], v24, s[60:63], 0 offen")
        a("buffer_store_dwordx4 v[28:31], v24, s[60:63], 0 offen offset:16")
        a("buffer_store_dwordx4 v[32:35], v24, s[60:63], 0 offen offset:32")
    a(f"{end}:")
    a("s_endpgm")
    launch = f"; @launch kernel={name} grid=(256,1,1) block=(256,1,1) lds={4*SLOT}\n"
    return launch, kernel_header(name) + a.text(), kernel_desc(name, 512, 256)
```

```python
from common import *

def stamp_code(a, dbg, which):
    pass

class Stamps:
    def __init__(self, a, on, ka):
        self.a = a; self.on = on; self.ka = ka
    def start(self):
        if self.on:
            self.a(f"s_load_dwordx2 s[48:49], s[0:1], {self.ka}")
            self.a("s_memtime s[50:51]"); self.a("s_memrealtime s[70:71]")
            for r in range(80, 88): self.a(f"s_mov_b32 s{r}, 0")
    def main(self, i, wait=True):
        if self.on:
            self.a(f"s_memtime s[{50+2*i}:{51+2*i}]"); self.a(f"s_memrealtime s[{70+2*i}:{71+2*i}]")
            if wait: self.a("s_waitcnt lgkmcnt(0)")
    def extra(self, i):
        if self.on: self.a(f"s_memtime s[{80+2*i}:{81+2*i}]")
    def dump(self, swave, nwaves_log2, off=0):
        if not self.on: return
        a = self.a
        a("s_waitcnt vmcnt(0)")
        self.main(3)
        srd(a, 60, 48, 1 << 20, off)
        for r in (52, 54, 56, 80, 82, 84, 86): a(f"s_sub_u32 s{r}, s{r}, s50")
        for i, r in enumerate((52, 54, 56, 50, 70, 72, 74, 76, 80, 82, 84, 86)): a(f"v_mov_b32 v{20+i}, s{r}")
        a(f"s_lshl_b32 s64, s2, {nwaves_log2}"); a(f"s_add_u32 s64, s64, s{swave}"); a("s_lshl_b32 s64, s64, 6")
        a("v_mov_b32 v19, s64")
        a("s_mov_b64 exec, 1")
        for i in range(3): a(f"buffer_store_dwordx4 v[{20+4*i}:{23+4*i}], v19, s[60:63], 0 offen offset:{16*i}")

def gen_gemm2(name="gemm2_kernel", dbg_time=False, PF=8, WRAP=False, NOMFMA=False):
    a = Asm(name)
    st_ = Stamps(a, dbg_time, KA_WS)
    SLOT = 16384
    XCH = 8 * SLOT
    ACC = 32
    def acc(j, t): return ACC + (j*2 + t)*16
    HR = 96
    XR = 0; WF = 128
    vDMA = 1
    vX0 = 5; vX1 = 6; vWc = 8; vWn = 10
    vL = 12; vO = 13; vE = 14; vE2 = 15; vT = 16
    sWS = 4; sWp = 6; sOut = 40
    sX = 8; sWsrd = 12; sH = 16; sO = 20
    sOX = 28; sOW = 29; sBase = 30; sM0 = 31; sIt = 32; sWave = 33; sM = 34; sN = 35; sT = 36
    end = a.label("end")
    a(f"s_cmp_ge_u32 s2, 256"); a(f"s_cbranch_scc1 {end}")
    a(f"s_load_dwordx2 {sr(sWS,2)}, s[0:1], {KA_WS}")
    a(f"s_load_dwordx2 {sr(sWp,2)}, s[0:1], {KA_WD}")
    a(f"s_load_dwordx2 {sr(sOut,2)}, s[0:1], {KA_OUT}")
    st_.start()
    a(f"v_lshrrev_b32 v{vT}, 6, v0")
    a(f"v_and_b32 v{vL}, 63, v0")
    a(f"v_readfirstlane_b32 s{sWave}, v{vT}")
    a(f"s_and_b32 s{sT}, s2, 7")
    a(f"s_lshr_b32 s{sT+1}, s2, 3")
    a(f"s_and_b32 s{sM}, s{sT}, 3")
    a(f"s_lshl_b32 s{sM}, s{sM}, 2")
    a(f"s_and_b32 s{sT+2}, s{sT+1}, 3")
    a(f"s_add_u32 s{sM}, s{sM}, s{sT+2}")
    a(f"s_lshr_b32 s{sN}, s{sT}, 2")
    a(f"s_lshl_b32 s{sN}, s{sN}, 3")
    a(f"s_lshr_b32 s{sT+2}, s{sT+1}, 2")
    a(f"s_add_u32 s{sN}, s{sN}, s{sT+2}")
    a(f"s_lshl_b32 s{sM}, s{sM}, 7")
    a(f"s_lshl_b32 s{sN}, s{sN}, 6")
    a(f"s_lshr_b32 s{sT}, s{sWave}, 1")
    a(f"s_lshl_b32 s{sT}, s{sT}, 6")
    a(f"s_add_u32 s{sM}, s{sM}, s{sT}")
    a(f"s_and_b32 s{sT+3}, s{sWave}, 1")
    a(f"v_lshrrev_b32 v{vT}, 3, v{vL}")
    a(f"s_lshl_b32 s{sT}, s{sWave}, 5")
    a(f"v_add_u32 v{vT}, s{sT}, v{vT}")
    a(f"v_lshlrev_b32 v{vT}, 11, v{vT}")
    a(f"v_bfe_u32 v{vT+1}, v{vL}, 4, 1")
    a(f"v_lshlrev_b32 v{vT+1}, 2, v{vT+1}")
    a(f"v_and_b32 v{vT+2}, 7, v{vL}")
    a(f"v_xor_b32 v{vT+1}, v{vT+1}, v{vT+2}")
    a(f"v_lshl_add_u32 v{vT}, v{vT+1}, 4, v{vT}")
    a(f"s_lshl_b32 s{sT}, s{sN}, 1")
    a(f"v_add_u32 v{vDMA}, s{sT}, v{vT}")
    for i in range(1, 4): a(f"v_add_u32 v{vDMA+i}, {i*(16384-1024)}, v{vDMA}")
    a(f"s_lshl_b32 s{sM0}, s{sWave}, 12")
    a(f"v_and_b32 v{vT}, 31, v{vL}")
    a(f"s_lshl_b32 s{sT}, s{sT+3}, 5")
    a(f"s_add_u32 s{sM}, s{sM}, s{sT}")
    a(f"v_add_u32 v{vT}, s{sM}, v{vT}")
    a(f"v_lshrrev_b32 v{vT+1}, 5, v{vL}")
    a(f"v_lshl_add_u32 v{vT+2}, v{vT+1}, 11, v{vT}")
    a(f"v_lshlrev_b32 v{vT+2}, 4, v{vT+2}")
    a(f"s_lshl_b32 s{sT}, s{sT+3}, 18")
    a(f"v_add_u32 v{vX0}, s{sT}, v{vT+2}")
    a(f"v_xor_b32 v{vX1}, 512, v{vX0}")
    a(f"s_lshl_b32 s{sT}, s{sN}, 12")
    a(f"v_add_u32 v{vT+2}, s{sT}, v{vT+2}")
    a(f"v_lshlrev_b32 v{vO}, 11, v{vT}")
    a(f"v_lshl_add_u32 v{vO}, v{vT+1}, 4, v{vO}")
    a(f"s_lshl_b32 s{sT}, s{sN}, 1")
    a(f"v_add_u32 v{vO}, s{sT}, v{vO}")
    a(f"v_bfe_u32 v{vT+3}, v{vL}, 2, 2")
    a(f"v_lshl_add_u32 v{vT+3}, v{vT+1}, 3, v{vT+3}")
    a(f"v_lshlrev_b32 v{vWc}, 7, v{vT+3}")
    a(f"v_bfe_u32 v{vT+3}, v{vL}, 4, 1")
    a(f"v_lshl_add_u32 v{vWc}, v{vT+3}, 5, v{vWc}")
    a(f"v_and_b32 v{vT+3}, 1, v{vL}")
    a(f"v_lshl_add_u32 v{vWc}, v{vT+3}, 4, v{vWc}")
    a(f"v_bfe_u32 v{vT+3}, v{vL}, 1, 1")
    a(f"v_lshl_add_u32 v{vWc}, v{vT+3}, 3, v{vWc}")
    a(f"v_bfe_u32 v{vT+3}, v{vL}, 3, 1")
    a(f"v_lshl_add_u32 v{vWc}, v{vT+3}, 6, v{vWc}")
    a(f"s_lshl_b32 s{sT}, s{sT+3}, 13")
    a(f"v_add_u32 v{vWc}, s{sT}, v{vWc}")
    a(f"v_xor_b32 v{vWc+1}, 64, v{vWc}")
    a(f"v_add_u32 v{vWn}, {4*SLOT}, v{vWc}")
    a(f"v_add_u32 v{vWn+1}, {4*SLOT}, v{vWc+1}")
    a(f"s_lshl_b32 s{sT}, s{sWave}, 13")
    a(f"s_add_u32 s{sT}, s{sT}, {XCH}")
    a(f"v_lshlrev_b32 v{vE}, 4, v{vL}")
    a(f"v_add_u32 v{vE}, s{sT}, v{vE}")
    a(f"v_xor_b32 v{vE2}, 8192, v{vE}")
    vP = 7; sP = 44; sOP = 42; sPS = 43
    a(f"s_lshr_b32 s{sT}, s2, 3"); a(f"s_lshl_b32 s{sT}, s{sT}, 1"); a(f"s_add_u32 s{sT}, s{sT}, s{sT+3}")
    a(f"s_lshr_b32 s{sT+1}, s{sT}, 2"); a(f"s_lshl_b32 s{sT+1}, s{sT+1}, 15")
    a(f"s_and_b32 s{sT+2}, s{sT}, 3"); a(f"s_lshl_b32 s{sT+2}, s{sT+2}, 11"); a(f"s_add_u32 s{sT+1}, s{sT+1}, s{sT+2}")
    a(f"s_and_b32 s{sT+2}, s2, 3"); a(f"s_lshl_b32 s{sT+2}, s{sT+2}, 13"); a(f"s_add_u32 s{sT+1}, s{sT+1}, s{sT+2}")
    a(f"s_lshl_b32 s{sT}, s{sT}, 12"); a(f"s_bfe_u32 s{sT+2}, s2, 0x10002"); a(f"s_lshl_b32 s{sT+2}, s{sT+2}, 10"); a(f"s_add_u32 s{sT}, s{sT}, s{sT+2}")
    a(f"s_cmp_ge_u32 s{sWave}, 2")
    a(f"s_cselect_b32 s{sOP}, s{sT}, s{sT+1}")
    a(f"s_mov_b32 s{sPS}, {16*32768}")
    a(f"s_cselect_b32 s{sPS}, {128*2048}, s{sPS}")
    a(f"s_cselect_b32 s{sT}, 1024, 0")
    a(f"v_lshlrev_b32 v{vP}, 5, v{vL}")
    a(f"v_mul_lo_u32 v{vT+3}, v{vT+1}, s{sT}")
    a(f"v_add_u32 v{vP}, v{vP}, v{vT+3}")
    a("s_waitcnt lgkmcnt(0)")
    srd(a, sX, sWS, SZ_ACT, WS_ACT)
    srd(a, sH, sWS, SZ_H8, WS_H8)
    srd(a, sWsrd, sWp, SZ_W)
    srd(a, sO, sOut, 2048*1024*2)
    a(f"s_cmp_ge_u32 s{sWave}, 2")
    for i in range(3): a(f"s_cselect_b32 s{sP+i}, s{sWsrd+i}, s{sX+i}")
    a(f"s_mov_b32 s{sP+3}, 0x20000")
    def pf(): return [f"buffer_load_dword v{vT+8}, v{vP}, {sr(sP,4)}, s{sOP} offen", f"s_add_u32 s{sOP}, s{sOP}, s{sPS}"]
    for i in range(PF):
        for ins in pf(): a(ins)

    def dma(i):
        o = f" offset:{1024*i}" if i else ""
        return f"buffer_load_dwordx4 v{vDMA+i}, {sr(sWsrd,4)}, s{sOW} offen{o} lds"
    def xload(slot, s2, j, so):
        return f"buffer_load_dwordx4 {ar(XR+slot*16+s2*8+j*4,4)}, v{vX0+j}, {sr(sX,4)}, s{so} offen"
    sOX2 = 27
    def x_adv(ss):
        d = (4 if ss == 0 else 12) * 32768
        return [f"s_add_u32 s{sOX}, s{sOX}, {d}", f"s_add_u32 s{sOX2}, s{sOX2}, {d}"]
    a(f"s_mov_b32 s{sOW}, 0"); a(f"s_mov_b32 s{sOX}, 0"); a(f"s_mov_b32 s{sOX2}, 65536")
    n_issued = 0
    for g in range(-9, 0):
        if g % 2 == 1:
            T = (g - 1)//2 + 5
            a(f"s_add_u32 m0, s{sM0}, {T*SLOT}"); a("s_nop 0"); a(dma(0)); a(dma(1))
        else:
            a(dma(2)); a(dma(3)); a(f"s_add_u32 s{sOW}, s{sOW}, {128*2048}")
        n_issued += 2
        if g + 7 >= 0:
            x = g + 7
            for s2 in range(2):
                for j in range(2): a(xload(x, s2, j, sOX if s2 == 0 else sOX2))
            for ins in x_adv(x & 1): a(ins)
            n_issued += 4
    for i in range(4):
        a(f"s_mov_b32 s{sT}, {2*i*32768}")
        a(f"buffer_load_dwordx4 {vr(HR+4*i,4)}, v{vT+2}, {sr(sH,4)}, s{sT} offen")
    n_issued += 4
    for r in range(ACC, ACC+64): a(f"v_mov_b32 v{r}, 0")
    a(f"s_mov_b32 s{sBase}, 0"); a(f"s_mov_b32 s{sIt}, 0")
    st_.extra(0)
    a(f"s_waitcnt vmcnt({n_issued - 4})")
    a("s_barrier")
    def wread(st, s2, t, j, reg, imm0):
        return f"ds_read_b64_tr_b16 {ar(WF+st*16+s2*8+t*4+j*2,2)}, v{reg+t} offset:{imm0 + (16*s2 + 4*j)*128}"
    for s2 in range(2):
        for t in range(2):
            for j in range(2): a(wread(0, s2, t, j, vWc, 0))
    st_.main(1)
    loop = a.label("loop")
    a(f"{loop}:")
    for u in range(8):
        ss = u & 1; stg = u >> 1
        a(f"s_waitcnt vmcnt({39 if PF else 36}) lgkmcnt(0)")
        if ss == 1: a("s_barrier")
        gaps = {g: [] for g in range(8)}
        nu = (u + 1) % 8
        reg = vWn if u == 7 else vWc
        imm0 = (nu >> 1) * SLOT + (nu & 1) * 32 * 128
        k = 0
        for s2 in range(2):
            for t in range(2):
                for j in range(2):
                    gaps[k // 2].append(wread(1 - ss, s2, t, j, reg, imm0)); k += 1
        if ss == 1:
            if stg + 1 < 4: gaps[0].insert(0, f"s_add_u32 m0, s{sT+1}, {(stg+1)*SLOT}")
            else: gaps[0].insert(0, f"s_mov_b32 m0, s{sT}")
            gaps[1].append(dma(0)); gaps[2].append(dma(1))
        else:
            if PF: gaps[0] += pf()
            gaps[1].append(dma(2)); gaps[2].append(dma(3))
            gaps[3].append(f"s_add_u32 s{sOW}, s{sOW}, {128*2048}")
        xs = (u - 1) % 8
        k = 4
        for s2 in range(2):
            for j in range(2):
                gaps[k].append(xload(xs, s2, j, sOX if s2 == 0 else sOX2)); k += 1
        gaps[7] += x_adv(xs & 1)
        if u == 0:
            gaps[4].insert(0, f"s_add_u32 s{sT}, s{sM0}, s{sBase}")
            gaps[5].insert(0, f"s_xor_b32 s{sBase}, s{sBase}, {4*SLOT}")
            gaps[6].insert(0, f"s_add_u32 s{sT+1}, s{sM0}, s{sBase}")
        if u == 3 and WRAP:
            gaps[7] += [f"s_and_b32 s{sOX}, s{sOX}, {64*32768*2-1}", f"s_and_b32 s{sOX2}, s{sOX2}, {64*32768*2-1}", f"s_and_b32 s{sOW}, s{sOW}, {512*2048*2-1}"]
        if u == 7:
            gaps[5].append(f"v_swap_b32 v{vWc}, v{vWn}")
            gaps[6].append(f"v_swap_b32 v{vWc+1}, v{vWn+1}")
            gaps[7].append(f"s_add_u32 s{sIt}, s{sIt}, 1")
            gaps[7].append(f"s_cmp_lt_u32 s{sIt}, 7")
        k = 0
        for s2 in range(2):
            for (t, j) in ((0,0),(0,1),(1,1),(1,0)):
                if not NOMFMA: a(f"v_mfma_f32_32x32x16_bf16 {vr(acc(j,t),16)}, {ar(WF+ss*16+s2*8+t*4,4)}, {ar(XR+u*16+s2*8+j*4,4)}, {vr(acc(j,t),16)}")
                else: a("s_nop 0")
                for ins in gaps[k]: a(ins)
                k += 1
    a(f"s_cbranch_scc1 {loop}")
    st_.main(2, wait=False)
    a("s_nop 15")
    for i in range(8):
        a(f"ds_write_b128 v{vE}, {vr(acc(1,0)+4*i,4)} offset:{1024*i}")
    a("s_waitcnt lgkmcnt(0)")
    a("s_barrier")
    for i in range(8):
        a(f"ds_read_b128 {vr(acc(1,0)+4*i,4)}, v{vE2} offset:{1024*i}")
    for i in range(4):
        b = acc(0,0) + 8*i; p = acc(1,0) + 8*i; hreg = HR + 4*i
        a(f"s_waitcnt lgkmcnt({6-2*i})")
        for e in range(4):
            a(f"v_pk_add_f32 {vr(b+2*e,2)}, {vr(b+2*e,2)}, {vr(p+2*e,2)}")
        for e in range(4):
            a(f"v_cvt_pk_bf16_f32 v{p+e}, v{b+2*e}, v{b+2*e+1}")
        for e in range(4):
            a(f"v_lshlrev_b32 v{b+2*e}, 16, v{p+e}")
            a(f"v_and_b32 v{b+2*e+1}, 0xffff0000, v{p+e}")
        for e in range(4):
            a(f"v_lshlrev_b32 v{p+2*e}, 16, v{hreg+e}")
            a(f"v_and_b32 v{p+2*e+1}, 0xffff0000, v{hreg+e}")
        for e in range(4):
            a(f"v_pk_add_f32 {vr(b+2*e,2)}, {vr(b+2*e,2)}, {vr(p+2*e,2)}")
        for e in range(4):
            a(f"v_cvt_pk_bf16_f32 v{hreg+e}, v{b+2*e}, v{b+2*e+1}")
        o = f" offset:{32*i}" if i else ""
        a(f"buffer_store_dwordx4 {vr(hreg,4)}, v{vO}, {sr(sO,4)}, 0 offen{o}")
    st_.dump(sWave, 2, WS_DBG + 0x60000)
    a(f"{end}:")
    a("s_endpgm")
    launch = f"; @launch kernel={name} grid=(256,1,1) block=(256,1,1) lds={XCH + 32768}\n"
    return launch, kernel_header(name) + a.text(), kernel_desc(name, 112 + 160, 112)
```

```python
from common import *
from gemm1 import ln_stats_from_regs
from gemm2 import Stamps
LOG2E = 1.4426950408889634

def cmul(a, d, x, y, conj_out=False):
    if not conj_out:
        a(f"v_pk_mul_f32 {vr(d,2)}, {vr(x,2)}, {vr(y,2)} op_sel_hi:[0,1]")
        a(f"v_pk_fma_f32 {vr(d,2)}, {vr(x,2)}, {vr(y,2)}, {vr(d,2)} op_sel:[1,1,0] op_sel_hi:[1,0,1] neg_lo:[0,1,0]")
    else:
        a(f"v_pk_mul_f32 {vr(d,2)}, {vr(x,2)}, {vr(y,2)} op_sel_hi:[0,1] neg_hi:[0,1]")
        a(f"v_pk_fma_f32 {vr(d,2)}, {vr(x,2)}, {vr(y,2)}, {vr(d,2)} op_sel:[1,1,0] op_sel_hi:[1,0,1] neg_lo:[0,1,0] neg_hi:[0,1,0]")

def gen_k0(name="prep_kernel", dbg_time=False):
    a = Asm(name)
    st_ = Stamps(a, dbg_time, KA_WS)
    sWave = 33; sCG = 34; sT = 36
    vL = 1
    end = a.label("end"); side = a.label("side"); join = a.label("join")
    a(f"s_cmp_ge_u32 s2, 256"); a(f"s_cbranch_scc1 {end}")
    a(f"s_load_dwordx8 s[8:15], s[0:1], 0")
    a(f"s_load_dwordx4 s[16:19], s[0:1], 32")
    a(f"s_load_dwordx4 s[20:23], s[0:1], {KA_WG}")
    a(f"s_load_dwordx2 s[4:5], s[0:1], {KA_WS}")
    st_.start()
    a(f"v_lshrrev_b32 v2, 6, v0")
    a(f"v_and_b32 v{vL}, 63, v0")
    a(f"v_readfirstlane_b32 s{sWave}, v2")
    a(f"s_and_b32 s{sT}, s2, 7"); a(f"s_lshl_b32 s{sT}, s{sT}, 5")
    a(f"s_lshr_b32 s{sCG}, s2, 3"); a(f"s_add_u32 s{sCG}, s{sCG}, s{sT}")
    a(f"s_cmp_ge_u32 s{sWave}, 4")
    a("s_waitcnt lgkmcnt(0)")
    a(f"s_cbranch_scc1 {side}")
    sD = 35
    a(f"s_lshl_b32 s{sD}, s{sCG}, 2"); a(f"s_add_u32 s{sD}, s{sD}, s{sWave}")
    srd(a, 24, 10, 1024*256); srd(a, 28, 12, 1024*256); srd(a, 40, 14, 1024*256); srd(a, 44, 16, 1024*256)
    srd(a, 64, 18, 2048); srd(a, 88, 4, 1024*2048, WS_KT)
    a(f"s_lshl_b32 s{sT}, s{sD}, 8")
    a(f"v_lshlrev_b32 v2, 2, v{vL}")
    for i, s in enumerate((24, 28, 40, 44)):
        a(f"buffer_load_dword v{4+i}, v2, {sr(s,4)}, s{sT} offen")
    a(f"s_lshl_b32 s{sT+1}, s{sD}, 1")
    a(f"v_mov_b32 v3, 0")
    a(f"buffer_load_ushort v8, v3, s[64:67], s{sT+1} offen")
    nu = 10
    a(f"v_and_b32 v{nu}, 15, v{vL}")
    pB0 = 12; pG = 14; pB1 = 16
    a(f"v_cvt_f32_u32 v{pB0}, v{nu}")
    a(f"v_mul_f32 v{pG}, {f32(32.0)}, v{pB0}")
    a(f"v_lshlrev_b32 v18, 2, v{nu}"); a(f"v_add_u32 v18, 512, v18")
    a(f"v_bfe_u32 v19, v{nu}, 2, 1"); a(f"v_lshlrev_b32 v19, 9, v19")
    a(f"v_and_b32 v20, 3, v{nu}"); a(f"v_lshl_add_u32 v19, v20, 3, v19"); a(f"v_add_u32 v19, 1024, v19")
    a(f"v_cmp_gt_u32 vcc, 8, v{nu}"); a("s_nop 1")
    a(f"v_cndmask_b32 v18, v19, v18, vcc")
    a(f"v_cvt_f32_u32 v{pB1}, v18")
    GS = 272; AS = 4 * GS
    a(f"s_mul_i32 s{sT+2}, s{sWave}, {3*AS + 64}")
    vPW = 22; vPR = 23
    a(f"v_lshrrev_b32 v20, 4, v{vL}")
    a(f"v_mul_u32_u24 v{vPR}, {GS}, v20")
    a(f"v_add_u32 v{vPR}, s{sT+2}, v{vPR}")
    a(f"v_lshl_add_u32 v{vPW}, v{nu}, 4, v{vPR}")
    vO1 = 24; vO2 = 25
    a(f"v_lshlrev_b32 v{vO1}, 6, v{nu}"); a(f"v_lshl_add_u32 v{vO1}, v20, 3, v{vO1}")
    a(f"v_lshlrev_b32 v18, 4, v{nu}"); a(f"v_lshl_add_u32 v18, v20, 3, v18"); a(f"v_add_u32 v18, 1024, v18")
    a(f"v_lshlrev_b32 v19, 3, v{nu}"); a(f"v_lshl_add_u32 v19, v20, 7, v19"); a(f"v_add_u32 v19, {1280-256}, v19")
    a(f"v_cmp_gt_u32 vcc, 32, v{vL}"); a("s_nop 1")
    a(f"v_cndmask_b32 v{vO2}, v19, v18, vcc")
    ACC = 28
    for r in range(ACC, ACC+12): a(f"v_mov_b32 v{r}, 0")
    a("s_waitcnt vmcnt(0)")
    st_.extra(0)
    a("v_lshlrev_b32 v8, 16, v8"); a(f"v_mul_f32 v8, {f32(LOG2E)}, v8"); a("v_exp_f32 v8, v8"); a("s_nop 0")
    a("v_cvt_pk_bf16_f32 v8, v8, v8"); a("v_lshlrev_b32 v8, 16, v8")
    Z = 40; C = 44; E = 48; T = 52
    a(f"v_lshlrev_b32 v{T}, 16, v4"); a(f"v_and_b32 v{T+1}, 0xffff0000, v4")
    a(f"v_mul_f32 v{T}, {f32(LOG2E)}, v{T}"); a(f"v_mul_f32 v{T+1}, {f32(LOG2E)}, v{T+1}")
    a(f"v_exp_f32 v{T}, v{T}"); a(f"v_exp_f32 v{T+1}, v{T+1}"); a("s_nop 0")
    a(f"v_cvt_pk_bf16_f32 v4, v{T}, v{T+1}")
    a(f"v_lshlrev_b32 v{Z}, 16, v4"); a(f"v_and_b32 v{Z+2}, 0xffff0000, v4")
    a(f"v_lshlrev_b32 v{Z+1}, 16, v5"); a(f"v_and_b32 v{Z+3}, 0xffff0000, v5")
    a(f"v_lshlrev_b32 v{C}, 16, v6"); a(f"v_and_b32 v{C+2}, 0xffff0000, v6")
    a(f"v_lshlrev_b32 v{C+1}, 16, v7"); a(f"v_and_b32 v{C+3}, 0xffff0000, v7")
    for i in range(4): a(f"v_mul_f32 v{Z+i}, v{Z+i}, v8")
    a("v_add_f32 v9, v8, v8")
    for i in range(4): a(f"v_mul_f32 v{C+i}, v{C+i}, v9")
    for m in range(2):
        a(f"v_mul_f32 v{Z+2*m}, {f32(-LOG2E)}, v{Z+2*m}")
        a(f"v_mul_f32 v{Z+2*m+1}, 0.15915494, v{Z+2*m+1}")
        a(f"v_rndne_f32 v{T}, v{Z+2*m+1}")
        a(f"v_sub_f32 v{Z+2*m+1}, v{Z+2*m+1}, v{T}")
    a(f"ds_write_b128 v{vPW}, {vr(Z,4)}")
    a(f"ds_write_b128 v{vPW}, {vr(C,4)} offset:{AS}")
    def cexp_const(dst, m, p, t):
        a(f"v_mul_f32 v{t}, {f32(p)}, v{Z+2*m}"); a(f"v_mul_f32 v{t+1}, {f32(p)}, v{Z+2*m+1}")
        a(f"v_fract_f32 v{t+1}, v{t+1}")
        a(f"v_exp_f32 v{t}, v{t}"); a(f"v_cos_f32 v{dst}, v{t+1}"); a(f"v_sin_f32 v{dst+1}, v{t+1}"); a("s_nop 0")
        a(f"v_pk_mul_f32 {vr(dst,2)}, {vr(dst,2)}, {vr(t,2)} op_sel_hi:[1,0]")
    for m in range(2): cexp_const(E+2*m, m, 16.0, T)
    a(f"ds_write_b128 v{vPW}, {vr(E,4)} offset:{2*AS}")
    for m in range(2): cexp_const(T+2+2*m, m, 2048.0, T)
    a(f"v_mul_f32 v26, v{T+2}, v{C}"); a(f"v_fma_f32 v26, -v{T+3}, v{C+1}, v26")
    a(f"v_fma_f32 v26, v{T+4}, v{C+2}, v26"); a(f"v_fma_f32 v26, -v{T+5}, v{C+3}, v26")
    wave_sum(a, 26, 27, 1)
    a("v_cvt_pk_bf16_f32 v26, v26, v26")
    a("s_waitcnt lgkmcnt(0)")
    PZ = 60; PC = 68; PE = 76
    AG = 84; AB0 = 92; AB1 = 100
    EX = 108
    TM = 132
    OG = 140; OB0 = 144; OB0p = 148; OB1 = 152
    def rd():
        for i, b in enumerate((PZ, PC, PE)):
            a(f"ds_read_b128 {vr(b,4)}, v{vPR} offset:{i*AS}")
            a(f"ds_read_b128 {vr(b+4,4)}, v{vPR} offset:{i*AS+16}")
    a(f"s_mov_b32 s{sT+3}, 0")
    loop = a.label("kg")
    a(f"{loop}:")
    rd()
    a(f"v_add_u32 v{vPR}, 32, v{vPR}")
    a("s_waitcnt lgkmcnt(4)")
    mats = ((AG, pG), (AB0, pB0), (AB1, pB1))
    for k, (A_, p) in enumerate(mats):
        for m in range(4):
            a(f"v_pk_mul_f32 {vr(EX+8*k+2*m,2)}, {vr(PZ+2*m,2)}, {vr(p,2)} op_sel_hi:[1,0]")
    for m in range(4): a(f"v_fract_f32 v{EX+16+2*m+1}, v{EX+16+2*m+1}")
    for k, (A_, p) in enumerate(mats):
        for m in range(4):
            e = EX + 8*k + 2*m
            a(f"v_cos_f32 v{A_+2*m}, v{e+1}"); a(f"v_sin_f32 v{A_+2*m+1}, v{e+1}"); a(f"v_exp_f32 v{e}, v{e}")
    a("s_nop 0")
    for k, (A_, p) in enumerate(mats):
        for m in range(4):
            a(f"v_pk_mul_f32 {vr(A_+2*m,2)}, {vr(A_+2*m,2)}, {vr(EX+8*k+2*m,2)} op_sel_hi:[1,0]")
    a("s_waitcnt lgkmcnt(0)")
    for m in range(4): cmul(a, TM+2*m, AG+2*m, PC+2*m, conj_out=True)
    for m in range(4): a(f"v_cvt_pk_bf16_f32 v{OG+m}, v{TM+2*m}, v{TM+2*m+1}")
    for m in range(4): a(f"v_cvt_pk_bf16_f32 v{OB0+m}, v{AB0+2*m}, v{AB0+2*m+1}")
    for m in range(4): a(f"v_cvt_pk_bf16_f32 v{OB1+m}, v{AB1+2*m}, v{AB1+2*m+1}")
    for m in range(4): cmul(a, TM+2*m, AB0+2*m, PE+2*m)
    a(f"v_mfma_f32_16x16x32_bf16 {vr(ACC,4)}, {vr(OB0,4)}, {vr(OG,4)}, {vr(ACC,4)}")
    for m in range(4): a(f"v_cvt_pk_bf16_f32 v{OB0p+m}, v{TM+2*m}, v{TM+2*m+1}")
    a(f"v_mfma_f32_16x16x32_bf16 {vr(ACC+8,4)}, {vr(OB1,4)}, {vr(OG,4)}, {vr(ACC+8,4)}")
    a(f"s_add_u32 s{sT+3}, s{sT+3}, 1"); a(f"s_cmp_lt_u32 s{sT+3}, 8")
    a(f"v_mfma_f32_16x16x32_bf16 {vr(ACC+4,4)}, {vr(OB0p,4)}, {vr(OG,4)}, {vr(ACC+4,4)}")
    a(f"s_cbranch_scc1 {loop}")
    a("s_nop 7")
    for t in range(3):
        a(f"v_cvt_pk_bf16_f32 v{60+2*t}, v{ACC+4*t}, v{ACC+4*t+1}")
        a(f"v_cvt_pk_bf16_f32 v{61+2*t}, v{ACC+4*t+2}, v{ACC+4*t+3}")
    a(f"s_lshl_b32 s{sT}, s{sD}, 11")
    a(f"buffer_store_dwordx2 v[60:61], v{vO1}, s[88:91], s{sT} offen")
    a(f"buffer_store_dwordx2 v[62:63], v{vO1}, s[88:91], s{sT} offen offset:32")
    a(f"buffer_store_dwordx2 v[64:65], v{vO2}, s[88:91], s{sT} offen")
    a("s_mov_b64 exec, 1")
    a(f"buffer_store_dword v26, v3, s[88:91], s{sT} offen offset:1536")
    a("s_mov_b64 exec, -1")
    st_.main(1); st_.main(2)
    a("s_barrier")
    a(f"s_branch {join}")
    a(f"{side}:")
    srd(a, 24, 8, 2048*2048)
    srd(a, 28, 4, 8 << 20, WS_UX)
    srd(a, 40, 4, 2048*8, WS_ST2)
    srd(a, 64, 4, 2*3584*16, WS_CS)
    sW4 = 35
    a(f"s_sub_u32 s{sW4}, s{sWave}, 4")
    a(f"s_lshl_b32 s{sT}, s2, 3"); a(f"s_lshl_b32 s{sT+1}, s{sW4}, 1"); a(f"s_add_u32 s{sT}, s{sT}, s{sT+1}")
    a(f"v_and_b32 v2, 1, v{vL}"); a(f"v_add_u32 v2, s{sT}, v2")
    a(f"v_lshrrev_b32 v3, 1, v{vL}")
    a(f"v_lshlrev_b32 v4, 11, v2"); a(f"v_lshl_add_u32 v4, v3, 4, v4")
    XD = 16
    for i in range(4):
        o = f" offset:{512*i}" if i else ""
        a(f"buffer_load_dwordx4 {vr(XD+4*i,4)}, v4, s[24:27], 0 offen{o}")
    nocs = a.label("nocs"); nocs2 = a.label("nocs2")
    a(f"s_lshr_b32 s{sT}, s2, 3")
    a(f"s_cmp_ge_u32 s{sT}, 14")
    a(f"s_cselect_b32 s44, s22, s20"); a(f"s_cselect_b32 s45, s23, s21")
    a(f"s_cselect_b32 s{sT+1}, 14, 0"); a(f"s_cselect_b32 s{sT+3}, 3584, 0")
    a(f"s_mov_b32 s46, {SZ_W}"); a("s_mov_b32 s47, 0x20000")
    a(f"s_sub_u32 s{sT+1}, s{sT}, s{sT+1}")
    a(f"s_and_b32 s{sT+2}, s2, 7"); a(f"s_mul_i32 s{sT+2}, s{sT+2}, 448")
    a(f"s_lshr_b32 s92, s{sT+1}, 1"); a(f"s_lshl_b32 s92, s92, 6"); a(f"s_add_u32 s92, s92, s{sT+2}")
    a(f"s_and_b32 s93, s{sT+1}, 1")
    a(f"s_add_u32 s94, s92, s{sT+3}"); a(f"s_lshl_b32 s94, s94, 4"); a(f"s_lshl_b32 s95, s93, 3"); a(f"s_add_u32 s94, s94, s95")
    a(f"s_lshl_b32 s95, s93, 2"); a(f"s_add_u32 s95, s95, s{sW4}"); a(f"s_mul_i32 s95, s95, {128*7168}")
    a(f"s_lshl_b32 s92, s92, 1"); a(f"s_add_u32 s95, s95, s92")
    a(f"v_lshrrev_b32 v5, 3, v{vL}"); a(f"v_mul_u32_u24 v5, 7168, v5")
    a(f"v_and_b32 v6, 7, v{vL}"); a(f"v_lshl_add_u32 v5, v6, 4, v5")
    WD = 96
    a(f"s_cmp_ge_u32 s{sT}, 28")
    a(f"s_cselect_b32 s95, {SZ_W}, s95")
    for i in range(16):
        a(f"buffer_load_dwordx4 {vr(WD+4*i,4)}, v5, s[44:47], s95 offen")
        a(f"s_add_u32 s95, s95, {8*7168}")
    a(f"v_lshlrev_b32 v7, 3, v2"); a("v_mov_b32 v8, -1"); a("v_mov_b32 v9, -1")
    a("s_mov_b64 exec, 3")
    a(f"buffer_store_dwordx2 v[8:9], v7, s[40:43], 0 offen")
    a("s_mov_b64 exec, -1")
    a(f"v_lshlrev_b32 v7, 4, v2"); a(f"v_lshl_add_u32 v7, v3, 16, v7")
    a("s_waitcnt vmcnt(17)")
    st_.extra(0)
    XC = 32; UP = 48
    for i in range(0, 16): a(f"v_mov_b32 v{XC+i}, v{XD+i}")
    ln_stats_from_regs(a, XD, 16, 10, 12, UP, 2, 1.0/1024)
    a("v_rcp_f32 v11, v11")
    for i in range(16):
        a(f"v_lshlrev_b32 v{UP+2*i}, 16, v{XC+i}"); a(f"v_and_b32 v{UP+2*i+1}, 0xffff0000, v{XC+i}")
    for i in range(16):
        a(f"v_pk_add_f32 {vr(UP+2*i,2)}, {vr(UP+2*i,2)}, v[10:11] op_sel_hi:[1,0] neg_lo:[0,1] neg_hi:[0,1]")
    for i in range(16): a(f"v_cvt_pk_bf16_f32 v{XD+i}, v{UP+2*i}, v{UP+2*i+1}")
    for i in range(16):
        a(f"v_lshlrev_b32 v{UP+2*i}, 16, v{XD+i}"); a(f"v_and_b32 v{UP+2*i+1}, 0xffff0000, v{XD+i}")
    for i in range(16):
        a(f"v_pk_mul_f32 {vr(UP+2*i,2)}, {vr(UP+2*i,2)}, v[10:11] op_sel:[0,1] op_sel_hi:[1,1]")
    for k in range(8):
        b = UP + 4*k
        a(f"v_cvt_pk_bf16_f32 v{b}, v{b}, v{b+1}")
        a(f"v_cvt_pk_bf16_f32 v{b+1}, v{b+2}, v{b+3}")
        a(f"v_mov_b32 v{b+2}, v{XC+2*k}"); a(f"v_mov_b32 v{b+3}, v{XC+2*k+1}")
        a(f"s_mov_b32 s{sT+1}, {((k>>1)*64 + (k&1))*32768}")
        a(f"buffer_store_dwordx4 {vr(b,4)}, v7, s[28:31], s{sT+1} offen")
    st_.main(1)
    S = 16
    for i in range(16):
        a(f"s_waitcnt vmcnt({9 + 15 - i})")
        dst = S if i == 0 else 24
        for e in range(4):
            a(f"v_lshlrev_b32 v{dst+2*e}, 16, v{WD+4*i+e}"); a(f"v_and_b32 v{dst+2*e+1}, 0xffff0000, v{WD+4*i+e}")
        if i:
            for e in range(4): a(f"v_pk_add_f32 {vr(S+2*e,2)}, {vr(S+2*e,2)}, {vr(24+2*e,2)}")
    for e in range(8): wave_sum(a, S+e, 24, 8)
    CSL = 16384
    a(f"s_lshl_b32 s{sT+1}, s{sW4}, 8"); a(f"s_add_u32 s{sT+1}, s{sT+1}, {CSL}")
    a(f"v_lshlrev_b32 v6, 5, v6"); a(f"v_add_u32 v6, s{sT+1}, v6")
    a("s_mov_b64 exec, 0xff")
    a(f"ds_write_b128 v6, {vr(S,4)}"); a(f"ds_write_b128 v6, {vr(S+4,4)} offset:16")
    a("s_mov_b64 exec, -1")
    a("s_waitcnt lgkmcnt(0)")
    st_.main(2)
    a("s_barrier")
    a(f"s_cmp_lg_u32 s{sW4}, 0"); a(f"s_cbranch_scc1 {join}")
    a(f"s_cmp_ge_u32 s{sT}, 28"); a(f"s_cbranch_scc1 {join}")
    a(f"v_lshlrev_b32 v6, 2, v{vL}")
    for i in range(4): a(f"ds_read_b32 v{16+i}, v6 offset:{CSL + 256*i}")
    a("s_waitcnt lgkmcnt(0)")
    a("v_add_f32 v16, v16, v17"); a("v_add_f32 v18, v18, v19"); a("v_add_f32 v16, v16, v18")
    a("v_cvt_pk_bf16_f32 v17, v16, v16"); a("v_lshlrev_b32 v17, 16, v17")
    a("v_sub_f32 v16, v16, v17")
    a("v_cvt_pk_bf16_f32 v18, v16, v16"); a("v_lshlrev_b32 v18, 16, v18")
    a("v_sub_f32 v16, v16, v18")
    a("v_mov_b32 v19, 0")
    a("v_cvt_pk_bf16_f32 v21, v16, v19")
    a("v_lshrrev_b32 v17, 16, v17"); a("v_or_b32 v20, v17, v18")
    a(f"v_lshlrev_b32 v6, 4, v{vL}")
    a(f"buffer_store_dwordx2 v[20:21], v6, s[64:67], s94 offen")
    a(f"{join}:")
    st_.dump(sWave, 3, WS_DBG)
    a(f"{end}:")
    a("s_endpgm")
    launch = f"; @launch kernel={name} grid=(256,1,1) block=(512,1,1) lds={16384+1024}\n"
    return launch, kernel_header(name) + a.text(), kernel_desc(name, 160, 160)
```

```python
import sys
from build import *
sys.path.insert(0,'dev')
import mb
def mk(parts, path):
    assemble(parts, path)
    co, l = mb.build(path)
    print(path, mb.cl.address_register_problem(co, list_kernels=list(dict.fromkeys(x.kernel for x in l))))
```

```python
from mk import *
from k0 import *; from k1 import *; from gemm1 import *; from gemm2 import *
import sys
mk([gen_k0(dbg_time=True), gen_k1(dbg_time=True), gen_gemm1(dbg_time=True), gen_gemm2(dbg_time=True, PF=0)], 'all_dbg.s')
mk([gen_k0(), gen_k1(), gen_gemm1(), gen_gemm2(PF=0)], 'sequential_preLN__ssm_conv_s4d__geglu_ffn__prompt.s')
```

```python
from common import *
LOG2E = 1.4426950408889634
NAME = "sequential_preLN__ssm_conv_s4d__geglu_ffn__prompt_kernel"

M_H4  = 0x0000000
M_ACT = 0x0400000
M_ST2 = 0x1200000
M_FLG = 0x1210000
M_CS  = 0x1220000
M_DBG = 0x1280000
M_U2  = 0x1300000
M_END = 0x1b00000

pU, pLOGA, pAIM, pCRE, pCIM, pLOGDT, pDSKIP, pBX, pWG, pWU, pWD, pOUT, pDBG, pWS = [64 + 2*i for i in range(14)]
sNON = 92; sWave = 94; sCG = 95; sTO = 96
sFLG = 60
sT = 48
vL = 30; vSTAMP = 31
SC = "sc0 sc1"

SLOT1 = 28800; UPOFF = 14464
UCS = 4512; UCH = 4*UCS; UPAD = 400
KCS = 4224; KCH = 8448; KPAD = 112
UBASE = 2*SLOT1
KBASE = UBASE + 4*UCH
SBASE = KBASE + 4*KCH
PBASE = 4*SLOT1
POFF = 512; TOFF = UCS + 512
assert SBASE + 256 <= 163840

class G:
    def __init__(self, dbg):
        self.a = Asm("mk"); self.dbg = dbg; self.nst = 0
    def stamp(self):
        if not self.dbg: return
        a = self.a
        a("s_memrealtime s[98:99]"); a("s_memtime s[100:101]"); a("s_waitcnt lgkmcnt(0)")
        a(f"v_writelane_b32 v{vSTAMP}, s98, {self.nst}"); a(f"v_writelane_b32 v{vSTAMP}, s100, {32+self.nst}")
        self.nst += 1

def cmul(a, d, x, y, conj_out=False):
    n1 = " neg_hi:[0,1]" if conj_out else ""
    n2 = " neg_hi:[0,1,0]" if conj_out else ""
    a(f"v_pk_mul_f32 {vr(d,2)}, {vr(x,2)}, {vr(y,2)} op_sel_hi:[0,1]{n1}")
    a(f"v_pk_fma_f32 {vr(d,2)}, {vr(x,2)}, {vr(y,2)}, {vr(d,2)} op_sel:[1,1,0] op_sel_hi:[1,0,1] neg_lo:[0,1,0]{n2}")

def wave_sum2(a, v, t):
    for d in (4, 8):
        a("s_nop 0")
        for e in range(2): a(f"v_add_f32_dpp v{v+e}, v{v+e}, v{v+e} row_ror:{d} row_mask:0xf bank_mask:0xf")
    for op in ("v_permlane16_swap_b32", "v_permlane32_swap_b32"):
        for e in range(2): a(f"v_mov_b32 v{t+e}, v{v+e}")
        a("s_nop 0")
        for e in range(2): a(f"{op} v{t+e}, v{v+e}")
        a("s_nop 0")
        a(f"v_pk_add_f32 {vr(v,2)}, {vr(v,2)}, {vr(t,2)}")

def ln_stats8(a, pairs, T, W):
    for k, (r0, r1) in enumerate(pairs):
        a(f"v_lshlrev_b32 v{T+4*k}, 16, v{r0}"); a(f"v_lshlrev_b32 v{T+4*k+1}, 16, v{r1}")
        a(f"v_and_b32 v{T+4*k+2}, 0xffff0000, v{r0}"); a(f"v_and_b32 v{T+4*k+3}, 0xffff0000, v{r1}")
    a(f"v_pk_add_f32 {vr(W,2)}, {vr(T,2)}, {vr(T+2,2)}")
    a(f"v_pk_add_f32 {vr(W+2,2)}, {vr(T+4,2)}, {vr(T+6,2)}")
    for k in range(4, 16): a(f"v_pk_add_f32 {vr(W+2*(k&1),2)}, {vr(W+2*(k&1),2)}, {vr(T+2*k,2)}")
    a(f"v_pk_add_f32 {vr(W,2)}, {vr(W,2)}, {vr(W+2,2)}")
    a("s_nop 0")
    wave_sum2(a, W, W+4)
    for e in range(2): a(f"v_mul_f32 v{W+e}, {f32(1/256)}, v{W+e}")
    for k in range(16):
        t = W + 4 + 2*(k & 3)
        a(f"v_pk_add_f32 {vr(t,2)}, {vr(T+2*k,2)}, {vr(W,2)} neg_lo:[0,1] neg_hi:[0,1]")
        if k == 0: a(f"v_pk_mul_f32 {vr(W+2,2)}, {vr(t,2)}, {vr(t,2)}")
        else: a(f"v_pk_fma_f32 {vr(W+2,2)}, {vr(t,2)}, {vr(t,2)}, {vr(W+2,2)}")
    a("s_nop 0")
    wave_sum2(a, W+2, W+4)
    a(f"v_and_b32 v{W+4}, 3, v{vL}"); a(f"v_lshlrev_b32 v{W+4}, 4, v{W+4}"); a(f"v_add_u32 v{W+4}, {SBASE}, v{W+4}")
    a(f"s_lshl_b32 s{sT}, s{sWave}, 6"); a(f"v_add_u32 v{W+5}, s{sT}, v{W+4}")
    a(f"ds_write_b128 v{W+5}, {vr(W,4)}")
    a("s_waitcnt lgkmcnt(0)"); a("s_barrier")
    E = W + 8
    for w in range(4): a(f"ds_read_b128 {vr(E+4*w,4)}, v{W+4} offset:{64*w}")
    a("s_waitcnt lgkmcnt(0)")
    a(f"v_pk_add_f32 {vr(W,2)}, {vr(E,2)}, {vr(E+4,2)}"); a(f"v_pk_add_f32 {vr(W+4,2)}, {vr(E+8,2)}, {vr(E+12,2)}")
    a(f"v_pk_add_f32 {vr(W+2,2)}, {vr(E+2,2)}, {vr(E+6,2)}"); a(f"v_pk_add_f32 {vr(W+6,2)}, {vr(E+10,2)}, {vr(E+14,2)}")
    a(f"v_pk_add_f32 {vr(W,2)}, {vr(W,2)}, {vr(W+4,2)}"); a(f"v_pk_add_f32 {vr(W+2,2)}, {vr(W+2,2)}, {vr(W+6,2)}")
    for e in range(2): a(f"v_mul_f32 v{W+e}, {f32(0.25)}, v{W+e}")
    for e in range(2): a(f"v_mul_f32 v{W+2+e}, {f32(1/256)}, v{W+2+e}")
    for w in range(4):
        a(f"v_pk_add_f32 {vr(E+4*w,2)}, {vr(E+4*w,2)}, {vr(W,2)} neg_lo:[0,1] neg_hi:[0,1]")
    for w in range(4):
        a(f"v_pk_fma_f32 {vr(W+2,2)}, {vr(E+4*w,2)}, {vr(E+4*w,2)}, {vr(W+2,2)}")
    for e in range(2): a(f"v_mul_f32 v{W+2+e}, {f32(0.25)}, v{W+2+e}")
    def rnd(b):
        a(f"v_cvt_pk_bf16_f32 v{W+4}, v{b}, v{b+1}")
        a(f"v_lshlrev_b32 v{b}, 16, v{W+4}"); a(f"v_and_b32 v{b+1}, 0xffff0000, v{W+4}")
    rnd(W); rnd(W+2)
    for e in range(2): a(f"v_add_f32 v{W+2+e}, {f32(1e-5)}, v{W+2+e}")
    rnd(W+2)
    for e in range(2): a(f"v_sqrt_f32 v{W+2+e}, v{W+2+e}")
    a("s_nop 0")
    rnd(W+2)
    for e in range(2): a(f"v_rcp_f32 v{W+2+e}, v{W+2+e}")
    a("s_nop 0")

TIMEOUT = 400000
def set_flag(g, which, tmp):
    a = g.a
    sk = a.label("fl")
    a(f"s_cmp_lg_u32 s{sWave}, 0"); a(f"s_cbranch_scc1 {sk}")
    a(f"s_lshl_b32 s{sT}, s2, 6"); a(f"s_add_u32 s{sT}, s{sT}, {which*16384}")
    a(f"v_mov_b32 v{tmp}, s{sNON}"); a(f"v_mov_b32 v{tmp+1}, s{sNON+1}"); a(f"v_mov_b32 v{tmp+2}, 0")
    a("s_mov_b64 exec, 1")
    a(f"buffer_store_dwordx2 {vr(tmp,2)}, v{tmp+2}, {sr(sFLG,4)}, s{sT} offen {SC}")
    a("s_mov_b64 exec, -1")
    a(f"{sk}:")

def poll_flags(g, voff, soff, tmp, preloaded=False):
    a = g.a
    lp = a.label("poll"); dn = a.label("pdone"); pre = a.label("ppre")
    a(f"s_mov_b32 s{sTO}, 0")
    if preloaded: a(f"s_branch {pre}")
    a(f"{lp}:")
    a(f"buffer_load_dwordx2 {vr(tmp,2)}, v{voff}, {sr(sFLG,4)}, s{soff} offen {SC}")
    if preloaded: a(f"{pre}:")
    a("s_waitcnt vmcnt(0)")
    a(f"v_cmp_ne_u64 vcc, {sr(sNON,2)}, {vr(tmp,2)}")
    a(f"s_cbranch_vccz {dn}")
    a("s_sleep 1")
    a(f"s_add_u32 s{sTO}, s{sTO}, 1"); a(f"s_cmp_lt_u32 s{sTO}, {TIMEOUT}"); a(f"s_cbranch_scc1 {lp}")
    a(f"{dn}:")

class VM:
    def __init__(self): self.ops = []
    def add(self, tag): self.ops.append(tag)
    def wait_for(self, tag):
        idx = max(i for i, t in enumerate(self.ops) if t == tag)
        n = len(self.ops) - 1 - idx
        assert n <= 63, n
        return n


pDMA = 224
pX = 231; pST = 232; pWc = 233; pO = 234; pSR = 235; pTch = 236
sG_W = 4
sG_OW = 22; sG_M0 = 24; sG_F = 27; sG_R = 31; sG_SR = 35; sG_TN = 34; sG_TM = 33

def g1_dma(reg, i):
    return f"buffer_load_dwordx4 v{reg+i}, {sr(sG_W,4)}, s{sG_OW} offen offset:{(i & 3)*1024} lds"
def g1_wadv():
    return [f"s_add_u32 s{sG_OW}, s{sG_OW}, {64*7168}", f"s_cmp_eq_u32 s{sG_OW}, {SZ_W}", f"s_cselect_b32 s{sG_OW}, 0, s{sG_OW}"]

def gemm1_addr(g):
    a = g.a
    t0 = 240; sM = 26
    a(f"s_and_b32 s{sT}, s2, 7")
    a(f"s_bfe_u32 s{sG_TM}, s2, 0x30003")
    a(f"s_lshl_b32 s{sG_TN}, s{sT}, 2"); a(f"s_lshr_b32 s{sT+2}, s2, 6"); a(f"s_add_u32 s{sG_TN}, s{sG_TN}, s{sT+2}")
    a(f"s_lshl_b32 s{sM}, s{sG_TM}, 8")
    a(f"s_lshl_b32 s{sG_R}, s{sG_TN}, 3"); a(f"s_add_u32 s{sG_R}, s{sG_R}, s{sM}")
    a(f"s_mul_i32 s{sG_F}, s{sG_TN}, 112")
    a(f"s_cmp_ge_u32 s{sWave}, 2")
    a(f"s_cselect_b32 s{sG_W}, s{pWU}, s{pWG}"); a(f"s_cselect_b32 s{sG_W+1}, s{pWU+1}, s{pWG+1}")
    a(f"s_mov_b32 s{sG_W+2}, {SZ_W}"); a(f"s_mov_b32 s{sG_W+3}, 0x20000")
    a(f"s_and_b32 s{sT}, s{sWave}, 1"); a(f"s_mul_i32 s{sT+1}, s{sT}, 448"); a(f"s_lshl_b32 s{sT+2}, s{sG_F}, 1")
    for i in range(7):
        imm = (i & 3) * 1024
        a(f"v_add_u32 v{t0}, s{sT+1}, v{vL}")
        if i: a(f"v_add_u32 v{t0}, {64*i}, v{t0}")
        a(f"v_mul_u32_u24 v{t0+1}, 4682, v{t0}"); a(f"v_lshrrev_b32 v{t0+1}, 16, v{t0+1}")
        a(f"v_mul_u32_u24 v{t0+1}, {7168-224}, v{t0+1}")
        a(f"v_lshl_add_u32 v{t0+1}, v{t0}, 4, v{t0+1}")
        a(f"v_add_u32 v{pDMA+i}, s{sT+2}, v{t0+1}")
        if imm: a(f"v_subrev_u32 v{pDMA+i}, {imm}, v{pDMA+i}")
    a(f"v_and_b32 v{t0+3}, 3, v{vL}")
    a(f"s_mul_i32 s{sG_M0}, s{sT}, 7168"); a(f"s_lshr_b32 s{sT}, s{sWave}, 1"); a(f"s_mul_i32 s{sT}, s{sT}, {UPOFF}")
    a(f"s_add_u32 s{sG_M0}, s{sG_M0}, s{sT}")
    a(f"s_mul_i32 s{sG_OW}, s{sG_TM}, {128*7168}")
    a(f"s_lshl_b32 s{sT}, s{sWave}, 6"); a(f"s_add_u32 s{sM}, s{sM}, s{sT}")
    a(f"v_and_b32 v{t0}, 31, v{vL}"); a(f"v_add_u32 v{t0}, s{sM}, v{t0}")
    a(f"v_lshlrev_b32 v{pST}, 4, v{t0}")
    a(f"v_lshrrev_b32 v{t0+1}, 5, v{vL}")
    a(f"v_lshlrev_b32 v{pX}, 3, v{t0}"); a(f"v_lshl_add_u32 v{pX}, v{t0+1}, 15, v{pX}")
    a(f"v_lshl_add_u32 v{pO}, v{t0+1}, 15, v{pST}"); a(f"s_lshl_b32 s{sT}, s{sG_F}, 12"); a(f"v_add_u32 v{pO}, s{sT}, v{pO}")
    a(f"v_bfe_u32 v{t0+2}, v{vL}, 2, 2"); a(f"v_lshl_add_u32 v{t0+2}, v{t0+1}, 3, v{t0+2}")
    a(f"v_mul_u32_u24 v{pWc}, 224, v{t0+2}")
    a(f"v_bfe_u32 v{t0+2}, v{vL}, 1, 1"); a(f"v_mul_u32_u24 v{t0+2}, {UPOFF}, v{t0+2}"); a(f"v_add_u32 v{pWc}, v{pWc}, v{t0+2}")
    a(f"v_and_b32 v{t0+2}, 1, v{vL}"); a(f"v_lshl_add_u32 v{pWc}, v{t0+2}, 4, v{pWc}")
    a(f"v_bfe_u32 v{t0+2}, v{vL}, 4, 1"); a(f"v_lshl_add_u32 v{pWc}, v{t0+2}, 3, v{pWc}")
    a(f"v_lshrrev_b32 v{pSR}, 2, v{vL}"); a(f"v_lshlrev_b32 v{pSR}, 14, v{pSR}"); a(f"v_lshl_add_u32 v{pSR}, v{t0+3}, 4, v{pSR}")
    a(f"s_lshl_b32 s{sG_SR}, s{sWave}, 20"); a(f"s_lshl_b32 s{sT}, s{sG_R}, 3"); a(f"s_add_u32 s{sG_SR}, s{sG_SR}, s{sT}")

def phase01(g, KPRE=2, KMID=2, DPRE=2, XNT=""):
    a = g.a
    vm = VM()
    a("s_load_dwordx16 s[64:79], s[0:1], 0")
    a("s_load_dwordx8 s[80:87], s[0:1], 64")
    a("s_load_dwordx4 s[88:91], s[0:1], 96")
    a(f"s_memrealtime {sr(sT+2,2)}")
    a(f"v_lshrrev_b32 v2, 6, v0")
    a(f"v_and_b32 v{vL}, 63, v0")
    a(f"v_readfirstlane_b32 s{sWave}, v2")
    a(f"s_and_b32 s{sT}, s2, 7"); a(f"s_lshl_b32 s{sT}, s{sT}, 5")
    a(f"s_lshr_b32 s{sCG}, s2, 3"); a(f"s_add_u32 s{sCG}, s{sCG}, s{sT}")
    if g.dbg: a(f"v_mov_b32 v{vSTAMP}, 0")
    a(f"v_and_b32 v3, 3, v{vL}"); a(f"v_lshrrev_b32 v4, 2, v{vL}")
    a(f"v_lshlrev_b32 v5, 12, v3"); a(f"v_lshl_add_u32 v5, v4, 4, v5")
    a(f"s_lshl_b32 s{sT}, s2, 14"); a(f"s_lshl_b32 s{sT+1}, s{sWave}, 9"); a(f"s_add_u32 s{sT}, s{sT}, s{sT+1}")
    a(f"v_mov_b32 v1, 0")
    sD = 97
    a(f"s_lshl_b32 s{sD}, s{sCG}, 2"); a(f"s_add_u32 s{sD}, s{sD}, s{sWave}")
    a(f"s_lshl_b32 s{sT+4}, s{sD}, 8"); a(f"v_lshlrev_b32 v2, 2, v{vL}")
    a(f"s_lshl_b32 s{sT+5}, s{sD}, 1")
    a("s_waitcnt lgkmcnt(0)")
    g.stamp()
    sX = 36; sDB = 8; sU2 = 40; sH = 44; sP = 12
    PR = 24
    for i, p in enumerate((pLOGA, pAIM, pCRE, pCIM)):
        srd(a, sP+4*i, p, 1024*256)
        a(f"buffer_load_dword v{PR+i}, v2, {sr(sP+4*i,4)}, s{sT+4} offen"); vm.add("P")
    srd(a, 28, pLOGDT, 2048)
    a(f"buffer_load_ushort v{PR+4}, v1, s[28:31], s{sT+5} offen"); vm.add("P")
    srd(a, sX, pU, 2048*2048)
    XD = 32
    for e in range(2):
        for i in range(2):
            a(f"buffer_load_dwordx4 {vr(XD+8*e+4*i,4)}, v5, {sr(sX,4)}, s{sT} offen offset:{2048*e+256*i} {XNT}"); vm.add("X")
    srd(a, sDB, pDBG, 256)
    nn = a.label("nn")
    a(f"s_or_b32 s{sT+1}, s2, s{sWave}"); a(f"s_cmp_lg_u32 s{sT+1}, 0"); a(f"s_cbranch_scc1 {nn}")
    a(f"s_or_b32 s{sT+2}, s{sT+2}, 1")
    a(f"v_mov_b32 v6, s{sT+2}"); a(f"v_mov_b32 v7, s{sT+3}")
    a("s_mov_b64 exec, 1")
    a(f"buffer_store_dwordx2 v[6:7], v1, {sr(sDB,4)}, 0 offen {SC}")
    a("s_mov_b64 exec, -1")
    a(f"{nn}:")
    srd(a, sFLG, pWS, 4*16384, M_FLG)
    srd(a, sU2, pWS, 8 << 20, M_U2); srd(a, sH, pWS, 4 << 20, M_H4)
    a(f"s_lshl_b32 s{sT+1}, s{sCG}, 3")
    a(f"s_load_dwordx2 s[58:59], {sr(pDSKIP,2)}, s{sT+1}")
    a(f"v_lshlrev_b32 v6, 15, v4"); a(f"v_lshl_add_u32 v6, v3, 4, v6")
    nu = 9
    a(f"v_and_b32 v{nu}, 15, v{vL}")
    pB0 = 10; pG = 12; pB1 = 14
    a(f"v_cvt_f32_u32 v{pB0}, v{nu}")
    a(f"v_mul_f32 v{pG}, {f32(32.0)}, v{pB0}")
    a(f"v_lshlrev_b32 v16, 2, v{nu}"); a(f"v_add_u32 v16, 512, v16")
    a(f"v_bfe_u32 v17, v{nu}, 2, 1"); a(f"v_lshlrev_b32 v17, 9, v17")
    a(f"v_lshl_add_u32 v17, v3, 3, v17"); a(f"v_add_u32 v17, 1024, v17")
    a(f"v_cmp_gt_u32 vcc, 8, v{nu}"); a("s_nop 1")
    a(f"v_cndmask_b32 v16, v17, v16, vcc")
    a(f"v_cvt_f32_u32 v{pB1}, v16")
    GS = 272; AS = 4*GS
    vPW = 11; vPR = 13; vO1 = 15; vO2 = 18; vG = 19
    a(f"s_mul_i32 s{sT+2}, s{sWave}, {UCH}"); a(f"s_add_u32 s{sT+2}, s{sT+2}, {UBASE+POFF}")
    a(f"v_lshrrev_b32 v{vG}, 4, v{vL}")
    a(f"v_mul_u32_u24 v{vPR}, {GS}, v{vG}"); a(f"v_add_u32 v{vPR}, s{sT+2}, v{vPR}")
    a(f"v_lshl_add_u32 v{vPW}, v{nu}, 4, v{vPR}")
    sTB = sT+7
    a(f"s_mul_i32 s{sTB}, s{sWave}, {UCH}"); a(f"s_add_u32 s{sTB}, s{sTB}, {UBASE+TOFF}")
    a(f"v_lshlrev_b32 v{vO1}, 6, v{nu}"); a(f"v_lshl_add_u32 v{vO1}, v{vG}, 3, v{vO1}"); a(f"v_add_u32 v{vO1}, s{sTB}, v{vO1}")
    a(f"v_lshlrev_b32 v16, 4, v{nu}"); a(f"v_lshl_add_u32 v16, v{vG}, 3, v16"); a(f"v_add_u32 v16, 1024, v16")
    a(f"v_lshlrev_b32 v17, 3, v{nu}"); a(f"v_lshl_add_u32 v17, v{vG}, 7, v17"); a(f"v_add_u32 v17, {1280-256}, v17")
    a(f"v_cmp_gt_u32 vcc, 32, v{vL}"); a("s_nop 1")
    a(f"v_cndmask_b32 v{vO2}, v17, v16, vcc"); a(f"v_add_u32 v{vO2}, s{sTB}, v{vO2}")
    SA = 184
    def sel(dst, lo32, hi32):
        a(f"v_mov_b32 v{dst}, {hi32:#x}"); a(f"v_mov_b32 v16, {lo32:#x}"); a(f"v_cndmask_b32 v{dst}, v{dst}, v16, vcc")
    sel(SA, 0x01000302, 0x01000100); sel(SA+1, 0x01000302, 0x01000504); sel(SA+2, 0x03020504, 0x01000504); sel(SA+3, 0x03020504, 0x05040504)
    a(f"v_mov_b32 v{SA+4}, v{SA+3}")
    a(f"s_mov_b32 s{sT+3}, 0x03020504"); a(f"v_writelane_b32 v{SA+4}, s{sT+3}, 32")
    a(f"s_mov_b32 s{sT+2}, 0x0c0c0504"); a(f"v_writelane_b32 v{SA+4}, s{sT+2}, 0")
    sUB = sT+8; sKB = sT+9
    a(f"s_mul_i32 s{sUB}, s{sWave}, {UCH}"); a(f"s_add_u32 s{sUB}, s{sUB}, {UBASE}")
    a(f"s_mul_i32 s{sKB}, s{sWave}, {KCH}"); a(f"s_add_u32 s{sKB}, s{sKB}, {KBASE}")
    vK = 20; vK2 = 21
    a(f"v_lshlrev_b32 v16, 4, v{vL}"); a(f"v_add_u32 v{vK}, s{sKB}, v16"); a(f"v_add_u32 v{vK2}, v{vK}, v16")
    a(f"v_add_u32 v16, s{sUB}, v16")
    ACC = 48
    for r in range(ACC, ACC+12): a(f"v_mov_b32 v{r}, 0")
    a("s_mov_b64 exec, 0x1ffffff")
    for c in range(4): a(f"ds_write_b128 v16, v[48:51] offset:{c*UCS}")
    a("s_mov_b64 exec, 0x7f")
    a(f"ds_write_b128 v{vK}, v[48:51]"); a(f"ds_write_b128 v{vK}, v[48:51] offset:{KCS}")
    a("s_mov_b64 exec, -1")
    vA = 4; vB = 5; vY = 7
    a(f"v_and_b32 v16, 1, v{vL}"); a(f"v_mul_u32_u24 v{vA}, {KCS}, v16")
    a(f"v_bfe_u32 v16, v{vL}, 1, 3"); a(f"v_sub_u32 v16, v16, v{vG}"); a(f"v_add_u32 v16, 3, v16")
    a(f"v_lshl_add_u32 v{vA}, v16, 4, v{vA}"); a(f"v_add_u32 v{vA}, s{sKB}, v{vA}")
    a(f"v_mul_u32_u24 v{vB}, {UCS}, v3")
    a(f"v_bfe_u32 v16, v{vL}, 2, 2"); a(f"v_lshl_add_u32 v17, v16, 3, v{vG}")
    a(f"v_lshl_add_u32 v{vB}, v17, 4, v{vB}"); a(f"v_add_u32 v{vB}, s{sUB}, v{vB}")
    a(f"v_lshlrev_b32 v{vY}, 5, v16"); a(f"v_lshl_add_u32 v{vY}, v{vG}, 3, v{vY}"); a(f"v_add_u32 v{vY}, v{vY}, v3")
    a(f"v_lshlrev_b32 v{vY}, 2, v{vY}"); a(f"v_add_u32 v{vY}, s{sKB}, v{vY}")
    vUC = 190
    a(f"v_lshlrev_b32 v16, 2, v0")
    for c in range(4):
        for ch in range(2): a(f"v_add_u32 v{vUC+2*c+ch}, {UBASE + ch*UCH + c*UCS + UPAD - 4*(c+1)}, v16")
    vF = 29; vR = 8
    a(f"v_lshlrev_b32 v{vF}, 6, v0"); a(f"v_lshlrev_b32 v{vR}, 4, v0")
    gemm1_addr(g)
    bgl = []
    for stg in range(2):
        for i in range(7):
            grp = []
            if i in (0, 4): grp += [(f"s_add_u32 m0, s{sG_M0}, {stg*SLOT1 + (4096 if i else 0)}", None), ("s_nop 0", None)]
            grp.append((g1_dma(pDMA, i), "D"))
            if i == 6: grp += [(x, None) for x in g1_wadv()]
            bgl.append(grp)
    def take(n):
        out = bgl[:n]; del bgl[:n]; return out
    a(f"s_waitcnt vmcnt({vm.wait_for('P')})")
    g.stamp()
    gemm1_after_params = True
    dt = PR+4
    a(f"v_lshlrev_b32 v{dt}, 16, v{dt}"); a(f"v_mul_f32 v{dt}, {f32(LOG2E)}, v{dt}"); a(f"v_exp_f32 v{dt}, v{dt}"); a("s_nop 0")
    a(f"v_cvt_pk_bf16_f32 v{dt}, v{dt}, v{dt}"); a(f"v_lshlrev_b32 v{dt}, 16, v{dt}")
    Z = 64; C = 68; E = 72; TT = 76
    a(f"v_lshlrev_b32 v{TT}, 16, v{PR}"); a(f"v_and_b32 v{TT+1}, 0xffff0000, v{PR}")
    a(f"v_mul_f32 v{TT}, {f32(LOG2E)}, v{TT}"); a(f"v_mul_f32 v{TT+1}, {f32(LOG2E)}, v{TT+1}")
    a(f"v_exp_f32 v{TT}, v{TT}"); a(f"v_exp_f32 v{TT+1}, v{TT+1}"); a("s_nop 0")
    a(f"v_cvt_pk_bf16_f32 v{PR}, v{TT}, v{TT+1}")
    for k, b in enumerate((Z, Z+1, C, C+1)):
        a(f"v_lshlrev_b32 v{b}, 16, v{PR+k}"); a(f"v_and_b32 v{b+2}, 0xffff0000, v{PR+k}")
    for i in range(4): a(f"v_mul_f32 v{Z+i}, v{Z+i}, v{dt}")
    a(f"v_add_f32 v{dt}, v{dt}, v{dt}")
    for i in range(4): a(f"v_mul_f32 v{C+i}, v{C+i}, v{dt}")
    for m in range(2):
        a(f"v_mul_f32 v{Z+2*m}, {f32(-LOG2E)}, v{Z+2*m}")
        a(f"v_mul_f32 v{Z+2*m+1}, 0.15915494, v{Z+2*m+1}")
        a(f"v_rndne_f32 v{TT}, v{Z+2*m+1}")
        a(f"v_sub_f32 v{Z+2*m+1}, v{Z+2*m+1}, v{TT}")
    a(f"ds_write_b128 v{vPW}, {vr(Z,4)}")
    a(f"ds_write_b128 v{vPW}, {vr(C,4)} offset:{AS}")
    def cexp_const(dst, m, p, t):
        a(f"v_mul_f32 v{t}, {f32(p)}, v{Z+2*m}"); a(f"v_mul_f32 v{t+1}, {f32(p)}, v{Z+2*m+1}")
        a(f"v_fract_f32 v{t+1}, v{t+1}")
        a(f"v_exp_f32 v{t}, v{t}"); a(f"v_cos_f32 v{dst}, v{t+1}"); a(f"v_sin_f32 v{dst+1}, v{t+1}"); a("s_nop 0")
        a(f"v_pk_mul_f32 {vr(dst,2)}, {vr(dst,2)}, {vr(t,2)} op_sel_hi:[1,0]")
    for m in range(2): cexp_const(E+2*m, m, 16.0, TT)
    a(f"ds_write_b128 v{vPW}, {vr(E,4)} offset:{2*AS}")
    PZ = 200; PC = 208; PE = 216
    def rdz(step):
        a(f"ds_read_b128 {vr(PZ,4)}, v{vPR} offset:{32*step}"); a(f"ds_read_b128 {vr(PZ+4,4)}, v{vPR} offset:{32*step+16}")
    rdz(0)
    for m in range(2): cexp_const(TT+2+2*m, m, 2048.0, TT)
    a(f"v_mul_f32 v60, v{TT+2}, v{C}"); a(f"v_fma_f32 v60, -v{TT+3}, v{C+1}, v60")
    a(f"v_fma_f32 v60, v{TT+4}, v{C+2}, v60"); a(f"v_fma_f32 v60, -v{TT+5}, v{C+3}, v60")
    wave_sum(a, 60, 61, 1)
    a("v_cvt_pk_bf16_f32 v60, v60, v60")
    a(f"v_mov_b32 v61, s{sTB}")
    a(f"ds_write_b32 v61, v60 offset:1536")
    AG = 64; AB0 = 72; AB1 = 80; EX = 88; TM = 112; TM2 = 120; OG = 128; OB0 = 132; OB0p = 136; OB1 = 140
    def kstep(step, bg):
        bg = list(bg)
        def B():
            if bg:
                for ins, tag in bg.pop(0):
                    a(ins)
                    if tag: vm.add(tag)
        mats = ((AG, pG), (AB0, pB0), (AB1, pB1))
        a("s_waitcnt lgkmcnt(0)")
        for i, b in enumerate((PC, PE)):
            a(f"ds_read_b128 {vr(b,4)}, v{vPR} offset:{(i+1)*AS+32*step}"); a(f"ds_read_b128 {vr(b+4,4)}, v{vPR} offset:{(i+1)*AS+32*step+16}")
        for k, (A_, p) in enumerate(mats):
            for m in range(4):
                a(f"v_pk_mul_f32 {vr(EX+8*k+2*m,2)}, {vr(PZ+2*m,2)}, {vr(p,2)} op_sel_hi:[1,0]")
        if step < 7: rdz(step+1)
        for m in range(4): a(f"v_fract_f32 v{EX+16+2*m+1}, v{EX+16+2*m+1}")
        for k, (A_, p) in enumerate(mats):
            B()
            for m in range(4):
                e = EX + 8*k + 2*m
                a(f"v_cos_f32 v{A_+2*m}, v{e+1}"); a(f"v_sin_f32 v{A_+2*m+1}, v{e+1}"); a(f"v_exp_f32 v{e}, v{e}")
        a(f"s_waitcnt lgkmcnt({2 if step < 7 else 0})")
        for k, (A_, p) in enumerate(mats):
            for m in range(4):
                a(f"v_pk_mul_f32 {vr(A_+2*m,2)}, {vr(A_+2*m,2)}, {vr(EX+8*k+2*m,2)} op_sel_hi:[1,0]")
        for m in range(4): a(f"v_pk_mul_f32 {vr(TM+2*m,2)}, {vr(AG+2*m,2)}, {vr(PC+2*m,2)} op_sel_hi:[0,1] neg_hi:[0,1]")
        for m in range(4): a(f"v_pk_mul_f32 {vr(TM2+2*m,2)}, {vr(AB0+2*m,2)}, {vr(PE+2*m,2)} op_sel_hi:[0,1]")
        for m in range(4): a(f"v_pk_fma_f32 {vr(TM+2*m,2)}, {vr(AG+2*m,2)}, {vr(PC+2*m,2)}, {vr(TM+2*m,2)} op_sel:[1,1,0] op_sel_hi:[1,0,1] neg_lo:[0,1,0] neg_hi:[0,1,0]")
        for m in range(4): a(f"v_pk_fma_f32 {vr(TM2+2*m,2)}, {vr(AB0+2*m,2)}, {vr(PE+2*m,2)}, {vr(TM2+2*m,2)} op_sel:[1,1,0] op_sel_hi:[1,0,1] neg_lo:[0,1,0]")
        for m in range(4): a(f"v_cvt_pk_bf16_f32 v{OG+m}, v{TM+2*m}, v{TM+2*m+1}")
        for m in range(4): a(f"v_cvt_pk_bf16_f32 v{OB0+m}, v{AB0+2*m}, v{AB0+2*m+1}")
        for m in range(4): a(f"v_cvt_pk_bf16_f32 v{OB1+m}, v{AB1+2*m}, v{AB1+2*m+1}")
        a(f"v_mfma_f32_16x16x32_bf16 {vr(ACC,4)}, {vr(OB0,4)}, {vr(OG,4)}, {vr(ACC,4)}")
        for m in range(4): a(f"v_cvt_pk_bf16_f32 v{OB0p+m}, v{TM2+2*m}, v{TM2+2*m+1}")
        a(f"v_mfma_f32_16x16x32_bf16 {vr(ACC+8,4)}, {vr(OB1,4)}, {vr(OG,4)}, {vr(ACC+8,4)}")
        a("s_nop 0")
        a(f"v_mfma_f32_16x16x32_bf16 {vr(ACC+4,4)}, {vr(OB0p,4)}, {vr(OG,4)}, {vr(ACC+4,4)}")
        assert not bg
    step = 0
    for _ in range(KPRE): kstep(step, take(DPRE)); step += 1
    a(f"s_waitcnt vmcnt({vm.wait_for('X')})")
    g.stamp()
    T = 64; W = 96
    ln_stats8(a, [(XD+k, XD+8+k) for k in range(8)], T, W)
    XP = 144; XD0 = XD; XD = 160
    for k in range(16): a(f"v_pk_add_f32 {vr(T+2*k,2)}, {vr(T+2*k,2)}, {vr(W,2)} neg_lo:[0,1] neg_hi:[0,1]")
    for k in range(16): a(f"v_cvt_pk_bf16_f32 v{XD+k}, v{T+2*k}, v{T+2*k+1}")
    for k in range(16):
        a(f"v_lshlrev_b32 v{T+2*k}, 16, v{XD+k}"); a(f"v_and_b32 v{T+2*k+1}, 0xffff0000, v{XD+k}")
    for k in range(16): a(f"v_pk_mul_f32 {vr(T+2*k,2)}, {vr(T+2*k,2)}, {vr(W+2,2)}")
    a(f"s_lshl_b32 s{sT}, s{sWave}, 20"); a(f"s_lshl_b32 s{sT+1}, s2, 6"); a(f"s_add_u32 s{sT}, s{sT}, s{sT+1}")
    for q in range(4):
        for k in range(4*q, 4*q+4): a(f"v_cvt_pk_bf16_f32 v{XD+k}, v{T+2*k}, v{T+2*k+1}")
        a(f"s_add_u32 s{sT+1}, s{sT}, {((q>>1)*32 + (q&1))*16384}")
        a(f"buffer_store_dwordx4 {vr(XD+4*q,4)}, v6, {sr(sU2,4)}, s{sT+1} offen {SC}"); vm.add("U")
    a(f"s_mov_b32 s{sT+2}, 0x05040100"); a(f"s_mov_b32 s{sT+3}, 0x07060302")
    for q in range(4):
        for k in range(4*q, 4*q+4): a(f"v_perm_b32 v{XP+k}, v{XD0+8+(k>>1)}, v{XD0+(k>>1)}, s{sT+2+(k&1)}")
        a(f"s_add_u32 s{sT+1}, s{sT}, {((q>>1)*32 + (q&1))*16384 + (4 << 20)}")
        a(f"buffer_store_dwordx4 {vr(XP+4*q,4)}, v6, {sr(sU2,4)}, s{sT+1} offen {SC}"); vm.add("U")
    a(f"buffer_load_dwordx2 v[22:23], v1, {sr(sDB,4)}, 0 offen {SC}"); vm.add("N")
    g.stamp()
    for _ in range(KMID): kstep(step, take(3)); step += 1
    a(f"s_waitcnt vmcnt({vm.wait_for('N')})")
    gn = a.label("gn"); gn2 = a.label("gn2")
    a(f"s_mov_b32 s{sTO}, 0")
    a(f"{gn}:")
    a(f"v_readfirstlane_b32 s{sNON}, v22"); a(f"v_readfirstlane_b32 s{sNON+1}, v23")
    a(f"s_cmp_lg_u32 s{sNON}, 0"); a(f"s_cbranch_scc1 {gn2}")
    a(f"buffer_load_dwordx2 v[22:23], v1, {sr(sDB,4)}, 0 offen {SC}")
    a("s_waitcnt vmcnt(0)")
    a(f"s_add_u32 s{sTO}, s{sTO}, 1"); a(f"s_cmp_lt_u32 s{sTO}, {TIMEOUT}"); a(f"s_cbranch_scc1 {gn}")
    a(f"{gn2}:")
    a("s_barrier")
    set_flag(g, 0, 22)
    g.stamp()
    while step < 8:
        kstep(step, take(3)); step += 1
    assert not bgl
    Eb = 72
    a(f"v_lshlrev_b32 v16, 4, v{vL}"); a(f"v_add_u32 v16, s{sTB}, v16"); a(f"v_subrev_u32 v17, 4, v16")
    a(f"v_add_u32 v2, s{sTB}, v2")
    s00 = sT; s11 = sT+1; s10 = sT+2; s21 = sT+3
    a(f"s_mov_b32 s{s00}, 0x01000100"); a(f"s_mov_b32 s{s11}, 0x03020302"); a(f"s_mov_b32 s{s10}, 0x01000302"); a(f"s_mov_b32 s{s21}, 0x03020504")
    for t in (0, 2, 1):
        a(f"v_cvt_pk_bf16_f32 v{64+2*t}, v{ACC+4*t}, v{ACC+4*t+1}")
        a(f"v_cvt_pk_bf16_f32 v{65+2*t}, v{ACC+4*t+2}, v{ACC+4*t+3}")
    a(f"ds_write_b64 v{vO1}, v[64:65]"); a(f"ds_write_b64 v{vO1}, v[66:67] offset:32"); a(f"ds_write_b64 v{vO2}, v[68:69]")
    a(f"ds_read_b128 {vr(Eb,4)}, v16"); a(f"ds_read_b32 v{Eb+4}, v16 offset:16"); a(f"ds_read_b32 v{Eb-1}, v17")
    a(f"ds_read_b32 v78, v2 offset:1024"); a(f"ds_read_b32 v79, v2 offset:1028")
    a(f"ds_read_b32 v80, v2 offset:1280"); a(f"ds_read_b32 v81, v2 offset:1284")
    a(f"buffer_load_dwordx2 v[22:23], v{vF}, {sr(sFLG,4)}, 0 offen {SC}")
    a("s_waitcnt lgkmcnt(0)")
    O = 84
    for d, s0, s1, sl in ((0,3,2,2),(1,2,1,3),(2,1,0,2),(3,0,-1,4),(4,4,3,1),(5,2,2,0),(6,2,1,1),(7,0,0,0)):
        a(f"v_perm_b32 v{O+d}, v{Eb+s0}, v{Eb+s1}, v{SA+sl}")
    a(f"ds_write_b128 v{vK}, {vr(O,4)} offset:{KPAD}")
    a(f"ds_write_b128 v{vK}, {vr(O+4,4)} offset:{KPAD+KCS}")
    def mk(dst, kind, p01, p2):
        if kind == "00": a(f"v_perm_b32 v{dst}, v{p01}, v{p01}, s{s00}")
        elif kind == "11": a(f"v_perm_b32 v{dst}, v{p01}, v{p01}, s{s11}")
        elif kind == "22": a(f"v_perm_b32 v{dst}, v{p2}, v{p2}, s{s00}")
        elif kind == "10": a(f"v_perm_b32 v{dst}, v{p01}, v{p01}, s{s10}")
        elif kind == "21": a(f"v_perm_b32 v{dst}, v{p2}, v{p01}, s{s21}")
    chunks = [(78, ["21","11","00","00"], vK, KPAD + 1024), (78, ["22","11","10","00"], vK, KPAD + 1024 + KCS),
              (80, ["11","00","00","00"], vK2, KPAD + 2048), (80, ["22","21","11","11"], vK2, KPAD + 2048 + 16),
              (80, ["11","10","00","00"], vK2, KPAD + 2048 + KCS), (80, ["22","22","11","11"], vK2, KPAD + 2048 + KCS + 16)]
    for ci, (p, kinds, ad, off) in enumerate(chunks):
        b = O + 8 + 4*ci
        for e, kd in enumerate(kinds): mk(b+e, kd, p, p+1)
        a(f"ds_write_b128 v{ad}, {vr(b,4)} offset:{off}")
    g.stamp()
    a(f"s_mov_b32 s{sT}, 0")
    sCGo = sT+7
    a(f"s_lshl_b32 s{sCGo}, s{sCG}, 14")
    poll_flags(g, vF, sT, 22, preloaded=True)
    a("s_barrier")
    g.stamp()
    UR = 32
    for i in range(4):
        a(f"s_add_u32 s{sT}, s{sCGo}, {4096*i}")
        a(f"buffer_load_dwordx4 {vr(UR+4*i,4)}, v{vR}, {sr(sU2,4)}, s{sT} offen {SC}")
    def rdA(st, p, q): return f"ds_read_b128 {ar(64*st+4*p,4)}, v{vA} offset:{(8*p+q)*64}"
    def rdB(st, r, q): return f"ds_read_b128 {ar(64*st+32+4*r,4)}, v{vB} offset:{(8*r-q+7)*64}"
    for i in range(8): a(rdA(0, i, 0))
    XG = 48
    for i in range(4):
        a(f"s_add_u32 s{sT}, s{sCGo}, {4096*i + (4 << 20)}")
        a(f"buffer_load_dwordx4 {vr(XG+4*i,4)}, v{vR}, {sr(sU2,4)}, s{sT} offen {SC}")
    for ii in range(4):
        a(f"s_waitcnt vmcnt({7-ii})")
        for c in range(4):
            for ch in range(2):
                a(f"ds_write2st64_b32 v{vUC+2*c+ch}, v{UR+4*ii+ch}, v{UR+4*ii+ch+2} offset0:{4*ii} offset1:{4*ii+141}")
    a("s_waitcnt lgkmcnt(0)")
    a("s_barrier")
    g.stamp()
    CA = 64
    for i in range(8): a(rdB(0, i, 0))
    fill = []
    F = fill.append
    TD = 96; XU = 128
    F(f"s_lshl_b32 s{sT}, s58, 16"); F(f"s_and_b32 s{sT+1}, s58, 0xffff0000"); F(f"s_lshl_b32 s{sT+2}, s59, 16"); F(f"s_and_b32 s{sT+3}, s59, 0xffff0000")
    for i in range(4):
        for ch in range(4):
            u = UR+4*i+ch; d = TD+8*i+2*ch
            F(f"v_lshlrev_b32 v{d}, 16, v{u}"); F(f"v_and_b32 v{d+1}, 0xffff0000, v{u}")
            F(f"v_mul_f32 v{d}, s{sT+ch}, v{d}"); F(f"v_mul_f32 v{d+1}, s{sT+ch}, v{d+1}")
            F(f"v_cvt_pk_bf16_f32 v{u}, v{d}, v{d+1}")
            F(f"v_lshlrev_b32 v{d}, 16, v{u}"); F(f"v_and_b32 v{d+1}, 0xffff0000, v{u}")
    F(f"v_lshlrev_b32 v16, 2, v0"); F(f"v_add_u32 v16, {KBASE}, v16")
    fill2 = ["s_waitcnt vmcnt(0)"]
    for k in range(16):
        fill2 += [f"v_lshlrev_b32 v{XU+2*k}, 16, v{XG+k}", f"v_and_b32 v{XU+2*k+1}, 0xffff0000, v{XG+k}"]
    sched = {}
    fi = 0
    for q in range(8):
        st = q & 1
        a("s_waitcnt lgkmcnt(0)")
        nxt = []
        if q < 7:
            for i in range(8): nxt += [rdA(1-st, i, q+1), rdB(1-st, i, q+1)]
        else:
            assert fi == len(fill), (fi, len(fill))
            fill = fill2; fi = 0
        k = 0
        for p in range(8):
            for r in range(8 - p):
                t = p + r
                c = "0" if (q == 0 and p == 0) else vr(CA+4*t, 4)
                a(f"v_mfma_f32_16x16x32_bf16 {vr(CA+4*t,4)}, {ar(64*st+4*p,4)}, {ar(64*st+32+4*r,4)}, {c}")
                if (q, k) in sched:
                    for ins in sched.pop((q, k)): a(ins)
                elif nxt and (k % 2 == 0 or (k < 8)): a(nxt.pop(0))
                elif fi < len(fill): a(fill[fi]); fi += 1
                k += 1
        assert not nxt
    assert fi == len(fill) and not sched, (fi, len(fill), sched)
    for t in range(8):
        a(f"v_cvt_pk_bf16_f32 v{168+2*t}, v{CA+4*t}, v{CA+4*t+1}")
        a(f"v_cvt_pk_bf16_f32 v{169+2*t}, v{CA+4*t+2}, v{CA+4*t+3}")
        a(f"ds_write2_b32 v{vY}, v{168+2*t}, v{169+2*t} offset0:{128*(t&1)} offset1:{128*(t&1)+4}")
        if t & 1 and t < 7: a(f"v_add_u32 v{vY}, 1024, v{vY}")
    a("s_waitcnt lgkmcnt(0)")
    g.stamp()
    a("s_barrier")
    Y = 64; YU = 160
    for i in range(4):
        for ch in (0, 2):
            a(f"ds_read2st64_b32 {vr(Y+4*i+ch,2)}, v16 offset0:{4*i+33*ch} offset1:{4*i+33*(ch+1)}")
    for i in range(4):
        a(f"s_waitcnt lgkmcnt({6-2*i})")
        for ch in range(4):
            a(f"v_lshlrev_b32 v{YU+2*ch}, 16, v{Y+4*i+ch}"); a(f"v_and_b32 v{YU+2*ch+1}, 0xffff0000, v{Y+4*i+ch}")
        b = TD+8*i
        for ch in range(4): a(f"v_pk_add_f32 {vr(b+2*ch,2)}, {vr(b+2*ch,2)}, {vr(YU+2*ch,2)}")
        for ch in range(4): a(f"v_cvt_pk_bf16_f32 v{YU+ch}, v{b+2*ch}, v{b+2*ch+1}")
        for ch in range(4):
            a(f"v_lshlrev_b32 v{b+2*ch}, 16, v{YU+ch}"); a(f"v_and_b32 v{b+2*ch+1}, 0xffff0000, v{YU+ch}")
        for ch in range(4): a(f"v_pk_add_f32 {vr(b+2*ch,2)}, {vr(b+2*ch,2)}, {vr(XU+8*i+2*ch,2)}")
        for e in range(2):
            for hp in range(2):
                a(f"v_cvt_pk_bf16_f32 v{Y+4*i+2*e+hp}, v{b+4*hp+e}, v{b+4*hp+2+e}")
        a(f"s_add_u32 s{sT}, s{sCGo}, {4096*i}")
        a(f"buffer_store_dwordx4 {vr(Y+4*i,4)}, v{vR}, {sr(sH,4)}, s{sT} offen {SC}")
    g.stamp()

def phase_gemm1(g, XF=SC):
    a = g.a
    SLOT = SLOT1
    ACC = 32
    def acc(j, t): return ACC + (j*7 + t)*16
    XR = 0; WF = 64; CSF = 120
    vDMA = 1; vX = 8; vST = 9; vWc = 10; vWn = 11; vS = 12; vO = 28; vFl = 20; vC = 22; vF2 = 23
    sX = 44; sACT = 8; sST = 36; sCS = 40; sW2 = 12
    sOX = 20; sOX2 = 21; sBase = 23; sIt = 25; sA = 28; sB = 29; sNS = 30; sCSo = 32
    sOW = sG_OW; sM0 = sG_M0
    vm = VM()
    for i in range(4): vm.add("H")
    def pro_dma(stage, idxs):
        for i in idxs:
            if i in (0, 4): a(f"s_add_u32 m0, s{sM0}, {stage*SLOT + (4096 if i else 0)}"); a("s_nop 0")
            a(g1_dma(pDMA, i)); vm.add(f"D{stage}")
            if i == 6:
                for ins in g1_wadv(): a(ins)
    pro_dma(2, range(7)); pro_dma(3, [0, 1])
    a(f"v_and_b32 v160, 31, v{vL}"); a(f"v_mov_b32 v161, 0x3f803f80")
    for t in range(7):
        a(f"v_cmp_eq_u32 vcc, {t}, v160"); a("s_nop 1")
        for e in range(4): a(f"v_cndmask_b32 v{96+4*t+e}, 0, v161, vcc")
    a(f"s_waitcnt vmcnt({vm.wait_for('H')})")
    a("s_barrier")
    set_flag(g, 1, 162)
    g.stamp()
    for i in range(7): a(f"v_mov_b32 v{vDMA+i}, v{pDMA+i}")
    for d, s_ in ((vX, pX), (vST, pST), (vWc, pWc), (vO, pO)): a(f"v_mov_b32 v{d}, v{s_}")
    a(f"v_add_u32 v{vWn}, {2*SLOT}, v{vWc}")
    srd(a, sACT, pWS, SZ_ACT, M_ACT); srd(a, sST, pWS, 2048*16, M_ST2); srd(a, sCS, pWS, 32*224*32, M_CS)
    srd(a, sW2, pWD, SZ_W)
    a(f"s_lshl_b32 s16, s2, 2"); a(f"s_add_u32 s16, s16, s{sWave}"); a(f"s_mul_i32 s16, s16, 7168")
    a(f"v_lshlrev_b32 v27, 6, v{vL}")
    a(f"s_mul_i32 s{sCSo}, s{sG_TN}, {224*32}")
    a(f"v_lshlrev_b32 v{vC}, 5, v160"); a(f"v_lshrrev_b32 v163, 5, v{vL}"); a(f"v_lshl_add_u32 v{vC}, v163, 4, v{vC}")
    a(f"v_and_b32 v{vF2}, 7, v{vL}"); a(f"v_lshlrev_b32 v{vF2}, 9, v{vF2}")
    a(f"s_and_b32 s{sT}, s2, 0xc7"); a(f"s_lshl_b32 s{sT}, s{sT}, 6"); a(f"s_add_u32 s{sT}, s{sT}, {3*16384}")
    a(f"v_add_u32 v{vF2}, s{sT}, v{vF2}")
    a(f"s_lshl_b32 s{sOX}, s{sG_TM}, 19"); a(f"s_add_u32 s{sOX2}, s{sOX}, 16384")
    a(f"s_mov_b32 s{sBase}, 0"); a(f"s_mov_b32 s{sIt}, 2"); a(f"s_mov_b32 s{sNS}, 3")
    a(f"s_lshr_b32 s{sT}, s{sWave}, 1"); a(f"s_mul_i32 s{sT}, s{sT}, {SLOT}")
    a(f"s_and_b32 s{sT+1}, s{sWave}, 1"); a(f"s_mul_i32 s{sT+1}, s{sT+1}, {2*3584}"); a(f"s_add_u32 s{sT}, s{sT}, s{sT+1}")
    a(f"v_add_u32 v164, s{sT}, v{vWc}")
    a(f"s_mul_i32 s{sT}, s{sWave}, 896"); a(f"s_add_u32 s{sT}, s{sT}, {PBASE}")
    a(f"v_lshlrev_b32 v165, 7, v160"); a(f"v_lshl_add_u32 v165, v163, 4, v165"); a(f"v_add_u32 v165, s{sT}, v165")
    def wread(st, t, j, reg, imm0):
        return f"ds_read_b64_tr_b16 {ar(WF+st*28+t*4+j*2,2)}, v{reg} offset:{imm0 + 4*j*224 + 32*t}"
    a(f"s_mov_b32 s{sT+1}, 16384")
    a(f"buffer_load_dwordx2 v[166:167], v29, {sr(sFLG,4)}, s{sT+1} offen {SC}")
    for st in range(2):
        for t in range(7):
            for j in range(2): a(wread(st, t, j, 164, st*3584))
    for st in range(2):
        a(f"s_waitcnt lgkmcnt({14 if st == 0 else 0})")
        for t in range(7):
            c = "0" if (st == 0 and t == 0) else "v[128:143]"
            a(f"v_mfma_f32_32x32x16_bf16 v[128:143], {ar(WF+st*28+t*4,4)}, {vr(96+4*t,4)}, {c}")
    for t in range(7):
        for j in range(2): a(wread(0, t, j, vWc, 0))
    a(f"v_cmp_gt_u32 vcc, 7, v160")
    a("s_and_saveexec_b64 s[56:57], vcc")
    for q in range(4): a(f"ds_write_b128 v165, {vr(128+4*q,4)} offset:{32*q}")
    a("s_mov_b64 exec, -1")
    a("s_waitcnt lgkmcnt(0)")
    g.stamp()
    poll_flags(g, 29, sT+1, 166, preloaded=True)
    a("s_barrier")
    g.stamp()
    vm = VM()
    SD = 64
    def xload(slot, k):
        j, hf = k >> 1, k & 1
        return f"buffer_load_dwordx2 {ar(XR+slot*8+j*4+hf*2,2)}, v{vX}, {sr(sX,4)}, s{sOX2 if hf else sOX} offen offset:{256*j} {XF}"
    xadv = [f"s_add_u32 s{sOX}, s{sOX}, 65536", f"s_and_b32 s{sOX}, s{sOX}, {(4<<20)-1}", f"s_add_u32 s{sOX2}, s{sOX}, 16384"]
    for i in range(4):
        a(f"buffer_load_dwordx4 {vr(SD+4*i,4)}, v{pSR}, {sr(sX,4)}, s{sG_SR} offen {SC}"); vm.add("R")
        a(f"s_add_u32 s{sG_SR}, s{sG_SR}, {16*16384}")
    def pro_x(x):
        for k in range(4): a(xload(x, k)); vm.add(f"X{x}")
        for ins in xadv: a(ins)
    for x in range(3): pro_x(x)
    a(f"v_lshlrev_b32 v168, 2, v0"); a(f"v_add_u32 v168, {PBASE}, v168")
    for w in range(4): a(f"ds_read_b32 v{170+w}, v168 offset:{896*w}")
    a(f"v_lshlrev_b32 v169, 5, v0")
    a(f"s_lshl_b32 s{sT}, s{sG_TM}, 2"); a(f"s_add_u32 s{sT}, s{sT}, s{sCSo}")
    a(f"v_cmp_gt_u32 vcc, 224, v0")
    a("s_waitcnt lgkmcnt(0)")
    a("v_add_f32 v170, v170, v171"); a("v_add_f32 v172, v172, v173"); a("v_add_f32 v170, v170, v172")
    a("v_cvt_pk_bf16_f32 v171, v170, v170"); a("v_lshlrev_b32 v171, 16, v171")
    a("v_sub_f32 v170, v170, v171")
    a("v_cvt_pk_bf16_f32 v170, v171, v170")
    a("s_and_saveexec_b64 s[56:57], vcc")
    a(f"buffer_store_dword v170, v169, {sr(sCS,4)}, s{sT} offen {SC}"); vm.add("C")
    a("s_mov_b64 exec, -1")
    a(f"s_waitcnt vmcnt({vm.wait_for('R')})")
    g.stamp()
    for x in range(3, 7): pro_x(x)
    W = 128
    ln_stats8(a, [(SD+4*(k>>1)+(k&1), SD+4*(k>>1)+2+(k&1)) for k in range(8)], 96, W)
    nst = a.label("nst")
    a(f"s_cmp_lg_u32 s{sWave}, 0"); a(f"s_cbranch_scc1 {nst}")
    a(f"v_cmp_gt_u32 vcc, 4, v{vL}")
    a(f"v_and_b32 v{W+8}, 3, v{vL}"); a(f"v_lshlrev_b32 v{W+8}, 5, v{W+8}"); a(f"v_bfe_u32 v{W+9}, v{vL}, 2, 1"); a(f"v_lshl_add_u32 v{W+8}, v{W+9}, 4, v{W+8}")
    a(f"v_cndmask_b32 v{W+4}, v{W+1}, v{W}, vcc"); a(f"v_cndmask_b32 v{W+5}, v{W+3}, v{W+2}, vcc")
    a(f"v_mov_b32 v{W+6}, s{sNON}"); a(f"v_mov_b32 v{W+7}, s{sNON+1}")
    a(f"s_lshl_b32 s{sT}, s{sG_R}, 4")
    a("s_mov_b64 exec, 0xff")
    a(f"buffer_store_dwordx4 {vr(W+4,4)}, v{W+8}, {sr(sST,4)}, s{sT} offen {SC}")
    a("s_mov_b64 exec, -1")
    a("s_nop 3")
    a(f"{nst}:")
    g.stamp()
    def ld_flags_stats():
        return [f"buffer_load_dwordx2 {vr(vFl,2)}, v{vF2}, {sr(sFLG,4)}, 0 offen {SC}",
                f"buffer_load_dwordx4 {vr(vS,4)}, v{vST}, {sr(sST,4)}, 0 offen {SC}",
                f"buffer_load_dwordx4 {vr(vS+4,4)}, v{vST}, {sr(sST,4)}, 0 offen offset:512 {SC}"]
    def ld_cs(t):
        if t < 4: return f"buffer_load_dwordx4 {ar(CSF+4*t,4)}, v{vC}, {sr(sCS,4)}, s{sCSo} offen offset:{1024*t} {SC}"
        return f"buffer_load_dwordx4 {ar(CSF+4*t,4)}, v{vC}, {sr(sCS,4)}, s{sNS} offen offset:{1024*(t-4)} {SC}"
    DM = {3: [0, 1], 0: [2, 3], 1: [4, 5], 2: [6]}
    def body(kind, base_step):
        first = kind == "first"; last = kind == "last"
        for u in range(8):
            s = u % 4; st = u & 1
            if last and u == 4: a("s_waitcnt vmcnt(0) lgkmcnt(0)")
            elif last and u > 4: a("s_waitcnt lgkmcnt(0)")
            else: a(f"s_waitcnt vmcnt({vm.wait_for(f'X{base_step+u}')}) lgkmcnt(0)")
            if s == 3 and not (last and u == 7): a("s_barrier")
            if first and u == 7: set_flag(g, 3, 24)
            gaps = {k: [] for k in range(14)}
            tags = {k: [] for k in range(14)}
            nu = (u + 1) % 8
            reg = vWn if u == 7 else vWc
            imm0 = (nu // 4) * SLOT + (nu % 4) * 16 * 224
            k = 0
            if not (last and u == 7):
                for t in range(7):
                    for j in range(2):
                        gaps[k // 2].append(wread(1 - st, t, j, reg, imm0)); k += 1
            xs = (u - 1) % 8
            if not (last and u > 0):
                for k in range(4):
                    gaps[6+k].append(xload(xs, k)); tags[6+k].append(f"X{base_step+u+7}")
                gaps[10] += xadv
            gi = 11
            if not last:
                for i in DM[s]:
                    if i in (0, 4):
                        e = 4096 if i else 0
                        if u in (3, 4, 5, 6): ins = f"s_add_u32 m0, s{sA}, {e}"
                        elif u == 7: ins = f"s_add_u32 m0, s{sA}, {SLOT + e}"
                        else: ins = f"s_add_u32 m0, s{sB}, {SLOT + e}"
                        gaps[gi-2].append(ins)
                    gaps[gi].append(g1_dma(vDMA, i)); tags[gi].append("D")
                    if i == 6:
                        gaps[gi+1] += g1_wadv()
                        gaps[gi+2] += [f"s_add_u32 s{sNS}, s{sNS}, 1", f"s_cmp_ge_u32 s{sNS}, 16", f"s_cselect_b32 s{sOW}, {SZ_W + 64*7168}, s{sOW}"]
                    gi += 1
                if u == 0:
                    gaps[0].insert(0, f"s_add_u32 s{sA}, s{sM0}, s{sBase}")
                    gaps[1].insert(0, f"s_sub_u32 s{sBase}, {2*SLOT}, s{sBase}")
                    gaps[2].insert(0, f"s_add_u32 s{sB}, s{sM0}, s{sBase}")
                if first and u in (2, 6):
                    gaps[13].append(f"buffer_load_dword a200, v27, {sr(sW2,4)}, s16 offen offset:{3072 if u == 6 else 0}")
                if u == 7:
                    gaps[8].append(f"v_swap_b32 v{vWc}, v{vWn}")
                    if not first:
                        gaps[13].append(f"s_add_u32 s{sIt}, s{sIt}, 1"); gaps[13].append(f"s_cmp_lt_u32 s{sIt}, 8")
            else:
                if u == 0:
                    for n, ins in enumerate(ld_flags_stats()): gaps[11+n].append(ins); tags[11+n].append("S")
                if u == 1: gaps[8].append(f"s_add_u32 s{sNS}, s{sCSo}, 4096")
                if u == 4:
                    for t in range(7): gaps[7+t].append(ld_cs(t))
                if u == 6:
                    tn2 = sT+4
                    pre = [f"s_bfe_u32 s{tn2}, s2, 0x10002", f"s_lshl_b32 s{tn2}, s{tn2}, 3", f"s_lshr_b32 s{sT}, s2, 5", f"s_add_u32 s{tn2}, s{tn2}, s{sT}",
                           f"v_lshrrev_b32 v1, 3, v{vL}", f"s_lshl_b32 s{sT}, s{sWave}, 5", f"v_add_u32 v1, s{sT}, v1", f"v_lshlrev_b32 v1, 11, v1",
                           f"v_bfe_u32 v2, v{vL}, 4, 1", f"v_lshlrev_b32 v2, 2, v2", f"v_and_b32 v3, 7, v{vL}", f"v_xor_b32 v2, v2, v3",
                           f"v_lshl_add_u32 v1, v2, 4, v1", f"s_lshl_b32 s{sT}, s{tn2}, 7", f"v_add_u32 v1, s{sT}, v1", f"s_lshl_b32 s{sM0}, s{sWave}, 12"]
                    for n, ins in enumerate(pre): gaps[7 + n*7//len(pre)].append(ins)
                if u == 7:
                    gaps[0].append("s_barrier")
            k = 0
            for t in range(7):
                for j in range(2):
                    c = "0" if (first and u == 0) else vr(acc(j,t),16)
                    a(f"v_mfma_f32_32x32x16_bf16 {vr(acc(j,t),16)}, {ar(WF+st*28+t*4,4)}, {ar(XR+u*8+j*4,4)}, {c}")
                    for ins in gaps[k]: a(ins)
                    for tg in tags[k]: vm.add(tg)
                    k += 1
    body("first", 0)
    loop = a.label("g1loop")
    a(f"{loop}:")
    body("mid", 8)
    a(f"s_cbranch_scc1 {loop}")
    body("last", 16)
    g.stamp()
    poll = a.label("sp"); ok = a.label("sok")
    a(f"s_mov_b32 s{sTO}, 0")
    a(f"{poll}:")
    a(f"v_cmp_ne_u64 vcc, {sr(sNON,2)}, {vr(vS+2,2)}")
    a(f"v_cmp_ne_u64 {sr(sT,2)}, {sr(sNON,2)}, {vr(vS+6,2)}")
    a(f"s_or_b64 vcc, vcc, {sr(sT,2)}")
    a(f"v_cmp_ne_u64 {sr(sT,2)}, {sr(sNON,2)}, {vr(vFl,2)}")
    a(f"s_or_b64 vcc, vcc, {sr(sT,2)}")
    a(f"s_cbranch_vccz {ok}")
    for ins in ld_flags_stats(): a(ins)
    a("s_waitcnt vmcnt(0)")
    for t in range(7): a(ld_cs(t))
    a(f"s_add_u32 s{sTO}, s{sTO}, 1"); a(f"s_cmp_lt_u32 s{sTO}, {TIMEOUT}"); a(f"s_cbranch_scc1 {poll}")
    a(f"{ok}:")
    for j in range(2):
        b = 20 + 4*j
        a(f"v_xor_b32 v{b+1}, 0x80000000, v{vS+4*j}")
        a(f"v_lshrrev_b32 v{b}, 16, v{b+1}")
        a(f"v_or_b32 v{b}, v{b}, v{b+1}")
        for e in range(1, 4): a(f"v_mov_b32 v{b+e}, v{b}")
    a("s_waitcnt vmcnt(0)")
    a("s_nop 0")
    K0 = -2.0 * 0.7978845608028654 * LOG2E
    K1 = K0 * 0.044715
    C = {0: 2, 1: 6}
    cst = []
    for j in range(2):
        s_ = vS + 4*j + 1; c = C[j]
        cst += [f"v_mul_f32 v{c}, {f32(K0)}, v{s_}", f"v_mul_f32 v{c+2}, v{s_}, v{s_}", f"v_mul_f32 v{c+1}, v{c+2}, v{s_}",
                f"v_mul_f32 v{c+1}, {f32(K1)}, v{c+1}", f"v_rcp_f32 v{c+2}, v{c+2}"]
    for j in range(2):
        for t in range(7):
            a(f"v_mfma_f32_32x32x16_bf16 {vr(acc(j,t),16)}, {ar(CSF+t*4,4)}, {vr(20+4*j,4)}, {vr(acc(j,t),16)}")
            if cst: a(cst.pop(0))
    w2 = []
    for T2 in range(5):
        for i in range(4 if T2 < 4 else 2):
            grp = []
            if i == 0: grp.append(f"s_add_u32 m0, s{sM0}, {T2*16384}")
            grp.append(f"s_mov_b32 s{sT+1}, {T2*128*2048 + i*15360}")
            grp.append(f"buffer_load_dwordx4 v1, {sr(sW2,4)}, s{sT+1} offen offset:{1024*i} lds")
            w2.append(grp)
    def W2():
        if w2:
            for ins in w2.pop(0): a(ins)
    T = 12
    for j in range(2):
        c = C[j]
        for t in range(7):
            b = acc(j, t)
            prs = [(b, b+4), (b+2, b+6), (b+8, b+12), (b+10, b+14)]
            for i, (gt, u_) in enumerate(prs): a(f"v_pk_mul_f32 {vr(T+2*i,2)}, {vr(gt,2)}, {vr(gt,2)}")
            for i, (gt, u_) in enumerate(prs): a(f"v_pk_fma_f32 {vr(T+2*i,2)}, {vr(T+2*i,2)}, {vr(c,2)}, {vr(c,2)} op_sel:[0,1,0] op_sel_hi:[1,1,0]")
            for i, (gt, u_) in enumerate(prs): a(f"v_pk_mul_f32 {vr(T+2*i,2)}, {vr(T+2*i,2)}, {vr(gt,2)}")
            W2()
            for i in range(8): a(f"v_exp_f32 v{T+i}, v{T+i}")
            for i, (gt, u_) in enumerate(prs): a(f"v_pk_mul_f32 {vr(u_,2)}, {vr(u_,2)}, {vr(gt,2)}")
            for i, (gt, u_) in enumerate(prs): a(f"v_pk_fma_f32 {vr(T+2*i,2)}, {vr(T+2*i,2)}, {vr(c+2,2)}, {vr(c+2,2)} op_sel_hi:[1,0,0]")
            W2()
            for i in range(8): a(f"v_rcp_f32 v{T+i}, v{T+i}")
            a(f"s_mov_b32 s{sT}, {t*65536}")
            for i, (gt, u_) in enumerate(prs): a(f"v_pk_mul_f32 {vr(u_,2)}, {vr(u_,2)}, {vr(T+2*i,2)}")
            for i, (gt, u_) in enumerate(prs): a(f"v_cvt_pk_bf16_f32 v{b+i}, v{u_}, v{u_+1}")
            a(f"buffer_store_dwordx4 {vr(b,4)}, v{vO}, {sr(sACT,4)}, s{sT} offen offset:{512*j} {SC}")
    assert not w2
    g.stamp()

def phase_gemm2(g):
    a = g.a
    SLOT = 16384; XCH = 8*SLOT
    ACC = 32
    def acc(j, t): return ACC + (j*2 + t)*16
    HR = 96; XR = 0; WF = 128
    vDMA = 1; vX0 = 5; vX1 = 6; vWc = 8; vWn = 10; vO = 13; vE = 14; vE2 = 15; vT = 16
    sX = 8; sW = 12; sH = 44; sO = 4
    sOX = 20; sOX2 = 21; sOW = 22; sBase = 23; sM0 = 24; sIt = 25; sM = 26; sN = 27; sA = 28; sB = 29; sK = 30
    tn2 = sT+4
    a(f"s_and_b32 s{sM}, s2, 3"); a(f"s_lshl_b32 s{sM}, s{sM}, 2"); a(f"s_bfe_u32 s{sT}, s2, 0x20003"); a(f"s_add_u32 s{sM}, s{sM}, s{sT}")
    a(f"s_lshr_b32 s{sT+5}, s{sM}, 1")
    a(f"s_lshl_b32 s{sM}, s{sM}, 7"); a(f"s_lshl_b32 s{sN}, s{tn2}, 6")
    a(f"s_lshr_b32 s{sT}, s{sWave}, 1"); a(f"s_lshl_b32 s{sT}, s{sT}, 6"); a(f"s_add_u32 s{sM}, s{sM}, s{sT}")
    a(f"s_and_b32 s{sK}, s{sWave}, 1")
    for i in range(1, 4): a(f"v_add_u32 v{vDMA+i}, {i*15360}, v{vDMA}")
    a(f"v_and_b32 v{vT}, 31, v{vL}")
    a(f"s_lshl_b32 s{sT}, s{sK}, 5"); a(f"s_add_u32 s{sM}, s{sM}, s{sT}")
    a(f"v_add_u32 v{vT}, s{sM}, v{vT}")
    a(f"v_lshrrev_b32 v{vT+1}, 5, v{vL}")
    a(f"v_lshl_add_u32 v{vT+2}, v{vT+1}, 11, v{vT}"); a(f"v_lshlrev_b32 v{vT+2}, 4, v{vT+2}")
    a(f"s_lshl_b32 s{sT}, s{sK}, 18"); a(f"v_add_u32 v{vX0}, s{sT}, v{vT+2}"); a(f"v_xor_b32 v{vX1}, 512, v{vX0}")
    a(f"v_lshlrev_b32 v{vT+2}, 3, v{vT}"); a(f"v_lshl_add_u32 v{vT+2}, v{vT+1}, 15, v{vT+2}")
    a(f"s_lshl_b32 s{sT}, s{sN}, 12"); a(f"v_add_u32 v{vT+2}, s{sT}, v{vT+2}")
    a(f"v_lshlrev_b32 v{vO}, 11, v{vT}"); a(f"v_lshl_add_u32 v{vO}, v{vT+1}, 4, v{vO}")
    a(f"s_lshl_b32 s{sT}, s{sN}, 1"); a(f"v_add_u32 v{vO}, s{sT}, v{vO}")
    a(f"v_bfe_u32 v{vT+3}, v{vL}, 2, 2"); a(f"v_lshl_add_u32 v{vT+3}, v{vT+1}, 3, v{vT+3}"); a(f"v_lshlrev_b32 v{vWc}, 7, v{vT+3}")
    a(f"v_bfe_u32 v{vT+3}, v{vL}, 4, 1"); a(f"v_lshl_add_u32 v{vWc}, v{vT+3}, 5, v{vWc}")
    a(f"v_and_b32 v{vT+3}, 1, v{vL}"); a(f"v_lshl_add_u32 v{vWc}, v{vT+3}, 4, v{vWc}")
    a(f"v_bfe_u32 v{vT+3}, v{vL}, 1, 1"); a(f"v_lshl_add_u32 v{vWc}, v{vT+3}, 3, v{vWc}")
    a(f"v_bfe_u32 v{vT+3}, v{vL}, 3, 1"); a(f"v_lshl_add_u32 v{vWc}, v{vT+3}, 6, v{vWc}")
    a(f"s_lshl_b32 s{sT}, s{sK}, 13"); a(f"v_add_u32 v{vWc}, s{sT}, v{vWc}")
    a(f"v_xor_b32 v{vWc+1}, 64, v{vWc}")
    a(f"v_add_u32 v{vWn}, {4*SLOT}, v{vWc}"); a(f"v_add_u32 v{vWn+1}, {4*SLOT}, v{vWc+1}")
    a(f"s_lshl_b32 s{sT}, s{sWave}, 13"); a(f"s_add_u32 s{sT}, s{sT}, {XCH}")
    a(f"v_lshlrev_b32 v{vE}, 4, v{vL}"); a(f"v_add_u32 v{vE}, s{sT}, v{vE}"); a(f"v_xor_b32 v{vE2}, 8192, v{vE}")
    srd(a, sO, pOUT, 2048*1024*2)
    a(f"v_and_b32 v{vT+4}, 7, v{vL}"); a(f"v_bfe_u32 v{vT+3}, v{vL}, 3, 2"); a(f"v_lshl_add_u32 v{vT+4}, v{vT+3}, 6, v{vT+4}")
    a(f"v_lshlrev_b32 v{vT+4}, 6, v{vT+4}")
    a(f"s_lshl_b32 s{sT+5}, s{sT+5}, 9"); a(f"s_add_u32 s{sT+5}, s{sT+5}, {2*16384}")
    a(f"s_mov_b32 s{sOW}, {4*128*2048}"); a(f"s_mov_b32 s{sOX}, 0"); a(f"s_mov_b32 s{sOX2}, 65536")
    a(f"s_mov_b32 s{sBase}, 0"); a(f"s_mov_b32 s{sIt}, 1")
    a("s_waitcnt vmcnt(0)")
    a("s_barrier")
    set_flag(g, 2, 22)
    g.stamp()
    for i in range(8):
        a(f"s_mov_b32 s{sT}, {((i>>1)*4 + (i&1))*16384}")
        a(f"buffer_load_dwordx2 {vr(HR+2*i,2)}, v{vT+2}, {sr(sH,4)}, s{sT} offen {SC}")
    def wread(st, s2, t, j, reg, imm0):
        return f"ds_read_b64_tr_b16 {ar(WF+st*16+s2*8+t*4+j*2,2)}, v{reg+t} offset:{imm0 + (16*s2 + 4*j)*128}"
    for s2 in range(2):
        for t in range(2):
            for j in range(2): a(wread(0, s2, t, j, vWc, 0))
    poll_flags(g, vT+4, sT+5, 22)
    g.stamp()
    vm = VM()
    def dma(i): return f"buffer_load_dwordx4 v{vDMA+i}, {sr(sW,4)}, s{sOW} offen offset:{1024*i} lds"
    def xload(slot, s2, j):
        return f"buffer_load_dwordx4 {ar(XR+slot*16+s2*8+j*4,4)}, v{vX0+j}, {sr(sX,4)}, s{sOX2 if s2 else sOX} offen {SC}"
    def x_adv(ss):
        d = (4 if ss == 0 else 12) * 32768
        return [f"s_add_u32 s{sOX}, s{sOX}, {d}", f"s_add_u32 s{sOX2}, s{sOX2}, {d}"]
    for x in range(7):
        for s2 in range(2):
            for j in range(2): a(xload(x, s2, j)); vm.add(f"X{x}")
        for ins in x_adv(x & 1): a(ins)
    def body(first, base):
        for u in range(8):
            ss = u & 1; stg = u >> 1
            a(f"s_waitcnt vmcnt({vm.wait_for(f'X{base+u}')}) lgkmcnt(0)")
            if ss == 1: a("s_barrier")
            gaps = {k: [] for k in range(8)}; tags = {k: [] for k in range(8)}
            nu = (u + 1) % 8
            reg = vWn if u == 7 else vWc
            imm0 = (nu >> 1) * SLOT + (nu & 1) * 32 * 128
            k = 0
            for s2 in range(2):
                for t in range(2):
                    for j in range(2):
                        gaps[k // 2].append(wread(1 - ss, s2, t, j, reg, imm0)); k += 1
            if ss == 1:
                if stg + 1 < 4: gaps[0].insert(0, f"s_add_u32 m0, s{sB}, {(stg+1)*SLOT}")
                else: gaps[0].insert(0, f"s_mov_b32 m0, s{sA}")
                gaps[1].append(dma(0)); gaps[2].append(dma(1))
            else:
                gaps[1].append(dma(2)); gaps[2].append(dma(3))
                gaps[3].append(f"s_add_u32 s{sOW}, s{sOW}, {128*2048}")
            tags[1].append("D"); tags[2].append("D")
            xs = (u - 1) % 8
            k = 4
            for s2 in range(2):
                for j in range(2):
                    gaps[k].append(xload(xs, s2, j)); tags[k].append(f"X{base+u+7}"); k += 1
            gaps[7] += x_adv(xs & 1)
            if u == 0:
                gaps[4].insert(0, f"s_add_u32 s{sA}, s{sM0}, s{sBase}")
                gaps[5].insert(0, f"s_xor_b32 s{sBase}, s{sBase}, {4*SLOT}")
                gaps[6].insert(0, f"s_add_u32 s{sB}, s{sM0}, s{sBase}")
            if u == 7:
                gaps[5].append(f"v_swap_b32 v{vWc}, v{vWn}"); gaps[6].append(f"v_swap_b32 v{vWc+1}, v{vWn+1}")
                if not first:
                    gaps[7].append(f"s_add_u32 s{sIt}, s{sIt}, 1"); gaps[7].append(f"s_cmp_lt_u32 s{sIt}, 7")
            k = 0
            for s2 in range(2):
                for (t, j) in ((0,0),(0,1),(1,1),(1,0)):
                    c = "0" if (first and u == 0 and s2 == 0) else vr(acc(j,t),16)
                    a(f"v_mfma_f32_32x32x16_bf16 {vr(acc(j,t),16)}, {ar(WF+ss*16+s2*8+t*4,4)}, {ar(XR+u*16+s2*8+j*4,4)}, {c}")
                    for ins in gaps[k]: a(ins)
                    for tg in tags[k]: vm.add(tg)
                    k += 1
    body(True, 0)
    loop = a.label("g2loop")
    a(f"{loop}:")
    body(False, 8)
    a(f"s_cbranch_scc1 {loop}")
    g.stamp()
    a("s_nop 15")
    for i in range(8): a(f"ds_write_b128 v{vE}, {vr(acc(1,0)+4*i,4)} offset:{1024*i}")
    a("s_waitcnt lgkmcnt(0)")
    a("s_barrier")
    for i in range(8): a(f"ds_read_b128 {vr(acc(1,0)+4*i,4)}, v{vE2} offset:{1024*i}")
    for i in range(4):
        b = acc(0,0) + 8*i; p = acc(1,0) + 8*i; hreg = HR + 4*i
        a(f"s_waitcnt lgkmcnt({6-2*i})")
        for e in range(4): a(f"v_pk_add_f32 {vr(b+2*e,2)}, {vr(b+2*e,2)}, {vr(p+2*e,2)}")
        for e in range(4): a(f"v_cvt_pk_bf16_f32 v{p+e}, v{b+2*e}, v{b+2*e+1}")
        for e in range(4):
            a(f"v_lshlrev_b32 v{b+2*e}, 16, v{p+e}"); a(f"v_and_b32 v{b+2*e+1}, 0xffff0000, v{p+e}")
        for e in range(4):
            a(f"v_lshlrev_b32 v{p+2*e}, 16, v{hreg+e}"); a(f"v_and_b32 v{p+2*e+1}, 0xffff0000, v{hreg+e}")
        for e in range(4): a(f"v_pk_add_f32 {vr(b+2*e,2)}, {vr(b+2*e,2)}, {vr(p+2*e,2)}")
        for e in range(4): a(f"v_cvt_pk_bf16_f32 v{hreg+e}, v{b+2*e}, v{b+2*e+1}")
        a(f"buffer_store_dwordx4 {vr(hreg,4)}, v{vO}, {sr(sO,4)}, 0 offen offset:{32*i}")

def gen_mega(dbg=False, as_list=False, p01={}, g1={}):
    g = G(dbg); a = g.a
    end = a.label("end")
    a(f"s_cmp_ge_u32 s2, 256"); a(f"s_cbranch_scc1 {end}")
    phase01(g, **p01); phase_gemm1(g, **g1); phase_gemm2(g)
    if dbg:
        g.stamp()
        a("s_waitcnt vmcnt(0)")
        g.stamp()
        srd(a, 4, pWS, 1 << 19, M_DBG)
        a(f"v_lshlrev_b32 v1, 2, v{vL}")
        a(f"s_lshl_b32 s{sT}, s2, 2"); a(f"s_add_u32 s{sT}, s{sT}, s{sWave}"); a(f"s_lshl_b32 s{sT}, s{sT}, 8")
        a(f"buffer_store_dword v{vSTAMP}, v1, s[4:7], s{sT} offen")
    a(f"{end}:")
    a("s_endpgm")
    k = f"kernel={NAME} " if as_list else ""
    launch = f"; @launch {k}grid=(256,1,1) block=(256,1,1) lds=163840\n"
    return launch, kernel_header(NAME) + a.text(), kernel_desc(NAME, 512, 256)

if __name__ == "__main__":
    from mk import *
    mk([gen_mega(dbg=True, as_list=True)], 'mega_dbg.s')
    mk([gen_mega(dbg=True, as_list=True, g1=dict(XF='sc1 nt'))], 'mega_b.s')
    mk([gen_mega(dbg=True, as_list=True, g1=dict(XF='sc1'), p01=dict(XNT='nt'))], 'mega_c.s')
    assemble([gen_mega(dbg=False)], 'mega_single.s')
```

```python
from common import *
LOG2E = 1.4426950408889634
NAME = "sequential_preLN__ssm_conv_s4d__geglu_ffn__prompt_kernel"

M_H4  = 0x0000000
M_ACT = 0x0400000
M_ST2 = 0x1200000
M_FLG = 0x1210000
M_CS  = 0x1220000
M_DBG = 0x1280000
M_U2  = 0x1300000
M_END = 0x1b00000

pU, pLOGA, pAIM, pCRE, pCIM, pLOGDT, pDSKIP, pBX, pWG, pWU, pWD, pOUT, pDBG, pWS = [64 + 2*i for i in range(14)]
sNON = 92; sWave = 94; sCG = 95; sTO = 96
sFLG = 60
sT = 48
vL = 30; vSTAMP = 31
SC = "sc0 sc1"

SLOT1 = 28800; UPOFF = 14464
UCS = 4512; UCH = 4*UCS; UPAD = 400
KCS = 4224; KCH = 8448; KPAD = 112
UBASE = 2*SLOT1
KBASE = UBASE + 4*UCH
SBASE = KBASE + 4*KCH
PBASE = 4*SLOT1
RS = 528; TOFF = 24*RS + 16
NBASE = SBASE + 240
assert SBASE + 256 <= 163840

class G:
    def __init__(self, dbg):
        self.a = Asm("mk"); self.dbg = dbg; self.nst = 0
    def stamp(self):
        if not self.dbg: return
        a = self.a
        a("s_memrealtime s[98:99]"); a("s_memtime s[100:101]"); a("s_waitcnt lgkmcnt(0)")
        a(f"v_writelane_b32 v{vSTAMP}, s98, {self.nst}"); a(f"v_writelane_b32 v{vSTAMP}, s100, {32+self.nst}")
        self.nst += 1

def cmul(a, d, x, y, conj_out=False):
    n1 = " neg_hi:[0,1]" if conj_out else ""
    n2 = " neg_hi:[0,1,0]" if conj_out else ""
    a(f"v_pk_mul_f32 {vr(d,2)}, {vr(x,2)}, {vr(y,2)} op_sel_hi:[0,1]{n1}")
    a(f"v_pk_fma_f32 {vr(d,2)}, {vr(x,2)}, {vr(y,2)}, {vr(d,2)} op_sel:[1,1,0] op_sel_hi:[1,0,1] neg_lo:[0,1,0]{n2}")

def red4(v, t):
    o = []
    for d in (4, 8):
        o += [f"v_add_f32_dpp v{v+e}, v{v+e}, v{v+e} row_ror:{d} row_mask:0xf bank_mask:0xf" for e in range(4)]
    for op in ("v_permlane16_swap_b32", "v_permlane32_swap_b32"):
        o += [f"v_mov_b32 v{t+e}, v{v+e}" for e in range(4)]
        o += [f"{op} v{t+e}, v{v+e}" for e in range(4)]
        o += [f"v_add_f32 v{v+e}, v{v+e}, v{t+e}" for e in range(4)]
    return o

def stats_final(W, t):
    o = [f"v_mul_f32 v{W+e}, {f32(1/1024)}, v{W+e}" for e in range(4)]
    o += [f"v_fma_f32 v{W+2+e}, -v{W+e}, v{W+e}, v{W+2+e}" for e in range(2)]
    o += [f"v_max_f32 v{W+2+e}, 0, v{W+2+e}" for e in range(2)]
    def rnd(b): return [f"v_cvt_pk_bf16_f32 v{t}, v{b}, v{b+1}", f"v_lshlrev_b32 v{b}, 16, v{t}", f"v_and_b32 v{b+1}, 0xffff0000, v{t}"]
    o += rnd(W+2)
    o += [f"v_add_f32 v{W+2+e}, {f32(1e-5)}, v{W+2+e}" for e in range(2)]
    o += rnd(W+2)
    o += [f"v_sqrt_f32 v{W+2+e}, v{W+2+e}" for e in range(2)]
    o += rnd(W)
    o += rnd(W+2)
    o += [f"v_rcp_f32 v{W+2+e}, v{W+2+e}" for e in range(2)]
    o += ["s_nop 0"]
    return o

def ln_stats8(a, pairs, T, W):
    for k, (r0, r1) in enumerate(pairs):
        a(f"v_lshlrev_b32 v{T+4*k}, 16, v{r0}"); a(f"v_lshlrev_b32 v{T+4*k+1}, 16, v{r1}")
        a(f"v_and_b32 v{T+4*k+2}, 0xffff0000, v{r0}"); a(f"v_and_b32 v{T+4*k+3}, 0xffff0000, v{r1}")
    a(f"v_pk_add_f32 {vr(W,2)}, {vr(T,2)}, {vr(T+4,2)}"); a(f"v_pk_mul_f32 {vr(W+2,2)}, {vr(T,2)}, {vr(T,2)}")
    a(f"v_pk_add_f32 {vr(W+4,2)}, {vr(T+2,2)}, {vr(T+6,2)}"); a(f"v_pk_mul_f32 {vr(W+6,2)}, {vr(T+2,2)}, {vr(T+2,2)}")
    for k in range(2, 16):
        b = W + 4*(k & 1)
        if k >= 4: a(f"v_pk_add_f32 {vr(b,2)}, {vr(b,2)}, {vr(T+2*k,2)}")
        a(f"v_pk_fma_f32 {vr(b+2,2)}, {vr(T+2*k,2)}, {vr(T+2*k,2)}, {vr(b+2,2)}")
    a(f"v_pk_add_f32 {vr(W,2)}, {vr(W,2)}, {vr(W+4,2)}"); a(f"v_pk_add_f32 {vr(W+2,2)}, {vr(W+2,2)}, {vr(W+6,2)}")
    a(f"v_and_b32 v{W+24}, 3, v{vL}"); a(f"v_lshlrev_b32 v{W+24}, 4, v{W+24}"); a(f"v_add_u32 v{W+24}, {SBASE}, v{W+24}")
    a(f"s_lshl_b32 s{sT}, s{sWave}, 6"); a(f"v_add_u32 v{W+25}, s{sT}, v{W+24}")
    for ins in red4(W, W+4): a(ins)
    a(f"ds_write_b128 v{W+25}, {vr(W,4)}")
    a("s_waitcnt lgkmcnt(0)"); a("s_barrier")
    E = W + 8
    for w in range(4): a(f"ds_read_b128 {vr(E+4*w,4)}, v{W+24} offset:{64*w}")
    a("s_waitcnt lgkmcnt(0)")
    a(f"v_pk_add_f32 {vr(W,2)}, {vr(E,2)}, {vr(E+4,2)}"); a(f"v_pk_add_f32 {vr(W+4,2)}, {vr(E+8,2)}, {vr(E+12,2)}")
    a(f"v_pk_add_f32 {vr(W+2,2)}, {vr(E+2,2)}, {vr(E+6,2)}"); a(f"v_pk_add_f32 {vr(W+6,2)}, {vr(E+10,2)}, {vr(E+14,2)}")
    a(f"v_pk_add_f32 {vr(W,2)}, {vr(W,2)}, {vr(W+4,2)}"); a(f"v_pk_add_f32 {vr(W+2,2)}, {vr(W+2,2)}, {vr(W+6,2)}")
    for ins in stats_final(W, W+4): a(ins)

TIMEOUT = 400000
def set_flag(g, which, tmp):
    a = g.a
    sk = a.label("fl")
    a(f"s_cmp_lg_u32 s{sWave}, 0"); a(f"s_cbranch_scc1 {sk}")
    a(f"s_lshl_b32 s{sT}, s2, 6"); a(f"s_add_u32 s{sT}, s{sT}, {which*16384}")
    a(f"v_mov_b32 v{tmp}, s{sNON}"); a(f"v_mov_b32 v{tmp+1}, s{sNON+1}"); a(f"v_mov_b32 v{tmp+2}, 0")
    a("s_mov_b64 exec, 1")
    a(f"buffer_store_dwordx2 {vr(tmp,2)}, v{tmp+2}, {sr(sFLG,4)}, s{sT} offen {SC}")
    a("s_mov_b64 exec, -1")
    a(f"{sk}:")

def poll_flags(g, voff, soff, tmp, preloaded=False):
    a = g.a
    lp = a.label("poll"); dn = a.label("pdone"); pre = a.label("ppre")
    a(f"s_mov_b32 s{sTO}, 0")
    if preloaded: a(f"s_branch {pre}")
    a(f"{lp}:")
    a(f"buffer_load_dwordx2 {vr(tmp,2)}, v{voff}, {sr(sFLG,4)}, s{soff} offen {SC}")
    if preloaded: a(f"{pre}:")
    a("s_waitcnt vmcnt(0)")
    a(f"v_cmp_ne_u64 vcc, {sr(sNON,2)}, {vr(tmp,2)}")
    a(f"s_cbranch_vccz {dn}")
    a("s_mov_b64 exec, vcc")
    a(f"s_add_u32 s{sTO}, s{sTO}, 1"); a(f"s_cmp_lt_u32 s{sTO}, {TIMEOUT}"); a(f"s_cbranch_scc1 {lp}")
    a(f"{dn}:")
    a("s_mov_b64 exec, -1")

class VM:
    def __init__(self): self.ops = []
    def add(self, tag): self.ops.append(tag)
    def wait_for(self, tag):
        idx = max(i for i, t in enumerate(self.ops) if t == tag)
        n = len(self.ops) - 1 - idx
        assert n <= 63, n
        return n


pDMA = 224
pX = 231; pST = 232; pWc = 233; pO = 234; pSR = 235; pTch = 236
sG_W = 4
sG_OW = 22; sG_M0 = 24; sG_F = 27; sG_R = 31; sG_SR = 35; sG_TN = 34; sG_TM = 33

def g1_dma(reg, i, fl=""):
    return f"buffer_load_dwordx4 v{reg+i}, {sr(sG_W,4)}, s{sG_OW} offen offset:{(i & 3)*1024} {fl} lds"
sG_OWN = 19; sG_OWN2 = 18
def g1_wadv(kind):
    if kind == "even": return [f"s_add_u32 s{sG_OW}, s{sG_OW}, {64*7168}"]
    first = f"s_mov_b32 s{sG_OW}, 0" if kind == "own" else f"s_add_u32 s{sG_OW}, s{sG_OW}, {64*7168}"
    return [first, f"s_cmp_eq_u32 s{sG_OW}, s{sG_OWN}", f"s_cselect_b32 s{sG_OW}, s{sG_OWN2}, s{sG_OW}"]

def gemm1_addr(g):
    a = g.a
    t0 = 240; sM = 26
    a(f"s_and_b32 s{sT}, s2, 7")
    a(f"s_bfe_u32 s{sG_TM}, s2, 0x30003")
    a(f"s_lshl_b32 s{sG_TN}, s{sT}, 2"); a(f"s_lshr_b32 s{sT+2}, s2, 6"); a(f"s_add_u32 s{sG_TN}, s{sG_TN}, s{sT+2}")
    a(f"s_lshl_b32 s{sM}, s{sG_TM}, 8")
    a(f"s_lshl_b32 s{sG_R}, s{sG_TN}, 3"); a(f"s_add_u32 s{sG_R}, s{sG_R}, s{sM}")
    a(f"s_mul_i32 s{sG_F}, s{sG_TN}, 112")
    a(f"s_cmp_ge_u32 s{sWave}, 2")
    a(f"s_cselect_b32 s{sG_W}, s{pWU}, s{pWG}"); a(f"s_cselect_b32 s{sG_W+1}, s{pWU+1}, s{pWG+1}")
    a(f"s_mov_b32 s{sG_W+2}, {SZ_W}"); a(f"s_mov_b32 s{sG_W+3}, 0x20000")
    a(f"s_and_b32 s{sT}, s{sWave}, 1"); a(f"s_mul_i32 s{sT+1}, s{sT}, 448"); a(f"s_lshl_b32 s{sT+2}, s{sG_F}, 1")
    for i in range(7):
        imm = (i & 3) * 1024
        a(f"v_add_u32 v{t0}, s{sT+1}, v{vL}")
        if i: a(f"v_add_u32 v{t0}, {64*i}, v{t0}")
        a(f"v_mul_u32_u24 v{t0+1}, 4682, v{t0}"); a(f"v_lshrrev_b32 v{t0+1}, 16, v{t0+1}")
        a(f"v_mul_u32_u24 v{t0+1}, {7168-224}, v{t0+1}")
        a(f"v_lshl_add_u32 v{t0+1}, v{t0}, 4, v{t0+1}")
        a(f"v_add_u32 v{pDMA+i}, s{sT+2}, v{t0+1}")
        if imm: a(f"v_subrev_u32 v{pDMA+i}, {imm}, v{pDMA+i}")
    a(f"v_and_b32 v{t0+3}, 3, v{vL}")
    a(f"s_mul_i32 s{sG_M0}, s{sT}, 7168"); a(f"s_lshr_b32 s{sT}, s{sWave}, 1"); a(f"s_mul_i32 s{sT}, s{sT}, {UPOFF}")
    a(f"s_add_u32 s{sG_M0}, s{sG_M0}, s{sT}")
    a(f"s_mul_i32 s{sG_OW}, s{sG_TM}, {128*7168}")
    a(f"s_mov_b32 s{sG_OWN}, s{sG_OW}"); a(f"s_add_u32 s{sG_OWN2}, s{sG_OW}, {128*7168}")
    a(f"s_lshl_b32 s{sT}, s{sWave}, 6"); a(f"s_add_u32 s{sM}, s{sM}, s{sT}")
    a(f"v_and_b32 v{t0}, 31, v{vL}"); a(f"v_add_u32 v{t0}, s{sM}, v{t0}")
    a(f"v_lshlrev_b32 v{pST}, 4, v{t0}")
    a(f"v_lshrrev_b32 v{t0+1}, 5, v{vL}")
    a(f"v_lshlrev_b32 v{pX}, 3, v{t0}"); a(f"v_lshl_add_u32 v{pX}, v{t0+1}, 15, v{pX}")
    a(f"v_lshl_add_u32 v{pO}, v{t0+1}, 15, v{pST}"); a(f"s_lshl_b32 s{sT}, s{sG_F}, 12"); a(f"v_add_u32 v{pO}, s{sT}, v{pO}")
    a(f"v_bfe_u32 v{t0+2}, v{vL}, 2, 2"); a(f"v_lshl_add_u32 v{t0+2}, v{t0+1}, 3, v{t0+2}")
    a(f"v_mul_u32_u24 v{pWc}, 224, v{t0+2}")
    a(f"v_bfe_u32 v{t0+2}, v{vL}, 1, 1"); a(f"v_mul_u32_u24 v{t0+2}, {UPOFF}, v{t0+2}"); a(f"v_add_u32 v{pWc}, v{pWc}, v{t0+2}")
    a(f"v_and_b32 v{t0+2}, 1, v{vL}"); a(f"v_lshl_add_u32 v{pWc}, v{t0+2}, 4, v{pWc}")
    a(f"v_bfe_u32 v{t0+2}, v{vL}, 4, 1"); a(f"v_lshl_add_u32 v{pWc}, v{t0+2}, 3, v{pWc}")
    a(f"v_lshrrev_b32 v{pSR}, 2, v{vL}"); a(f"v_lshlrev_b32 v{pSR}, 14, v{pSR}"); a(f"v_lshl_add_u32 v{pSR}, v{t0+3}, 4, v{pSR}")
    a(f"s_lshl_b32 s{sG_SR}, s{sWave}, 20"); a(f"s_lshl_b32 s{sT}, s{sG_R}, 3"); a(f"s_add_u32 s{sG_SR}, s{sG_SR}, s{sT}")

def phase01(g, ORDER="LSM", KMID=1, DPOST=7, XNT="nt", TOUCH=False, DNT="", DSP=18):
    a = g.a
    vm = VM()
    a("s_load_dwordx16 s[64:79], s[0:1], 0")
    a("s_load_dwordx8 s[80:87], s[0:1], 64")
    a("s_load_dwordx4 s[88:91], s[0:1], 96")
    a(f"s_memrealtime {sr(sT+2,2)}")
    a(f"v_lshrrev_b32 v2, 6, v0")
    a(f"v_and_b32 v{vL}, 63, v0")
    a(f"v_readfirstlane_b32 s{sWave}, v2")
    a(f"s_and_b32 s{sT}, s2, 7"); a(f"s_lshl_b32 s{sT}, s{sT}, 5")
    a(f"s_lshr_b32 s{sCG}, s2, 3"); a(f"s_add_u32 s{sCG}, s{sCG}, s{sT}")
    if g.dbg: a(f"v_mov_b32 v{vSTAMP}, 0")
    a(f"v_and_b32 v3, 3, v{vL}"); a(f"v_lshrrev_b32 v4, 2, v{vL}")
    a(f"v_lshlrev_b32 v5, 12, v3"); a(f"v_lshl_add_u32 v5, v4, 4, v5")
    a(f"s_lshl_b32 s{sT}, s2, 14"); a(f"s_lshl_b32 s{sT+1}, s{sWave}, 9"); a(f"s_add_u32 s{sT}, s{sT}, s{sT+1}")
    a(f"v_mov_b32 v1, 0")
    sD = 97
    a(f"s_lshl_b32 s{sD}, s{sCG}, 2"); a(f"s_add_u32 s{sD}, s{sD}, s{sWave}")
    a(f"s_lshl_b32 s{sT+4}, s{sD}, 8"); a(f"v_lshlrev_b32 v2, 2, v{vL}")
    a(f"s_lshl_b32 s{sT+5}, s{sD}, 1")
    vF = 29; vR = 8
    a(f"v_lshlrev_b32 v{vF}, 6, v0"); a(f"v_lshlrev_b32 v{vR}, 4, v0")
    a("s_waitcnt lgkmcnt(0)")
    g.stamp()
    sX = 36; sDB = 8; sU2 = 40; sH = 44; sP = 12
    srd(a, sDB, pDBG, 256)
    nn = a.label("nn")
    a(f"s_or_b32 s{sT+1}, s2, s{sWave}"); a(f"s_cmp_lg_u32 s{sT+1}, 0"); a(f"s_cbranch_scc1 {nn}")
    a(f"s_or_b32 s{sT+2}, s{sT+2}, 1")
    a(f"v_mov_b32 v6, s{sT+2}"); a(f"v_mov_b32 v7, s{sT+3}")
    a("s_mov_b64 exec, 0xf")
    a(f"buffer_store_dwordx2 v[6:7], v{vF}, {sr(sDB,4)}, 0 offen {SC}")
    a("s_mov_b64 exec, -1")
    a(f"{nn}:")
    PR = 24; XD = 32
    def ld_params():
        for i, p in enumerate((pLOGA, pAIM, pCRE, pCIM)):
            srd(a, sP+4*i, p, 1024*256)
            a(f"buffer_load_dword v{PR+i}, v2, {sr(sP+4*i,4)}, s{sT+4} offen"); vm.add("P")
        srd(a, 28, pLOGDT, 2048)
        a(f"buffer_load_ushort v{PR+4}, v1, s[28:31], s{sT+5} offen"); vm.add("P")
    def ld_x():
        srd(a, sX, pU, 2048*2048)
        for e in range(2):
            for i in range(2):
                a(f"buffer_load_dwordx4 {vr(XD+8*e+4*i,4)}, v5, {sr(sX,4)}, s{sT} offen offset:{2048*e+256*i} {XNT}"); vm.add("X")
    if ORDER[0] == "S": ld_params(); ld_x()
    else: ld_x(); ld_params()
    if TOUCH:
        srd(a, sX, pWS, M_END)
        a(f"v_lshlrev_b32 v6, 21, v{vL}"); a(f"v_lshlrev_b32 v7, 7, v{vL}"); a(f"v_add_u32 v6, v6, v7")
        a(f"buffer_load_dword a204, v6, {sr(sX,4)}, 0 offen"); vm.add("T")
        srd(a, sX, pOUT, 4 << 20)
        a(f"buffer_load_dword a205, v6, {sr(sX,4)}, 0 offen"); vm.add("T")
        a(f"buffer_load_dword a206, v1, {sr(sDB,4)}, 0 offen sc1"); vm.add("T")
    srd(a, sFLG, pWS, 4*16384, M_FLG)
    srd(a, sU2, pWS, 8 << 20, M_U2); srd(a, sH, pWS, 4 << 20, M_H4)
    a(f"s_lshl_b32 s{sT+1}, s{sCG}, 3")
    a(f"s_load_dwordx2 s[58:59], {sr(pDSKIP,2)}, s{sT+1}")
    a(f"v_lshlrev_b32 v6, 15, v4"); a(f"v_lshl_add_u32 v6, v3, 4, v6")
    nu = 9; vG = 19
    a(f"v_and_b32 v{nu}, 15, v{vL}"); a(f"v_lshrrev_b32 v{vG}, 4, v{vL}")
    sUB = sT+8; sKB = sT+9; sTB = sT+7
    a(f"s_mul_i32 s{sUB}, s{sWave}, {UCH}"); a(f"s_add_u32 s{sUB}, s{sUB}, {UBASE}")
    a(f"s_mul_i32 s{sKB}, s{sWave}, {KCH}"); a(f"s_add_u32 s{sKB}, s{sKB}, {KBASE}")
    a(f"s_add_u32 s{sTB}, s{sUB}, {TOFF}")
    vTa = 10; vTb = 11; vTc = 12; vTw = 13; vO1 = 15; vO2 = 18
    a(f"v_lshlrev_b32 v16, 7, v{vG}"); a(f"v_add_u32 v16, s{sUB}, v16")
    a(f"v_bfe_u32 v17, v{vL}, 2, 2"); a(f"v_mul_u32_u24 v{vTa}, {RS}, v17"); a(f"v_add_u32 v{vTa}, v{vTa}, v16")
    a(f"v_mul_u32_u24 v{vTb}, {RS}, v3")
    a(f"v_bfe_u32 v17, v{vL}, 3, 1"); a(f"v_lshlrev_b32 v{vTc}, v17, v{vTb}")
    a(f"v_add_u32 v{vTb}, v{vTb}, v16"); a(f"v_add_u32 v{vTc}, v{vTc}, v16")
    a(f"v_lshlrev_b32 v{vTw}, 3, v{vL}"); a(f"v_add_u32 v{vTw}, s{sUB}, v{vTw}")
    a(f"v_mov_b32 v16, 0x3c00"); a(f"v_mov_b32 v17, 0x3c00")
    for e in (0, 4, 12): a(f"ds_write_b64 v{vTw}, v[16:17] offset:{e*RS}")
    a(f"v_lshlrev_b32 v{vO1}, 6, v{nu}"); a(f"v_lshl_add_u32 v{vO1}, v{vG}, 3, v{vO1}"); a(f"v_add_u32 v{vO1}, s{sTB}, v{vO1}")
    a(f"v_lshlrev_b32 v22, 4, v{nu}"); a(f"v_lshl_add_u32 v22, v{vG}, 3, v22"); a(f"v_add_u32 v22, 1024, v22")
    a(f"v_lshlrev_b32 v23, 3, v{nu}"); a(f"v_lshl_add_u32 v23, v{vG}, 7, v23"); a(f"v_add_u32 v23, {1280-256}, v23")
    a(f"v_cmp_gt_u32 vcc, 32, v{vL}"); a("s_nop 1")
    a(f"v_cndmask_b32 v{vO2}, v23, v22, vcc"); a(f"v_add_u32 v{vO2}, s{sTB}, v{vO2}")
    SA = 184
    def sel(dst, lo32, hi32):
        a(f"v_mov_b32 v{dst}, {hi32:#x}"); a(f"v_mov_b32 v22, {lo32:#x}"); a(f"v_cndmask_b32 v{dst}, v{dst}, v22, vcc")
    sel(SA, 0x01000302, 0x01000100); sel(SA+1, 0x01000302, 0x01000504); sel(SA+2, 0x03020504, 0x01000504); sel(SA+3, 0x03020504, 0x05040504)
    a(f"v_mov_b32 v{SA+4}, v{SA+3}")
    a(f"s_mov_b32 s{sT+3}, 0x03020504"); a(f"v_writelane_b32 v{SA+4}, s{sT+3}, 32")
    a(f"s_mov_b32 s{sT+2}, 0x0c0c0504"); a(f"v_writelane_b32 v{SA+4}, s{sT+2}, 0")
    vK = 20; vK2 = 21; vZ = 14
    a(f"v_lshlrev_b32 v22, 4, v{vL}"); a(f"v_add_u32 v{vK}, s{sKB}, v22"); a(f"v_add_u32 v{vK2}, v{vK}, v22")
    a(f"v_add_u32 v{vZ}, s{sUB}, v22")
    ZR = 180
    for r in range(ZR, ZR+4): a(f"v_mov_b32 v{r}, 0")
    a("s_mov_b64 exec, 0x7f")
    a(f"ds_write_b128 v{vK}, {vr(ZR,4)}"); a(f"ds_write_b128 v{vK}, {vr(ZR,4)} offset:{KCS}")
    a("s_mov_b64 exec, -1")
    vA = 4; vB = 5; vY = 7
    a(f"v_and_b32 v22, 1, v{vL}"); a(f"v_mul_u32_u24 v{vA}, {KCS}, v22")
    a(f"v_bfe_u32 v22, v{vL}, 1, 3"); a(f"v_sub_u32 v22, v22, v{vG}"); a(f"v_add_u32 v22, 3, v22")
    a(f"v_lshl_add_u32 v{vA}, v22, 4, v{vA}"); a(f"v_add_u32 v{vA}, s{sKB}, v{vA}")
    a(f"v_mul_u32_u24 v{vB}, {UCS}, v3")
    a(f"v_bfe_u32 v22, v{vL}, 2, 2"); a(f"v_lshl_add_u32 v23, v22, 3, v{vG}")
    a(f"v_lshl_add_u32 v{vB}, v23, 4, v{vB}"); a(f"v_add_u32 v{vB}, s{sUB}, v{vB}")
    a(f"v_lshlrev_b32 v{vY}, 5, v22"); a(f"v_lshl_add_u32 v{vY}, v{vG}, 3, v{vY}"); a(f"v_add_u32 v{vY}, v{vY}, v3")
    a(f"v_lshlrev_b32 v{vY}, 2, v{vY}"); a(f"v_add_u32 v{vY}, s{sKB}, v{vY}")
    vUC = 190
    a(f"v_lshlrev_b32 v22, 2, v0")
    for c in range(4):
        for ch in range(2): a(f"v_add_u32 v{vUC+2*c+ch}, {UBASE + ch*UCH + c*UCS + UPAD - 4*(c+1)}, v22")
    gemm1_addr(g)
    bgl = []
    for stg in range(2):
        for i in range(7):
            grp = []
            if i in (0, 4): grp += [(f"s_add_u32 m0, s{sG_M0}, {stg*SLOT1 + (4096 if i else 0)}", None), ("s_nop 0", None)]
            grp.append((g1_dma(pDMA, i, DNT), "D"))
            if i == 6: grp += [(x, None) for x in g1_wadv('own' if stg else 'even')]
            bgl.append(grp)
    def take(n):
        out = bgl[:n]; del bgl[:n]; return out
    ACC = 48; vSC = 60

    def setup():
        a(f"s_waitcnt vmcnt({vm.wait_for('P')})")
        g.stamp()
        dt = PR+4
        Z = 64; C = 68; TT = 72
        a(f"v_lshlrev_b32 v{dt}, 16, v{dt}"); a(f"v_lshlrev_b32 v{TT}, 16, v{PR}"); a(f"v_and_b32 v{TT+1}, 0xffff0000, v{PR}")
        for r in (dt, TT, TT+1): a(f"v_mul_f32 v{r}, {f32(LOG2E)}, v{r}")
        for r in (dt, TT, TT+1): a(f"v_exp_f32 v{r}, v{r}")
        for k, b in ((1, Z+1), (2, C), (3, C+1)):
            a(f"v_lshlrev_b32 v{b}, 16, v{PR+k}"); a(f"v_and_b32 v{b+2}, 0xffff0000, v{PR+k}")
        a(f"v_cvt_pk_bf16_f32 v{dt}, v{dt}, v{dt}"); a(f"v_cvt_pk_bf16_f32 v{PR}, v{TT}, v{TT+1}")
        a(f"v_max3_f32 v{vSC}, |v{C}|, |v{C+1}|, |v{C+2}|"); a(f"v_max_f32 v{vSC}, |v{C+3}|, v{vSC}")
        a(f"v_lshlrev_b32 v{dt}, 16, v{dt}")
        a(f"v_lshlrev_b32 v{Z}, 16, v{PR}"); a(f"v_and_b32 v{Z+2}, 0xffff0000, v{PR}")
        red = [f"v_max_f32_dpp v{vSC}, v{vSC}, v{vSC} {m} row_mask:0xf bank_mask:0xf" for m in ("quad_perm:[1,0,3,2]", "quad_perm:[2,3,0,1]", "row_ror:4", "row_ror:8")]
        a(red[0])
        for i in range(4): a(f"v_mul_f32 v{Z+i}, v{Z+i}, v{dt}")
        a(red[1])
        for m in range(2):
            a(f"v_mul_f32 v{Z+2*m}, {f32(-LOG2E)}, v{Z+2*m}"); a(f"v_mul_f32 v{Z+2*m+1}, 0.15915494, v{Z+2*m+1}")
        a(red[2])
        names = [1, 2, 3, 4, 8, 12, 16, 20, 24, 28, 32, 64, 96, 128, 256, 512, 528, 1024, 1536, 2048, "R1", "R2", "R3"]
        E = {n: 88 + 4*i for i, n in enumerate(names)}
        AR = 76
        for i, p in enumerate((1, 32, 512)):
            for k in range(4):
                if p == 1: a(f"v_mov_b32 v{AR+4*i+k}, v{Z+k}")
                else: a(f"v_mul_f32 v{AR+4*i+k}, {f32(p)}, v{Z+k}")
            if i == 0: a(red[3])
        for i in range(6): a(f"v_fract_f32 v{AR+2*i+1}, v{AR+2*i+1}")
        for op in ("v_permlane16_swap_b32", "v_permlane32_swap_b32"):
            a(f"v_mov_b32 v{TT}, v{vSC}"); a("s_nop 1"); a(f"{op} v{TT}, v{vSC}"); a("s_nop 0"); a(f"v_max_f32 v{vSC}, v{vSC}, v{TT}")
        for i, p in enumerate((1, 32, 512)):
            for m in range(2):
                r = AR+4*i+2*m
                a(f"v_cos_f32 v{E[p]+2*m}, v{r+1}"); a(f"v_sin_f32 v{E[p]+2*m+1}, v{r+1}"); a(f"v_exp_f32 v{r}, v{r}")
        a(f"v_frexp_exp_i32_f32 v{TT}, v{vSC}")
        a(f"v_add_f32 v{dt}, v{dt}, v{dt}")
        a(f"v_ldexp_f32 v{vSC}, v{dt}, v{TT}")
        a(f"v_sub_u32 v{TT}, 0, v{TT}")
        for i, p in enumerate((1, 32, 512)):
            for m in range(2):
                a(f"v_pk_mul_f32 {vr(E[p]+2*m,2)}, {vr(E[p]+2*m,2)}, {vr(AR+4*i+2*m,2)} op_sel_hi:[1,0]")
        for k in range(4): a(f"v_ldexp_f32 v{C+k}, v{C+k}, v{TT}")
        E["C"] = C
        ent = {1: 1, 2: 2, 3: 3, 4: 5, 8: 6, 12: 7, 16: 8, 20: 9, 24: 10, 28: 11, 32: 13, 64: 14, 96: 15, "C": 16, "R1": 17, "R2": 18, "R3": 19,
               512: 20, 528: 21, 1024: 22, 1536: 23}
        wt = [0]
        def emit(n):
            if n not in ent: return
            t = AR + 2*(wt[0] % 6); wt[0] += 1
            ng = "-" if 12 <= ent[n] < 20 else ""
            for m in range(2): a(f"v_cvt_pk_f16_f32 v{t+m}, v{E[n]+2*m}, {ng}v{E[n]+2*m+1}")
            a(f"ds_write_b64 v{vTw}, {vr(t,2)} offset:{ent[n]*RS}")
        levels = [[(2,1,1), (64,32,32), (1024,512,512)], [(3,2,1), (4,2,2), (96,64,32), (128,64,64), (1536,1024,512), (2048,1024,1024)],
                  [(8,4,4), (256,128,128), ("R1","C",128)], [(12,8,4), (16,8,8), ("R2","C",256)],
                  [(20,16,4), (24,16,8), (28,16,12), (528,512,16), ("R3","R2",128)]]
        pend = [1, 32, 512, "C"]
        for lv in levels:
            for d, x, y in lv:
                for m in range(2): a(f"v_pk_mul_f32 {vr(E[d]+2*m,2)}, {vr(E[x]+2*m,2)}, {vr(E[y]+2*m,2)} op_sel_hi:[0,1]")
            for d, x, y in lv:
                for m in range(2):
                    a(f"v_pk_fma_f32 {vr(E[d]+2*m,2)}, {vr(E[x]+2*m,2)}, {vr(E[y]+2*m,2)}, {vr(E[d]+2*m,2)} op_sel:[1,1,0] op_sel_hi:[1,0,1] neg_lo:[0,1,0]")
            for n in pend: emit(n)
            pend = [d for d, x, y in lv]
        for n in pend: emit(n)
        e = E[2048]
        a(f"v_mul_f32 v61, v{e}, v{C}"); a(f"v_fma_f32 v61, -v{e+1}, v{C+1}, v61")
        a(f"v_fma_f32 v61, v{e+2}, v{C+2}, v61"); a(f"v_fma_f32 v61, -v{e+3}, v{C+3}, v61")
        wave_sum(a, 61, 62, 1)
        a(f"v_mul_f32 v61, v61, v{vSC}")
        a("v_cvt_pk_bf16_f32 v61, v61, v61")
        a(f"v_mov_b32 v62, s{sTB}")
        a(f"ds_write_b32 v62, v61 offset:1536")

    FB = 64
    srcs = [(vTa, 4), (vTa, 8), (vTb, 0), (vTa, 16), (vTb, 12), (vTa, 20), (vTc, 4)]
    def rdf(step):
        return [f"ds_read_b128 {vr(FB+28*(step&1)+4*i,4)}, v{r} offset:{e*RS+16*step}" for i, (r, e) in enumerate(srcs)]
    OB = 120
    def kstep(step, bg):
        f = FB + 28*(step & 1); o = OB + 16*(step & 1)
        a("s_waitcnt lgkmcnt(0)")
        nxt = rdf(step+1) if step < 7 else []
        prods = [(o, f+12, f+16), (o+4, f, f+8), (o+8, f+4, f+8), (o+12, f+20, f+24)]
        for d, x, y in prods:
            for m in range(4): a(f"v_pk_mul_f16 v{d+m}, v{x+m}, v{y+m} op_sel_hi:[0,1]")
            for _ in range(2):
                if nxt: a(nxt.pop(0))
        for grp in bg:
            for ins, tag in grp:
                a(ins)
                if tag: vm.add(tag)
        for i, (d, x, y) in enumerate(prods):
            for m in range(4): a(f"v_pk_fma_f16 v{d+m}, v{x+m}, v{y+m}, v{d+m} op_sel:[1,1,0] op_sel_hi:[1,0,1] neg_lo:[0,1,0]")
            if i >= 2:
                c = "0" if step == 0 else vr(ACC+4*(i-2),4)
                a(f"v_mfma_f32_16x16x32_f16 {vr(ACC+4*(i-2),4)}, {vr(o+4*(i-1),4)}, {vr(o,4)}, {c}")
        a("s_nop 0")
        c = "0" if step == 0 else vr(ACC+8,4)
        a(f"v_mfma_f32_16x16x32_f16 {vr(ACC+8,4)}, {vr(o+12,4)}, {vr(o,4)}, {c}")

    def ln1():
        a(f"s_waitcnt vmcnt({vm.wait_for('X')})")
        g.stamp()
        T = 64; W = 96; XP = 144; XO = 160
        ln_stats8(a, [(XD+k, XD+8+k) for k in range(8)], T, W)
        for k in range(16): a(f"v_pk_add_f32 {vr(T+2*k,2)}, {vr(T+2*k,2)}, {vr(W,2)} neg_lo:[0,1] neg_hi:[0,1]")
        for k in range(16): a(f"v_cvt_pk_bf16_f32 v{XO+k}, v{T+2*k}, v{T+2*k+1}")
        for k in range(16):
            a(f"v_lshlrev_b32 v{T+2*k}, 16, v{XO+k}"); a(f"v_and_b32 v{T+2*k+1}, 0xffff0000, v{XO+k}")
        for k in range(16): a(f"v_pk_mul_f32 {vr(T+2*k,2)}, {vr(T+2*k,2)}, {vr(W+2,2)}")
        a(f"s_lshl_b32 s{sT}, s{sWave}, 20"); a(f"s_lshl_b32 s{sT+1}, s2, 6"); a(f"s_add_u32 s{sT}, s{sT}, s{sT+1}")
        for q in range(4):
            for k in range(4*q, 4*q+4): a(f"v_cvt_pk_bf16_f32 v{XO+k}, v{T+2*k}, v{T+2*k+1}")
            a(f"s_add_u32 s{sT+1}, s{sT}, {((q>>1)*32 + (q&1))*16384}")
            a(f"buffer_store_dwordx4 {vr(XO+4*q,4)}, v6, {sr(sU2,4)}, s{sT+1} offen {SC}"); vm.add("U")
        a(f"s_mov_b32 s{sT+2}, 0x05040100"); a(f"s_mov_b32 s{sT+3}, 0x07060302")
        for q in range(4):
            for k in range(4*q, 4*q+4): a(f"v_perm_b32 v{XP+k}, v{XD+8+(k>>1)}, v{XD+(k>>1)}, s{sT+2+(k&1)}")
            a(f"s_add_u32 s{sT+1}, s{sT}, {((q>>1)*32 + (q&1))*16384 + (4 << 20)}")
            a(f"buffer_store_dwordx4 {vr(XP+4*q,4)}, v6, {sr(sU2,4)}, s{sT+1} offen {SC}"); vm.add("U")
        nl = a.label("nl")
        a(f"s_and_b32 s{sT+6}, s2, 3"); a(f"s_lshl_b32 s{sT+6}, s{sT+6}, 6")
        a(f"s_cmp_lg_u32 s{sWave}, 0"); a(f"s_cbranch_scc1 {nl}")
        a(f"buffer_load_dwordx2 v[22:23], v1, {sr(sDB,4)}, s{sT+6} offen sc1")
        a(f"{nl}:")
        a("s_nop 1")
        g.stamp()

    if ORDER == "SLM": setup(); ln1()
    else: ln1(); setup()
    for ins in rdf(0): a(ins)
    step = 0
    for _ in range(KMID): kstep(step, []); step += 1
    a(f"s_waitcnt vmcnt(0)")
    gn = a.label("gn"); gn2 = a.label("gn2"); gn3 = a.label("gn3")
    a(f"s_cmp_lg_u32 s{sWave}, 0"); a(f"s_cbranch_scc1 {gn3}")
    a(f"s_mov_b32 s{sTO}, 0")
    a(f"{gn}:")
    a(f"v_readfirstlane_b32 s{sNON}, v22"); a(f"v_readfirstlane_b32 s{sNON+1}, v23")
    a(f"s_cmp_lg_u32 s{sNON}, 0"); a(f"s_cbranch_scc1 {gn2}")
    a(f"buffer_load_dwordx2 v[22:23], v1, {sr(sDB,4)}, s{sT+6} offen sc1")
    a("s_waitcnt vmcnt(0)")
    a(f"s_add_u32 s{sTO}, s{sTO}, 1"); a(f"s_cmp_lt_u32 s{sTO}, {TIMEOUT}"); a(f"s_cbranch_scc1 {gn}")
    a(f"{gn2}:")
    a(f"v_mov_b32 v24, {KBASE + KCH - 16}")
    a(f"ds_write_b64 v24, v[22:23]")
    a("s_waitcnt lgkmcnt(0)")
    a(f"{gn3}:")
    a("s_barrier")
    set_flag(g, 0, 22)
    g.stamp()
    a(f"v_mov_b32 v24, {KBASE + KCH - 16}")
    a(f"ds_read_b64 v[26:27], v24")
    first = True
    while step < 8:
        n = min(2, DPOST); DPOST -= n
        kstep(step, take(n)); step += 1
        if first:
            a(f"v_readfirstlane_b32 s{sNON}, v26"); a(f"v_readfirstlane_b32 s{sNON+1}, v27"); first = False
    assert not first
    Eb = 72
    a(f"v_lshlrev_b32 v16, 4, v{vL}"); a(f"v_add_u32 v16, s{sTB}, v16"); a(f"v_subrev_u32 v17, 4, v16")
    a(f"v_add_u32 v2, s{sTB}, v2")
    s00 = sT; s11 = sT+1; s10 = sT+2; s21 = sT+3
    a(f"s_mov_b32 s{s00}, 0x01000100"); a(f"s_mov_b32 s{s11}, 0x03020302"); a(f"s_mov_b32 s{s10}, 0x01000302"); a(f"s_mov_b32 s{s21}, 0x03020504")
    for t in (0, 1, 2):
        for e in range(2): a(f"v_pk_mul_f32 {vr(ACC+4*t+2*e,2)}, {vr(ACC+4*t+2*e,2)}, {vr(vSC,2)} op_sel_hi:[1,0]")
        a(f"v_cvt_pk_bf16_f32 v{64+2*t}, v{ACC+4*t}, v{ACC+4*t+1}")
        a(f"v_cvt_pk_bf16_f32 v{65+2*t}, v{ACC+4*t+2}, v{ACC+4*t+3}")
    a(f"ds_write_b64 v{vO1}, v[64:65]"); a(f"ds_write_b64 v{vO1}, v[66:67] offset:32"); a(f"ds_write_b64 v{vO2}, v[68:69]")
    a(f"ds_read_b128 {vr(Eb,4)}, v16"); a(f"ds_read_b32 v{Eb+4}, v16 offset:16"); a(f"ds_read_b32 v{Eb-1}, v17")
    a(f"ds_read_b32 v78, v2 offset:1024"); a(f"ds_read_b32 v79, v2 offset:1028")
    a(f"ds_read_b32 v80, v2 offset:1280"); a(f"ds_read_b32 v81, v2 offset:1284")
    a("s_mov_b64 exec, 0x1ffffff")
    for c in range(4): a(f"ds_write_b128 v{vZ}, {vr(ZR,4)} offset:{c*UCS}")
    a("s_mov_b64 exec, -1")
    a(f"buffer_load_dwordx2 v[22:23], v{vF}, {sr(sFLG,4)}, 0 offen {SC}")
    a("s_waitcnt lgkmcnt(0)")
    O = 84
    for d, s0, s1, sl in ((0,3,2,2),(1,2,1,3),(2,1,0,2),(3,0,-1,4),(4,4,3,1),(5,2,2,0),(6,2,1,1),(7,0,0,0)):
        a(f"v_perm_b32 v{O+d}, v{Eb+s0}, v{Eb+s1}, v{SA+sl}")
    a(f"ds_write_b128 v{vK}, {vr(O,4)} offset:{KPAD}")
    a(f"ds_write_b128 v{vK}, {vr(O+4,4)} offset:{KPAD+KCS}")
    def mk(dst, kind, p01, p2):
        if kind == "00": a(f"v_perm_b32 v{dst}, v{p01}, v{p01}, s{s00}")
        elif kind == "11": a(f"v_perm_b32 v{dst}, v{p01}, v{p01}, s{s11}")
        elif kind == "22": a(f"v_perm_b32 v{dst}, v{p2}, v{p2}, s{s00}")
        elif kind == "10": a(f"v_perm_b32 v{dst}, v{p01}, v{p01}, s{s10}")
        elif kind == "21": a(f"v_perm_b32 v{dst}, v{p2}, v{p01}, s{s21}")
    chunks = [(78, ["21","11","00","00"], vK, KPAD + 1024), (78, ["22","11","10","00"], vK, KPAD + 1024 + KCS),
              (80, ["11","00","00","00"], vK2, KPAD + 2048), (80, ["22","21","11","11"], vK2, KPAD + 2048 + 16),
              (80, ["11","10","00","00"], vK2, KPAD + 2048 + KCS), (80, ["22","22","11","11"], vK2, KPAD + 2048 + KCS + 16)]
    for ci, (p, kinds, ad, off) in enumerate(chunks):
        b = O + 8 + 4*ci
        for e, kd in enumerate(kinds): mk(b+e, kd, p, p+1)
        a(f"ds_write_b128 v{ad}, {vr(b,4)} offset:{off}")
    g.stamp()
    a(f"s_mov_b32 s{sT}, 0")
    sCGo = sT+7
    a(f"s_lshl_b32 s{sCGo}, s{sCG}, 14")
    poll_flags(g, vF, sT, 22, preloaded=True)
    a("s_barrier")
    g.stamp()
    UR = 32
    for i in range(4):
        a(f"s_add_u32 s{sT}, s{sCGo}, {4096*i}")
        a(f"buffer_load_dwordx4 {vr(UR+4*i,4)}, v{vR}, {sr(sU2,4)}, s{sT} offen {SC}")
    def rdA(st, p, q): return f"ds_read_b128 {ar(64*st+4*p,4)}, v{vA} offset:{(8*p+q)*64}"
    def rdB(st, r, q): return f"ds_read_b128 {ar(64*st+32+4*r,4)}, v{vB} offset:{(8*r-q+7)*64}"
    for i in range(8): a(rdA(0, i, 0))
    XG = 48
    for i in range(4):
        a(f"s_add_u32 s{sT}, s{sCGo}, {4096*i + (4 << 20)}")
        a(f"buffer_load_dwordx4 {vr(XG+4*i,4)}, v{vR}, {sr(sU2,4)}, s{sT} offen {SC}")
    for ii in range(4):
        a(f"s_waitcnt vmcnt({7-ii})")
        for c in range(4):
            for ch in range(2):
                a(f"ds_write2st64_b32 v{vUC+2*c+ch}, v{UR+4*ii+ch}, v{UR+4*ii+ch+2} offset0:{4*ii} offset1:{4*ii+141}")
    a("s_waitcnt lgkmcnt(0)")
    a("s_barrier")
    g.stamp()
    CA = 64
    for i in range(8): a(rdB(0, i, 0))
    fill = []
    F = fill.append
    TD = 96; XU = 128
    F(f"s_lshl_b32 s{sT}, s58, 16"); F(f"s_and_b32 s{sT+1}, s58, 0xffff0000"); F(f"s_lshl_b32 s{sT+2}, s59, 16"); F(f"s_and_b32 s{sT+3}, s59, 0xffff0000")
    for i in range(4):
        for ch in range(4):
            u = UR+4*i+ch; d = TD+8*i+2*ch
            F(f"v_lshlrev_b32 v{d}, 16, v{u}"); F(f"v_and_b32 v{d+1}, 0xffff0000, v{u}")
            F(f"v_mul_f32 v{d}, s{sT+ch}, v{d}"); F(f"v_mul_f32 v{d+1}, s{sT+ch}, v{d+1}")
            F(f"v_cvt_pk_bf16_f32 v{u}, v{d}, v{d+1}")
            F(f"v_lshlrev_b32 v{d}, 16, v{u}"); F(f"v_and_b32 v{d+1}, 0xffff0000, v{u}")
    F(f"v_lshlrev_b32 v16, 2, v0"); F(f"v_add_u32 v16, {KBASE}, v16")
    fill2 = ["s_waitcnt vmcnt(0)"]
    for k in range(16):
        fill2 += [f"v_lshlrev_b32 v{XU+2*k}, 16, v{XG+k}", f"v_and_b32 v{XU+2*k+1}, 0xffff0000, v{XG+k}"]
    sched = {}
    nb = len(bgl)
    for n in range(nb):
        pos = n * DSP + 9
        sched[(pos // 36, pos % 36)] = [ins for ins, tag in bgl[n]]
    fill2[0] = f"s_waitcnt vmcnt({nb})"
    fi = 0
    for q in range(8):
        st = q & 1
        a("s_waitcnt lgkmcnt(0)")
        nxt = []
        if q < 7:
            for i in range(8): nxt += [rdA(1-st, i, q+1), rdB(1-st, i, q+1)]
        else:
            assert fi == len(fill), (fi, len(fill))
            fill = fill2; fi = 0
        k = 0
        for p in range(8):
            for r in range(8 - p):
                t = p + r
                c = "0" if (q == 0 and p == 0) else vr(CA+4*t, 4)
                a(f"v_mfma_f32_16x16x32_bf16 {vr(CA+4*t,4)}, {ar(64*st+4*p,4)}, {ar(64*st+32+4*r,4)}, {c}")
                if (q, k) in sched:
                    for ins in sched.pop((q, k)): a(ins)
                elif nxt and (k % 2 == 0 or (k < 8)): a(nxt.pop(0))
                elif fi < len(fill): a(fill[fi]); fi += 1
                k += 1
        assert not nxt
    assert fi == len(fill) and not sched, (fi, len(fill), sched)
    for t in range(8):
        a(f"v_cvt_pk_bf16_f32 v{168+2*t}, v{CA+4*t}, v{CA+4*t+1}")
        a(f"v_cvt_pk_bf16_f32 v{169+2*t}, v{CA+4*t+2}, v{CA+4*t+3}")
        a(f"ds_write2_b32 v{vY}, v{168+2*t}, v{169+2*t} offset0:{128*(t&1)} offset1:{128*(t&1)+4}")
        if t & 1 and t < 7: a(f"v_add_u32 v{vY}, 1024, v{vY}")
    a("s_waitcnt vmcnt(0) lgkmcnt(0)")
    g.stamp()
    a("s_barrier")
    Y = 64; YU = 160
    for i in range(4):
        for ch in (0, 2):
            a(f"ds_read2st64_b32 {vr(Y+4*i+ch,2)}, v16 offset0:{4*i+33*ch} offset1:{4*i+33*(ch+1)}")
    for i in range(4):
        a(f"s_waitcnt lgkmcnt({6-2*i})")
        for ch in range(4):
            a(f"v_lshlrev_b32 v{YU+2*ch}, 16, v{Y+4*i+ch}"); a(f"v_and_b32 v{YU+2*ch+1}, 0xffff0000, v{Y+4*i+ch}")
        b = TD+8*i
        for ch in range(4): a(f"v_pk_add_f32 {vr(b+2*ch,2)}, {vr(b+2*ch,2)}, {vr(YU+2*ch,2)}")
        for ch in range(4): a(f"v_cvt_pk_bf16_f32 v{YU+ch}, v{b+2*ch}, v{b+2*ch+1}")
        for ch in range(4):
            a(f"v_lshlrev_b32 v{b+2*ch}, 16, v{YU+ch}"); a(f"v_and_b32 v{b+2*ch+1}, 0xffff0000, v{YU+ch}")
        for ch in range(4): a(f"v_pk_add_f32 {vr(b+2*ch,2)}, {vr(b+2*ch,2)}, {vr(XU+8*i+2*ch,2)}")
        for e in range(2):
            for hp in range(2):
                a(f"v_cvt_pk_bf16_f32 v{Y+4*i+2*e+hp}, v{b+4*hp+e}, v{b+4*hp+2+e}")
        a(f"s_add_u32 s{sT}, s{sCGo}, {4096*i}")
        a(f"buffer_store_dwordx4 {vr(Y+4*i,4)}, v{vR}, {sr(sH,4)}, s{sT} offen {SC}")
    g.stamp()

M_XCH = 0x1b00000
XSL = 16384; XWG = 3*XSL; SZ_XCH = 256*XWG
s2_TM = sT+4; s2_TN = sT+5; s2_KQ = sT+6
def g2_dma_addr(sM0):
    return [f"s_bfe_u32 s{s2_KQ}, s2, 0x20001",
        f"s_and_b32 s{s2_TM}, s2, 1", f"s_lshl_b32 s{s2_TM}, s{s2_TM}, 2", f"s_bfe_u32 s{sT}, s2, 0x20003", f"s_add_u32 s{s2_TM}, s{s2_TM}, s{sT}",
        f"s_lshr_b32 s{s2_TN}, s2, 5",
        f"v_lshrrev_b32 v2, 4, v{vL}", f"s_mul_i32 s{sT}, s{s2_KQ}, 896", f"s_lshl_b32 s{sT+1}, s{sWave}, 4", f"s_add_u32 s{sT}, s{sT}, s{sT+1}",
        f"v_add_u32 v1, s{sT}, v2", f"v_lshlrev_b32 v1, 11, v1",
        f"v_lshlrev_b32 v2, 2, v2", f"v_and_b32 v3, 15, v{vL}", f"v_xor_b32 v2, v2, v3",
        f"v_lshl_add_u32 v1, v2, 4, v1", f"s_lshl_b32 s{sT}, s{s2_TN}, 8", f"v_add_u32 v1, s{sT}, v1", f"s_lshl_b32 s{sM0}, s{sWave}, 12"]
G2_STG = 64*2048; G2_I = 4*2048 - 1024
def g2_dma(stage, i, sM0=24, sW=12):
    grp = []
    if i == 0: grp.append(f"s_add_u32 m0, s{sM0}, {(stage % 10)*16384}")
    grp.append(f"s_mov_b32 s{sT+1}, {stage*G2_STG + i*G2_I}")
    grp.append(f"buffer_load_dwordx4 v1, {sr(sW,4)}, s{sT+1} offen offset:{1024*i} lds")
    return grp

def phase_gemm2(g, PRE1, LA=8, TAIL=16, XSLEEP=4):
    a = g.a
    ACC = 32
    def acc(j, t): return ACC + (t*2 + j)*16
    HR = 160; IN = 176; XR = 0; WF = 192; NX = 24
    vX = 2; vW = 4; vO = 16; vI = 17; vH = 18; vFl = 19; vT = 232; vM = 20
    sX = 8; sH = 44; sO = 4; sIB = 36
    sOX = 20; sM = 26; sN = 27; sI = 31; sFo = 33
    a(f"s_lshl_b32 s{sM}, s{s2_TM}, 8"); a(f"s_lshl_b32 s{sT}, s{sWave}, 6"); a(f"s_add_u32 s{sM}, s{sM}, s{sT}")
    a(f"s_lshl_b32 s{sN}, s{s2_TN}, 7"); a(f"s_lshl_b32 s{sT}, s{s2_KQ}, 5"); a(f"s_add_u32 s{sN}, s{sN}, s{sT}")
    a(f"v_and_b32 v{vT}, 31, v{vL}"); a(f"v_add_u32 v{vT}, s{sM}, v{vT}")
    a(f"v_lshrrev_b32 v{vT+1}, 5, v{vL}")
    a(f"v_lshl_add_u32 v{vX}, v{vT+1}, 11, v{vT}"); a(f"v_lshlrev_b32 v{vX}, 4, v{vX}")
    a(f"s_mul_i32 s{sOX}, s{s2_KQ}, {112*32768}")
    a(f"v_lshlrev_b32 v{vH}, 3, v{vT}"); a(f"v_lshl_add_u32 v{vH}, v{vT+1}, 15, v{vH}")
    a(f"s_lshl_b32 s{sT}, s{sN}, 12"); a(f"v_add_u32 v{vH}, s{sT}, v{vH}")
    a(f"v_lshlrev_b32 v{vO}, 11, v{vT}"); a(f"v_lshl_add_u32 v{vO}, v{vT+1}, 4, v{vO}")
    a(f"s_lshl_b32 s{sT}, s{sN}, 1"); a(f"v_add_u32 v{vO}, s{sT}, v{vO}")
    a(f"v_bfe_u32 v{vT+3}, v{vL}, 2, 2"); a(f"v_lshl_add_u32 v{vT+4}, v{vT+1}, 3, v{vT+3}"); a(f"v_lshlrev_b32 v{vW}, 8, v{vT+4}")
    a(f"v_xor_b32 v{vT+3}, s{s2_KQ}, v{vT+3}"); a(f"v_lshl_add_u32 v{vW}, v{vT+3}, 6, v{vW}")
    a(f"v_bfe_u32 v{vT+3}, v{vL}, 4, 1"); a(f"v_lshl_add_u32 v{vW}, v{vT+3}, 5, v{vW}")
    a(f"v_and_b32 v{vT+3}, 1, v{vL}"); a(f"v_lshl_add_u32 v{vW}, v{vT+3}, 4, v{vW}")
    a(f"v_bfe_u32 v{vT+3}, v{vL}, 1, 1"); a(f"v_lshl_add_u32 v{vW}, v{vT+3}, 3, v{vW}")
    for t in range(1, 4): a(f"v_xor_b32 v{vW+t}, {64*t}, v{vW}")
    for b in range(1, 3):
        for t in range(4): a(f"v_add_u32 v{vW+4*b+t}, {65536*b}, v{vW+t}")
    a(f"v_lshlrev_b32 v{vI}, 4, v{vL}"); a(f"s_lshl_b32 s{sT}, s{sWave}, 12"); a(f"v_add_u32 v{vI}, s{sT}, v{vI}"); a(f"v_mov_b32 v{vM}, -2")
    srd(a, sO, pOUT, 2048*1024*2); srd(a, sIB, pWS, SZ_XCH, M_XCH)
    a(f"s_mul_i32 s{sI}, s2, {XWG}")
    for t in range(1, 4):
        a(f"s_xor_b32 s{27+t}, s2, {2*t}"); a(f"s_mul_i32 s{27+t}, s{27+t}, {XWG}"); a(f"s_add_u32 s{27+t}, s{27+t}, {XSL*(t-1)}")
    a(f"v_bfe_u32 v{vT+4}, v{vL}, 2, 1"); a(f"v_and_b32 v{vT+3}, 3, v{vL}"); a(f"v_lshl_add_u32 v{vT+4}, v{vT+3}, 6, v{vT+4}")
    a(f"s_lshl_b32 s{sT}, s{s2_TM}, 2"); a(f"s_add_u32 s{sT}, s{sT}, s{s2_KQ}"); a(f"s_lshl_b32 s{sT}, s{sT}, 1")
    a(f"v_add_u32 v{vT+4}, s{sT}, v{vT+4}")
    a(f"v_lshlrev_b32 v{vT+3}, 1, v{vT+3}"); a(f"v_xor_b32 v{vT+3}, s2, v{vT+3}")
    a(f"v_and_b32 v{vT+2}, 8, v{vL}"); a(f"v_cmp_eq_u32 vcc, 0, v{vT+2}"); a("s_nop 1")
    a(f"v_cndmask_b32 v{vFl}, v{vT+3}, v{vT+4}, vcc"); a(f"v_lshlrev_b32 v{vFl}, 6, v{vFl}")
    a(f"s_mov_b32 s{sFo}, {2*16384}")
    a("s_waitcnt vmcnt(0)")
    a("s_barrier")
    set_flag(g, 2, 22)
    g.stamp()
    def wread(st, f, t, step, j):
        off = ((step >> 2) % 10)*16384 + (step & 3)*4096 + j*1024
        return f"ds_read_b64_tr_b16 {ar(WF+st*16+f*4+j*2,2)}, v{vW + 4*(off >> 16) + t} offset:{off & 0xffff}"
    T0 = 56 - TAIL; TG = TAIL // 4
    sup = [[(t, s) for t in range(4)] for s in range(T0)]
    for t in (1, 2, 3, 0):
        for hf in range(TG): sup.append([(t, T0 + 4*hf + k) for k in range(4)])
    SEND = [T0 + TG*k for k in (1, 2, 3)]
    def need_of(n): return max(s for t, s in sup[min(n, 55)])
    def reads(n):
        return [wread(n & 1, f, t, s, j) for f, (t, s) in enumerate(sup[n]) for j in range(2)]
    for ins in reads(0): a(ins)
    for stg in range(PRE1, 10):
        for i in range(4):
            for ins in g2_dma(stg, i): a(ins)
    poll_flags(g, vFl, sFo, 22)
    g.stamp()
    vm = VM()
    def xload(x):
        return [f"buffer_load_dwordx4 {ar(XR+(x % NX)*8+j*4,4)}, v{vX}, {sr(sX,4)}, s{sOX} offen offset:{512*j} {SC}" for j in range(2)]
    xadv = f"s_add_u32 s{sOX}, s{sOX}, 65536"
    nx = 0
    for x in range(4):
        for ins in xload(x): a(ins); vm.add(f"X{x}")
        a(xadv); nx += 1
    dl = [(stg, i) for stg in range(10, 14) for i in range(4)]
    started = set()
    send = []
    for n, fr in enumerate(sup):
        need = max(s for t, s in fr)
        w = vm.wait_for(f"X{need}")
        if n == 39:
            assert not dl
            w = min(w, vm.wait_for("D"))
        a(f"s_waitcnt vmcnt({w}) lgkmcnt(0)")
        if n in (min(4*PRE1 - 1, 15), 15, 39): a("s_barrier")
        gaps = {k: [] for k in range(8)}; tags = {k: [] for k in range(8)}
        if n + 1 < len(sup):
            for k, ins in enumerate(reads(n + 1)): gaps[k // 2].append(ins)
        gi = 4
        for rep in range(2):
            if nx < 56 and nx <= max(need_of(k_) for k_ in range(n, n + LA + 1)) and gi <= 6:
                for j, ins in enumerate(xload(nx)): gaps[gi+j].append(ins); tags[gi+j].append(f"X{nx}")
                gaps[gi+1].append(xadv); nx += 1; gi += 2
        if n >= 15 and dl and gi <= 6:
            grp = g2_dma(*dl.pop(0))
            gaps[gi] += grp[:-1]; gaps[gi+1].append(grp[-1]); tags[gi+1].append("D")
        if n in (34, 35, 36, 37):
            for e in range(2):
                i = 2*(n-34) + e
                gj, gq = (i >> 2), (i >> 1) & 1
                gaps[6+e] += [f"s_mov_b32 s{sT}, {(4*gq + e)*16384}", f"buffer_load_dwordx2 {vr(HR+2*i,2)}, v{vH}, {sr(sH,4)}, s{sT} offen offset:{256*gj} {SC}"]
                tags[6+e].append("R")
        if n in SEND:
            t = sup[n-1][0][0]; b = acc(0, t)
            send = []
            for i in range(4):
                send += [f"v_cvt_pk_bf16_f32 v{b+4*i+e}, v{b+8*i+2*e}, v{b+8*i+2*e+1}" for e in range(4)]
                send += [f"v_min_u32 v{b+4*i+e}, v{b+4*i+e}, v{vM}" for e in range(4)]
                send += [f"buffer_store_dwordx4 {vr(b+4*i,4)}, v{vI}, {sr(sIB,4)}, s{27+t} offen offset:{1024*i} {SC}"]
        k = 0
        for f, (t, s) in enumerate(fr):
            for j in ((0, 1) if f % 2 == 0 else (1, 0)):
                c = vr(acc(j,t),16) if (j, t) in started else "0"
                started.add((j, t))
                a(f"v_mfma_f32_32x32x16_bf16 {vr(acc(j,t),16)}, {ar(WF+(n&1)*16+f*4,4)}, {ar(XR+(s % NX)*8+j*4,4)}, {c}")
                for ins in gaps[k]: a(ins)
                for tg in tags[k]: vm.add(tg)
                if send and not (n in SEND and k < 4):
                    for _ in range(4 if k >= 4 or n == 55 else 2):
                        if send:
                            ins = send.pop(0); a(ins)
                            if ins.startswith("buffer"): vm.add("S")
                k += 1
        if n - 1 in SEND: assert not send, len(send)
    assert nx == 56 and not dl
    g.stamp()
    P = acc(0, 1)
    a(f"s_add_u32 s28, s{sI}, {XSL}"); a(f"s_add_u32 s29, s{sI}, {2*XSL}")
    def ld_slot(sl):
        for i in range(4): a(f"buffer_load_dwordx4 {vr(IN+16*sl+4*i,4)}, v{vI}, {sr(sIB,4)}, s{(sI, 28, 29)[sl]} offen offset:{1024*i} {SC}")
    a(f"s_waitcnt vmcnt({vm.wait_for('R')})")
    for sl in range(3): ld_slot(sl)
    for k in range(16):
        a(f"v_lshlrev_b32 v{P+2*k}, 16, v{HR+k}"); a(f"v_and_b32 v{P+2*k+1}, 0xffff0000, v{HR+k}")
    a(f"s_mov_b32 s{sTO}, 0")
    Q = acc(0, 2); B = acc(0, 0)
    for sl in range(3):
        lp = a.label("xp"); dn = a.label("xd")
        a(f"s_waitcnt vmcnt({8-4*sl})")
        a(f"{lp}:")
        I = IN + 16*sl
        a(f"v_max3_u32 v21, v{I}, v{I+1}, v{I+2}"); a(f"v_max3_u32 v22, v{I+3}, v{I+4}, v{I+5}")
        for k in range(6, 16, 2): a(f"v_max3_u32 v{21 + ((k>>1)&1)}, v{21 + ((k>>1)&1)}, v{I+k}, v{I+k+1}")
        a(f"v_max_u32 v21, v21, v22")
        a(f"v_cmp_eq_u32 vcc, -1, v21")
        a(f"s_cbranch_vccz {dn}")
        a(f"s_sleep {XSLEEP}")
        ld_slot(sl)
        a(f"s_add_u32 s{sTO}, s{sTO}, 1"); a(f"s_cmp_lt_u32 s{sTO}, {TIMEOUT}")
        a("s_waitcnt vmcnt(0)")
        a(f"s_cbranch_scc1 {lp}")
        a(f"{dn}:")
        if sl == 2: break
        for k in range(16):
            a(f"v_lshlrev_b32 v{Q+2*k}, 16, v{I+k}"); a(f"v_and_b32 v{Q+2*k+1}, 0xffff0000, v{I+k}")
        for k in range(16): a(f"v_pk_add_f32 {vr(B+2*k,2)}, {vr(B+2*k,2)}, {vr(Q+2*k,2)}")
    g.stamp()
    a(f"s_mov_b32 s{sT}, 65536")
    for i in range(4):
        b = B + 8*i
        for e in range(4):
            a(f"v_lshlrev_b32 v{Q+2*e}, 16, v{IN+32+4*i+e}"); a(f"v_and_b32 v{Q+2*e+1}, 0xffff0000, v{IN+32+4*i+e}")
        for e in range(4): a(f"v_pk_add_f32 {vr(b+2*e,2)}, {vr(b+2*e,2)}, {vr(Q+2*e,2)}")
        for e in range(4): a(f"v_cvt_pk_bf16_f32 v{Q+e}, v{b+2*e}, v{b+2*e+1}")
        for e in range(4):
            a(f"v_lshlrev_b32 v{b+2*e}, 16, v{Q+e}"); a(f"v_and_b32 v{b+2*e+1}, 0xffff0000, v{Q+e}")
        for e in range(4): a(f"v_pk_add_f32 {vr(b+2*e,2)}, {vr(b+2*e,2)}, {vr(P+8*i+2*e,2)}")
        for e in range(4): a(f"v_cvt_pk_bf16_f32 v{HR+4*i+e}, v{b+2*e}, v{b+2*e+1}")
        so = f"s{sT}" if i >= 2 else "0"
        a(f"buffer_store_dwordx4 {vr(HR+4*i,4)}, v{vO}, {sr(sO,4)}, {so} offen offset:{32*(i&1)}")

def phase_gemm1(g, PRE1, XF=SC, LA=7, X0=3, TU=3, PU=(0,2,6)):
    a = g.a
    SLOT = SLOT1
    ACC = 32
    def acc(j, t): return ACC + (j*7 + t)*16
    XR = 0; WF = 64; CSF = 120
    vDMA = 1; vX = 8; vST = 9; vWc = 10; vWn = 11; vS = 12; vO = 28; vFl = 20; vC = 22; vF2 = 23
    sX = 44; sACT = 8; sST = 36; sCS = 40; sW2 = 12
    sOX = 20; sOX2 = 21; sBase = 23; sIt = 25; sA = 28; sB = 29; sNS = 30; sCSo = 32
    sOW = sG_OW; sM0 = sG_M0
    vm = VM()
    for i in range(4): vm.add("H")
    def pro_dma(stage, idxs):
        for i in idxs:
            if i in (0, 4): a(f"s_add_u32 m0, s{sM0}, {stage*SLOT + (4096 if i else 0)}"); a("s_nop 0")
            a(g1_dma(pDMA, i)); vm.add(f"D{stage}")
            if i == 6:
                for ins in g1_wadv("odd" if stage & 1 else "even"): a(ins)
    a(f"v_and_b32 v160, 31, v{vL}"); a(f"v_mov_b32 v161, 0x3f803f80")
    for t in range(7):
        a(f"v_cmp_eq_u32 vcc, {t}, v160"); a("s_nop 1")
        for e in range(4): a(f"v_cndmask_b32 v{96+4*t+e}, 0, v161, vcc")
    for i in range(7): a(f"v_mov_b32 v{vDMA+i}, v{pDMA+i}")
    for d, s_ in ((vX, pX), (vST, pST), (vWc, pWc), (vO, pO)): a(f"v_mov_b32 v{d}, v{s_}")
    a(f"v_add_u32 v{vWn}, {2*SLOT}, v{vWc}")
    srd(a, sACT, pWS, SZ_ACT, M_ACT); srd(a, sST, pWS, 2048*16, M_ST2); srd(a, sCS, pWS, 32*224*32, M_CS)
    srd(a, sW2, pWD, SZ_W)
    a(f"s_mul_i32 s16, s2, 28672")
    a(f"v_mov_b32 v27, v{pSR}")
    for e in range(4): a(f"v_accvgpr_write_b32 a{208+e}, -1")
    srd(a, 52, pWS, SZ_XCH, M_XCH)
    a(f"s_mul_i32 s51, s2, {XWG}"); a(f"s_add_u32 s54, s51, {XWG}")
    a(f"s_mul_i32 s{sCSo}, s{sG_TN}, {224*32}")
    a(f"v_lshrrev_b32 v163, 5, v{vL}")
    a(f"s_lshl_b32 s{sOX}, s{sG_TM}, 19"); a(f"s_add_u32 s{sOX2}, s{sOX}, 16384")
    a(f"s_mov_b32 s17, s{sOX}"); a(f"s_add_u32 s26, s{sOX}, {1 << 19}")
    a(f"s_mov_b32 s{sBase}, 0"); a(f"s_mov_b32 s{sIt}, 3"); a(f"s_mov_b32 s{sNS}, 3")
    a(f"s_lshr_b32 s{sT}, s{sWave}, 1"); a(f"s_mul_i32 s{sT}, s{sT}, {SLOT}")
    a(f"s_and_b32 s{sT+1}, s{sWave}, 1"); a(f"s_mul_i32 s{sT+1}, s{sT+1}, {2*3584}"); a(f"s_add_u32 s{sT}, s{sT}, s{sT+1}")
    a(f"v_add_u32 v164, s{sT}, v{vWc}")
    a(f"s_mul_i32 s{sT}, s{sWave}, 896"); a(f"s_add_u32 s{sT}, s{sT}, {PBASE}")
    a(f"v_lshlrev_b32 v165, 7, v160"); a(f"v_lshl_add_u32 v165, v163, 4, v165"); a(f"v_add_u32 v165, s{sT}, v165")
    def wread(st, t, j, reg, imm0):
        return f"ds_read_b64_tr_b16 {ar(WF+st*28+t*4+j*2,2)}, v{reg} offset:{imm0 + 4*j*224 + 32*t}"
    for st in range(2):
        for t in range(7):
            for j in range(2): a(wread(st, t, j, 164, st*3584))
    a(f"s_waitcnt vmcnt({vm.wait_for('H')})")
    a("s_barrier")
    set_flag(g, 1, 174)
    g.stamp()
    a("s_waitcnt lgkmcnt(0)")
    for st in range(2):
        for t in range(7):
            c = "0" if (st == 0 and t == 0) else "v[128:143]"
            a(f"v_mfma_f32_32x32x16_bf16 v[128:143], {ar(WF+st*28+t*4,4)}, {vr(96+4*t,4)}, {c}")
            pro_dma(2 + st, [t])
    for t in range(7):
        for j in range(2): a(wread(0, t, j, vWc, 0))
    a(f"v_cmp_gt_u32 vcc, 7, v160")
    a("s_and_saveexec_b64 s[56:57], vcc")
    for q in range(4): a(f"ds_write_b128 v165, {vr(128+4*q,4)} offset:{32*q}")
    a("s_mov_b64 exec, -1")
    a(f"s_mov_b32 s{sT+1}, 16384")
    a("s_waitcnt lgkmcnt(0)")
    g.stamp()
    poll_flags(g, 29, sT+1, 166)
    a("s_barrier")
    g.stamp()
    vm = VM()
    SD = 64
    def xload(slot, k):
        j, hf = k >> 1, k & 1
        return f"buffer_load_dwordx2 {ar(XR+slot*8+j*4+hf*2,2)}, v{vX}, {sr(sX,4)}, s{sOX2 if hf else sOX} offen offset:{256*j} {XF}"
    xadv = [f"s_add_u32 s{sOX}, s{sOX}, 65536", f"s_add_u32 s{sOX2}, s{sOX}, 16384"]
    def xadv_pair(own):
        return [f"s_mov_b32 s{sOX}, 0" if own else xadv[0], f"s_cmp_eq_u32 s{sOX}, s17", f"s_cselect_b32 s{sOX}, s26, s{sOX}", xadv[1]]
    RD = 148
    def pro_x(x):
        for k in range(4): a(xload(x, k)); vm.add(f"X{x}")
        for ins in xadv: a(ins)
    for x in range(X0): pro_x(x)
    nxt_x = [X0]
    a(f"v_lshlrev_b32 v168, 2, v0"); a(f"v_add_u32 v168, {PBASE}, v168")
    for w in range(4): a(f"ds_read_b32 v{170+w}, v168 offset:{896*w}")
    a(f"v_lshlrev_b32 v169, 5, v0")
    a(f"s_lshl_b32 s{sT}, s{sG_TM}, 2"); a(f"s_add_u32 s{sT}, s{sT}, s{sCSo}")
    a(f"v_cmp_gt_u32 vcc, 224, v0")
    a(f"v_and_b32 v29, 3, v{vL}"); a(f"v_lshlrev_b32 v29, 4, v29"); a(f"s_lshl_b32 s{sT+1}, s{sWave}, 6"); a(f"s_add_u32 s{sT+1}, s{sT+1}, {SBASE}")
    a(f"v_add_u32 v29, s{sT+1}, v29")
    a("s_waitcnt lgkmcnt(0)")
    a("v_add_f32 v170, v170, v171"); a("v_add_f32 v172, v172, v173"); a("v_add_f32 v170, v170, v172")
    a("v_cvt_pk_bf16_f32 v171, v170, v170"); a("v_lshlrev_b32 v171, 16, v171")
    a("v_sub_f32 v170, v170, v171")
    a("v_cvt_pk_bf16_f32 v170, v171, v170")
    a("s_and_saveexec_b64 s[56:57], vcc")
    a(f"buffer_store_dword v170, v169, {sr(sCS,4)}, s{sT} offen {SC}"); vm.add("C")
    a("s_mov_b64 exec, -1")
    g.stamp()
    accu = []
    for k in range(8):
        r0 = RD+4*(k>>1)+(k&1); r1 = r0+2
        accu += [f"v_accvgpr_read_b32 v16, a{r0}", f"v_accvgpr_read_b32 v17, a{r1}",
                 "v_lshlrev_b32 v18, 16, v16", "v_lshlrev_b32 v19, 16, v17", "v_and_b32 v16, 0xffff0000, v16", "v_and_b32 v17, 0xffff0000, v17"]
        if k == 0:
            accu += ["v_add_f32 v12, v18, v16", "v_add_f32 v13, v19, v17", "v_mul_f32 v14, v18, v18", "v_mul_f32 v15, v19, v19"]
        else:
            accu += ["v_add_f32 v12, v12, v18", "v_add_f32 v13, v13, v19", "v_fmac_f32 v14, v18, v18", "v_fmac_f32 v15, v19, v19",
                     "v_add_f32 v12, v12, v16", "v_add_f32 v13, v13, v17"]
        accu += ["v_fmac_f32 v14, v16, v16", "v_fmac_f32 v15, v17, v17"]
    n3 = (len(accu) + 3) // 4
    FILL = {0: accu[:n3], 1: accu[n3:2*n3], 2: accu[2*n3:3*n3], 3: accu[3*n3:],
            4: red4(12, 16) + ["ds_write_b128 v29, v[12:15]"],
            5: [f"ds_read_b128 {vr(16+4*w,4)}, v29 offset:{64*(w+1)}" for w in range(3)],
            6: [f"v_add_f32 v{12+e}, v{12+e}, v{16+e}" for e in range(4)] + [f"v_add_f32 v{20+e}, v{20+e}, v{24+e}" for e in range(4)]
               + [f"v_add_f32 v{12+e}, v{12+e}, v{20+e}" for e in range(4)] + stats_final(12, 16),
            7: [f"v_cmp_gt_u32 vcc, 4, v{vL}", f"v_and_b32 v29, 3, v{vL}", "v_lshlrev_b32 v29, 5, v29", f"v_bfe_u32 v21, v{vL}, 2, 1", "v_lshl_add_u32 v29, v21, 4, v29",
                "v_cndmask_b32 v16, v13, v12, vcc", "v_cndmask_b32 v17, v15, v14, vcc", "v_cmp_gt_u32 vcc, 8, v0",
                f"v_mov_b32 v18, s{sNON}", f"v_mov_b32 v19, s{sNON+1}", "v_mov_b32 v21, 0x7fff0000", "v_cndmask_b32 v29, v21, v29, vcc",
                f"s_lshl_b32 s{sT}, s{sG_R}, 4", f"buffer_store_dwordx4 v[16:19], v29, {sr(sST,4)}, s{sT} offen {SC}", "v_lshlrev_b32 v26, 4, v0"]}
    LFILL = [f"v_and_b32 v{vC}, 31, v{vL}", f"v_lshlrev_b32 v{vC}, 5, v{vC}", f"v_lshrrev_b32 v{vF2}, 5, v{vL}", f"v_lshl_add_u32 v{vC}, v{vF2}, 4, v{vC}",
             f"v_and_b32 v{vF2}, 7, v{vL}", f"v_lshlrev_b32 v{vF2}, 9, v{vF2}",
             f"s_and_b32 s{sT}, s2, 0xc7", f"s_lshl_b32 s{sT}, s{sT}, 6", f"s_add_u32 s{sT}, s{sT}, {3*16384}", f"v_add_u32 v{vF2}, s{sT}, v{vF2}"]
    def ld_flags_stats():
        return [f"buffer_load_dwordx2 {vr(vFl,2)}, v{vF2}, {sr(sFLG,4)}, 0 offen {SC}",
                f"buffer_load_dwordx4 {vr(vS,4)}, v{vST}, {sr(sST,4)}, 0 offen {SC}",
                f"buffer_load_dwordx4 {vr(vS+4,4)}, v{vST}, {sr(sST,4)}, 0 offen offset:512 {SC}"]
    def ld_cs(t):
        if t < 4: return f"buffer_load_dwordx4 {ar(CSF+4*t,4)}, v{vC}, {sr(sCS,4)}, s{sCSo} offen offset:{1024*t} {SC}"
        return f"buffer_load_dwordx4 {ar(CSF+4*t,4)}, v{vC}, {sr(sCS,4)}, s{sNS} offen offset:{1024*(t-4)} {SC}"
    DM = {3: [0, 1], 0: [2, 3], 1: [4, 5], 2: [6]}
    def body(kind, base_step):
        first = kind == "first"; last = kind == "last"; second = kind == "second"; mid = kind == "mid"
        for u in range(8):
            s = u % 4; st = u & 1
            w = vm.wait_for(f'X{base_step+u}')
            if second and u == 0: w = min(w, vm.wait_for("R"))
            if last and u == 2: w = min(w, vm.wait_for("S"))
            a(f"s_waitcnt vmcnt({w}) lgkmcnt(0)")
            if (s == 3 and not (last and u == 7)) or (second and u == 5): a("s_barrier")
            if first and u == 7: set_flag(g, 3, 22)
            gaps = {k: [] for k in range(14)}
            tags = {k: [] for k in range(14)}
            nu = (u + 1) % 8
            reg = vWn if u == 7 else vWc
            imm0 = (nu // 4) * SLOT + (nu % 4) * 16 * 224
            k = 0
            if not (last and u == 7):
                for t in range(7):
                    for j in range(2):
                        gaps[k // 2].append(wread(1 - st, t, j, reg, imm0)); k += 1
            xl = []
            while nxt_x[0] <= base_step + u + LA and len(xl) < 2 and not (last and nxt_x[0] >= base_step + 8):
                xl.append(nxt_x[0]); nxt_x[0] += 1
            g0 = 6 if len(xl) == 1 else 2
            for x in xl:
                for k in range(4):
                    gaps[g0+k].append(xload(x % 8, k)); tags[g0+k].append(f"X{x}")
                gaps[g0+3] += xadv_pair(x == 7) if x % 8 == 7 else xadv
                g0 += 4
            gi = 11
            if not last:
                for i in ([] if first and u < 3 else DM[s]):
                    if i in (0, 4):
                        e = 4096 if i else 0
                        if u in (3, 4, 5, 6): ins = f"s_add_u32 m0, s{sA}, {e}"
                        elif u == 7: ins = f"s_add_u32 m0, s{sA}, {SLOT + e}"
                        else: ins = f"s_add_u32 m0, s{sB}, {SLOT + e}"
                        gaps[gi-2].append(ins)
                    gaps[gi].append(g1_dma(vDMA, i)); tags[gi].append("D")
                    if i == 6:
                        gaps[gi+1] += g1_wadv("odd" if u == 2 else "even")
                    gi += 1
                if u == 0:
                    gaps[0].insert(0, f"s_add_u32 s{sA}, s{sM0}, s{sBase}")
                    gaps[1].insert(0, f"s_sub_u32 s{sBase}, {2*SLOT}, s{sBase}")
                    gaps[2].insert(0, f"s_add_u32 s{sB}, s{sM0}, s{sBase}")
                if mid and u in PU:
                    gaps[13] += [f"buffer_store_dwordx4 a[208:211], v26, s[52:55], s51 offen {SC}", f"s_add_u32 s51, s51, 4096"]; tags[13].append("P")
                if first and u in (2, 3, 4, 5):
                    gaps[13] += [f"buffer_load_dwordx4 {ar(RD+4*(u-2),4)}, v27, {sr(sX,4)}, s{sG_SR} offen {SC}", f"s_add_u32 s{sG_SR}, s{sG_SR}, {16*16384}"]; tags[13].append("R")
                if u == 7:
                    gaps[8].append(f"v_swap_b32 v{vWc}, v{vWn}")
                    if mid:
                        gaps[13].append(f"s_add_u32 s{sIt}, s{sIt}, 1"); gaps[13].append(f"s_cmp_lt_u32 s{sIt}, 8")
            else:
                if u == 0:
                    for n, ins in enumerate(LFILL): gaps[n].append(ins)
                    for n, ins in enumerate(ld_flags_stats()): gaps[11+n].append(ins); tags[11+n].append("S")
                if u == 1: gaps[8].append(f"s_add_u32 s{sNS}, s{sCSo}, 4096")
                if u == 2:
                    for t in range(7): gaps[7+t].append(ld_cs(t)); tags[7+t].append('CS')
                if u == TU:
                    for t in range(7):
                        gaps[7+t] += [f"buffer_load_dwordx4 a[200:203], v26, {sr(sW2,4)}, s16 offen", f"s_add_u32 s16, s16, 4096"]; tags[7+t].append("T")
                if u == 6:
                    pre = g2_dma_addr(sM0)
                    for n, ins in enumerate(pre): gaps[7 + n*7//len(pre)].append(ins)
                if u == 7:
                    gaps[0].append("s_barrier")
            if second and u in FILL:
                fl = FILL[u]
                for n, ins in enumerate(fl): gaps[n*14//len(fl) if len(fl) > 7 else 7+n].append(ins)
            k = 0
            for t in range(7):
                for j in range(2):
                    c = "0" if (first and u == 0) else vr(acc(j,t),16)
                    a(f"v_mfma_f32_32x32x16_bf16 {vr(acc(j,t),16)}, {ar(WF+st*28+t*4,4)}, {ar(XR+u*8+j*4,4)}, {c}")
                    for ins in gaps[k]: a(ins)
                    for tg in tags[k]: vm.add(tg)
                    k += 1
    body("first", 0)
    g.stamp()
    body("second", 8)
    loop = a.label("g1loop")
    a(f"{loop}:")
    if g.dbg:
        a("s_memrealtime s[98:99]"); a("s_memtime s[100:101]"); a(f"s_add_u32 s97, s{sIt}, {g.nst-3}"); a("s_waitcnt lgkmcnt(0)")
        a("s_mov_b32 s99, m0"); a("s_mov_b32 m0, s97"); a("s_nop 1")
        a(f"v_writelane_b32 v{vSTAMP}, s98, m0"); a("s_add_u32 m0, m0, 32"); a("s_nop 1"); a(f"v_writelane_b32 v{vSTAMP}, s100, m0"); a("s_mov_b32 m0, s99")
        g.nst += 5
    body("mid", 16)
    a(f"s_cbranch_scc1 {loop}")
    g.stamp()
    body("last", 24)
    g.stamp()
    poll = a.label("sp"); ok = a.label("sok")
    a(f"s_mov_b32 s{sTO}, 0")
    a(f"{poll}:")
    a(f"v_cmp_ne_u64 vcc, {sr(sNON,2)}, {vr(vS+2,2)}")
    a(f"v_cmp_ne_u64 {sr(sT,2)}, {sr(sNON,2)}, {vr(vS+6,2)}")
    a(f"s_or_b64 vcc, vcc, {sr(sT,2)}")
    a(f"v_cmp_ne_u64 {sr(sT,2)}, {sr(sNON,2)}, {vr(vFl,2)}")
    a(f"s_or_b64 vcc, vcc, {sr(sT,2)}")
    a(f"s_cbranch_vccz {ok}")
    for ins in ld_flags_stats(): a(ins)
    a("s_waitcnt vmcnt(0)")
    for t in range(7): a(ld_cs(t))
    a("s_waitcnt vmcnt(0)")
    a(f"s_add_u32 s{sTO}, s{sTO}, 1"); a(f"s_cmp_lt_u32 s{sTO}, {TIMEOUT}"); a(f"s_cbranch_scc1 {poll}")
    a(f"{ok}:")
    for j in range(2):
        b = 20 + 4*j
        a(f"v_xor_b32 v{b+1}, 0x80000000, v{vS+4*j}")
        a(f"v_lshrrev_b32 v{b}, 16, v{b+1}")
        a(f"v_or_b32 v{b}, v{b}, v{b+1}")
        for e in range(1, 4): a(f"v_mov_b32 v{b+e}, v{b}")
    a("s_waitcnt vmcnt(7)")
    a("s_nop 0")
    K0 = -2.0 * 0.7978845608028654 * LOG2E
    K1 = K0 * 0.044715
    C = {0: 2, 1: 6}
    cst = []
    for j in range(2):
        s_ = vS + 4*j + 1; c = C[j]
        cst += [f"v_mul_f32 v{c}, {f32(K0)}, v{s_}", f"v_mul_f32 v{c+2}, v{s_}, v{s_}", f"v_mul_f32 v{c+1}, v{c+2}, v{s_}",
                f"v_mul_f32 v{c+1}, {f32(K1)}, v{c+1}", f"v_rcp_f32 v{c+2}, v{c+2}"]
    for j in range(2):
        for t in range(7):
            a(f"v_mfma_f32_32x32x16_bf16 {vr(acc(j,t),16)}, {ar(CSF+t*4,4)}, {vr(20+4*j,4)}, {vr(acc(j,t),16)}")
            if cst: a(cst.pop(0))
    w2 = [g2_dma(stg, i) for stg in range(PRE1) for i in range(4)]
    def W2():
        if w2:
            for ins in w2.pop(0): a(ins)
    T = 12
    for j in range(2):
        c = C[j]
        for t in range(7):
            b = acc(j, t)
            prs = [(b, b+4), (b+2, b+6), (b+8, b+12), (b+10, b+14)]
            for i, (gt, u_) in enumerate(prs): a(f"v_pk_mul_f32 {vr(T+2*i,2)}, {vr(gt,2)}, {vr(gt,2)}")
            for i, (gt, u_) in enumerate(prs): a(f"v_pk_fma_f32 {vr(T+2*i,2)}, {vr(T+2*i,2)}, {vr(c,2)}, {vr(c,2)} op_sel:[0,1,0] op_sel_hi:[1,1,0]")
            for i, (gt, u_) in enumerate(prs): a(f"v_pk_mul_f32 {vr(T+2*i,2)}, {vr(T+2*i,2)}, {vr(gt,2)}")
            W2()
            for i in range(8): a(f"v_exp_f32 v{T+i}, v{T+i}")
            for i, (gt, u_) in enumerate(prs): a(f"v_pk_mul_f32 {vr(u_,2)}, {vr(u_,2)}, {vr(gt,2)}")
            for i, (gt, u_) in enumerate(prs): a(f"v_pk_fma_f32 {vr(T+2*i,2)}, {vr(T+2*i,2)}, {vr(c+2,2)}, {vr(c+2,2)} op_sel_hi:[1,0,0]")
            W2()
            for i in range(8): a(f"v_rcp_f32 v{T+i}, v{T+i}")
            a(f"s_mov_b32 s{sT}, {t*65536}")
            for i, (gt, u_) in enumerate(prs): a(f"v_pk_mul_f32 {vr(u_,2)}, {vr(u_,2)}, {vr(T+2*i,2)}")
            for i, (gt, u_) in enumerate(prs): a(f"v_cvt_pk_bf16_f32 v{b+i}, v{u_}, v{u_+1}")
            a(f"buffer_store_dwordx4 {vr(b,4)}, v{vO}, {sr(sACT,4)}, s{sT} offen offset:{512*j} {SC}")
    assert not w2
    g.stamp()

def gen_mega(dbg=False, as_list=False, p01={}, g1={}, g2={}, PRE1=6):
    g = G(dbg); a = g.a
    end = a.label("end")
    a(f"s_cmp_ge_u32 s2, 256"); a(f"s_cbranch_scc1 {end}")
    phase01(g, **p01); phase_gemm1(g, PRE1, **g1); phase_gemm2(g, PRE1, **g2)
    if dbg:
        g.stamp()
        a("s_waitcnt vmcnt(0)")
        g.stamp()
        srd(a, 4, pWS, 1 << 19, M_DBG)
        a(f"v_lshlrev_b32 v1, 2, v{vL}")
        a(f"s_lshl_b32 s{sT}, s2, 2"); a(f"s_add_u32 s{sT}, s{sT}, s{sWave}"); a(f"s_lshl_b32 s{sT}, s{sT}, 8")
        a(f"buffer_store_dword v{vSTAMP}, v1, s[4:7], s{sT} offen")
    a(f"{end}:")
    a("s_endpgm")
    k = f"kernel={NAME} " if as_list else ""
    launch = f"; @launch {k}grid=(256,1,1) block=(256,1,1) lds=163840\n"
    return launch, kernel_header(NAME) + a.text(), kernel_desc(NAME, 512, 256)

if __name__ == "__main__":
    from mk import *
    mk([gen_mega(dbg=True, as_list=True)], 'mega_dbg.s')
    mk([gen_mega(dbg=True, as_list=True, g2=dict(XSLEEP=12))], 'mega_b.s')
    mk([gen_mega(dbg=True, as_list=True, PRE1=4)], 'mega_c.s')
    assemble([gen_mega(dbg=False)], 'm1.s')
    assemble([gen_mega(dbg=False, p01=dict(DNT="nt"))], 'm2.s')
    assemble([gen_mega(dbg=False, p01=dict(XNT=""))], 'm3.s')
    assemble([gen_mega(dbg=False, p01=dict(DPOST=0, DSP=12))], 'm4.s')
    assemble([gen_mega(dbg=False, PRE1=4)], 'm5.s')
```

```python
from common import *
LOG2E = 1.4426950408889634
NAME = "sequential_preLN__ssm_conv_s4d__geglu_ffn__prompt_kernel"

M_H4  = 0x0000000
M_ACT = 0x0400000
M_ST2 = 0x1200000
M_FLG = 0x1210000
M_CS  = 0x1220000
M_DBG = 0x1280000
M_U2  = 0x1300000
M_END = 0x1b00000

pU, pLOGA, pAIM, pCRE, pCIM, pLOGDT, pDSKIP, pBX, pWG, pWU, pWD, pOUT, pDBG, pWS = [64 + 2*i for i in range(14)]
sNON = 92; sWave = 94; sCG = 95; sTO = 96
sFLG = 60
sT = 48
vL = 30; vSTAMP = 31
SC = "sc0 sc1"

SLOT1 = 28800; UPOFF = 14464
UCS = 4512; UCH = 4*UCS; UPAD = 400
KCS = 4224; KCH = 8448; KPAD = 112
UBASE = 2*SLOT1
KBASE = UBASE + 4*UCH
SBASE = KBASE + 4*KCH
PBASE = 4*SLOT1
RS = 528; TOFF = 24*RS + 16
NBASE = SBASE + 240
assert SBASE + 256 <= 163840

class G:
    def __init__(self, dbg):
        self.a = Asm("mk"); self.dbg = dbg; self.nst = 0
    def stamp(self):
        if not self.dbg: return
        a = self.a
        a("s_memrealtime s[98:99]"); a("s_memtime s[100:101]"); a("s_waitcnt lgkmcnt(0)")
        a(f"v_writelane_b32 v{vSTAMP}, s98, {self.nst}"); a(f"v_writelane_b32 v{vSTAMP}, s100, {32+self.nst}")
        self.nst += 1

def cmul(a, d, x, y, conj_out=False):
    n1 = " neg_hi:[0,1]" if conj_out else ""
    n2 = " neg_hi:[0,1,0]" if conj_out else ""
    a(f"v_pk_mul_f32 {vr(d,2)}, {vr(x,2)}, {vr(y,2)} op_sel_hi:[0,1]{n1}")
    a(f"v_pk_fma_f32 {vr(d,2)}, {vr(x,2)}, {vr(y,2)}, {vr(d,2)} op_sel:[1,1,0] op_sel_hi:[1,0,1] neg_lo:[0,1,0]{n2}")

def red4(v, t):
    o = []
    for d in (4, 8):
        o += [f"v_add_f32_dpp v{v+e}, v{v+e}, v{v+e} row_ror:{d} row_mask:0xf bank_mask:0xf" for e in range(4)]
    for op in ("v_permlane16_swap_b32", "v_permlane32_swap_b32"):
        o += [f"v_mov_b32 v{t+e}, v{v+e}" for e in range(4)]
        o += [f"{op} v{t+e}, v{v+e}" for e in range(4)]
        o += [f"v_add_f32 v{v+e}, v{v+e}, v{t+e}" for e in range(4)]
    return o

def stats_final(W, t):
    o = [f"v_mul_f32 v{W+e}, {f32(1/1024)}, v{W+e}" for e in range(4)]
    o += [f"v_fma_f32 v{W+2+e}, -v{W+e}, v{W+e}, v{W+2+e}" for e in range(2)]
    o += [f"v_max_f32 v{W+2+e}, 0, v{W+2+e}" for e in range(2)]
    def rnd(b): return [f"v_cvt_pk_bf16_f32 v{t}, v{b}, v{b+1}", f"v_lshlrev_b32 v{b}, 16, v{t}", f"v_and_b32 v{b+1}, 0xffff0000, v{t}"]
    o += rnd(W+2)
    o += [f"v_add_f32 v{W+2+e}, {f32(1e-5)}, v{W+2+e}" for e in range(2)]
    o += rnd(W+2)
    o += [f"v_sqrt_f32 v{W+2+e}, v{W+2+e}" for e in range(2)]
    o += rnd(W)
    o += rnd(W+2)
    o += [f"v_rcp_f32 v{W+2+e}, v{W+2+e}" for e in range(2)]
    o += ["s_nop 0"]
    return o

def ln_stats8(a, pairs, T, W):
    for k, (r0, r1) in enumerate(pairs):
        a(f"v_lshlrev_b32 v{T+4*k}, 16, v{r0}"); a(f"v_lshlrev_b32 v{T+4*k+1}, 16, v{r1}")
        a(f"v_and_b32 v{T+4*k+2}, 0xffff0000, v{r0}"); a(f"v_and_b32 v{T+4*k+3}, 0xffff0000, v{r1}")
    a(f"v_pk_add_f32 {vr(W,2)}, {vr(T,2)}, {vr(T+4,2)}"); a(f"v_pk_mul_f32 {vr(W+2,2)}, {vr(T,2)}, {vr(T,2)}")
    a(f"v_pk_add_f32 {vr(W+4,2)}, {vr(T+2,2)}, {vr(T+6,2)}"); a(f"v_pk_mul_f32 {vr(W+6,2)}, {vr(T+2,2)}, {vr(T+2,2)}")
    for k in range(2, 16):
        b = W + 4*(k & 1)
        if k >= 4: a(f"v_pk_add_f32 {vr(b,2)}, {vr(b,2)}, {vr(T+2*k,2)}")
        a(f"v_pk_fma_f32 {vr(b+2,2)}, {vr(T+2*k,2)}, {vr(T+2*k,2)}, {vr(b+2,2)}")
    a(f"v_pk_add_f32 {vr(W,2)}, {vr(W,2)}, {vr(W+4,2)}"); a(f"v_pk_add_f32 {vr(W+2,2)}, {vr(W+2,2)}, {vr(W+6,2)}")
    a(f"v_and_b32 v{W+24}, 3, v{vL}"); a(f"v_lshlrev_b32 v{W+24}, 4, v{W+24}"); a(f"v_add_u32 v{W+24}, {SBASE}, v{W+24}")
    a(f"s_lshl_b32 s{sT}, s{sWave}, 6"); a(f"v_add_u32 v{W+25}, s{sT}, v{W+24}")
    for ins in red4(W, W+4): a(ins)
    a(f"ds_write_b128 v{W+25}, {vr(W,4)}")
    a("s_waitcnt lgkmcnt(0)"); a("s_barrier")
    E = W + 8
    for w in range(4): a(f"ds_read_b128 {vr(E+4*w,4)}, v{W+24} offset:{64*w}")
    a("s_waitcnt lgkmcnt(0)")
    a(f"v_pk_add_f32 {vr(W,2)}, {vr(E,2)}, {vr(E+4,2)}"); a(f"v_pk_add_f32 {vr(W+4,2)}, {vr(E+8,2)}, {vr(E+12,2)}")
    a(f"v_pk_add_f32 {vr(W+2,2)}, {vr(E+2,2)}, {vr(E+6,2)}"); a(f"v_pk_add_f32 {vr(W+6,2)}, {vr(E+10,2)}, {vr(E+14,2)}")
    a(f"v_pk_add_f32 {vr(W,2)}, {vr(W,2)}, {vr(W+4,2)}"); a(f"v_pk_add_f32 {vr(W+2,2)}, {vr(W+2,2)}, {vr(W+6,2)}")
    for ins in stats_final(W, W+4): a(ins)

TIMEOUT = 400000
def set_flag(g, which, tmp):
    a = g.a
    sk = a.label("fl")
    a(f"s_cmp_lg_u32 s{sWave}, 0"); a(f"s_cbranch_scc1 {sk}")
    a(f"s_lshl_b32 s{sT}, s2, 6"); a(f"s_add_u32 s{sT}, s{sT}, {which*16384}")
    a(f"v_mov_b32 v{tmp}, s{sNON}"); a(f"v_mov_b32 v{tmp+1}, s{sNON+1}"); a(f"v_mov_b32 v{tmp+2}, 0")
    a("s_mov_b64 exec, 1")
    a(f"buffer_store_dwordx2 {vr(tmp,2)}, v{tmp+2}, {sr(sFLG,4)}, s{sT} offen {SC}")
    a("s_mov_b64 exec, -1")
    a(f"{sk}:")

def poll_flags(g, voff, soff, tmp, preloaded=False):
    a = g.a
    lp = a.label("poll"); dn = a.label("pdone"); pre = a.label("ppre")
    a(f"s_mov_b32 s{sTO}, 0")
    if preloaded: a(f"s_branch {pre}")
    a(f"{lp}:")
    a(f"buffer_load_dwordx2 {vr(tmp,2)}, v{voff}, {sr(sFLG,4)}, s{soff} offen {SC}")
    if preloaded: a(f"{pre}:")
    a("s_waitcnt vmcnt(0)")
    a(f"v_cmp_ne_u64 vcc, {sr(sNON,2)}, {vr(tmp,2)}")
    a(f"s_cbranch_vccz {dn}")
    a("s_mov_b64 exec, vcc")
    a(f"s_add_u32 s{sTO}, s{sTO}, 1"); a(f"s_cmp_lt_u32 s{sTO}, {TIMEOUT}"); a(f"s_cbranch_scc1 {lp}")
    a(f"{dn}:")
    a("s_mov_b64 exec, -1")

class VM:
    def __init__(self): self.ops = []
    def add(self, tag): self.ops.append(tag)
    def wait_for(self, tag):
        idx = max(i for i, t in enumerate(self.ops) if t == tag)
        n = len(self.ops) - 1 - idx
        assert n <= 63, n
        return n


pDMA = 224
pX = 231; pST = 232; pWc = 233; pO = 234; pSR = 235; pTch = 236
sG_W = 4
sG_OW = 22; sG_M0 = 24; sG_F = 27; sG_R = 31; sG_SR = 35; sG_TN = 34; sG_TM = 33

def g1_dma(reg, i, fl=""):
    return f"buffer_load_dwordx4 v{reg+i}, {sr(sG_W,4)}, s{sG_OW} offen offset:{(i & 3)*1024} {fl} lds"
sG_OWN = 19; sG_OWN2 = 18
def g1_wadv(kind):
    if kind == "even": return [f"s_add_u32 s{sG_OW}, s{sG_OW}, {64*7168}"]
    first = f"s_mov_b32 s{sG_OW}, 0" if kind == "own" else f"s_add_u32 s{sG_OW}, s{sG_OW}, {64*7168}"
    return [first, f"s_cmp_eq_u32 s{sG_OW}, s{sG_OWN}", f"s_cselect_b32 s{sG_OW}, s{sG_OWN2}, s{sG_OW}"]

def gemm1_addr(g):
    a = g.a
    t0 = 240; sM = 26
    a(f"s_and_b32 s{sT}, s2, 7")
    a(f"s_bfe_u32 s{sG_TM}, s2, 0x30003")
    a(f"s_lshl_b32 s{sG_TN}, s{sT}, 2"); a(f"s_lshr_b32 s{sT+2}, s2, 6"); a(f"s_add_u32 s{sG_TN}, s{sG_TN}, s{sT+2}")
    a(f"s_lshl_b32 s{sM}, s{sG_TM}, 8")
    a(f"s_lshl_b32 s{sG_R}, s{sG_TN}, 3"); a(f"s_add_u32 s{sG_R}, s{sG_R}, s{sM}")
    a(f"s_mul_i32 s{sG_F}, s{sG_TN}, 112")
    a(f"s_cmp_ge_u32 s{sWave}, 2")
    a(f"s_cselect_b32 s{sG_W}, s{pWU}, s{pWG}"); a(f"s_cselect_b32 s{sG_W+1}, s{pWU+1}, s{pWG+1}")
    a(f"s_mov_b32 s{sG_W+2}, {SZ_W}"); a(f"s_mov_b32 s{sG_W+3}, 0x20000")
    a(f"s_and_b32 s{sT}, s{sWave}, 1"); a(f"s_mul_i32 s{sT+1}, s{sT}, 448"); a(f"s_lshl_b32 s{sT+2}, s{sG_F}, 1")
    for i in range(7):
        imm = (i & 3) * 1024
        a(f"v_add_u32 v{t0}, s{sT+1}, v{vL}")
        if i: a(f"v_add_u32 v{t0}, {64*i}, v{t0}")
        a(f"v_mul_u32_u24 v{t0+1}, 4682, v{t0}"); a(f"v_lshrrev_b32 v{t0+1}, 16, v{t0+1}")
        a(f"v_mul_u32_u24 v{t0+1}, {7168-224}, v{t0+1}")
        a(f"v_lshl_add_u32 v{t0+1}, v{t0}, 4, v{t0+1}")
        a(f"v_add_u32 v{pDMA+i}, s{sT+2}, v{t0+1}")
        if imm: a(f"v_subrev_u32 v{pDMA+i}, {imm}, v{pDMA+i}")
    a(f"v_and_b32 v{t0+3}, 3, v{vL}")
    a(f"s_mul_i32 s{sG_M0}, s{sT}, 7168"); a(f"s_lshr_b32 s{sT}, s{sWave}, 1"); a(f"s_mul_i32 s{sT}, s{sT}, {UPOFF}")
    a(f"s_add_u32 s{sG_M0}, s{sG_M0}, s{sT}")
    a(f"s_mul_i32 s{sG_OW}, s{sG_TM}, {128*7168}")
    a(f"s_mov_b32 s{sG_OWN}, s{sG_OW}"); a(f"s_add_u32 s{sG_OWN2}, s{sG_OW}, {128*7168}")
    a(f"s_lshl_b32 s{sT}, s{sWave}, 6"); a(f"s_add_u32 s{sM}, s{sM}, s{sT}")
    a(f"v_and_b32 v{t0}, 31, v{vL}"); a(f"v_add_u32 v{t0}, s{sM}, v{t0}")
    a(f"v_lshlrev_b32 v{pST}, 4, v{t0}")
    a(f"v_lshrrev_b32 v{t0+1}, 5, v{vL}")
    a(f"v_lshlrev_b32 v{pX}, 3, v{t0}"); a(f"v_lshl_add_u32 v{pX}, v{t0+1}, 15, v{pX}")
    a(f"v_lshl_add_u32 v{pO}, v{t0+1}, 15, v{pST}"); a(f"s_lshl_b32 s{sT}, s{sG_F}, 12"); a(f"v_add_u32 v{pO}, s{sT}, v{pO}")
    a(f"v_bfe_u32 v{t0+2}, v{vL}, 2, 2"); a(f"v_lshl_add_u32 v{t0+2}, v{t0+1}, 3, v{t0+2}")
    a(f"v_mul_u32_u24 v{pWc}, 224, v{t0+2}")
    a(f"v_bfe_u32 v{t0+2}, v{vL}, 1, 1"); a(f"v_mul_u32_u24 v{t0+2}, {UPOFF}, v{t0+2}"); a(f"v_add_u32 v{pWc}, v{pWc}, v{t0+2}")
    a(f"v_and_b32 v{t0+2}, 1, v{vL}"); a(f"v_lshl_add_u32 v{pWc}, v{t0+2}, 4, v{pWc}")
    a(f"v_bfe_u32 v{t0+2}, v{vL}, 4, 1"); a(f"v_lshl_add_u32 v{pWc}, v{t0+2}, 3, v{pWc}")
    a(f"v_lshrrev_b32 v{pSR}, 2, v{vL}"); a(f"v_lshlrev_b32 v{pSR}, 14, v{pSR}"); a(f"v_lshl_add_u32 v{pSR}, v{t0+3}, 4, v{pSR}")
    a(f"s_lshl_b32 s{sG_SR}, s{sWave}, 20"); a(f"s_lshl_b32 s{sT}, s{sG_R}, 3"); a(f"s_add_u32 s{sG_SR}, s{sG_SR}, s{sT}")

def phase01(g, ORDER="LSM", KMID=1, DPOST=7, XNT="nt", TOUCH=False, DNT="", DSP=18, CPF=True):
    a = g.a
    vm = VM()
    a("s_load_dwordx16 s[64:79], s[0:1], 0")
    a("s_load_dwordx8 s[80:87], s[0:1], 64")
    a("s_load_dwordx4 s[88:91], s[0:1], 96")
    a(f"s_memrealtime {sr(sT+2,2)}")
    a(f"v_lshrrev_b32 v2, 6, v0")
    a(f"v_and_b32 v{vL}, 63, v0")
    a(f"v_readfirstlane_b32 s{sWave}, v2")
    a(f"s_and_b32 s{sT}, s2, 7"); a(f"s_lshl_b32 s{sT}, s{sT}, 5")
    a(f"s_lshr_b32 s{sCG}, s2, 3"); a(f"s_add_u32 s{sCG}, s{sCG}, s{sT}")
    if g.dbg: a(f"v_mov_b32 v{vSTAMP}, 0")
    a(f"v_and_b32 v3, 3, v{vL}"); a(f"v_lshrrev_b32 v4, 2, v{vL}")
    a(f"v_lshlrev_b32 v5, 12, v3"); a(f"v_lshl_add_u32 v5, v4, 4, v5")
    a(f"s_lshl_b32 s{sT}, s2, 14"); a(f"s_lshl_b32 s{sT+1}, s{sWave}, 9"); a(f"s_add_u32 s{sT}, s{sT}, s{sT+1}")
    a(f"v_mov_b32 v1, 0")
    sD = 97
    a(f"s_lshl_b32 s{sD}, s{sCG}, 2"); a(f"s_add_u32 s{sD}, s{sD}, s{sWave}")
    a(f"s_lshl_b32 s{sT+4}, s{sD}, 8"); a(f"v_lshlrev_b32 v2, 2, v{vL}")
    a(f"s_lshl_b32 s{sT+5}, s{sD}, 1")
    vF = 29; vR = 8
    a(f"v_lshlrev_b32 v{vF}, 6, v0"); a(f"v_lshlrev_b32 v{vR}, 4, v0")
    a("s_waitcnt lgkmcnt(0)")
    g.stamp()
    sX = 36; sDB = 8; sU2 = 40; sH = 44; sP = 12
    srd(a, sDB, pDBG, 256)
    nn = a.label("nn")
    a(f"s_or_b32 s{sT+1}, s2, s{sWave}"); a(f"s_cmp_lg_u32 s{sT+1}, 0"); a(f"s_cbranch_scc1 {nn}")
    a(f"s_or_b32 s{sT+2}, s{sT+2}, 1")
    a(f"v_mov_b32 v6, s{sT+2}"); a(f"v_mov_b32 v7, s{sT+3}")
    a("s_mov_b64 exec, 0xf")
    a(f"buffer_store_dwordx2 v[6:7], v{vF}, {sr(sDB,4)}, 0 offen {SC}")
    a("s_mov_b64 exec, -1")
    a(f"{nn}:")
    PR = 24; XD = 32
    def ld_params():
        for i, p in enumerate((pLOGA, pAIM, pCRE, pCIM)):
            srd(a, sP+4*i, p, 1024*256)
            a(f"buffer_load_dword v{PR+i}, v2, {sr(sP+4*i,4)}, s{sT+4} offen"); vm.add("P")
        srd(a, 28, pLOGDT, 2048)
        a(f"buffer_load_ushort v{PR+4}, v1, s[28:31], s{sT+5} offen"); vm.add("P")
    def ld_x():
        srd(a, sX, pU, 2048*2048)
        for e in range(2):
            for i in range(2):
                a(f"buffer_load_dwordx4 {vr(XD+8*e+4*i,4)}, v5, {sr(sX,4)}, s{sT} offen offset:{2048*e+256*i} {XNT}"); vm.add("X")
    if ORDER[0] == "S": ld_params(); ld_x()
    else: ld_x(); ld_params()
    if CPF:
        a("s_getpc_b64 s[36:37]"); a("s_and_b32 s36, s36, 0xffffff00"); a(f"s_mov_b32 s38, CODE_BYTES"); a("s_mov_b32 s39, 0x20000")
        a(f"s_lshr_b32 s{sT+1}, s2, 3"); a(f"s_and_b32 s{sT+1}, s{sT+1}, 3"); a(f"s_lshl_b32 s{sT+1}, s{sT+1}, 14")
        a(f"buffer_load_dword a204, v{vF}, s[36:39], s{sT+1} offen"); vm.add("T")
    if TOUCH:
        srd(a, sX, pWS, M_END)
        a(f"v_lshlrev_b32 v6, 21, v{vL}"); a(f"v_lshlrev_b32 v7, 7, v{vL}"); a(f"v_add_u32 v6, v6, v7")
        a(f"buffer_load_dword a204, v6, {sr(sX,4)}, 0 offen"); vm.add("T")
        srd(a, sX, pOUT, 4 << 20)
        a(f"buffer_load_dword a205, v6, {sr(sX,4)}, 0 offen"); vm.add("T")
        a(f"buffer_load_dword a206, v1, {sr(sDB,4)}, 0 offen sc1"); vm.add("T")
    srd(a, sFLG, pWS, 4*16384, M_FLG)
    srd(a, sU2, pWS, 8 << 20, M_U2); srd(a, sH, pWS, 4 << 20, M_H4)
    a(f"s_lshl_b32 s{sT+1}, s{sCG}, 3")
    a(f"s_load_dwordx2 s[58:59], {sr(pDSKIP,2)}, s{sT+1}")
    a(f"v_lshlrev_b32 v6, 15, v4"); a(f"v_lshl_add_u32 v6, v3, 4, v6")
    nu = 9; vG = 19
    a(f"v_and_b32 v{nu}, 15, v{vL}"); a(f"v_lshrrev_b32 v{vG}, 4, v{vL}")
    sUB = sT+8; sKB = sT+9; sTB = sT+7
    a(f"s_mul_i32 s{sUB}, s{sWave}, {UCH}"); a(f"s_add_u32 s{sUB}, s{sUB}, {UBASE}")
    a(f"s_mul_i32 s{sKB}, s{sWave}, {KCH}"); a(f"s_add_u32 s{sKB}, s{sKB}, {KBASE}")
    a(f"s_add_u32 s{sTB}, s{sUB}, {TOFF}")
    vTa = 10; vTb = 11; vTc = 12; vTw = 13; vO1 = 15; vO2 = 18
    a(f"v_lshlrev_b32 v16, 7, v{vG}"); a(f"v_add_u32 v16, s{sUB}, v16")
    a(f"v_bfe_u32 v17, v{vL}, 2, 2"); a(f"v_mul_u32_u24 v{vTa}, {RS}, v17"); a(f"v_add_u32 v{vTa}, v{vTa}, v16")
    a(f"v_mul_u32_u24 v{vTb}, {RS}, v3")
    a(f"v_bfe_u32 v17, v{vL}, 3, 1"); a(f"v_lshlrev_b32 v{vTc}, v17, v{vTb}")
    a(f"v_add_u32 v{vTb}, v{vTb}, v16"); a(f"v_add_u32 v{vTc}, v{vTc}, v16")
    a(f"v_lshlrev_b32 v{vTw}, 3, v{vL}"); a(f"v_add_u32 v{vTw}, s{sUB}, v{vTw}")
    a(f"v_mov_b32 v16, 0x3c00"); a(f"v_mov_b32 v17, 0x3c00")
    for e in (0, 4, 12): a(f"ds_write_b64 v{vTw}, v[16:17] offset:{e*RS}")
    a(f"v_lshlrev_b32 v{vO1}, 6, v{nu}"); a(f"v_lshl_add_u32 v{vO1}, v{vG}, 3, v{vO1}"); a(f"v_add_u32 v{vO1}, s{sTB}, v{vO1}")
    a(f"v_lshlrev_b32 v22, 4, v{nu}"); a(f"v_lshl_add_u32 v22, v{vG}, 3, v22"); a(f"v_add_u32 v22, 1024, v22")
    a(f"v_lshlrev_b32 v23, 3, v{nu}"); a(f"v_lshl_add_u32 v23, v{vG}, 7, v23"); a(f"v_add_u32 v23, {1280-256}, v23")
    a(f"v_cmp_gt_u32 vcc, 32, v{vL}"); a("s_nop 1")
    a(f"v_cndmask_b32 v{vO2}, v23, v22, vcc"); a(f"v_add_u32 v{vO2}, s{sTB}, v{vO2}")
    SA = 184
    def sel(dst, lo32, hi32):
        a(f"v_mov_b32 v{dst}, {hi32:#x}"); a(f"v_mov_b32 v22, {lo32:#x}"); a(f"v_cndmask_b32 v{dst}, v{dst}, v22, vcc")
    sel(SA, 0x01000302, 0x01000100); sel(SA+1, 0x01000302, 0x01000504); sel(SA+2, 0x03020504, 0x01000504); sel(SA+3, 0x03020504, 0x05040504)
    a(f"v_mov_b32 v{SA+4}, v{SA+3}")
    a(f"s_mov_b32 s{sT+3}, 0x03020504"); a(f"v_writelane_b32 v{SA+4}, s{sT+3}, 32")
    a(f"s_mov_b32 s{sT+2}, 0x0c0c0504"); a(f"v_writelane_b32 v{SA+4}, s{sT+2}, 0")
    vK = 20; vK2 = 21; vZ = 14
    a(f"v_lshlrev_b32 v22, 4, v{vL}"); a(f"v_add_u32 v{vK}, s{sKB}, v22"); a(f"v_add_u32 v{vK2}, v{vK}, v22")
    a(f"v_add_u32 v{vZ}, s{sUB}, v22")
    ZR = 180
    for r in range(ZR, ZR+4): a(f"v_mov_b32 v{r}, 0")
    a("s_mov_b64 exec, 0x7f")
    a(f"ds_write_b128 v{vK}, {vr(ZR,4)}"); a(f"ds_write_b128 v{vK}, {vr(ZR,4)} offset:{KCS}")
    a("s_mov_b64 exec, -1")
    vA = 4; vB = 5; vY = 7
    a(f"v_and_b32 v22, 1, v{vL}"); a(f"v_mul_u32_u24 v{vA}, {KCS}, v22")
    a(f"v_bfe_u32 v22, v{vL}, 1, 3"); a(f"v_sub_u32 v22, v22, v{vG}"); a(f"v_add_u32 v22, 3, v22")
    a(f"v_lshl_add_u32 v{vA}, v22, 4, v{vA}"); a(f"v_add_u32 v{vA}, s{sKB}, v{vA}")
    a(f"v_mul_u32_u24 v{vB}, {UCS}, v3")
    a(f"v_bfe_u32 v22, v{vL}, 2, 2"); a(f"v_lshl_add_u32 v23, v22, 3, v{vG}")
    a(f"v_lshl_add_u32 v{vB}, v23, 4, v{vB}"); a(f"v_add_u32 v{vB}, s{sUB}, v{vB}")
    a(f"v_lshlrev_b32 v{vY}, 5, v22"); a(f"v_lshl_add_u32 v{vY}, v{vG}, 3, v{vY}"); a(f"v_add_u32 v{vY}, v{vY}, v3")
    a(f"v_lshlrev_b32 v{vY}, 2, v{vY}"); a(f"v_add_u32 v{vY}, s{sKB}, v{vY}")
    vUC = 190
    a(f"v_lshlrev_b32 v22, 2, v0")
    for c in range(4):
        for ch in range(2): a(f"v_add_u32 v{vUC+2*c+ch}, {UBASE + ch*UCH + c*UCS + UPAD - 4*(c+1)}, v22")
    gemm1_addr(g)
    bgl = []
    for stg in range(2):
        for i in range(7):
            grp = []
            if i in (0, 4): grp += [(f"s_add_u32 m0, s{sG_M0}, {stg*SLOT1 + (4096 if i else 0)}", None), ("s_nop 0", None)]
            grp.append((g1_dma(pDMA, i, DNT), "D"))
            if i == 6: grp += [(x, None) for x in g1_wadv('own' if stg else 'even')]
            bgl.append(grp)
    def take(n):
        out = bgl[:n]; del bgl[:n]; return out
    ACC = 48; vSC = 60

    def setup():
        a(f"s_waitcnt vmcnt({vm.wait_for('P')})")
        g.stamp()
        dt = PR+4
        Z = 64; C = 68; TT = 72
        a(f"v_lshlrev_b32 v{dt}, 16, v{dt}"); a(f"v_lshlrev_b32 v{TT}, 16, v{PR}"); a(f"v_and_b32 v{TT+1}, 0xffff0000, v{PR}")
        for r in (dt, TT, TT+1): a(f"v_mul_f32 v{r}, {f32(LOG2E)}, v{r}")
        for r in (dt, TT, TT+1): a(f"v_exp_f32 v{r}, v{r}")
        for k, b in ((1, Z+1), (2, C), (3, C+1)):
            a(f"v_lshlrev_b32 v{b}, 16, v{PR+k}"); a(f"v_and_b32 v{b+2}, 0xffff0000, v{PR+k}")
        a(f"v_cvt_pk_bf16_f32 v{dt}, v{dt}, v{dt}"); a(f"v_cvt_pk_bf16_f32 v{PR}, v{TT}, v{TT+1}")
        a(f"v_max3_f32 v{vSC}, |v{C}|, |v{C+1}|, |v{C+2}|"); a(f"v_max_f32 v{vSC}, |v{C+3}|, v{vSC}")
        a(f"v_lshlrev_b32 v{dt}, 16, v{dt}")
        a(f"v_lshlrev_b32 v{Z}, 16, v{PR}"); a(f"v_and_b32 v{Z+2}, 0xffff0000, v{PR}")
        red = [f"v_max_f32_dpp v{vSC}, v{vSC}, v{vSC} {m} row_mask:0xf bank_mask:0xf" for m in ("quad_perm:[1,0,3,2]", "quad_perm:[2,3,0,1]", "row_ror:4", "row_ror:8")]
        a(red[0])
        for i in range(4): a(f"v_mul_f32 v{Z+i}, v{Z+i}, v{dt}")
        a(red[1])
        for m in range(2):
            a(f"v_mul_f32 v{Z+2*m}, {f32(-LOG2E)}, v{Z+2*m}"); a(f"v_mul_f32 v{Z+2*m+1}, 0.15915494, v{Z+2*m+1}")
        a(red[2])
        names = [1, 2, 3, 4, 8, 12, 16, 20, 24, 28, 32, 64, 96, 128, 256, 512, 528, 1024, 1536, 2048, "R1", "R2", "R3"]
        E = {n: 88 + 4*i for i, n in enumerate(names)}
        AR = 76
        for i, p in enumerate((1, 32, 512)):
            for k in range(4):
                if p == 1: a(f"v_mov_b32 v{AR+4*i+k}, v{Z+k}")
                else: a(f"v_mul_f32 v{AR+4*i+k}, {f32(p)}, v{Z+k}")
            if i == 0: a(red[3])
        for i in range(6): a(f"v_fract_f32 v{AR+2*i+1}, v{AR+2*i+1}")
        for op in ("v_permlane16_swap_b32", "v_permlane32_swap_b32"):
            a(f"v_mov_b32 v{TT}, v{vSC}"); a("s_nop 1"); a(f"{op} v{TT}, v{vSC}"); a("s_nop 0"); a(f"v_max_f32 v{vSC}, v{vSC}, v{TT}")
        for i, p in enumerate((1, 32, 512)):
            for m in range(2):
                r = AR+4*i+2*m
                a(f"v_cos_f32 v{E[p]+2*m}, v{r+1}"); a(f"v_sin_f32 v{E[p]+2*m+1}, v{r+1}"); a(f"v_exp_f32 v{r}, v{r}")
        a(f"v_frexp_exp_i32_f32 v{TT}, v{vSC}")
        a(f"v_add_f32 v{dt}, v{dt}, v{dt}")
        a(f"v_ldexp_f32 v{vSC}, v{dt}, v{TT}")
        a(f"v_sub_u32 v{TT}, 0, v{TT}")
        for i, p in enumerate((1, 32, 512)):
            for m in range(2):
                a(f"v_pk_mul_f32 {vr(E[p]+2*m,2)}, {vr(E[p]+2*m,2)}, {vr(AR+4*i+2*m,2)} op_sel_hi:[1,0]")
        for k in range(4): a(f"v_ldexp_f32 v{C+k}, v{C+k}, v{TT}")
        E["C"] = C
        ent = {1: 1, 2: 2, 3: 3, 4: 5, 8: 6, 12: 7, 16: 8, 20: 9, 24: 10, 28: 11, 32: 13, 64: 14, 96: 15, "C": 16, "R1": 17, "R2": 18, "R3": 19,
               512: 20, 528: 21, 1024: 22, 1536: 23}
        wt = [0]
        def emit(n):
            if n not in ent: return
            t = AR + 2*(wt[0] % 6); wt[0] += 1
            ng = "-" if 12 <= ent[n] < 20 else ""
            for m in range(2): a(f"v_cvt_pk_f16_f32 v{t+m}, v{E[n]+2*m}, {ng}v{E[n]+2*m+1}")
            a(f"ds_write_b64 v{vTw}, {vr(t,2)} offset:{ent[n]*RS}")
        levels = [[(2,1,1), (64,32,32), (1024,512,512)], [(3,2,1), (4,2,2), (96,64,32), (128,64,64), (1536,1024,512), (2048,1024,1024)],
                  [(8,4,4), (256,128,128), ("R1","C",128)], [(12,8,4), (16,8,8), ("R2","C",256)],
                  [(20,16,4), (24,16,8), (28,16,12), (528,512,16), ("R3","R2",128)]]
        pend = [1, 32, 512, "C"]
        for lv in levels:
            for d, x, y in lv:
                for m in range(2): a(f"v_pk_mul_f32 {vr(E[d]+2*m,2)}, {vr(E[x]+2*m,2)}, {vr(E[y]+2*m,2)} op_sel_hi:[0,1]")
            for d, x, y in lv:
                for m in range(2):
                    a(f"v_pk_fma_f32 {vr(E[d]+2*m,2)}, {vr(E[x]+2*m,2)}, {vr(E[y]+2*m,2)}, {vr(E[d]+2*m,2)} op_sel:[1,1,0] op_sel_hi:[1,0,1] neg_lo:[0,1,0]")
            for n in pend: emit(n)
            pend = [d for d, x, y in lv]
        for n in pend: emit(n)
        e = E[2048]
        a(f"v_mul_f32 v61, v{e}, v{C}"); a(f"v_fma_f32 v61, -v{e+1}, v{C+1}, v61")
        a(f"v_fma_f32 v61, v{e+2}, v{C+2}, v61"); a(f"v_fma_f32 v61, -v{e+3}, v{C+3}, v61")
        wave_sum(a, 61, 62, 1)
        a(f"v_mul_f32 v61, v61, v{vSC}")
        a("v_cvt_pk_bf16_f32 v61, v61, v61")
        a(f"v_mov_b32 v62, s{sTB}")
        a(f"ds_write_b32 v62, v61 offset:1536")

    FB = 64
    srcs = [(vTa, 4), (vTa, 8), (vTb, 0), (vTa, 16), (vTb, 12), (vTa, 20), (vTc, 4)]
    def rdf(step):
        return [f"ds_read_b128 {vr(FB+28*(step&1)+4*i,4)}, v{r} offset:{e*RS+16*step}" for i, (r, e) in enumerate(srcs)]
    OB = 120
    def kstep(step, bg):
        f = FB + 28*(step & 1); o = OB + 16*(step & 1)
        a("s_waitcnt lgkmcnt(0)")
        nxt = rdf(step+1) if step < 7 else []
        prods = [(o, f+12, f+16), (o+4, f, f+8), (o+8, f+4, f+8), (o+12, f+20, f+24)]
        for d, x, y in prods:
            for m in range(4): a(f"v_pk_mul_f16 v{d+m}, v{x+m}, v{y+m} op_sel_hi:[0,1]")
            for _ in range(2):
                if nxt: a(nxt.pop(0))
        for grp in bg:
            for ins, tag in grp:
                a(ins)
                if tag: vm.add(tag)
        for i, (d, x, y) in enumerate(prods):
            for m in range(4): a(f"v_pk_fma_f16 v{d+m}, v{x+m}, v{y+m}, v{d+m} op_sel:[1,1,0] op_sel_hi:[1,0,1] neg_lo:[0,1,0]")
            if i >= 2:
                c = "0" if step == 0 else vr(ACC+4*(i-2),4)
                a(f"v_mfma_f32_16x16x32_f16 {vr(ACC+4*(i-2),4)}, {vr(o+4*(i-1),4)}, {vr(o,4)}, {c}")
        a("s_nop 0")
        c = "0" if step == 0 else vr(ACC+8,4)
        a(f"v_mfma_f32_16x16x32_f16 {vr(ACC+8,4)}, {vr(o+12,4)}, {vr(o,4)}, {c}")

    def ln1():
        a(f"s_waitcnt vmcnt({vm.wait_for('X')})")
        g.stamp()
        T = 64; W = 96; XP = 144; XO = 160
        ln_stats8(a, [(XD+k, XD+8+k) for k in range(8)], T, W)
        for k in range(16): a(f"v_pk_add_f32 {vr(T+2*k,2)}, {vr(T+2*k,2)}, {vr(W,2)} neg_lo:[0,1] neg_hi:[0,1]")
        for k in range(16): a(f"v_cvt_pk_bf16_f32 v{XO+k}, v{T+2*k}, v{T+2*k+1}")
        for k in range(16):
            a(f"v_lshlrev_b32 v{T+2*k}, 16, v{XO+k}"); a(f"v_and_b32 v{T+2*k+1}, 0xffff0000, v{XO+k}")
        for k in range(16): a(f"v_pk_mul_f32 {vr(T+2*k,2)}, {vr(T+2*k,2)}, {vr(W+2,2)}")
        a(f"s_lshl_b32 s{sT}, s{sWave}, 20"); a(f"s_lshl_b32 s{sT+1}, s2, 6"); a(f"s_add_u32 s{sT}, s{sT}, s{sT+1}")
        for q in range(4):
            for k in range(4*q, 4*q+4): a(f"v_cvt_pk_bf16_f32 v{XO+k}, v{T+2*k}, v{T+2*k+1}")
            a(f"s_add_u32 s{sT+1}, s{sT}, {((q>>1)*32 + (q&1))*16384}")
            a(f"buffer_store_dwordx4 {vr(XO+4*q,4)}, v6, {sr(sU2,4)}, s{sT+1} offen {SC}"); vm.add("U")
        a(f"s_mov_b32 s{sT+2}, 0x05040100"); a(f"s_mov_b32 s{sT+3}, 0x07060302")
        for q in range(4):
            for k in range(4*q, 4*q+4): a(f"v_perm_b32 v{XP+k}, v{XD+8+(k>>1)}, v{XD+(k>>1)}, s{sT+2+(k&1)}")
            a(f"s_add_u32 s{sT+1}, s{sT}, {((q>>1)*32 + (q&1))*16384 + (4 << 20)}")
            a(f"buffer_store_dwordx4 {vr(XP+4*q,4)}, v6, {sr(sU2,4)}, s{sT+1} offen {SC}"); vm.add("U")
        nl = a.label("nl")
        a(f"s_and_b32 s{sT+6}, s2, 3"); a(f"s_lshl_b32 s{sT+6}, s{sT+6}, 6")
        a(f"s_cmp_lg_u32 s{sWave}, 0"); a(f"s_cbranch_scc1 {nl}")
        a(f"buffer_load_dwordx2 v[22:23], v1, {sr(sDB,4)}, s{sT+6} offen sc1")
        a(f"{nl}:")
        a("s_nop 1")
        g.stamp()

    if ORDER == "SLM": setup(); ln1()
    else: ln1(); setup()
    for ins in rdf(0): a(ins)
    step = 0
    for _ in range(KMID): kstep(step, []); step += 1
    a(f"s_waitcnt vmcnt(0)")
    gn = a.label("gn"); gn2 = a.label("gn2"); gn3 = a.label("gn3")
    a(f"s_cmp_lg_u32 s{sWave}, 0"); a(f"s_cbranch_scc1 {gn3}")
    a(f"s_mov_b32 s{sTO}, 0")
    a(f"{gn}:")
    a(f"v_readfirstlane_b32 s{sNON}, v22"); a(f"v_readfirstlane_b32 s{sNON+1}, v23")
    a(f"s_cmp_lg_u32 s{sNON}, 0"); a(f"s_cbranch_scc1 {gn2}")
    a(f"buffer_load_dwordx2 v[22:23], v1, {sr(sDB,4)}, s{sT+6} offen sc1")
    a("s_waitcnt vmcnt(0)")
    a(f"s_add_u32 s{sTO}, s{sTO}, 1"); a(f"s_cmp_lt_u32 s{sTO}, {TIMEOUT}"); a(f"s_cbranch_scc1 {gn}")
    a(f"{gn2}:")
    a(f"v_mov_b32 v24, {KBASE + KCH - 16}")
    a(f"ds_write_b64 v24, v[22:23]")
    a("s_waitcnt lgkmcnt(0)")
    a(f"{gn3}:")
    a("s_barrier")
    set_flag(g, 0, 22)
    g.stamp()
    a(f"v_mov_b32 v24, {KBASE + KCH - 16}")
    a(f"ds_read_b64 v[26:27], v24")
    first = True
    while step < 8:
        n = min(2, DPOST); DPOST -= n
        kstep(step, take(n)); step += 1
        if first:
            a(f"v_readfirstlane_b32 s{sNON}, v26"); a(f"v_readfirstlane_b32 s{sNON+1}, v27"); first = False
    assert not first
    Eb = 72
    a(f"v_lshlrev_b32 v16, 4, v{vL}"); a(f"v_add_u32 v16, s{sTB}, v16"); a(f"v_subrev_u32 v17, 4, v16")
    a(f"v_add_u32 v2, s{sTB}, v2")
    s00 = sT; s11 = sT+1; s10 = sT+2; s21 = sT+3
    a(f"s_mov_b32 s{s00}, 0x01000100"); a(f"s_mov_b32 s{s11}, 0x03020302"); a(f"s_mov_b32 s{s10}, 0x01000302"); a(f"s_mov_b32 s{s21}, 0x03020504")
    for t in (0, 1, 2):
        for e in range(2): a(f"v_pk_mul_f32 {vr(ACC+4*t+2*e,2)}, {vr(ACC+4*t+2*e,2)}, {vr(vSC,2)} op_sel_hi:[1,0]")
        a(f"v_cvt_pk_bf16_f32 v{64+2*t}, v{ACC+4*t}, v{ACC+4*t+1}")
        a(f"v_cvt_pk_bf16_f32 v{65+2*t}, v{ACC+4*t+2}, v{ACC+4*t+3}")
    a(f"ds_write_b64 v{vO1}, v[64:65]"); a(f"ds_write_b64 v{vO1}, v[66:67] offset:32"); a(f"ds_write_b64 v{vO2}, v[68:69]")
    a(f"ds_read_b128 {vr(Eb,4)}, v16"); a(f"ds_read_b32 v{Eb+4}, v16 offset:16"); a(f"ds_read_b32 v{Eb-1}, v17")
    a(f"ds_read_b32 v78, v2 offset:1024"); a(f"ds_read_b32 v79, v2 offset:1028")
    a(f"ds_read_b32 v80, v2 offset:1280"); a(f"ds_read_b32 v81, v2 offset:1284")
    a("s_mov_b64 exec, 0x1ffffff")
    for c in range(4): a(f"ds_write_b128 v{vZ}, {vr(ZR,4)} offset:{c*UCS}")
    a("s_mov_b64 exec, -1")
    a(f"buffer_load_dwordx2 v[22:23], v{vF}, {sr(sFLG,4)}, 0 offen {SC}")
    a("s_waitcnt lgkmcnt(0)")
    O = 84
    for d, s0, s1, sl in ((0,3,2,2),(1,2,1,3),(2,1,0,2),(3,0,-1,4),(4,4,3,1),(5,2,2,0),(6,2,1,1),(7,0,0,0)):
        a(f"v_perm_b32 v{O+d}, v{Eb+s0}, v{Eb+s1}, v{SA+sl}")
    a(f"ds_write_b128 v{vK}, {vr(O,4)} offset:{KPAD}")
    a(f"ds_write_b128 v{vK}, {vr(O+4,4)} offset:{KPAD+KCS}")
    def mk(dst, kind, p01, p2):
        if kind == "00": a(f"v_perm_b32 v{dst}, v{p01}, v{p01}, s{s00}")
        elif kind == "11": a(f"v_perm_b32 v{dst}, v{p01}, v{p01}, s{s11}")
        elif kind == "22": a(f"v_perm_b32 v{dst}, v{p2}, v{p2}, s{s00}")
        elif kind == "10": a(f"v_perm_b32 v{dst}, v{p01}, v{p01}, s{s10}")
        elif kind == "21": a(f"v_perm_b32 v{dst}, v{p2}, v{p01}, s{s21}")
    chunks = [(78, ["21","11","00","00"], vK, KPAD + 1024), (78, ["22","11","10","00"], vK, KPAD + 1024 + KCS),
              (80, ["11","00","00","00"], vK2, KPAD + 2048), (80, ["22","21","11","11"], vK2, KPAD + 2048 + 16),
              (80, ["11","10","00","00"], vK2, KPAD + 2048 + KCS), (80, ["22","22","11","11"], vK2, KPAD + 2048 + KCS + 16)]
    for ci, (p, kinds, ad, off) in enumerate(chunks):
        b = O + 8 + 4*ci
        for e, kd in enumerate(kinds): mk(b+e, kd, p, p+1)
        a(f"ds_write_b128 v{ad}, {vr(b,4)} offset:{off}")
    g.stamp()
    a(f"s_mov_b32 s{sT}, 0")
    sCGo = sT+7
    a(f"s_lshl_b32 s{sCGo}, s{sCG}, 14")
    poll_flags(g, vF, sT, 22, preloaded=True)
    a("s_barrier")
    g.stamp()
    UR = 32
    for i in range(4):
        a(f"s_add_u32 s{sT}, s{sCGo}, {4096*i}")
        a(f"buffer_load_dwordx4 {vr(UR+4*i,4)}, v{vR}, {sr(sU2,4)}, s{sT} offen {SC}")
    def rdA(st, p, q): return f"ds_read_b128 {ar(64*st+4*p,4)}, v{vA} offset:{(8*p+q)*64}"
    def rdB(st, r, q): return f"ds_read_b128 {ar(64*st+32+4*r,4)}, v{vB} offset:{(8*r-q+7)*64}"
    for i in range(8): a(rdA(0, i, 0))
    XG = 48
    for i in range(4):
        a(f"s_add_u32 s{sT}, s{sCGo}, {4096*i + (4 << 20)}")
        a(f"buffer_load_dwordx4 {vr(XG+4*i,4)}, v{vR}, {sr(sU2,4)}, s{sT} offen {SC}")
    for ii in range(4):
        a(f"s_waitcnt vmcnt({7-ii})")
        for c in range(4):
            for ch in range(2):
                a(f"ds_write2st64_b32 v{vUC+2*c+ch}, v{UR+4*ii+ch}, v{UR+4*ii+ch+2} offset0:{4*ii} offset1:{4*ii+141}")
    a("s_waitcnt lgkmcnt(0)")
    a("s_barrier")
    g.stamp()
    CA = 64
    for i in range(8): a(rdB(0, i, 0))
    fill = []
    F = fill.append
    TD = 96; XU = 128
    F(f"s_lshl_b32 s{sT}, s58, 16"); F(f"s_and_b32 s{sT+1}, s58, 0xffff0000"); F(f"s_lshl_b32 s{sT+2}, s59, 16"); F(f"s_and_b32 s{sT+3}, s59, 0xffff0000")
    for i in range(4):
        for ch in range(4):
            u = UR+4*i+ch; d = TD+8*i+2*ch
            F(f"v_lshlrev_b32 v{d}, 16, v{u}"); F(f"v_and_b32 v{d+1}, 0xffff0000, v{u}")
            F(f"v_mul_f32 v{d}, s{sT+ch}, v{d}"); F(f"v_mul_f32 v{d+1}, s{sT+ch}, v{d+1}")
            F(f"v_cvt_pk_bf16_f32 v{u}, v{d}, v{d+1}")
            F(f"v_lshlrev_b32 v{d}, 16, v{u}"); F(f"v_and_b32 v{d+1}, 0xffff0000, v{u}")
    F(f"v_lshlrev_b32 v16, 2, v0"); F(f"v_add_u32 v16, {KBASE}, v16")
    fill2 = ["s_waitcnt vmcnt(0)"]
    for k in range(16):
        fill2 += [f"v_lshlrev_b32 v{XU+2*k}, 16, v{XG+k}", f"v_and_b32 v{XU+2*k+1}, 0xffff0000, v{XG+k}"]
    sched = {}
    nb = len(bgl)
    for n in range(nb):
        pos = n * DSP + 9
        sched[(pos // 36, pos % 36)] = [ins for ins, tag in bgl[n]]
    fill2[0] = f"s_waitcnt vmcnt({nb})"
    fi = 0
    for q in range(8):
        st = q & 1
        a("s_waitcnt lgkmcnt(0)")
        nxt = []
        if q < 7:
            for i in range(8): nxt += [rdA(1-st, i, q+1), rdB(1-st, i, q+1)]
        else:
            assert fi == len(fill), (fi, len(fill))
            fill = fill2; fi = 0
        k = 0
        for p in range(8):
            for r in range(8 - p):
                t = p + r
                c = "0" if (q == 0 and p == 0) else vr(CA+4*t, 4)
                a(f"v_mfma_f32_16x16x32_bf16 {vr(CA+4*t,4)}, {ar(64*st+4*p,4)}, {ar(64*st+32+4*r,4)}, {c}")
                if (q, k) in sched:
                    for ins in sched.pop((q, k)): a(ins)
                elif nxt and (k % 2 == 0 or (k < 8)): a(nxt.pop(0))
                elif fi < len(fill): a(fill[fi]); fi += 1
                k += 1
        assert not nxt
    assert fi == len(fill) and not sched, (fi, len(fill), sched)
    for t in range(8):
        a(f"v_cvt_pk_bf16_f32 v{168+2*t}, v{CA+4*t}, v{CA+4*t+1}")
        a(f"v_cvt_pk_bf16_f32 v{169+2*t}, v{CA+4*t+2}, v{CA+4*t+3}")
        a(f"ds_write2_b32 v{vY}, v{168+2*t}, v{169+2*t} offset0:{128*(t&1)} offset1:{128*(t&1)+4}")
        if t & 1 and t < 7: a(f"v_add_u32 v{vY}, 1024, v{vY}")
    a("s_waitcnt vmcnt(0) lgkmcnt(0)")
    g.stamp()
    a("s_barrier")
    Y = 64; YU = 160
    for i in range(4):
        for ch in (0, 2):
            a(f"ds_read2st64_b32 {vr(Y+4*i+ch,2)}, v16 offset0:{4*i+33*ch} offset1:{4*i+33*(ch+1)}")
    for i in range(4):
        a(f"s_waitcnt lgkmcnt({6-2*i})")
        for ch in range(4):
            a(f"v_lshlrev_b32 v{YU+2*ch}, 16, v{Y+4*i+ch}"); a(f"v_and_b32 v{YU+2*ch+1}, 0xffff0000, v{Y+4*i+ch}")
        b = TD+8*i
        for ch in range(4): a(f"v_pk_add_f32 {vr(b+2*ch,2)}, {vr(b+2*ch,2)}, {vr(YU+2*ch,2)}")
        for ch in range(4): a(f"v_cvt_pk_bf16_f32 v{YU+ch}, v{b+2*ch}, v{b+2*ch+1}")
        for ch in range(4):
            a(f"v_lshlrev_b32 v{b+2*ch}, 16, v{YU+ch}"); a(f"v_and_b32 v{b+2*ch+1}, 0xffff0000, v{YU+ch}")
        for ch in range(4): a(f"v_pk_add_f32 {vr(b+2*ch,2)}, {vr(b+2*ch,2)}, {vr(XU+8*i+2*ch,2)}")
        for e in range(2):
            for hp in range(2):
                a(f"v_cvt_pk_bf16_f32 v{Y+4*i+2*e+hp}, v{b+4*hp+e}, v{b+4*hp+2+e}")
        a(f"s_add_u32 s{sT}, s{sCGo}, {4096*i}")
        a(f"buffer_store_dwordx4 {vr(Y+4*i,4)}, v{vR}, {sr(sH,4)}, s{sT} offen {SC}")
    g.stamp()

M_XCH = 0x1b00000
XSL = 16384; XWG = 3*XSL; SZ_XCH = 256*XWG
s2_TM = sT+4; s2_TN = sT+5; s2_KQ = sT+6
def g2_dma_addr(sM0):
    return [f"s_bfe_u32 s{s2_KQ}, s2, 0x20001",
        f"s_and_b32 s{s2_TM}, s2, 1", f"s_lshl_b32 s{s2_TM}, s{s2_TM}, 2", f"s_bfe_u32 s{sT}, s2, 0x20003", f"s_add_u32 s{s2_TM}, s{s2_TM}, s{sT}",
        f"s_lshr_b32 s{s2_TN}, s2, 5",
        f"v_lshrrev_b32 v2, 4, v{vL}", f"s_mul_i32 s{sT}, s{s2_KQ}, 896", f"s_lshl_b32 s{sT+1}, s{sWave}, 4", f"s_add_u32 s{sT}, s{sT}, s{sT+1}",
        f"v_add_u32 v1, s{sT}, v2", f"v_lshlrev_b32 v1, 11, v1",
        f"v_lshlrev_b32 v2, 2, v2", f"v_and_b32 v3, 15, v{vL}", f"v_xor_b32 v2, v2, v3",
        f"v_lshl_add_u32 v1, v2, 4, v1", f"s_lshl_b32 s{sT}, s{s2_TN}, 8", f"v_add_u32 v1, s{sT}, v1", f"s_lshl_b32 s{sM0}, s{sWave}, 12"]
G2_STG = 64*2048; G2_I = 4*2048 - 1024
def g2_dma(stage, i, sM0=24, sW=12):
    grp = []
    if i == 0: grp.append(f"s_add_u32 m0, s{sM0}, {(stage % 10)*16384}")
    grp.append(f"s_mov_b32 s{sT+1}, {stage*G2_STG + i*G2_I}")
    grp.append(f"buffer_load_dwordx4 v1, {sr(sW,4)}, s{sT+1} offen offset:{1024*i} lds")
    return grp

def phase_gemm2(g, PRE1, LA=8, TAIL=16, XSLEEP=4):
    a = g.a
    ACC = 32
    def acc(j, t): return ACC + (t*2 + j)*16
    HR = 160; IN = 176; XR = 0; WF = 192; NX = 24
    vX = 2; vW = 4; vO = 16; vI = 17; vH = 18; vFl = 19; vT = 232; vM = 20
    sX = 8; sH = 44; sO = 4; sIB = 36
    sOX = 20; sM = 26; sN = 27; sI = 31; sFo = 33
    a(f"s_lshl_b32 s{sM}, s{s2_TM}, 8"); a(f"s_lshl_b32 s{sT}, s{sWave}, 6"); a(f"s_add_u32 s{sM}, s{sM}, s{sT}")
    a(f"s_lshl_b32 s{sN}, s{s2_TN}, 7"); a(f"s_lshl_b32 s{sT}, s{s2_KQ}, 5"); a(f"s_add_u32 s{sN}, s{sN}, s{sT}")
    a(f"v_and_b32 v{vT}, 31, v{vL}"); a(f"v_add_u32 v{vT}, s{sM}, v{vT}")
    a(f"v_lshrrev_b32 v{vT+1}, 5, v{vL}")
    a(f"v_lshl_add_u32 v{vX}, v{vT+1}, 11, v{vT}"); a(f"v_lshlrev_b32 v{vX}, 4, v{vX}")
    a(f"s_mul_i32 s{sOX}, s{s2_KQ}, {112*32768}")
    a(f"v_lshlrev_b32 v{vH}, 3, v{vT}"); a(f"v_lshl_add_u32 v{vH}, v{vT+1}, 15, v{vH}")
    a(f"s_lshl_b32 s{sT}, s{sN}, 12"); a(f"v_add_u32 v{vH}, s{sT}, v{vH}")
    a(f"v_lshlrev_b32 v{vO}, 11, v{vT}"); a(f"v_lshl_add_u32 v{vO}, v{vT+1}, 4, v{vO}")
    a(f"s_lshl_b32 s{sT}, s{sN}, 1"); a(f"v_add_u32 v{vO}, s{sT}, v{vO}")
    a(f"v_bfe_u32 v{vT+3}, v{vL}, 2, 2"); a(f"v_lshl_add_u32 v{vT+4}, v{vT+1}, 3, v{vT+3}"); a(f"v_lshlrev_b32 v{vW}, 8, v{vT+4}")
    a(f"v_xor_b32 v{vT+3}, s{s2_KQ}, v{vT+3}"); a(f"v_lshl_add_u32 v{vW}, v{vT+3}, 6, v{vW}")
    a(f"v_bfe_u32 v{vT+3}, v{vL}, 4, 1"); a(f"v_lshl_add_u32 v{vW}, v{vT+3}, 5, v{vW}")
    a(f"v_and_b32 v{vT+3}, 1, v{vL}"); a(f"v_lshl_add_u32 v{vW}, v{vT+3}, 4, v{vW}")
    a(f"v_bfe_u32 v{vT+3}, v{vL}, 1, 1"); a(f"v_lshl_add_u32 v{vW}, v{vT+3}, 3, v{vW}")
    for t in range(1, 4): a(f"v_xor_b32 v{vW+t}, {64*t}, v{vW}")
    for b in range(1, 3):
        for t in range(4): a(f"v_add_u32 v{vW+4*b+t}, {65536*b}, v{vW+t}")
    a(f"v_lshlrev_b32 v{vI}, 4, v{vL}"); a(f"s_lshl_b32 s{sT}, s{sWave}, 12"); a(f"v_add_u32 v{vI}, s{sT}, v{vI}"); a(f"v_mov_b32 v{vM}, -2")
    srd(a, sO, pOUT, 2048*1024*2); srd(a, sIB, pWS, SZ_XCH, M_XCH)
    a(f"s_mul_i32 s{sI}, s2, {XWG}")
    for t in range(1, 4):
        a(f"s_xor_b32 s{27+t}, s2, {2*t}"); a(f"s_mul_i32 s{27+t}, s{27+t}, {XWG}"); a(f"s_add_u32 s{27+t}, s{27+t}, {XSL*(t-1)}")
    a(f"v_bfe_u32 v{vT+4}, v{vL}, 2, 1"); a(f"v_and_b32 v{vT+3}, 3, v{vL}"); a(f"v_lshl_add_u32 v{vT+4}, v{vT+3}, 6, v{vT+4}")
    a(f"s_lshl_b32 s{sT}, s{s2_TM}, 2"); a(f"s_add_u32 s{sT}, s{sT}, s{s2_KQ}"); a(f"s_lshl_b32 s{sT}, s{sT}, 1")
    a(f"v_add_u32 v{vT+4}, s{sT}, v{vT+4}")
    a(f"v_lshlrev_b32 v{vT+3}, 1, v{vT+3}"); a(f"v_xor_b32 v{vT+3}, s2, v{vT+3}")
    a(f"v_and_b32 v{vT+2}, 8, v{vL}"); a(f"v_cmp_eq_u32 vcc, 0, v{vT+2}"); a("s_nop 1")
    a(f"v_cndmask_b32 v{vFl}, v{vT+3}, v{vT+4}, vcc"); a(f"v_lshlrev_b32 v{vFl}, 6, v{vFl}")
    a(f"s_mov_b32 s{sFo}, {2*16384}")
    a("s_waitcnt vmcnt(0)")
    a("s_barrier")
    set_flag(g, 2, 22)
    g.stamp()
    def wread(st, f, t, step, j):
        off = ((step >> 2) % 10)*16384 + (step & 3)*4096 + j*1024
        return f"ds_read_b64_tr_b16 {ar(WF+st*16+f*4+j*2,2)}, v{vW + 4*(off >> 16) + t} offset:{off & 0xffff}"
    T0 = 56 - TAIL; TG = TAIL // 4
    sup = [[(t, s) for t in range(4)] for s in range(T0)]
    for t in (1, 2, 3, 0):
        for hf in range(TG): sup.append([(t, T0 + 4*hf + k) for k in range(4)])
    SEND = [T0 + TG*k for k in (1, 2, 3)]
    def need_of(n): return max(s for t, s in sup[min(n, 55)])
    def reads(n):
        return [wread(n & 1, f, t, s, j) for f, (t, s) in enumerate(sup[n]) for j in range(2)]
    for ins in reads(0): a(ins)
    for stg in range(PRE1, 10):
        for i in range(4):
            for ins in g2_dma(stg, i): a(ins)
    poll_flags(g, vFl, sFo, 22)
    g.stamp()
    vm = VM()
    def xload(x):
        return [f"buffer_load_dwordx4 {ar(XR+(x % NX)*8+j*4,4)}, v{vX}, {sr(sX,4)}, s{sOX} offen offset:{512*j} {SC}" for j in range(2)]
    xadv = f"s_add_u32 s{sOX}, s{sOX}, 65536"
    nx = 0
    for x in range(4):
        for ins in xload(x): a(ins); vm.add(f"X{x}")
        a(xadv); nx += 1
    dl = [(stg, i) for stg in range(10, 14) for i in range(4)]
    started = set()
    send = []
    for n, fr in enumerate(sup):
        need = max(s for t, s in fr)
        w = vm.wait_for(f"X{need}")
        if n == 39:
            assert not dl
            w = min(w, vm.wait_for("D"))
        a(f"s_waitcnt vmcnt({w}) lgkmcnt(0)")
        if n in (min(4*PRE1 - 1, 15), 15, 39): a("s_barrier")
        gaps = {k: [] for k in range(8)}; tags = {k: [] for k in range(8)}
        if n + 1 < len(sup):
            for k, ins in enumerate(reads(n + 1)): gaps[k // 2].append(ins)
        gi = 4
        for rep in range(2):
            if nx < 56 and nx <= max(need_of(k_) for k_ in range(n, n + LA + 1)) and gi <= 6:
                for j, ins in enumerate(xload(nx)): gaps[gi+j].append(ins); tags[gi+j].append(f"X{nx}")
                gaps[gi+1].append(xadv); nx += 1; gi += 2
        if n >= 15 and dl and gi <= 6:
            grp = g2_dma(*dl.pop(0))
            gaps[gi] += grp[:-1]; gaps[gi+1].append(grp[-1]); tags[gi+1].append("D")
        if n in (34, 35, 36, 37):
            for e in range(2):
                i = 2*(n-34) + e
                gj, gq = (i >> 2), (i >> 1) & 1
                gaps[6+e] += [f"s_mov_b32 s{sT}, {(4*gq + e)*16384}", f"buffer_load_dwordx2 {vr(HR+2*i,2)}, v{vH}, {sr(sH,4)}, s{sT} offen offset:{256*gj} {SC}"]
                tags[6+e].append("R")
        if n in SEND:
            t = sup[n-1][0][0]; b = acc(0, t)
            send = []
            for i in range(4):
                send += [f"v_cvt_pk_bf16_f32 v{b+4*i+e}, v{b+8*i+2*e}, v{b+8*i+2*e+1}" for e in range(4)]
                send += [f"v_min_u32 v{b+4*i+e}, v{b+4*i+e}, v{vM}" for e in range(4)]
                send += [f"buffer_store_dwordx4 {vr(b+4*i,4)}, v{vI}, {sr(sIB,4)}, s{27+t} offen offset:{1024*i} {SC}"]
        k = 0
        for f, (t, s) in enumerate(fr):
            for j in ((0, 1) if f % 2 == 0 else (1, 0)):
                c = vr(acc(j,t),16) if (j, t) in started else "0"
                started.add((j, t))
                a(f"v_mfma_f32_32x32x16_bf16 {vr(acc(j,t),16)}, {ar(WF+(n&1)*16+f*4,4)}, {ar(XR+(s % NX)*8+j*4,4)}, {c}")
                for ins in gaps[k]: a(ins)
                for tg in tags[k]: vm.add(tg)
                if send and not (n in SEND and k < 4):
                    for _ in range(4 if k >= 4 or n == 55 else 2):
                        if send:
                            ins = send.pop(0); a(ins)
                            if ins.startswith("buffer"): vm.add("S")
                k += 1
        if n - 1 in SEND: assert not send, len(send)
    assert nx == 56 and not dl
    g.stamp()
    P = acc(0, 1)
    a(f"s_add_u32 s28, s{sI}, {XSL}"); a(f"s_add_u32 s29, s{sI}, {2*XSL}")
    def ld_slot(sl):
        for i in range(4): a(f"buffer_load_dwordx4 {vr(IN+16*sl+4*i,4)}, v{vI}, {sr(sIB,4)}, s{(sI, 28, 29)[sl]} offen offset:{1024*i} {SC}")
    a(f"s_waitcnt vmcnt({vm.wait_for('R')})")
    for sl in range(3): ld_slot(sl)
    for k in range(16):
        a(f"v_lshlrev_b32 v{P+2*k}, 16, v{HR+k}"); a(f"v_and_b32 v{P+2*k+1}, 0xffff0000, v{HR+k}")
    a(f"s_mov_b32 s{sTO}, 0")
    Q = acc(0, 2); B = acc(0, 0)
    for sl in range(3):
        lp = a.label("xp"); dn = a.label("xd")
        a(f"s_waitcnt vmcnt({8-4*sl})")
        a(f"{lp}:")
        I = IN + 16*sl
        a(f"v_max3_u32 v21, v{I}, v{I+1}, v{I+2}"); a(f"v_max3_u32 v22, v{I+3}, v{I+4}, v{I+5}")
        for k in range(6, 16, 2): a(f"v_max3_u32 v{21 + ((k>>1)&1)}, v{21 + ((k>>1)&1)}, v{I+k}, v{I+k+1}")
        a(f"v_max_u32 v21, v21, v22")
        a(f"v_cmp_eq_u32 vcc, -1, v21")
        a(f"s_cbranch_vccz {dn}")
        a(f"s_sleep {XSLEEP}")
        ld_slot(sl)
        a(f"s_add_u32 s{sTO}, s{sTO}, 1"); a(f"s_cmp_lt_u32 s{sTO}, {TIMEOUT}")
        a("s_waitcnt vmcnt(0)")
        a(f"s_cbranch_scc1 {lp}")
        a(f"{dn}:")
        if sl == 2: break
        for k in range(16):
            a(f"v_lshlrev_b32 v{Q+2*k}, 16, v{I+k}"); a(f"v_and_b32 v{Q+2*k+1}, 0xffff0000, v{I+k}")
        for k in range(16): a(f"v_pk_add_f32 {vr(B+2*k,2)}, {vr(B+2*k,2)}, {vr(Q+2*k,2)}")
    g.stamp()
    a(f"s_mov_b32 s{sT}, 65536")
    for i in range(4):
        b = B + 8*i
        for e in range(4):
            a(f"v_lshlrev_b32 v{Q+2*e}, 16, v{IN+32+4*i+e}"); a(f"v_and_b32 v{Q+2*e+1}, 0xffff0000, v{IN+32+4*i+e}")
        for e in range(4): a(f"v_pk_add_f32 {vr(b+2*e,2)}, {vr(b+2*e,2)}, {vr(Q+2*e,2)}")
        for e in range(4): a(f"v_cvt_pk_bf16_f32 v{Q+e}, v{b+2*e}, v{b+2*e+1}")
        for e in range(4):
            a(f"v_lshlrev_b32 v{b+2*e}, 16, v{Q+e}"); a(f"v_and_b32 v{b+2*e+1}, 0xffff0000, v{Q+e}")
        for e in range(4): a(f"v_pk_add_f32 {vr(b+2*e,2)}, {vr(b+2*e,2)}, {vr(P+8*i+2*e,2)}")
        for e in range(4): a(f"v_cvt_pk_bf16_f32 v{HR+4*i+e}, v{b+2*e}, v{b+2*e+1}")
        so = f"s{sT}" if i >= 2 else "0"
        a(f"buffer_store_dwordx4 {vr(HR+4*i,4)}, v{vO}, {sr(sO,4)}, {so} offen offset:{32*(i&1)}")

def phase_gemm1(g, PRE1, XF=SC, LA=7, X0=3, TU=3, PU=(0,2,6)):
    a = g.a
    SLOT = SLOT1
    ACC = 32
    def acc(j, t): return ACC + (j*7 + t)*16
    XR = 0; WF = 64; CSF = 120
    vDMA = 1; vX = 8; vST = 9; vWc = 10; vWn = 11; vS = 12; vO = 28; vFl = 20; vC = 22; vF2 = 23
    sX = 44; sACT = 8; sST = 36; sCS = 40; sW2 = 12
    sOX = 20; sOX2 = 21; sBase = 23; sIt = 25; sA = 28; sB = 29; sNS = 30; sCSo = 32
    sOW = sG_OW; sM0 = sG_M0
    vm = VM()
    for i in range(4): vm.add("H")
    def pro_dma(stage, idxs):
        for i in idxs:
            if i in (0, 4): a(f"s_add_u32 m0, s{sM0}, {stage*SLOT + (4096 if i else 0)}"); a("s_nop 0")
            a(g1_dma(pDMA, i)); vm.add(f"D{stage}")
            if i == 6:
                for ins in g1_wadv("odd" if stage & 1 else "even"): a(ins)
    a(f"v_and_b32 v160, 31, v{vL}"); a(f"v_mov_b32 v161, 0x3f803f80")
    for t in range(7):
        a(f"v_cmp_eq_u32 vcc, {t}, v160"); a("s_nop 1")
        for e in range(4): a(f"v_cndmask_b32 v{96+4*t+e}, 0, v161, vcc")
    for i in range(7): a(f"v_mov_b32 v{vDMA+i}, v{pDMA+i}")
    for d, s_ in ((vX, pX), (vST, pST), (vWc, pWc), (vO, pO)): a(f"v_mov_b32 v{d}, v{s_}")
    a(f"v_add_u32 v{vWn}, {2*SLOT}, v{vWc}")
    srd(a, sACT, pWS, SZ_ACT, M_ACT); srd(a, sST, pWS, 2048*16, M_ST2); srd(a, sCS, pWS, 32*224*32, M_CS)
    srd(a, sW2, pWD, SZ_W)
    a(f"s_mul_i32 s16, s2, 28672")
    a(f"v_mov_b32 v27, v{pSR}")
    for e in range(4): a(f"v_accvgpr_write_b32 a{208+e}, -1")
    srd(a, 52, pWS, SZ_XCH, M_XCH)
    a(f"s_mul_i32 s51, s2, {XWG}"); a(f"s_add_u32 s54, s51, {XWG}")
    a(f"s_mul_i32 s{sCSo}, s{sG_TN}, {224*32}")
    a(f"v_lshrrev_b32 v163, 5, v{vL}")
    a(f"s_lshl_b32 s{sOX}, s{sG_TM}, 19"); a(f"s_add_u32 s{sOX2}, s{sOX}, 16384")
    a(f"s_mov_b32 s17, s{sOX}"); a(f"s_add_u32 s26, s{sOX}, {1 << 19}")
    a(f"s_mov_b32 s{sBase}, 0"); a(f"s_mov_b32 s{sIt}, 3"); a(f"s_mov_b32 s{sNS}, 3")
    a(f"s_lshr_b32 s{sT}, s{sWave}, 1"); a(f"s_mul_i32 s{sT}, s{sT}, {SLOT}")
    a(f"s_and_b32 s{sT+1}, s{sWave}, 1"); a(f"s_mul_i32 s{sT+1}, s{sT+1}, {2*3584}"); a(f"s_add_u32 s{sT}, s{sT}, s{sT+1}")
    a(f"v_add_u32 v164, s{sT}, v{vWc}")
    a(f"s_mul_i32 s{sT}, s{sWave}, 896"); a(f"s_add_u32 s{sT}, s{sT}, {PBASE}")
    a(f"v_lshlrev_b32 v165, 7, v160"); a(f"v_lshl_add_u32 v165, v163, 4, v165"); a(f"v_add_u32 v165, s{sT}, v165")
    def wread(st, t, j, reg, imm0):
        return f"ds_read_b64_tr_b16 {ar(WF+st*28+t*4+j*2,2)}, v{reg} offset:{imm0 + 4*j*224 + 32*t}"
    for st in range(2):
        for t in range(7):
            for j in range(2): a(wread(st, t, j, 164, st*3584))
    a(f"s_waitcnt vmcnt({vm.wait_for('H')})")
    a("s_barrier")
    set_flag(g, 1, 174)
    g.stamp()
    a("s_waitcnt lgkmcnt(0)")
    for st in range(2):
        for t in range(7):
            c = "0" if (st == 0 and t == 0) else "v[128:143]"
            a(f"v_mfma_f32_32x32x16_bf16 v[128:143], {ar(WF+st*28+t*4,4)}, {vr(96+4*t,4)}, {c}")
            pro_dma(2 + st, [t])
    for t in range(7):
        for j in range(2): a(wread(0, t, j, vWc, 0))
    a(f"v_cmp_gt_u32 vcc, 7, v160")
    a("s_and_saveexec_b64 s[56:57], vcc")
    for q in range(4): a(f"ds_write_b128 v165, {vr(128+4*q,4)} offset:{32*q}")
    a("s_mov_b64 exec, -1")
    a(f"s_mov_b32 s{sT+1}, 16384")
    a("s_waitcnt lgkmcnt(0)")
    g.stamp()
    poll_flags(g, 29, sT+1, 166)
    a("s_barrier")
    g.stamp()
    vm = VM()
    SD = 64
    def xload(slot, k):
        j, hf = k >> 1, k & 1
        return f"buffer_load_dwordx2 {ar(XR+slot*8+j*4+hf*2,2)}, v{vX}, {sr(sX,4)}, s{sOX2 if hf else sOX} offen offset:{256*j} {XF}"
    xadv = [f"s_add_u32 s{sOX}, s{sOX}, 65536", f"s_add_u32 s{sOX2}, s{sOX}, 16384"]
    def xadv_pair(own):
        return [f"s_mov_b32 s{sOX}, 0" if own else xadv[0], f"s_cmp_eq_u32 s{sOX}, s17", f"s_cselect_b32 s{sOX}, s26, s{sOX}", xadv[1]]
    RD = 148
    def pro_x(x):
        for k in range(4): a(xload(x, k)); vm.add(f"X{x}")
        for ins in xadv: a(ins)
    for x in range(X0): pro_x(x)
    nxt_x = [X0]
    a(f"v_lshlrev_b32 v168, 2, v0"); a(f"v_add_u32 v168, {PBASE}, v168")
    for w in range(4): a(f"ds_read_b32 v{170+w}, v168 offset:{896*w}")
    a(f"v_lshlrev_b32 v169, 5, v0")
    a(f"s_lshl_b32 s{sT}, s{sG_TM}, 2"); a(f"s_add_u32 s{sT}, s{sT}, s{sCSo}")
    a(f"v_cmp_gt_u32 vcc, 224, v0")
    a(f"v_and_b32 v29, 3, v{vL}"); a(f"v_lshlrev_b32 v29, 4, v29"); a(f"s_lshl_b32 s{sT+1}, s{sWave}, 6"); a(f"s_add_u32 s{sT+1}, s{sT+1}, {SBASE}")
    a(f"v_add_u32 v29, s{sT+1}, v29")
    a("s_waitcnt lgkmcnt(0)")
    a("v_add_f32 v170, v170, v171"); a("v_add_f32 v172, v172, v173"); a("v_add_f32 v170, v170, v172")
    a("v_cvt_pk_bf16_f32 v171, v170, v170"); a("v_lshlrev_b32 v171, 16, v171")
    a("v_sub_f32 v170, v170, v171")
    a("v_cvt_pk_bf16_f32 v170, v171, v170")
    a("s_and_saveexec_b64 s[56:57], vcc")
    a(f"buffer_store_dword v170, v169, {sr(sCS,4)}, s{sT} offen {SC}"); vm.add("C")
    a("s_mov_b64 exec, -1")
    g.stamp()
    accu = []
    for k in range(8):
        r0 = RD+4*(k>>1)+(k&1); r1 = r0+2
        accu += [f"v_accvgpr_read_b32 v16, a{r0}", f"v_accvgpr_read_b32 v17, a{r1}",
                 "v_lshlrev_b32 v18, 16, v16", "v_lshlrev_b32 v19, 16, v17", "v_and_b32 v16, 0xffff0000, v16", "v_and_b32 v17, 0xffff0000, v17"]
        if k == 0:
            accu += ["v_add_f32 v12, v18, v16", "v_add_f32 v13, v19, v17", "v_mul_f32 v14, v18, v18", "v_mul_f32 v15, v19, v19"]
        else:
            accu += ["v_add_f32 v12, v12, v18", "v_add_f32 v13, v13, v19", "v_fmac_f32 v14, v18, v18", "v_fmac_f32 v15, v19, v19",
                     "v_add_f32 v12, v12, v16", "v_add_f32 v13, v13, v17"]
        accu += ["v_fmac_f32 v14, v16, v16", "v_fmac_f32 v15, v17, v17"]
    n3 = (len(accu) + 3) // 4
    FILL = {0: accu[:n3], 1: accu[n3:2*n3], 2: accu[2*n3:3*n3], 3: accu[3*n3:],
            4: red4(12, 16) + ["ds_write_b128 v29, v[12:15]"],
            5: [f"ds_read_b128 {vr(16+4*w,4)}, v29 offset:{64*(w+1)}" for w in range(3)],
            6: [f"v_add_f32 v{12+e}, v{12+e}, v{16+e}" for e in range(4)] + [f"v_add_f32 v{20+e}, v{20+e}, v{24+e}" for e in range(4)]
               + [f"v_add_f32 v{12+e}, v{12+e}, v{20+e}" for e in range(4)] + stats_final(12, 16),
            7: [f"v_cmp_gt_u32 vcc, 4, v{vL}", f"v_and_b32 v29, 3, v{vL}", "v_lshlrev_b32 v29, 5, v29", f"v_bfe_u32 v21, v{vL}, 2, 1", "v_lshl_add_u32 v29, v21, 4, v29",
                "v_cndmask_b32 v16, v13, v12, vcc", "v_cndmask_b32 v17, v15, v14, vcc", "v_cmp_gt_u32 vcc, 8, v0",
                f"v_mov_b32 v18, s{sNON}", f"v_mov_b32 v19, s{sNON+1}", "v_mov_b32 v21, 0x7fff0000", "v_cndmask_b32 v29, v21, v29, vcc",
                f"s_lshl_b32 s{sT}, s{sG_R}, 4", f"buffer_store_dwordx4 v[16:19], v29, {sr(sST,4)}, s{sT} offen {SC}", "v_lshlrev_b32 v26, 4, v0"]}
    LFILL = [f"v_and_b32 v{vC}, 31, v{vL}", f"v_lshlrev_b32 v{vC}, 5, v{vC}", f"v_lshrrev_b32 v{vF2}, 5, v{vL}", f"v_lshl_add_u32 v{vC}, v{vF2}, 4, v{vC}",
             f"v_and_b32 v{vF2}, 7, v{vL}", f"v_lshlrev_b32 v{vF2}, 9, v{vF2}",
             f"s_and_b32 s{sT}, s2, 0xc7", f"s_lshl_b32 s{sT}, s{sT}, 6", f"s_add_u32 s{sT}, s{sT}, {3*16384}", f"v_add_u32 v{vF2}, s{sT}, v{vF2}"]
    def ld_flags_stats():
        return [f"buffer_load_dwordx2 {vr(vFl,2)}, v{vF2}, {sr(sFLG,4)}, 0 offen {SC}",
                f"buffer_load_dwordx4 {vr(vS,4)}, v{vST}, {sr(sST,4)}, 0 offen {SC}",
                f"buffer_load_dwordx4 {vr(vS+4,4)}, v{vST}, {sr(sST,4)}, 0 offen offset:512 {SC}"]
    def ld_cs(t):
        if t < 4: return f"buffer_load_dwordx4 {ar(CSF+4*t,4)}, v{vC}, {sr(sCS,4)}, s{sCSo} offen offset:{1024*t} {SC}"
        return f"buffer_load_dwordx4 {ar(CSF+4*t,4)}, v{vC}, {sr(sCS,4)}, s{sNS} offen offset:{1024*(t-4)} {SC}"
    DM = {3: [0, 1], 0: [2, 3], 1: [4, 5], 2: [6]}
    def body(kind, base_step):
        first = kind == "first"; last = kind == "last"; second = kind == "second"; mid = kind == "mid"
        for u in range(8):
            s = u % 4; st = u & 1
            w = vm.wait_for(f'X{base_step+u}')
            if second and u == 0: w = min(w, vm.wait_for("R"))
            if last and u == 2: w = min(w, vm.wait_for("S"))
            a(f"s_waitcnt vmcnt({w}) lgkmcnt(0)")
            if (s == 3 and not (last and u == 7)) or (second and u == 5): a("s_barrier")
            if first and u == 7: set_flag(g, 3, 22)
            gaps = {k: [] for k in range(14)}
            tags = {k: [] for k in range(14)}
            nu = (u + 1) % 8
            reg = vWn if u == 7 else vWc
            imm0 = (nu // 4) * SLOT + (nu % 4) * 16 * 224
            k = 0
            if not (last and u == 7):
                for t in range(7):
                    for j in range(2):
                        gaps[k // 2].append(wread(1 - st, t, j, reg, imm0)); k += 1
            xl = []
            while nxt_x[0] <= base_step + u + LA and len(xl) < 2 and not (last and nxt_x[0] >= base_step + 8):
                xl.append(nxt_x[0]); nxt_x[0] += 1
            g0 = 6 if len(xl) == 1 else 2
            for x in xl:
                for k in range(4):
                    gaps[g0+k].append(xload(x % 8, k)); tags[g0+k].append(f"X{x}")
                gaps[g0+3] += xadv_pair(x == 7) if x % 8 == 7 else xadv
                g0 += 4
            gi = 11
            if not last:
                for i in ([] if first and u < 3 else DM[s]):
                    if i in (0, 4):
                        e = 4096 if i else 0
                        if u in (3, 4, 5, 6): ins = f"s_add_u32 m0, s{sA}, {e}"
                        elif u == 7: ins = f"s_add_u32 m0, s{sA}, {SLOT + e}"
                        else: ins = f"s_add_u32 m0, s{sB}, {SLOT + e}"
                        gaps[gi-2].append(ins)
                    gaps[gi].append(g1_dma(vDMA, i)); tags[gi].append("D")
                    if i == 6:
                        gaps[gi+1] += g1_wadv("odd" if u == 2 else "even")
                    gi += 1
                if u == 0:
                    gaps[0].insert(0, f"s_add_u32 s{sA}, s{sM0}, s{sBase}")
                    gaps[1].insert(0, f"s_sub_u32 s{sBase}, {2*SLOT}, s{sBase}")
                    gaps[2].insert(0, f"s_add_u32 s{sB}, s{sM0}, s{sBase}")
                if mid and u in PU:
                    gaps[13] += [f"buffer_store_dwordx4 a[208:211], v26, s[52:55], s51 offen {SC}", f"s_add_u32 s51, s51, 4096"]; tags[13].append("P")
                if first and u in (2, 3, 4, 5):
                    gaps[13] += [f"buffer_load_dwordx4 {ar(RD+4*(u-2),4)}, v27, {sr(sX,4)}, s{sG_SR} offen {SC}", f"s_add_u32 s{sG_SR}, s{sG_SR}, {16*16384}"]; tags[13].append("R")
                if u == 7:
                    gaps[8].append(f"v_swap_b32 v{vWc}, v{vWn}")
                    if mid:
                        gaps[13].append(f"s_add_u32 s{sIt}, s{sIt}, 1"); gaps[13].append(f"s_cmp_lt_u32 s{sIt}, 8")
            else:
                if u == 0:
                    for n, ins in enumerate(LFILL): gaps[n].append(ins)
                    for n, ins in enumerate(ld_flags_stats()): gaps[11+n].append(ins); tags[11+n].append("S")
                if u == 1: gaps[8].append(f"s_add_u32 s{sNS}, s{sCSo}, 4096")
                if u == 2:
                    for t in range(7): gaps[7+t].append(ld_cs(t)); tags[7+t].append('CS')
                if u == TU:
                    for t in range(7):
                        gaps[7+t] += [f"buffer_load_dwordx4 a[200:203], v26, {sr(sW2,4)}, s16 offen", f"s_add_u32 s16, s16, 4096"]; tags[7+t].append("T")
                if u == 6:
                    pre = g2_dma_addr(sM0)
                    for n, ins in enumerate(pre): gaps[7 + n*7//len(pre)].append(ins)
                if u == 7:
                    gaps[0].append("s_barrier")
            if second and u in FILL:
                fl = FILL[u]
                for n, ins in enumerate(fl): gaps[n*14//len(fl) if len(fl) > 7 else 7+n].append(ins)
            k = 0
            for t in range(7):
                for j in range(2):
                    c = "0" if (first and u == 0) else vr(acc(j,t),16)
                    a(f"v_mfma_f32_32x32x16_bf16 {vr(acc(j,t),16)}, {ar(WF+st*28+t*4,4)}, {ar(XR+u*8+j*4,4)}, {c}")
                    for ins in gaps[k]: a(ins)
                    for tg in tags[k]: vm.add(tg)
                    k += 1
    body("first", 0)
    g.stamp()
    body("second", 8)
    loop = a.label("g1loop")
    a(f"{loop}:")
    if g.dbg:
        a("s_memrealtime s[98:99]"); a("s_memtime s[100:101]"); a(f"s_add_u32 s97, s{sIt}, {g.nst-3}"); a("s_waitcnt lgkmcnt(0)")
        a("s_mov_b32 s99, m0"); a("s_mov_b32 m0, s97"); a("s_nop 1")
        a(f"v_writelane_b32 v{vSTAMP}, s98, m0"); a("s_add_u32 m0, m0, 32"); a("s_nop 1"); a(f"v_writelane_b32 v{vSTAMP}, s100, m0"); a("s_mov_b32 m0, s99")
        g.nst += 5
    body("mid", 16)
    a(f"s_cbranch_scc1 {loop}")
    g.stamp()
    body("last", 24)
    g.stamp()
    poll = a.label("sp"); ok = a.label("sok")
    a(f"s_mov_b32 s{sTO}, 0")
    a(f"{poll}:")
    a(f"v_cmp_ne_u64 vcc, {sr(sNON,2)}, {vr(vS+2,2)}")
    a(f"v_cmp_ne_u64 {sr(sT,2)}, {sr(sNON,2)}, {vr(vS+6,2)}")
    a(f"s_or_b64 vcc, vcc, {sr(sT,2)}")
    a(f"v_cmp_ne_u64 {sr(sT,2)}, {sr(sNON,2)}, {vr(vFl,2)}")
    a(f"s_or_b64 vcc, vcc, {sr(sT,2)}")
    a(f"s_cbranch_vccz {ok}")
    for ins in ld_flags_stats(): a(ins)
    a("s_waitcnt vmcnt(0)")
    for t in range(7): a(ld_cs(t))
    a("s_waitcnt vmcnt(0)")
    a(f"s_add_u32 s{sTO}, s{sTO}, 1"); a(f"s_cmp_lt_u32 s{sTO}, {TIMEOUT}"); a(f"s_cbranch_scc1 {poll}")
    a(f"{ok}:")
    for j in range(2):
        b = 20 + 4*j
        a(f"v_xor_b32 v{b+1}, 0x80000000, v{vS+4*j}")
        a(f"v_lshrrev_b32 v{b}, 16, v{b+1}")
        a(f"v_or_b32 v{b}, v{b}, v{b+1}")
        for e in range(1, 4): a(f"v_mov_b32 v{b+e}, v{b}")
    a("s_waitcnt vmcnt(7)")
    a("s_nop 0")
    K0 = -2.0 * 0.7978845608028654 * LOG2E
    K1 = K0 * 0.044715
    C = {0: 2, 1: 6}
    cst = []
    for j in range(2):
        s_ = vS + 4*j + 1; c = C[j]
        cst += [f"v_mul_f32 v{c}, {f32(K0)}, v{s_}", f"v_mul_f32 v{c+2}, v{s_}, v{s_}", f"v_mul_f32 v{c+1}, v{c+2}, v{s_}",
                f"v_mul_f32 v{c+1}, {f32(K1)}, v{c+1}", f"v_rcp_f32 v{c+2}, v{c+2}"]
    for j in range(2):
        for t in range(7):
            a(f"v_mfma_f32_32x32x16_bf16 {vr(acc(j,t),16)}, {ar(CSF+t*4,4)}, {vr(20+4*j,4)}, {vr(acc(j,t),16)}")
            if cst: a(cst.pop(0))
    w2 = [g2_dma(stg, i) for stg in range(PRE1) for i in range(4)]
    def W2():
        if w2:
            for ins in w2.pop(0): a(ins)
    T = 12
    for j in range(2):
        c = C[j]
        for t in range(7):
            b = acc(j, t)
            prs = [(b, b+4), (b+2, b+6), (b+8, b+12), (b+10, b+14)]
            for i, (gt, u_) in enumerate(prs): a(f"v_pk_mul_f32 {vr(T+2*i,2)}, {vr(gt,2)}, {vr(gt,2)}")
            for i, (gt, u_) in enumerate(prs): a(f"v_pk_fma_f32 {vr(T+2*i,2)}, {vr(T+2*i,2)}, {vr(c,2)}, {vr(c,2)} op_sel:[0,1,0] op_sel_hi:[1,1,0]")
            for i, (gt, u_) in enumerate(prs): a(f"v_pk_mul_f32 {vr(T+2*i,2)}, {vr(T+2*i,2)}, {vr(gt,2)}")
            W2()
            for i in range(8): a(f"v_exp_f32 v{T+i}, v{T+i}")
            for i, (gt, u_) in enumerate(prs): a(f"v_pk_mul_f32 {vr(u_,2)}, {vr(u_,2)}, {vr(gt,2)}")
            for i, (gt, u_) in enumerate(prs): a(f"v_pk_fma_f32 {vr(T+2*i,2)}, {vr(T+2*i,2)}, {vr(c+2,2)}, {vr(c+2,2)} op_sel_hi:[1,0,0]")
            W2()
            for i in range(8): a(f"v_rcp_f32 v{T+i}, v{T+i}")
            a(f"s_mov_b32 s{sT}, {t*65536}")
            for i, (gt, u_) in enumerate(prs): a(f"v_pk_mul_f32 {vr(u_,2)}, {vr(u_,2)}, {vr(T+2*i,2)}")
            for i, (gt, u_) in enumerate(prs): a(f"v_cvt_pk_bf16_f32 v{b+i}, v{u_}, v{u_+1}")
            a(f"buffer_store_dwordx4 {vr(b,4)}, v{vO}, {sr(sACT,4)}, s{sT} offen offset:{512*j} {SC}")
    assert not w2
    g.stamp()

def gen_mega(dbg=False, as_list=False, p01={}, g1={}, g2={}, PRE1=6):
    g = G(dbg); a = g.a
    end = a.label("end")
    a(f"s_cmp_ge_u32 s2, 256"); a(f"s_cbranch_scc1 {end}")
    phase01(g, **p01); phase_gemm1(g, PRE1, **g1); phase_gemm2(g, PRE1, **g2)
    if dbg:
        g.stamp()
        a("s_waitcnt vmcnt(0)")
        g.stamp()
        srd(a, 4, pWS, 1 << 19, M_DBG)
        a(f"v_lshlrev_b32 v1, 2, v{vL}")
        a(f"s_lshl_b32 s{sT}, s2, 2"); a(f"s_add_u32 s{sT}, s{sT}, s{sWave}"); a(f"s_lshl_b32 s{sT}, s{sT}, 8")
        a(f"buffer_store_dword v{vSTAMP}, v1, s[4:7], s{sT} offen")
    a(f"{end}:")
    a("s_endpgm")
    k = f"kernel={NAME} " if as_list else ""
    launch = f"; @launch {k}grid=(256,1,1) block=(256,1,1) lds=163840\n"
    body = a.text()
    import subprocess, tempfile, os
    with tempfile.TemporaryDirectory() as td:
        open(td + "/x.s", "w").write('.amdgcn_target "amdgcn-amd-amdhsa--gfx950"\n.text\n' + body.replace("CODE_BYTES", "0x1234"))
        subprocess.run(["clang", "-x", "assembler", "-target", "amdgcn-amd-amdhsa", "-mcpu=gfx950", "-c", td + "/x.s", "-o", td + "/x.o"], check=True)
        subprocess.run(["llvm-objcopy", "-O", "binary", "-j", ".text", td + "/x.o", td + "/x.bin"], check=True)
        n = os.path.getsize(td + "/x.bin")
    assert n < 65536
    body = body.replace("CODE_BYTES", str((n - 768) & ~63))
    return launch, kernel_header(NAME) + body, kernel_desc(NAME, 512, 256)

if __name__ == "__main__":
    from mk import *
    mk([gen_mega(dbg=True, as_list=True)], 'mega_dbg.s')
    mk([gen_mega(dbg=True, as_list=True, p01=dict(CPF=False))], 'mega_b.s')
    assemble([gen_mega(dbg=False)], 'm1.s')
    assemble([gen_mega(dbg=False, p01=dict(CPF=False))], 'm2.s')
```

```python
from common import *
LOG2E = 1.4426950408889634
NAME = "sequential_preLN__ssm_conv_s4d__geglu_ffn__prompt_kernel"

M_H4  = 0x0000000
M_ACT = 0x0400000
M_ST2 = 0x1200000
M_FLG = 0x1210000
M_CS  = 0x1220000
M_DBG = 0x1280000
M_U2  = 0x1300000
M_END = 0x1b00000

pU, pLOGA, pAIM, pCRE, pCIM, pLOGDT, pDSKIP, pBX, pWG, pWU, pWD, pOUT, pDBG, pWS = [64 + 2*i for i in range(14)]
sNON = 92; sWave = 94; sCG = 95; sTO = 96
sFLG = 60
sT = 48
vL = 30; vSTAMP = 31
SC = "sc0 sc1"

SLOT1 = 28800; UPOFF = 14464
UCS = 4512; UCH = 4*UCS; UPAD = 400
KCS = 4224; KCH = 8448; KPAD = 112
UBASE = 2*SLOT1
KBASE = UBASE + 4*UCH
SBASE = KBASE + 4*KCH
PBASE = 4*SLOT1
RS = 528; TOFF = 24*RS + 16
NBASE = SBASE + 240
assert SBASE + 256 <= 163840

class G:
    def __init__(self, dbg):
        self.a = Asm("mk"); self.dbg = dbg; self.nst = 0
    def stamp(self):
        if not self.dbg: return
        a = self.a
        a("s_memrealtime s[98:99]"); a("s_memtime s[100:101]"); a("s_waitcnt lgkmcnt(0)")
        a(f"v_writelane_b32 v{vSTAMP}, s98, {self.nst}"); a(f"v_writelane_b32 v{vSTAMP}, s100, {32+self.nst}")
        self.nst += 1

def cmul(a, d, x, y, conj_out=False):
    n1 = " neg_hi:[0,1]" if conj_out else ""
    n2 = " neg_hi:[0,1,0]" if conj_out else ""
    a(f"v_pk_mul_f32 {vr(d,2)}, {vr(x,2)}, {vr(y,2)} op_sel_hi:[0,1]{n1}")
    a(f"v_pk_fma_f32 {vr(d,2)}, {vr(x,2)}, {vr(y,2)}, {vr(d,2)} op_sel:[1,1,0] op_sel_hi:[1,0,1] neg_lo:[0,1,0]{n2}")

def red4(v, t):
    o = []
    for d in (4, 8):
        o += [f"v_add_f32_dpp v{v+e}, v{v+e}, v{v+e} row_ror:{d} row_mask:0xf bank_mask:0xf" for e in range(4)]
    for op in ("v_permlane16_swap_b32", "v_permlane32_swap_b32"):
        o += [f"v_mov_b32 v{t+e}, v{v+e}" for e in range(4)]
        o += [f"{op} v{t+e}, v{v+e}" for e in range(4)]
        o += [f"v_add_f32 v{v+e}, v{v+e}, v{t+e}" for e in range(4)]
    return o

def stats_final(W, t):
    o = [f"v_mul_f32 v{W+e}, {f32(1/1024)}, v{W+e}" for e in range(4)]
    o += [f"v_fma_f32 v{W+2+e}, -v{W+e}, v{W+e}, v{W+2+e}" for e in range(2)]
    o += [f"v_max_f32 v{W+2+e}, 0, v{W+2+e}" for e in range(2)]
    def rnd(b): return [f"v_cvt_pk_bf16_f32 v{t}, v{b}, v{b+1}", f"v_lshlrev_b32 v{b}, 16, v{t}", f"v_and_b32 v{b+1}, 0xffff0000, v{t}"]
    o += rnd(W+2)
    o += [f"v_add_f32 v{W+2+e}, {f32(1e-5)}, v{W+2+e}" for e in range(2)]
    o += rnd(W+2)
    o += [f"v_sqrt_f32 v{W+2+e}, v{W+2+e}" for e in range(2)]
    o += rnd(W)
    o += rnd(W+2)
    o += [f"v_rcp_f32 v{W+2+e}, v{W+2+e}" for e in range(2)]
    o += ["s_nop 0"]
    return o

def ln_stats8(a, pairs, T, W):
    for k, (r0, r1) in enumerate(pairs):
        a(f"v_lshlrev_b32 v{T+4*k}, 16, v{r0}"); a(f"v_lshlrev_b32 v{T+4*k+1}, 16, v{r1}")
        a(f"v_and_b32 v{T+4*k+2}, 0xffff0000, v{r0}"); a(f"v_and_b32 v{T+4*k+3}, 0xffff0000, v{r1}")
    a(f"v_pk_add_f32 {vr(W,2)}, {vr(T,2)}, {vr(T+4,2)}"); a(f"v_pk_mul_f32 {vr(W+2,2)}, {vr(T,2)}, {vr(T,2)}")
    a(f"v_pk_add_f32 {vr(W+4,2)}, {vr(T+2,2)}, {vr(T+6,2)}"); a(f"v_pk_mul_f32 {vr(W+6,2)}, {vr(T+2,2)}, {vr(T+2,2)}")
    for k in range(2, 16):
        b = W + 4*(k & 1)
        if k >= 4: a(f"v_pk_add_f32 {vr(b,2)}, {vr(b,2)}, {vr(T+2*k,2)}")
        a(f"v_pk_fma_f32 {vr(b+2,2)}, {vr(T+2*k,2)}, {vr(T+2*k,2)}, {vr(b+2,2)}")
    a(f"v_pk_add_f32 {vr(W,2)}, {vr(W,2)}, {vr(W+4,2)}"); a(f"v_pk_add_f32 {vr(W+2,2)}, {vr(W+2,2)}, {vr(W+6,2)}")
    a(f"v_and_b32 v{W+24}, 3, v{vL}"); a(f"v_lshlrev_b32 v{W+24}, 4, v{W+24}"); a(f"v_add_u32 v{W+24}, {SBASE}, v{W+24}")
    a(f"s_lshl_b32 s{sT}, s{sWave}, 6"); a(f"v_add_u32 v{W+25}, s{sT}, v{W+24}")
    for ins in red4(W, W+4): a(ins)
    a(f"ds_write_b128 v{W+25}, {vr(W,4)}")
    a("s_waitcnt lgkmcnt(0)"); a("s_barrier")
    E = W + 8
    for w in range(4): a(f"ds_read_b128 {vr(E+4*w,4)}, v{W+24} offset:{64*w}")
    a("s_waitcnt lgkmcnt(0)")
    a(f"v_pk_add_f32 {vr(W,2)}, {vr(E,2)}, {vr(E+4,2)}"); a(f"v_pk_add_f32 {vr(W+4,2)}, {vr(E+8,2)}, {vr(E+12,2)}")
    a(f"v_pk_add_f32 {vr(W+2,2)}, {vr(E+2,2)}, {vr(E+6,2)}"); a(f"v_pk_add_f32 {vr(W+6,2)}, {vr(E+10,2)}, {vr(E+14,2)}")
    a(f"v_pk_add_f32 {vr(W,2)}, {vr(W,2)}, {vr(W+4,2)}"); a(f"v_pk_add_f32 {vr(W+2,2)}, {vr(W+2,2)}, {vr(W+6,2)}")
    for ins in stats_final(W, W+4): a(ins)

TIMEOUT = 400000
def set_flag(g, which, tmp):
    a = g.a
    sk = a.label("fl")
    a(f"s_cmp_lg_u32 s{sWave}, 0"); a(f"s_cbranch_scc1 {sk}")
    a(f"s_lshl_b32 s{sT}, s2, 6"); a(f"s_add_u32 s{sT}, s{sT}, {which*16384}")
    a(f"v_mov_b32 v{tmp}, s{sNON}"); a(f"v_mov_b32 v{tmp+1}, s{sNON+1}"); a(f"v_mov_b32 v{tmp+2}, 0")
    a("s_mov_b64 exec, 1")
    a(f"buffer_store_dwordx2 {vr(tmp,2)}, v{tmp+2}, {sr(sFLG,4)}, s{sT} offen {SC}")
    a("s_mov_b64 exec, -1")
    a(f"{sk}:")

def poll_flags(g, voff, soff, tmp, preloaded=False):
    a = g.a
    lp = a.label("poll"); dn = a.label("pdone"); pre = a.label("ppre")
    a(f"s_mov_b32 s{sTO}, 0")
    if preloaded: a(f"s_branch {pre}")
    a(f"{lp}:")
    a(f"buffer_load_dwordx2 {vr(tmp,2)}, v{voff}, {sr(sFLG,4)}, s{soff} offen {SC}")
    if preloaded: a(f"{pre}:")
    a("s_waitcnt vmcnt(0)")
    a(f"v_cmp_ne_u64 vcc, {sr(sNON,2)}, {vr(tmp,2)}")
    a(f"s_cbranch_vccz {dn}")
    a("s_mov_b64 exec, vcc")
    a(f"s_add_u32 s{sTO}, s{sTO}, 1"); a(f"s_cmp_lt_u32 s{sTO}, {TIMEOUT}"); a(f"s_cbranch_scc1 {lp}")
    a(f"{dn}:")
    a("s_mov_b64 exec, -1")

class VM:
    def __init__(self): self.ops = []
    def add(self, tag): self.ops.append(tag)
    def wait_for(self, tag):
        idx = max(i for i, t in enumerate(self.ops) if t == tag)
        n = len(self.ops) - 1 - idx
        assert n <= 63, n
        return n


pDMA = 224
pX = 231; pST = 232; pWc = 233; pO = 234; pSR = 235; pTch = 236
sG_W = 4
sG_OW = 22; sG_M0 = 24; sG_F = 27; sG_R = 31; sG_SR = 35; sG_TN = 34; sG_TM = 33

def g1_dma(reg, i, fl=""):
    return f"buffer_load_dwordx4 v{reg+i}, {sr(sG_W,4)}, s{sG_OW} offen offset:{(i & 3)*1024} {fl} lds"
sG_OWN = 19; sG_OWN2 = 18
def g1_wadv(kind):
    if kind == "even": return [f"s_add_u32 s{sG_OW}, s{sG_OW}, {64*7168}"]
    first = f"s_mov_b32 s{sG_OW}, 0" if kind == "own" else f"s_add_u32 s{sG_OW}, s{sG_OW}, {64*7168}"
    return [first, f"s_cmp_eq_u32 s{sG_OW}, s{sG_OWN}", f"s_cselect_b32 s{sG_OW}, s{sG_OWN2}, s{sG_OW}"]

def gemm1_addr(g, part):
    a = g.a if part == 0 else (lambda x: None)
    t0 = 240; sM = 26
    a(f"s_and_b32 s{sT}, s2, 7")
    a(f"s_bfe_u32 s{sG_TM}, s2, 0x30003")
    a(f"s_lshl_b32 s{sG_TN}, s{sT}, 2"); a(f"s_lshr_b32 s{sT+2}, s2, 6"); a(f"s_add_u32 s{sG_TN}, s{sG_TN}, s{sT+2}")
    a(f"s_lshl_b32 s{sM}, s{sG_TM}, 8")
    a(f"s_lshl_b32 s{sG_R}, s{sG_TN}, 3"); a(f"s_add_u32 s{sG_R}, s{sG_R}, s{sM}")
    a(f"s_mul_i32 s{sG_F}, s{sG_TN}, 112")
    a(f"s_cmp_ge_u32 s{sWave}, 2")
    a(f"s_cselect_b32 s{sG_W}, s{pWU}, s{pWG}"); a(f"s_cselect_b32 s{sG_W+1}, s{pWU+1}, s{pWG+1}")
    a(f"s_mov_b32 s{sG_W+2}, {SZ_W}"); a(f"s_mov_b32 s{sG_W+3}, 0x20000")
    a(f"s_and_b32 s{sT}, s{sWave}, 1"); a(f"s_mul_i32 s{sT+1}, s{sT}, 448"); a(f"s_lshl_b32 s{sT+2}, s{sG_F}, 1")
    for i in range(7):
        imm = (i & 3) * 1024
        a(f"v_add_u32 v{t0}, s{sT+1}, v{vL}")
        if i: a(f"v_add_u32 v{t0}, {64*i}, v{t0}")
        a(f"v_mul_u32_u24 v{t0+1}, 4682, v{t0}"); a(f"v_lshrrev_b32 v{t0+1}, 16, v{t0+1}")
        a(f"v_mul_u32_u24 v{t0+1}, {7168-224}, v{t0+1}")
        a(f"v_lshl_add_u32 v{t0+1}, v{t0}, 4, v{t0+1}")
        a(f"v_add_u32 v{pDMA+i}, s{sT+2}, v{t0+1}")
        if imm: a(f"v_subrev_u32 v{pDMA+i}, {imm}, v{pDMA+i}")
    a(f"v_and_b32 v{t0+3}, 3, v{vL}")
    a(f"s_mul_i32 s{sG_M0}, s{sT}, 7168"); a(f"s_lshr_b32 s{sT}, s{sWave}, 1"); a(f"s_mul_i32 s{sT}, s{sT}, {UPOFF}")
    a(f"s_add_u32 s{sG_M0}, s{sG_M0}, s{sT}")
    a(f"s_mul_i32 s{sG_OW}, s{sG_TM}, {128*7168}")
    a(f"s_mov_b32 s{sG_OWN}, s{sG_OW}"); a(f"s_add_u32 s{sG_OWN2}, s{sG_OW}, {128*7168}")
    a = g.a if part == 1 else (lambda x: None)
    a(f"s_lshl_b32 s{sT}, s{sWave}, 6"); a(f"s_add_u32 s{sM}, s{sM}, s{sT}")
    a(f"v_and_b32 v{t0}, 31, v{vL}"); a(f"v_add_u32 v{t0}, s{sM}, v{t0}")
    a(f"v_lshlrev_b32 v{pST}, 4, v{t0}")
    a(f"v_lshrrev_b32 v{t0+1}, 5, v{vL}")
    a(f"v_lshlrev_b32 v{pX}, 3, v{t0}"); a(f"v_lshl_add_u32 v{pX}, v{t0+1}, 15, v{pX}")
    a(f"v_lshl_add_u32 v{pO}, v{t0+1}, 15, v{pST}"); a(f"s_lshl_b32 s{sT}, s{sG_F}, 12"); a(f"v_add_u32 v{pO}, s{sT}, v{pO}")
    a(f"v_bfe_u32 v{t0+2}, v{vL}, 2, 2"); a(f"v_lshl_add_u32 v{t0+2}, v{t0+1}, 3, v{t0+2}")
    a(f"v_mul_u32_u24 v{pWc}, 224, v{t0+2}")
    a(f"v_bfe_u32 v{t0+2}, v{vL}, 1, 1"); a(f"v_mul_u32_u24 v{t0+2}, {UPOFF}, v{t0+2}"); a(f"v_add_u32 v{pWc}, v{pWc}, v{t0+2}")
    a(f"v_and_b32 v{t0+2}, 1, v{vL}"); a(f"v_lshl_add_u32 v{pWc}, v{t0+2}, 4, v{pWc}")
    a(f"v_bfe_u32 v{t0+2}, v{vL}, 4, 1"); a(f"v_lshl_add_u32 v{pWc}, v{t0+2}, 3, v{pWc}")
    a(f"v_lshrrev_b32 v{pSR}, 2, v{vL}"); a(f"v_lshlrev_b32 v{pSR}, 14, v{pSR}"); a(f"v_lshl_add_u32 v{pSR}, v{t0+3}, 4, v{pSR}")
    a(f"s_lshl_b32 s{sG_SR}, s{sWave}, 20"); a(f"s_lshl_b32 s{sT}, s{sG_R}, 3"); a(f"s_add_u32 s{sG_SR}, s{sG_SR}, s{sT}")

def phase01(g, ORDER="LSM", KMID=0, DPOST=7, XNT="nt", TOUCH=False, DNT="", DSP=18, CPF=True, DSTART=0):
    a = g.a
    vm = VM()
    a("s_load_dwordx16 s[64:79], s[0:1], 0")
    a("s_load_dwordx8 s[80:87], s[0:1], 64")
    a("s_load_dwordx4 s[88:91], s[0:1], 96")
    a(f"s_memrealtime {sr(sT+2,2)}")
    a(f"v_lshrrev_b32 v2, 6, v0")
    a(f"v_and_b32 v{vL}, 63, v0")
    a(f"v_readfirstlane_b32 s{sWave}, v2")
    a(f"s_and_b32 s{sT}, s2, 7"); a(f"s_lshl_b32 s{sT}, s{sT}, 5")
    a(f"s_lshr_b32 s{sCG}, s2, 3"); a(f"s_add_u32 s{sCG}, s{sCG}, s{sT}")
    if g.dbg: a(f"v_mov_b32 v{vSTAMP}, 0")
    a(f"v_and_b32 v3, 3, v{vL}"); a(f"v_lshrrev_b32 v4, 2, v{vL}")
    a(f"v_lshlrev_b32 v5, 12, v3"); a(f"v_lshl_add_u32 v5, v4, 4, v5")
    a(f"s_lshl_b32 s{sT}, s2, 14"); a(f"s_lshl_b32 s{sT+1}, s{sWave}, 9"); a(f"s_add_u32 s{sT}, s{sT}, s{sT+1}")
    a(f"v_mov_b32 v1, 0")
    sD = 97
    a(f"s_lshl_b32 s{sD}, s{sCG}, 2"); a(f"s_add_u32 s{sD}, s{sD}, s{sWave}")
    a(f"s_lshl_b32 s{sT+4}, s{sD}, 8"); a(f"v_lshlrev_b32 v2, 2, v{vL}")
    a(f"s_lshl_b32 s{sT+5}, s{sD}, 1")
    vF = 29; vR = 8
    a(f"v_lshlrev_b32 v{vF}, 6, v0"); a(f"v_lshlrev_b32 v{vR}, 4, v0")
    a("s_waitcnt lgkmcnt(0)")
    g.stamp()
    sX = 36; sDB = 8; sU2 = 40; sH = 44; sP = 12
    srd(a, sDB, pDBG, 256)
    nn = a.label("nn")
    a(f"s_or_b32 s{sT+1}, s2, s{sWave}"); a(f"s_cmp_lg_u32 s{sT+1}, 0"); a(f"s_cbranch_scc1 {nn}")
    a(f"s_or_b32 s{sT+2}, s{sT+2}, 1")
    a(f"v_mov_b32 v6, s{sT+2}"); a(f"v_mov_b32 v7, s{sT+3}")
    a("s_mov_b64 exec, 0xf")
    a(f"buffer_store_dwordx2 v[6:7], v{vF}, {sr(sDB,4)}, 0 offen {SC}")
    a("s_mov_b64 exec, -1")
    a(f"{nn}:")
    PR = 24; XD = 32
    def ld_params():
        for i, p in enumerate((pLOGA, pAIM, pCRE, pCIM)):
            srd(a, sP+4*i, p, 1024*256)
            a(f"buffer_load_dword v{PR+i}, v2, {sr(sP+4*i,4)}, s{sT+4} offen"); vm.add("P")
        srd(a, 28, pLOGDT, 2048)
        a(f"buffer_load_ushort v{PR+4}, v1, s[28:31], s{sT+5} offen"); vm.add("P")
    def ld_x():
        srd(a, sX, pU, 2048*2048)
        for e in range(2):
            for i in range(2):
                a(f"buffer_load_dwordx4 {vr(XD+8*e+4*i,4)}, v5, {sr(sX,4)}, s{sT} offen offset:{2048*e+256*i} {XNT}"); vm.add("X")
    if ORDER[0] == "S": ld_params(); ld_x()
    else: ld_x(); ld_params()
    if CPF:
        a("s_getpc_b64 s[36:37]"); a("s_and_b32 s36, s36, 0xffffff00"); a(f"s_mov_b32 s38, CODE_BYTES"); a("s_mov_b32 s39, 0x20000")
        a(f"s_lshr_b32 s{sT+1}, s2, 3"); a(f"s_and_b32 s{sT+1}, s{sT+1}, 3"); a(f"s_lshl_b32 s{sT+1}, s{sT+1}, 14")
        a(f"buffer_load_dword a204, v{vF}, s[36:39], s{sT+1} offen"); vm.add("T")
    if TOUCH:
        srd(a, sX, pWS, M_END)
        a(f"v_lshlrev_b32 v6, 21, v{vL}"); a(f"v_lshlrev_b32 v7, 7, v{vL}"); a(f"v_add_u32 v6, v6, v7")
        a(f"buffer_load_dword a204, v6, {sr(sX,4)}, 0 offen"); vm.add("T")
        srd(a, sX, pOUT, 4 << 20)
        a(f"buffer_load_dword a205, v6, {sr(sX,4)}, 0 offen"); vm.add("T")
        a(f"buffer_load_dword a206, v1, {sr(sDB,4)}, 0 offen sc1"); vm.add("T")
    gemm1_addr(g, 0)
    bgl = []
    for stg in range(2):
        for i in range(7):
            grp = []
            if i in (0, 4): grp += [(f"s_add_u32 m0, s{sG_M0}, {stg*SLOT1 + (4096 if i else 0)}", None), ("s_nop 0", None)]
            grp.append((g1_dma(pDMA, i, DNT), "D"))
            if i == 6: grp += [(x, None) for x in g1_wadv('own' if stg else 'even')]
            bgl.append(grp)
    def take(n):
        out = bgl[:n]; del bgl[:n]; return out
    for grp in take(DSTART):
        for ins, tag in grp:
            a(ins)
            if tag: vm.add(tag)
    gemm1_addr(g, 1)
    srd(a, sFLG, pWS, 4*16384, M_FLG)
    srd(a, sU2, pWS, 8 << 20, M_U2); srd(a, sH, pWS, 4 << 20, M_H4)
    a(f"s_lshl_b32 s{sT+1}, s{sCG}, 3")
    a(f"s_load_dwordx2 s[58:59], {sr(pDSKIP,2)}, s{sT+1}")
    a(f"v_lshlrev_b32 v6, 15, v4"); a(f"v_lshl_add_u32 v6, v3, 4, v6")
    nu = 9; vG = 19
    a(f"v_and_b32 v{nu}, 15, v{vL}"); a(f"v_lshrrev_b32 v{vG}, 4, v{vL}")
    sUB = sT+8; sKB = sT+9; sTB = sT+7
    a(f"s_mul_i32 s{sUB}, s{sWave}, {UCH}"); a(f"s_add_u32 s{sUB}, s{sUB}, {UBASE}")
    a(f"s_mul_i32 s{sKB}, s{sWave}, {KCH}"); a(f"s_add_u32 s{sKB}, s{sKB}, {KBASE}")
    a(f"s_add_u32 s{sTB}, s{sUB}, {TOFF}")
    vTa = 10; vTb = 11; vTc = 12; vTw = 13; vO1 = 15; vO2 = 18
    a(f"v_lshlrev_b32 v16, 7, v{vG}"); a(f"v_add_u32 v16, s{sUB}, v16")
    a(f"v_bfe_u32 v17, v{vL}, 2, 2"); a(f"v_mul_u32_u24 v{vTa}, {RS}, v17"); a(f"v_add_u32 v{vTa}, v{vTa}, v16")
    a(f"v_mul_u32_u24 v{vTb}, {RS}, v3")
    a(f"v_bfe_u32 v17, v{vL}, 3, 1"); a(f"v_lshlrev_b32 v{vTc}, v17, v{vTb}")
    a(f"v_add_u32 v{vTb}, v{vTb}, v16"); a(f"v_add_u32 v{vTc}, v{vTc}, v16")
    a(f"v_lshlrev_b32 v{vTw}, 3, v{vL}"); a(f"v_add_u32 v{vTw}, s{sUB}, v{vTw}")
    a(f"v_mov_b32 v16, 0x3c00"); a(f"v_mov_b32 v17, 0x3c00")
    for e in (0, 4, 12): a(f"ds_write_b64 v{vTw}, v[16:17] offset:{e*RS}")
    a(f"v_lshlrev_b32 v{vO1}, 6, v{nu}"); a(f"v_lshl_add_u32 v{vO1}, v{vG}, 3, v{vO1}"); a(f"v_add_u32 v{vO1}, s{sTB}, v{vO1}")
    a(f"v_lshlrev_b32 v22, 4, v{nu}"); a(f"v_lshl_add_u32 v22, v{vG}, 3, v22"); a(f"v_add_u32 v22, 1024, v22")
    a(f"v_lshlrev_b32 v23, 3, v{nu}"); a(f"v_lshl_add_u32 v23, v{vG}, 7, v23"); a(f"v_add_u32 v23, {1280-256}, v23")
    a(f"v_cmp_gt_u32 vcc, 32, v{vL}"); a("s_nop 1")
    a(f"v_cndmask_b32 v{vO2}, v23, v22, vcc"); a(f"v_add_u32 v{vO2}, s{sTB}, v{vO2}")
    SA = 184
    def sel(dst, lo32, hi32):
        a(f"v_mov_b32 v{dst}, {hi32:#x}"); a(f"v_mov_b32 v22, {lo32:#x}"); a(f"v_cndmask_b32 v{dst}, v{dst}, v22, vcc")
    sel(SA, 0x01000302, 0x01000100); sel(SA+1, 0x01000302, 0x01000504); sel(SA+2, 0x03020504, 0x01000504); sel(SA+3, 0x03020504, 0x05040504)
    a(f"v_mov_b32 v{SA+4}, v{SA+3}")
    a(f"s_mov_b32 s{sT+3}, 0x03020504"); a(f"v_writelane_b32 v{SA+4}, s{sT+3}, 32")
    a(f"s_mov_b32 s{sT+2}, 0x0c0c0504"); a(f"v_writelane_b32 v{SA+4}, s{sT+2}, 0")
    vK = 20; vK2 = 21; vZ = 14
    a(f"v_lshlrev_b32 v22, 4, v{vL}"); a(f"v_add_u32 v{vK}, s{sKB}, v22"); a(f"v_add_u32 v{vK2}, v{vK}, v22")
    a(f"v_add_u32 v{vZ}, s{sUB}, v22")
    ZR = 180
    for r in range(ZR, ZR+4): a(f"v_mov_b32 v{r}, 0")
    a("s_mov_b64 exec, 0x7f")
    a(f"ds_write_b128 v{vK}, {vr(ZR,4)}"); a(f"ds_write_b128 v{vK}, {vr(ZR,4)} offset:{KCS}")
    a("s_mov_b64 exec, -1")
    vA = 4; vB = 5; vY = 7
    a(f"v_and_b32 v22, 1, v{vL}"); a(f"v_mul_u32_u24 v{vA}, {KCS}, v22")
    a(f"v_bfe_u32 v22, v{vL}, 1, 3"); a(f"v_sub_u32 v22, v22, v{vG}"); a(f"v_add_u32 v22, 3, v22")
    a(f"v_lshl_add_u32 v{vA}, v22, 4, v{vA}"); a(f"v_add_u32 v{vA}, s{sKB}, v{vA}")
    a(f"v_mul_u32_u24 v{vB}, {UCS}, v3")
    a(f"v_bfe_u32 v22, v{vL}, 2, 2"); a(f"v_lshl_add_u32 v23, v22, 3, v{vG}")
    a(f"v_lshl_add_u32 v{vB}, v23, 4, v{vB}"); a(f"v_add_u32 v{vB}, s{sUB}, v{vB}")
    a(f"v_lshlrev_b32 v{vY}, 5, v22"); a(f"v_lshl_add_u32 v{vY}, v{vG}, 3, v{vY}"); a(f"v_add_u32 v{vY}, v{vY}, v3")
    a(f"v_lshlrev_b32 v{vY}, 2, v{vY}"); a(f"v_add_u32 v{vY}, s{sKB}, v{vY}")
    vUC = 190
    a(f"v_lshlrev_b32 v22, 2, v0")
    for c in range(4):
        for ch in range(2): a(f"v_add_u32 v{vUC+2*c+ch}, {UBASE + ch*UCH + c*UCS + UPAD - 4*(c+1)}, v22")
    ACC = 48; vSC = 60

    def setup():
        a(f"s_waitcnt vmcnt({vm.wait_for('P')})")
        g.stamp()
        dt = PR+4
        Z = 64; C = 68; TT = 72
        a(f"v_lshlrev_b32 v{dt}, 16, v{dt}"); a(f"v_lshlrev_b32 v{TT}, 16, v{PR}"); a(f"v_and_b32 v{TT+1}, 0xffff0000, v{PR}")
        for r in (dt, TT, TT+1): a(f"v_mul_f32 v{r}, {f32(LOG2E)}, v{r}")
        for r in (dt, TT, TT+1): a(f"v_exp_f32 v{r}, v{r}")
        for k, b in ((1, Z+1), (2, C), (3, C+1)):
            a(f"v_lshlrev_b32 v{b}, 16, v{PR+k}"); a(f"v_and_b32 v{b+2}, 0xffff0000, v{PR+k}")
        a(f"v_cvt_pk_bf16_f32 v{dt}, v{dt}, v{dt}"); a(f"v_cvt_pk_bf16_f32 v{PR}, v{TT}, v{TT+1}")
        a(f"v_max3_f32 v{vSC}, |v{C}|, |v{C+1}|, |v{C+2}|"); a(f"v_max_f32 v{vSC}, |v{C+3}|, v{vSC}")
        a(f"v_lshlrev_b32 v{dt}, 16, v{dt}")
        a(f"v_lshlrev_b32 v{Z}, 16, v{PR}"); a(f"v_and_b32 v{Z+2}, 0xffff0000, v{PR}")
        red = [f"v_max_f32_dpp v{vSC}, v{vSC}, v{vSC} {m} row_mask:0xf bank_mask:0xf" for m in ("quad_perm:[1,0,3,2]", "quad_perm:[2,3,0,1]", "row_ror:4", "row_ror:8")]
        a(red[0])
        for i in range(4): a(f"v_mul_f32 v{Z+i}, v{Z+i}, v{dt}")
        a(red[1])
        for m in range(2):
            a(f"v_mul_f32 v{Z+2*m}, {f32(-LOG2E)}, v{Z+2*m}"); a(f"v_mul_f32 v{Z+2*m+1}, 0.15915494, v{Z+2*m+1}")
        a(red[2])
        names = [1, 2, 3, 4, 8, 12, 16, 20, 24, 28, 32, 64, 96, 128, 256, 512, 528, 1024, 1536, 2048, "R1", "R2", "R3"]
        E = {n: 88 + 4*i for i, n in enumerate(names)}
        AR = 76
        for i, p in enumerate((1, 32, 512)):
            for k in range(4):
                if p == 1: a(f"v_mov_b32 v{AR+4*i+k}, v{Z+k}")
                else: a(f"v_mul_f32 v{AR+4*i+k}, {f32(p)}, v{Z+k}")
            if i == 0: a(red[3])
        for i in range(6): a(f"v_fract_f32 v{AR+2*i+1}, v{AR+2*i+1}")
        for op in ("v_permlane16_swap_b32", "v_permlane32_swap_b32"):
            a(f"v_mov_b32 v{TT}, v{vSC}"); a("s_nop 1"); a(f"{op} v{TT}, v{vSC}"); a("s_nop 0"); a(f"v_max_f32 v{vSC}, v{vSC}, v{TT}")
        for i, p in enumerate((1, 32, 512)):
            for m in range(2):
                r = AR+4*i+2*m
                a(f"v_cos_f32 v{E[p]+2*m}, v{r+1}"); a(f"v_sin_f32 v{E[p]+2*m+1}, v{r+1}"); a(f"v_exp_f32 v{r}, v{r}")
        a(f"v_frexp_exp_i32_f32 v{TT}, v{vSC}")
        a(f"v_add_f32 v{dt}, v{dt}, v{dt}")
        a(f"v_ldexp_f32 v{vSC}, v{dt}, v{TT}")
        a(f"v_sub_u32 v{TT}, 0, v{TT}")
        for i, p in enumerate((1, 32, 512)):
            for m in range(2):
                a(f"v_pk_mul_f32 {vr(E[p]+2*m,2)}, {vr(E[p]+2*m,2)}, {vr(AR+4*i+2*m,2)} op_sel_hi:[1,0]")
        for k in range(4): a(f"v_ldexp_f32 v{C+k}, v{C+k}, v{TT}")
        E["C"] = C
        ent = {1: 1, 2: 2, 3: 3, 4: 5, 8: 6, 12: 7, 16: 8, 20: 9, 24: 10, 28: 11, 32: 13, 64: 14, 96: 15, "C": 16, "R1": 17, "R2": 18, "R3": 19,
               512: 20, 528: 21, 1024: 22, 1536: 23}
        wt = [0]
        def emit(n):
            if n not in ent: return
            t = AR + 2*(wt[0] % 6); wt[0] += 1
            ng = "-" if 12 <= ent[n] < 20 else ""
            for m in range(2): a(f"v_cvt_pk_f16_f32 v{t+m}, v{E[n]+2*m}, {ng}v{E[n]+2*m+1}")
            a(f"ds_write_b64 v{vTw}, {vr(t,2)} offset:{ent[n]*RS}")
        levels = [[(2,1,1), (64,32,32), (1024,512,512)], [(3,2,1), (4,2,2), (96,64,32), (128,64,64), (1536,1024,512), (2048,1024,1024)],
                  [(8,4,4), (256,128,128), ("R1","C",128)], [(12,8,4), (16,8,8), ("R2","C",256)],
                  [(20,16,4), (24,16,8), (28,16,12), (528,512,16), ("R3","R2",128)]]
        pend = [1, 32, 512, "C"]
        for lv in levels:
            for d, x, y in lv:
                for m in range(2): a(f"v_pk_mul_f32 {vr(E[d]+2*m,2)}, {vr(E[x]+2*m,2)}, {vr(E[y]+2*m,2)} op_sel_hi:[0,1]")
            for d, x, y in lv:
                for m in range(2):
                    a(f"v_pk_fma_f32 {vr(E[d]+2*m,2)}, {vr(E[x]+2*m,2)}, {vr(E[y]+2*m,2)}, {vr(E[d]+2*m,2)} op_sel:[1,1,0] op_sel_hi:[1,0,1] neg_lo:[0,1,0]")
            for n in pend: emit(n)
            pend = [d for d, x, y in lv]
        for n in pend: emit(n)
        e = E[2048]
        a(f"v_mul_f32 v61, v{e}, v{C}"); a(f"v_fma_f32 v61, -v{e+1}, v{C+1}, v61")
        a(f"v_fma_f32 v61, v{e+2}, v{C+2}, v61"); a(f"v_fma_f32 v61, -v{e+3}, v{C+3}, v61")
        wave_sum(a, 61, 62, 1)
        a(f"v_mul_f32 v61, v61, v{vSC}")
        a("v_cvt_pk_bf16_f32 v61, v61, v61")
        a(f"v_mov_b32 v62, s{sTB}")
        a(f"ds_write_b32 v62, v61 offset:1536")

    FB = 64
    srcs = [(vTa, 4), (vTa, 8), (vTb, 0), (vTa, 16), (vTb, 12), (vTa, 20), (vTc, 4)]
    def rdf(step):
        return [f"ds_read_b128 {vr(FB+28*(step&1)+4*i,4)}, v{r} offset:{e*RS+16*step}" for i, (r, e) in enumerate(srcs)]
    OB = 120
    def kstep(step, bg):
        f = FB + 28*(step & 1); o = OB + 16*(step & 1)
        a("s_waitcnt lgkmcnt(0)")
        nxt = rdf(step+1) if step < 7 else []
        prods = [(o, f+12, f+16), (o+4, f, f+8), (o+8, f+4, f+8), (o+12, f+20, f+24)]
        for d, x, y in prods:
            for m in range(4): a(f"v_pk_mul_f16 v{d+m}, v{x+m}, v{y+m} op_sel_hi:[0,1]")
            for _ in range(2):
                if nxt: a(nxt.pop(0))
        for grp in bg:
            for ins, tag in grp:
                a(ins)
                if tag: vm.add(tag)
        for i, (d, x, y) in enumerate(prods):
            for m in range(4): a(f"v_pk_fma_f16 v{d+m}, v{x+m}, v{y+m}, v{d+m} op_sel:[1,1,0] op_sel_hi:[1,0,1] neg_lo:[0,1,0]")
            if i >= 2:
                c = "0" if step == 0 else vr(ACC+4*(i-2),4)
                a(f"v_mfma_f32_16x16x32_f16 {vr(ACC+4*(i-2),4)}, {vr(o+4*(i-1),4)}, {vr(o,4)}, {c}")
        a("s_nop 0")
        c = "0" if step == 0 else vr(ACC+8,4)
        a(f"v_mfma_f32_16x16x32_f16 {vr(ACC+8,4)}, {vr(o+12,4)}, {vr(o,4)}, {c}")

    def ln1():
        a(f"s_waitcnt vmcnt({vm.wait_for('X')})")
        g.stamp()
        T = 64; W = 96; XP = 144; XO = 160
        a(f"s_lshl_b32 s{sT}, s{sWave}, 20"); a(f"s_lshl_b32 s{sT+1}, s2, 6"); a(f"s_add_u32 s{sT}, s{sT}, s{sT+1}")
        a(f"s_mov_b32 s{sT+2}, 0x05040100"); a(f"s_mov_b32 s{sT+3}, 0x07060302")
        for q in range(4):
            for k in range(4*q, 4*q+4): a(f"v_perm_b32 v{XP+k}, v{XD+8+(k>>1)}, v{XD+(k>>1)}, s{sT+2+(k&1)}")
            a(f"s_add_u32 s{sT+1}, s{sT}, {((q>>1)*32 + (q&1))*16384 + (4 << 20)}")
            a(f"buffer_store_dwordx4 {vr(XP+4*q,4)}, v6, {sr(sU2,4)}, s{sT+1} offen {SC}"); vm.add("U")
        ln_stats8(a, [(XD+k, XD+8+k) for k in range(8)], T, W)
        for k in range(16): a(f"v_pk_add_f32 {vr(T+2*k,2)}, {vr(T+2*k,2)}, {vr(W,2)} neg_lo:[0,1] neg_hi:[0,1]")
        for k in range(16): a(f"v_cvt_pk_bf16_f32 v{XO+k}, v{T+2*k}, v{T+2*k+1}")
        for k in range(16):
            a(f"v_lshlrev_b32 v{T+2*k}, 16, v{XO+k}"); a(f"v_and_b32 v{T+2*k+1}, 0xffff0000, v{XO+k}")
        for k in range(16): a(f"v_pk_mul_f32 {vr(T+2*k,2)}, {vr(T+2*k,2)}, {vr(W+2,2)}")
        a(f"s_lshl_b32 s{sT}, s{sWave}, 20"); a(f"s_lshl_b32 s{sT+1}, s2, 6"); a(f"s_add_u32 s{sT}, s{sT}, s{sT+1}")
        for q in range(4):
            for k in range(4*q, 4*q+4): a(f"v_cvt_pk_bf16_f32 v{XO+k}, v{T+2*k}, v{T+2*k+1}")
            a(f"s_add_u32 s{sT+1}, s{sT}, {((q>>1)*32 + (q&1))*16384}")
            a(f"buffer_store_dwordx4 {vr(XO+4*q,4)}, v6, {sr(sU2,4)}, s{sT+1} offen {SC}"); vm.add("U")
        nl = a.label("nl")
        a(f"s_and_b32 s{sT+6}, s2, 3"); a(f"s_lshl_b32 s{sT+6}, s{sT+6}, 6")
        a(f"s_cmp_lg_u32 s{sWave}, 0"); a(f"s_cbranch_scc1 {nl}")
        a(f"buffer_load_dwordx2 v[22:23], v1, {sr(sDB,4)}, s{sT+6} offen sc1")
        a(f"{nl}:")
        a("s_nop 1")
        g.stamp()

    if ORDER == "SLM": setup(); ln1()
    else: ln1(); setup()
    for ins in rdf(0): a(ins)
    step = 0
    for _ in range(KMID): kstep(step, []); step += 1
    a(f"s_waitcnt vmcnt(0)")
    gn = a.label("gn"); gn2 = a.label("gn2"); gn3 = a.label("gn3")
    a(f"s_cmp_lg_u32 s{sWave}, 0"); a(f"s_cbranch_scc1 {gn3}")
    a(f"s_mov_b32 s{sTO}, 0")
    a(f"{gn}:")
    a(f"v_readfirstlane_b32 s{sNON}, v22"); a(f"v_readfirstlane_b32 s{sNON+1}, v23")
    a(f"s_cmp_lg_u32 s{sNON}, 0"); a(f"s_cbranch_scc1 {gn2}")
    a(f"buffer_load_dwordx2 v[22:23], v1, {sr(sDB,4)}, s{sT+6} offen sc1")
    a("s_waitcnt vmcnt(0)")
    a(f"s_add_u32 s{sTO}, s{sTO}, 1"); a(f"s_cmp_lt_u32 s{sTO}, {TIMEOUT}"); a(f"s_cbranch_scc1 {gn}")
    a(f"{gn2}:")
    a(f"v_mov_b32 v24, {KBASE + KCH - 16}")
    a(f"ds_write_b64 v24, v[22:23]")
    a("s_waitcnt lgkmcnt(0)")
    a(f"{gn3}:")
    a("s_barrier")
    set_flag(g, 0, 22)
    g.stamp()
    a(f"v_mov_b32 v24, {KBASE + KCH - 16}")
    a(f"ds_read_b64 v[26:27], v24")
    first = True
    while step < 8:
        n = min(2, DPOST); DPOST -= n
        kstep(step, take(n)); step += 1
        if first:
            a(f"v_readfirstlane_b32 s{sNON}, v26"); a(f"v_readfirstlane_b32 s{sNON+1}, v27"); first = False
    assert not first
    Eb = 72
    a(f"v_lshlrev_b32 v16, 4, v{vL}"); a(f"v_add_u32 v16, s{sTB}, v16"); a(f"v_subrev_u32 v17, 4, v16")
    a(f"v_add_u32 v2, s{sTB}, v2")
    s00 = sT; s11 = sT+1; s10 = sT+2; s21 = sT+3
    a(f"s_mov_b32 s{s00}, 0x01000100"); a(f"s_mov_b32 s{s11}, 0x03020302"); a(f"s_mov_b32 s{s10}, 0x01000302"); a(f"s_mov_b32 s{s21}, 0x03020504")
    for t in (0, 1, 2):
        for e in range(2): a(f"v_pk_mul_f32 {vr(ACC+4*t+2*e,2)}, {vr(ACC+4*t+2*e,2)}, {vr(vSC,2)} op_sel_hi:[1,0]")
        a(f"v_cvt_pk_bf16_f32 v{64+2*t}, v{ACC+4*t}, v{ACC+4*t+1}")
        a(f"v_cvt_pk_bf16_f32 v{65+2*t}, v{ACC+4*t+2}, v{ACC+4*t+3}")
    a(f"ds_write_b64 v{vO1}, v[64:65]"); a(f"ds_write_b64 v{vO1}, v[66:67] offset:32"); a(f"ds_write_b64 v{vO2}, v[68:69]")
    a(f"ds_read_b128 {vr(Eb,4)}, v16"); a(f"ds_read_b32 v{Eb+4}, v16 offset:16"); a(f"ds_read_b32 v{Eb-1}, v17")
    a(f"ds_read_b32 v78, v2 offset:1024"); a(f"ds_read_b32 v79, v2 offset:1028")
    a(f"ds_read_b32 v80, v2 offset:1280"); a(f"ds_read_b32 v81, v2 offset:1284")
    a("s_mov_b64 exec, 0x1ffffff")
    for c in range(4): a(f"ds_write_b128 v{vZ}, {vr(ZR,4)} offset:{c*UCS}")
    a("s_mov_b64 exec, -1")
    a(f"buffer_load_dwordx2 v[22:23], v{vF}, {sr(sFLG,4)}, 0 offen {SC}")
    a("s_waitcnt lgkmcnt(0)")
    O = 84
    for d, s0, s1, sl in ((0,3,2,2),(1,2,1,3),(2,1,0,2),(3,0,-1,4),(4,4,3,1),(5,2,2,0),(6,2,1,1),(7,0,0,0)):
        a(f"v_perm_b32 v{O+d}, v{Eb+s0}, v{Eb+s1}, v{SA+sl}")
    a(f"ds_write_b128 v{vK}, {vr(O,4)} offset:{KPAD}")
    a(f"ds_write_b128 v{vK}, {vr(O+4,4)} offset:{KPAD+KCS}")
    def mk(dst, kind, p01, p2):
        if kind == "00": a(f"v_perm_b32 v{dst}, v{p01}, v{p01}, s{s00}")
        elif kind == "11": a(f"v_perm_b32 v{dst}, v{p01}, v{p01}, s{s11}")
        elif kind == "22": a(f"v_perm_b32 v{dst}, v{p2}, v{p2}, s{s00}")
        elif kind == "10": a(f"v_perm_b32 v{dst}, v{p01}, v{p01}, s{s10}")
        elif kind == "21": a(f"v_perm_b32 v{dst}, v{p2}, v{p01}, s{s21}")
    chunks = [(78, ["21","11","00","00"], vK, KPAD + 1024), (78, ["22","11","10","00"], vK, KPAD + 1024 + KCS),
              (80, ["11","00","00","00"], vK2, KPAD + 2048), (80, ["22","21","11","11"], vK2, KPAD + 2048 + 16),
              (80, ["11","10","00","00"], vK2, KPAD + 2048 + KCS), (80, ["22","22","11","11"], vK2, KPAD + 2048 + KCS + 16)]
    for ci, (p, kinds, ad, off) in enumerate(chunks):
        b = O + 8 + 4*ci
        for e, kd in enumerate(kinds): mk(b+e, kd, p, p+1)
        a(f"ds_write_b128 v{ad}, {vr(b,4)} offset:{off}")
    g.stamp()
    a(f"s_mov_b32 s{sT}, 0")
    sCGo = sT+7
    a(f"s_lshl_b32 s{sCGo}, s{sCG}, 14")
    poll_flags(g, vF, sT, 22, preloaded=True)
    a("s_barrier")
    g.stamp()
    UR = 32
    for i in range(4):
        a(f"s_add_u32 s{sT}, s{sCGo}, {4096*i}")
        a(f"buffer_load_dwordx4 {vr(UR+4*i,4)}, v{vR}, {sr(sU2,4)}, s{sT} offen {SC}")
    def rdA(st, p, q): return f"ds_read_b128 {ar(64*st+4*p,4)}, v{vA} offset:{(8*p+q)*64}"
    def rdB(st, r, q): return f"ds_read_b128 {ar(64*st+32+4*r,4)}, v{vB} offset:{(8*r-q+7)*64}"
    for i in range(8): a(rdA(0, i, 0))
    XG = 48
    for i in range(4):
        a(f"s_add_u32 s{sT}, s{sCGo}, {4096*i + (4 << 20)}")
        a(f"buffer_load_dwordx4 {vr(XG+4*i,4)}, v{vR}, {sr(sU2,4)}, s{sT} offen {SC}")
    for ii in range(4):
        a(f"s_waitcnt vmcnt({7-ii})")
        for c in range(4):
            for ch in range(2):
                a(f"ds_write2st64_b32 v{vUC+2*c+ch}, v{UR+4*ii+ch}, v{UR+4*ii+ch+2} offset0:{4*ii} offset1:{4*ii+141}")
    a("s_waitcnt lgkmcnt(0)")
    a("s_barrier")
    g.stamp()
    CA = 64
    for i in range(8): a(rdB(0, i, 0))
    fill = []
    F = fill.append
    TD = 96; XU = 128
    F(f"s_lshl_b32 s{sT}, s58, 16"); F(f"s_and_b32 s{sT+1}, s58, 0xffff0000"); F(f"s_lshl_b32 s{sT+2}, s59, 16"); F(f"s_and_b32 s{sT+3}, s59, 0xffff0000")
    for i in range(4):
        for ch in range(4):
            u = UR+4*i+ch; d = TD+8*i+2*ch
            F(f"v_lshlrev_b32 v{d}, 16, v{u}"); F(f"v_and_b32 v{d+1}, 0xffff0000, v{u}")
            F(f"v_mul_f32 v{d}, s{sT+ch}, v{d}"); F(f"v_mul_f32 v{d+1}, s{sT+ch}, v{d+1}")
            F(f"v_cvt_pk_bf16_f32 v{u}, v{d}, v{d+1}")
            F(f"v_lshlrev_b32 v{d}, 16, v{u}"); F(f"v_and_b32 v{d+1}, 0xffff0000, v{u}")
    F(f"v_lshlrev_b32 v16, 2, v0"); F(f"v_add_u32 v16, {KBASE}, v16")
    fill2 = ["s_waitcnt vmcnt(0)"]
    for k in range(16):
        fill2 += [f"v_lshlrev_b32 v{XU+2*k}, 16, v{XG+k}", f"v_and_b32 v{XU+2*k+1}, 0xffff0000, v{XG+k}"]
    sched = {}
    nb = len(bgl)
    for n in range(nb):
        pos = n * DSP + 9
        sched[(pos // 36, pos % 36)] = [ins for ins, tag in bgl[n]]
    fill2[0] = f"s_waitcnt vmcnt({nb})"
    fi = 0
    for q in range(8):
        st = q & 1
        a("s_waitcnt lgkmcnt(0)")
        nxt = []
        if q < 7:
            for i in range(8): nxt += [rdA(1-st, i, q+1), rdB(1-st, i, q+1)]
        else:
            assert fi == len(fill), (fi, len(fill))
            fill = fill2; fi = 0
        k = 0
        for p in range(8):
            for r in range(8 - p):
                t = p + r
                c = "0" if (q == 0 and p == 0) else vr(CA+4*t, 4)
                a(f"v_mfma_f32_16x16x32_bf16 {vr(CA+4*t,4)}, {ar(64*st+4*p,4)}, {ar(64*st+32+4*r,4)}, {c}")
                if (q, k) in sched:
                    for ins in sched.pop((q, k)): a(ins)
                elif nxt and (k % 2 == 0 or (k < 8)): a(nxt.pop(0))
                elif fi < len(fill): a(fill[fi]); fi += 1
                k += 1
        assert not nxt
    assert fi == len(fill) and not sched, (fi, len(fill), sched)
    for t in range(8):
        a(f"v_cvt_pk_bf16_f32 v{168+2*t}, v{CA+4*t}, v{CA+4*t+1}")
        a(f"v_cvt_pk_bf16_f32 v{169+2*t}, v{CA+4*t+2}, v{CA+4*t+3}")
        a(f"ds_write2_b32 v{vY}, v{168+2*t}, v{169+2*t} offset0:{128*(t&1)} offset1:{128*(t&1)+4}")
        if t & 1 and t < 7: a(f"v_add_u32 v{vY}, 1024, v{vY}")
    a("s_waitcnt vmcnt(0) lgkmcnt(0)")
    g.stamp()
    a("s_barrier")
    Y = 64; YU = 160
    for i in range(4):
        for ch in (0, 2):
            a(f"ds_read2st64_b32 {vr(Y+4*i+ch,2)}, v16 offset0:{4*i+33*ch} offset1:{4*i+33*(ch+1)}")
    for i in range(4):
        a(f"s_waitcnt lgkmcnt({6-2*i})")
        for ch in range(4):
            a(f"v_lshlrev_b32 v{YU+2*ch}, 16, v{Y+4*i+ch}"); a(f"v_and_b32 v{YU+2*ch+1}, 0xffff0000, v{Y+4*i+ch}")
        b = TD+8*i
        for ch in range(4): a(f"v_pk_add_f32 {vr(b+2*ch,2)}, {vr(b+2*ch,2)}, {vr(YU+2*ch,2)}")
        for ch in range(4): a(f"v_cvt_pk_bf16_f32 v{YU+ch}, v{b+2*ch}, v{b+2*ch+1}")
        for ch in range(4):
            a(f"v_lshlrev_b32 v{b+2*ch}, 16, v{YU+ch}"); a(f"v_and_b32 v{b+2*ch+1}, 0xffff0000, v{YU+ch}")
        for ch in range(4): a(f"v_pk_add_f32 {vr(b+2*ch,2)}, {vr(b+2*ch,2)}, {vr(XU+8*i+2*ch,2)}")
        for e in range(2):
            for hp in range(2):
                a(f"v_cvt_pk_bf16_f32 v{Y+4*i+2*e+hp}, v{b+4*hp+e}, v{b+4*hp+2+e}")
        a(f"s_add_u32 s{sT}, s{sCGo}, {4096*i}")
        a(f"buffer_store_dwordx4 {vr(Y+4*i,4)}, v{vR}, {sr(sH,4)}, s{sT} offen {SC}")
    g.stamp()

M_XCH = 0x1b00000
XSL = 16384; XWG = 3*XSL; SZ_XCH = 256*XWG
s2_TM = sT+4; s2_TN = sT+5; s2_KQ = sT+6
def g2_dma_addr(sM0):
    return [f"s_bfe_u32 s{s2_KQ}, s2, 0x20001",
        f"s_and_b32 s{s2_TM}, s2, 1", f"s_lshl_b32 s{s2_TM}, s{s2_TM}, 2", f"s_bfe_u32 s{sT}, s2, 0x20003", f"s_add_u32 s{s2_TM}, s{s2_TM}, s{sT}",
        f"s_lshr_b32 s{s2_TN}, s2, 5",
        f"v_lshrrev_b32 v2, 4, v{vL}", f"s_mul_i32 s{sT}, s{s2_KQ}, 896", f"s_lshl_b32 s{sT+1}, s{sWave}, 4", f"s_add_u32 s{sT}, s{sT}, s{sT+1}",
        f"v_add_u32 v1, s{sT}, v2", f"v_lshlrev_b32 v1, 11, v1",
        f"v_lshlrev_b32 v2, 2, v2", f"v_and_b32 v3, 15, v{vL}", f"v_xor_b32 v2, v2, v3",
        f"v_lshl_add_u32 v1, v2, 4, v1", f"s_lshl_b32 s{sT}, s{s2_TN}, 8", f"v_add_u32 v1, s{sT}, v1", f"s_lshl_b32 s{sM0}, s{sWave}, 12"]
G2_STG = 64*2048; G2_I = 4*2048 - 1024
def g2_dma(stage, i, sM0=24, sW=12):
    grp = []
    if i == 0: grp.append(f"s_add_u32 m0, s{sM0}, {(stage % 10)*16384}")
    grp.append(f"s_mov_b32 s{sT+1}, {stage*G2_STG + i*G2_I}")
    grp.append(f"buffer_load_dwordx4 v1, {sr(sW,4)}, s{sT+1} offen offset:{1024*i} lds")
    return grp

def phase_gemm2(g, PRE1, LA=8, TAIL=16, XSLEEP=4, OF=''):
    a = g.a
    ACC = 32
    def acc(j, t): return ACC + (t*2 + j)*16
    HR = 160; IN = 176; XR = 0; WF = 192; NX = 24
    vX = 2; vW = 4; vO = 16; vI = 17; vH = 18; vFl = 19; vT = 232; vM = 20
    sX = 8; sH = 44; sO = 4; sIB = 36
    sOX = 20; sM = 26; sN = 27; sI = 31; sFo = 33
    a(f"s_lshl_b32 s{sM}, s{s2_TM}, 8"); a(f"s_lshl_b32 s{sT}, s{sWave}, 6"); a(f"s_add_u32 s{sM}, s{sM}, s{sT}")
    a(f"s_lshl_b32 s{sN}, s{s2_TN}, 7"); a(f"s_lshl_b32 s{sT}, s{s2_KQ}, 5"); a(f"s_add_u32 s{sN}, s{sN}, s{sT}")
    a(f"v_and_b32 v{vT}, 31, v{vL}"); a(f"v_add_u32 v{vT}, s{sM}, v{vT}")
    a(f"v_lshrrev_b32 v{vT+1}, 5, v{vL}")
    a(f"v_lshl_add_u32 v{vX}, v{vT+1}, 11, v{vT}"); a(f"v_lshlrev_b32 v{vX}, 4, v{vX}")
    a(f"s_mul_i32 s{sOX}, s{s2_KQ}, {112*32768}")
    a(f"v_lshlrev_b32 v{vH}, 3, v{vT}"); a(f"v_lshl_add_u32 v{vH}, v{vT+1}, 15, v{vH}")
    a(f"s_lshl_b32 s{sT}, s{sN}, 12"); a(f"v_add_u32 v{vH}, s{sT}, v{vH}")
    a(f"v_lshlrev_b32 v{vO}, 11, v{vT}"); a(f"v_lshl_add_u32 v{vO}, v{vT+1}, 4, v{vO}")
    a(f"s_lshl_b32 s{sT}, s{sN}, 1"); a(f"v_add_u32 v{vO}, s{sT}, v{vO}")
    a(f"v_bfe_u32 v{vT+3}, v{vL}, 2, 2"); a(f"v_lshl_add_u32 v{vT+4}, v{vT+1}, 3, v{vT+3}"); a(f"v_lshlrev_b32 v{vW}, 8, v{vT+4}")
    a(f"v_xor_b32 v{vT+3}, s{s2_KQ}, v{vT+3}"); a(f"v_lshl_add_u32 v{vW}, v{vT+3}, 6, v{vW}")
    a(f"v_bfe_u32 v{vT+3}, v{vL}, 4, 1"); a(f"v_lshl_add_u32 v{vW}, v{vT+3}, 5, v{vW}")
    a(f"v_and_b32 v{vT+3}, 1, v{vL}"); a(f"v_lshl_add_u32 v{vW}, v{vT+3}, 4, v{vW}")
    a(f"v_bfe_u32 v{vT+3}, v{vL}, 1, 1"); a(f"v_lshl_add_u32 v{vW}, v{vT+3}, 3, v{vW}")
    for t in range(1, 4): a(f"v_xor_b32 v{vW+t}, {64*t}, v{vW}")
    for b in range(1, 3):
        for t in range(4): a(f"v_add_u32 v{vW+4*b+t}, {65536*b}, v{vW+t}")
    a(f"v_lshlrev_b32 v{vI}, 4, v{vL}"); a(f"s_lshl_b32 s{sT}, s{sWave}, 12"); a(f"v_add_u32 v{vI}, s{sT}, v{vI}"); a(f"v_mov_b32 v{vM}, -2")
    srd(a, sO, pOUT, 2048*1024*2); srd(a, sIB, pWS, SZ_XCH, M_XCH)
    a(f"s_mul_i32 s{sI}, s2, {XWG}")
    for t in range(1, 4):
        a(f"s_xor_b32 s{27+t}, s2, {2*t}"); a(f"s_mul_i32 s{27+t}, s{27+t}, {XWG}"); a(f"s_add_u32 s{27+t}, s{27+t}, {XSL*(t-1)}")
    a(f"v_bfe_u32 v{vT+4}, v{vL}, 2, 1"); a(f"v_and_b32 v{vT+3}, 3, v{vL}"); a(f"v_lshl_add_u32 v{vT+4}, v{vT+3}, 6, v{vT+4}")
    a(f"s_lshl_b32 s{sT}, s{s2_TM}, 2"); a(f"s_add_u32 s{sT}, s{sT}, s{s2_KQ}"); a(f"s_lshl_b32 s{sT}, s{sT}, 1")
    a(f"v_add_u32 v{vT+4}, s{sT}, v{vT+4}")
    a(f"v_lshlrev_b32 v{vT+3}, 1, v{vT+3}"); a(f"v_xor_b32 v{vT+3}, s2, v{vT+3}")
    a(f"v_and_b32 v{vT+2}, 8, v{vL}"); a(f"v_cmp_eq_u32 vcc, 0, v{vT+2}"); a("s_nop 1")
    a(f"v_cndmask_b32 v{vFl}, v{vT+3}, v{vT+4}, vcc"); a(f"v_lshlrev_b32 v{vFl}, 6, v{vFl}")
    a(f"s_mov_b32 s{sFo}, {2*16384}")
    a("s_waitcnt vmcnt(0)")
    a("s_barrier")
    set_flag(g, 2, 22)
    g.stamp()
    def wread(st, f, t, step, j):
        off = ((step >> 2) % 10)*16384 + (step & 3)*4096 + j*1024
        return f"ds_read_b64_tr_b16 {ar(WF+st*16+f*4+j*2,2)}, v{vW + 4*(off >> 16) + t} offset:{off & 0xffff}"
    T0 = 56 - TAIL; TG = TAIL // 4
    sup = [[(t, s) for t in range(4)] for s in range(T0)]
    for t in (1, 2, 3, 0):
        for hf in range(TG): sup.append([(t, T0 + 4*hf + k) for k in range(4)])
    SEND = [T0 + TG*k for k in (1, 2, 3)]
    def need_of(n): return max(s for t, s in sup[min(n, 55)])
    def reads(n):
        return [wread(n & 1, f, t, s, j) for f, (t, s) in enumerate(sup[n]) for j in range(2)]
    for ins in reads(0): a(ins)
    for stg in range(PRE1, 10):
        for i in range(4):
            for ins in g2_dma(stg, i): a(ins)
    poll_flags(g, vFl, sFo, 22)
    g.stamp()
    vm = VM()
    def xload(x):
        return [f"buffer_load_dwordx4 {ar(XR+(x % NX)*8+j*4,4)}, v{vX}, {sr(sX,4)}, s{sOX} offen offset:{512*j} {SC}" for j in range(2)]
    xadv = f"s_add_u32 s{sOX}, s{sOX}, 65536"
    nx = 0
    for x in range(4):
        for ins in xload(x): a(ins); vm.add(f"X{x}")
        a(xadv); nx += 1
    dl = [(stg, i) for stg in range(10, 14) for i in range(4)]
    started = set()
    send = []
    for n, fr in enumerate(sup):
        need = max(s for t, s in fr)
        w = vm.wait_for(f"X{need}")
        if n == 39:
            assert not dl
            w = min(w, vm.wait_for("D"))
        a(f"s_waitcnt vmcnt({w}) lgkmcnt(0)")
        if n in (min(4*PRE1 - 1, 15), 15, 39): a("s_barrier")
        gaps = {k: [] for k in range(8)}; tags = {k: [] for k in range(8)}
        if n + 1 < len(sup):
            for k, ins in enumerate(reads(n + 1)): gaps[k // 2].append(ins)
        gi = 4
        for rep in range(2):
            if nx < 56 and nx <= max(need_of(k_) for k_ in range(n, n + LA + 1)) and gi <= 6:
                for j, ins in enumerate(xload(nx)): gaps[gi+j].append(ins); tags[gi+j].append(f"X{nx}")
                gaps[gi+1].append(xadv); nx += 1; gi += 2
        if n >= 15 and dl and gi <= 6:
            grp = g2_dma(*dl.pop(0))
            gaps[gi] += grp[:-1]; gaps[gi+1].append(grp[-1]); tags[gi+1].append("D")
        if n in (34, 35, 36, 37):
            for e in range(2):
                i = 2*(n-34) + e
                gj, gq = (i >> 2), (i >> 1) & 1
                gaps[6+e] += [f"s_mov_b32 s{sT}, {(4*gq + e)*16384}", f"buffer_load_dwordx2 {vr(HR+2*i,2)}, v{vH}, {sr(sH,4)}, s{sT} offen offset:{256*gj} {SC}"]
                tags[6+e].append("R")
        if n in SEND:
            t = sup[n-1][0][0]; b = acc(0, t)
            send = []
            for i in range(4):
                send += [f"v_cvt_pk_bf16_f32 v{b+4*i+e}, v{b+8*i+2*e}, v{b+8*i+2*e+1}" for e in range(4)]
                send += [f"v_min_u32 v{b+4*i+e}, v{b+4*i+e}, v{vM}" for e in range(4)]
                send += [f"buffer_store_dwordx4 {vr(b+4*i,4)}, v{vI}, {sr(sIB,4)}, s{27+t} offen offset:{1024*i} {SC}"]
        k = 0
        for f, (t, s) in enumerate(fr):
            for j in ((0, 1) if f % 2 == 0 else (1, 0)):
                c = vr(acc(j,t),16) if (j, t) in started else "0"
                started.add((j, t))
                a(f"v_mfma_f32_32x32x16_bf16 {vr(acc(j,t),16)}, {ar(WF+(n&1)*16+f*4,4)}, {ar(XR+(s % NX)*8+j*4,4)}, {c}")
                for ins in gaps[k]: a(ins)
                for tg in tags[k]: vm.add(tg)
                if send and not (n in SEND and k < 4):
                    for _ in range(4 if k >= 4 or n == 55 else 2):
                        if send:
                            ins = send.pop(0); a(ins)
                            if ins.startswith("buffer"): vm.add("S")
                k += 1
        if n - 1 in SEND: assert not send, len(send)
    assert nx == 56 and not dl
    g.stamp()
    P = acc(0, 1)
    a(f"s_add_u32 s28, s{sI}, {XSL}"); a(f"s_add_u32 s29, s{sI}, {2*XSL}")
    def ld_slot(sl):
        for i in range(4): a(f"buffer_load_dwordx4 {vr(IN+16*sl+4*i,4)}, v{vI}, {sr(sIB,4)}, s{(sI, 28, 29)[sl]} offen offset:{1024*i} {SC}")
    a(f"s_waitcnt vmcnt({vm.wait_for('R')})")
    for sl in range(3): ld_slot(sl)
    for k in range(16):
        a(f"v_lshlrev_b32 v{P+2*k}, 16, v{HR+k}"); a(f"v_and_b32 v{P+2*k+1}, 0xffff0000, v{HR+k}")
    a(f"s_mov_b32 s{sTO}, 0")
    Q = acc(0, 2); B = acc(0, 0)
    for sl in range(3):
        lp = a.label("xp"); dn = a.label("xd")
        a(f"s_waitcnt vmcnt({8-4*sl})")
        a(f"{lp}:")
        I = IN + 16*sl
        a(f"v_max3_u32 v21, v{I}, v{I+1}, v{I+2}"); a(f"v_max3_u32 v22, v{I+3}, v{I+4}, v{I+5}")
        for k in range(6, 16, 2): a(f"v_max3_u32 v{21 + ((k>>1)&1)}, v{21 + ((k>>1)&1)}, v{I+k}, v{I+k+1}")
        a(f"v_max_u32 v21, v21, v22")
        a(f"v_cmp_eq_u32 vcc, -1, v21")
        a(f"s_cbranch_vccz {dn}")
        a(f"s_sleep {XSLEEP}")
        ld_slot(sl)
        a(f"s_add_u32 s{sTO}, s{sTO}, 1"); a(f"s_cmp_lt_u32 s{sTO}, {TIMEOUT}")
        a("s_waitcnt vmcnt(0)")
        a(f"s_cbranch_scc1 {lp}")
        a(f"{dn}:")
        if sl == 2: break
        for k in range(16):
            a(f"v_lshlrev_b32 v{Q+2*k}, 16, v{I+k}"); a(f"v_and_b32 v{Q+2*k+1}, 0xffff0000, v{I+k}")
        for k in range(16): a(f"v_pk_add_f32 {vr(B+2*k,2)}, {vr(B+2*k,2)}, {vr(Q+2*k,2)}")
    g.stamp()
    a(f"s_mov_b32 s{sT}, 65536")
    for i in range(4):
        b = B + 8*i
        for e in range(4):
            a(f"v_lshlrev_b32 v{Q+2*e}, 16, v{IN+32+4*i+e}"); a(f"v_and_b32 v{Q+2*e+1}, 0xffff0000, v{IN+32+4*i+e}")
        for e in range(4): a(f"v_pk_add_f32 {vr(b+2*e,2)}, {vr(b+2*e,2)}, {vr(Q+2*e,2)}")
        for e in range(4): a(f"v_cvt_pk_bf16_f32 v{Q+e}, v{b+2*e}, v{b+2*e+1}")
        for e in range(4):
            a(f"v_lshlrev_b32 v{b+2*e}, 16, v{Q+e}"); a(f"v_and_b32 v{b+2*e+1}, 0xffff0000, v{Q+e}")
        for e in range(4): a(f"v_pk_add_f32 {vr(b+2*e,2)}, {vr(b+2*e,2)}, {vr(P+8*i+2*e,2)}")
        for e in range(4): a(f"v_cvt_pk_bf16_f32 v{HR+4*i+e}, v{b+2*e}, v{b+2*e+1}")
        so = f"s{sT}" if i >= 2 else "0"
        a(f"buffer_store_dwordx4 {vr(HR+4*i,4)}, v{vO}, {sr(sO,4)}, {so} offen offset:{32*(i&1)} {OF}")

def phase_gemm1(g, PRE1, XF=SC, LA=7, X0=3, TU=3, PU=(0,2,6), EXP='', WNT=''):
    a = g.a
    SLOT = SLOT1
    ACC = 32
    def acc(j, t): return ACC + (j*7 + t)*16
    XR = 0; WF = 64; CSF = 120
    vDMA = 1; vX = 8; vST = 9; vWc = 10; vWn = 11; vS = 12; vO = 28; vFl = 20; vC = 22; vF2 = 23
    sX = 44; sACT = 8; sST = 36; sCS = 40; sW2 = 12
    sOX = 20; sOX2 = 21; sBase = 23; sIt = 25; sA = 28; sB = 29; sNS = 30; sCSo = 32
    sOW = sG_OW; sM0 = sG_M0
    vm = VM()
    for i in range(4): vm.add("H")
    def pro_dma(stage, idxs):
        for i in idxs:
            if i in (0, 4): a(f"s_add_u32 m0, s{sM0}, {stage*SLOT + (4096 if i else 0)}"); a("s_nop 0")
            a(g1_dma(pDMA, i, WNT)); vm.add(f"D{stage}")
            if i == 6:
                for ins in g1_wadv("odd" if stage & 1 else "even"): a(ins)
    a(f"v_and_b32 v160, 31, v{vL}"); a(f"v_mov_b32 v161, 0x3f803f80")
    for t in range(7):
        a(f"v_cmp_eq_u32 vcc, {t}, v160"); a("s_nop 1")
        for e in range(4): a(f"v_cndmask_b32 v{96+4*t+e}, 0, v161, vcc")
    for i in range(7): a(f"v_mov_b32 v{vDMA+i}, v{pDMA+i}")
    for d, s_ in ((vX, pX), (vST, pST), (vWc, pWc), (vO, pO)): a(f"v_mov_b32 v{d}, v{s_}")
    a(f"v_add_u32 v{vWn}, {2*SLOT}, v{vWc}")
    srd(a, sACT, pWS, SZ_ACT, M_ACT); srd(a, sST, pWS, 2048*16, M_ST2); srd(a, sCS, pWS, 32*224*32, M_CS)
    srd(a, sW2, pWD, SZ_W)
    a(f"s_mul_i32 s16, s2, 28672")
    a(f"v_mov_b32 v27, v{pSR}")
    for e in range(4): a(f"v_accvgpr_write_b32 a{208+e}, -1")
    srd(a, 52, pWS, SZ_XCH, M_XCH)
    a(f"s_mul_i32 s51, s2, {XWG}"); a(f"s_add_u32 s54, s51, {XWG}")
    a(f"s_mul_i32 s{sCSo}, s{sG_TN}, {224*32}")
    a(f"v_lshrrev_b32 v163, 5, v{vL}")
    a(f"s_lshl_b32 s{sOX}, s{sG_TM}, 19"); a(f"s_add_u32 s{sOX2}, s{sOX}, 16384")
    a(f"s_mov_b32 s17, s{sOX}"); a(f"s_add_u32 s26, s{sOX}, {1 << 19}")
    a(f"s_mov_b32 s{sBase}, 0"); a(f"s_mov_b32 s{sIt}, 3"); a(f"s_mov_b32 s{sNS}, 3")
    a(f"s_lshr_b32 s{sT}, s{sWave}, 1"); a(f"s_mul_i32 s{sT}, s{sT}, {SLOT}")
    a(f"s_and_b32 s{sT+1}, s{sWave}, 1"); a(f"s_mul_i32 s{sT+1}, s{sT+1}, {2*3584}"); a(f"s_add_u32 s{sT}, s{sT}, s{sT+1}")
    a(f"v_add_u32 v164, s{sT}, v{vWc}")
    a(f"s_mul_i32 s{sT}, s{sWave}, 896"); a(f"s_add_u32 s{sT}, s{sT}, {PBASE}")
    a(f"v_lshlrev_b32 v165, 7, v160"); a(f"v_lshl_add_u32 v165, v163, 4, v165"); a(f"v_add_u32 v165, s{sT}, v165")
    def wread(st, t, j, reg, imm0):
        return f"ds_read_b64_tr_b16 {ar(WF+st*28+t*4+j*2,2)}, v{reg} offset:{imm0 + 4*j*224 + 32*t}"
    for st in range(2):
        for t in range(7):
            for j in range(2): a(wread(st, t, j, 164, st*3584))
    a(f"s_waitcnt vmcnt({vm.wait_for('H')})")
    a("s_barrier")
    set_flag(g, 1, 174)
    g.stamp()
    a("s_waitcnt lgkmcnt(0)")
    for st in range(2):
        for t in range(7):
            c = "0" if (st == 0 and t == 0) else "v[128:143]"
            a(f"v_mfma_f32_32x32x16_bf16 v[128:143], {ar(WF+st*28+t*4,4)}, {vr(96+4*t,4)}, {c}")
            pro_dma(2 + st, [t])
    for t in range(7):
        for j in range(2): a(wread(0, t, j, vWc, 0))
    a(f"v_cmp_gt_u32 vcc, 7, v160")
    a("s_and_saveexec_b64 s[56:57], vcc")
    for q in range(4): a(f"ds_write_b128 v165, {vr(128+4*q,4)} offset:{32*q}")
    a("s_mov_b64 exec, -1")
    a(f"s_mov_b32 s{sT+1}, 16384")
    a("s_waitcnt lgkmcnt(0)")
    g.stamp()
    poll_flags(g, 29, sT+1, 166)
    a("s_barrier")
    g.stamp()
    vm = VM()
    SD = 64
    def xload(slot, k):
        j, hf = k >> 1, k & 1
        return f"buffer_load_dwordx2 {ar(XR+slot*8+j*4+hf*2,2)}, v{vX}, {sr(sX,4)}, s{sOX2 if hf else sOX} offen offset:{256*j} {XF}"
    xadv = [f"s_add_u32 s{sOX}, s{sOX}, 65536", f"s_add_u32 s{sOX2}, s{sOX}, 16384"]
    def xadv_pair(own):
        return [f"s_mov_b32 s{sOX}, 0" if own else xadv[0], f"s_cmp_eq_u32 s{sOX}, s17", f"s_cselect_b32 s{sOX}, s26, s{sOX}", xadv[1]]
    RD = 148
    def pro_x(x):
        for k in range(4): a(xload(x, k)); vm.add(f"X{x}")
        for ins in xadv: a(ins)
    for x in range(X0): pro_x(x)
    nxt_x = [X0]
    a(f"v_lshlrev_b32 v168, 2, v0"); a(f"v_add_u32 v168, {PBASE}, v168")
    for w in range(4): a(f"ds_read_b32 v{170+w}, v168 offset:{896*w}")
    a(f"v_lshlrev_b32 v169, 5, v0")
    a(f"s_lshl_b32 s{sT}, s{sG_TM}, 2"); a(f"s_add_u32 s{sT}, s{sT}, s{sCSo}")
    a(f"v_cmp_gt_u32 vcc, 224, v0")
    a(f"v_and_b32 v29, 3, v{vL}"); a(f"v_lshlrev_b32 v29, 4, v29"); a(f"s_lshl_b32 s{sT+1}, s{sWave}, 6"); a(f"s_add_u32 s{sT+1}, s{sT+1}, {SBASE}")
    a(f"v_add_u32 v29, s{sT+1}, v29")
    a("s_waitcnt lgkmcnt(0)")
    a("v_add_f32 v170, v170, v171"); a("v_add_f32 v172, v172, v173"); a("v_add_f32 v170, v170, v172")
    a("v_cvt_pk_bf16_f32 v171, v170, v170"); a("v_lshlrev_b32 v171, 16, v171")
    a("v_sub_f32 v170, v170, v171")
    a("v_cvt_pk_bf16_f32 v170, v171, v170")
    a("s_and_saveexec_b64 s[56:57], vcc")
    a(f"buffer_store_dword v170, v169, {sr(sCS,4)}, s{sT} offen {SC}"); vm.add("C")
    a("s_mov_b64 exec, -1")
    g.stamp()
    accu = []
    for k in range(8):
        r0 = RD+4*(k>>1)+(k&1); r1 = r0+2
        accu += [f"v_accvgpr_read_b32 v16, a{r0}", f"v_accvgpr_read_b32 v17, a{r1}",
                 "v_lshlrev_b32 v18, 16, v16", "v_lshlrev_b32 v19, 16, v17", "v_and_b32 v16, 0xffff0000, v16", "v_and_b32 v17, 0xffff0000, v17"]
        if k == 0:
            accu += ["v_add_f32 v12, v18, v16", "v_add_f32 v13, v19, v17", "v_mul_f32 v14, v18, v18", "v_mul_f32 v15, v19, v19"]
        else:
            accu += ["v_add_f32 v12, v12, v18", "v_add_f32 v13, v13, v19", "v_fmac_f32 v14, v18, v18", "v_fmac_f32 v15, v19, v19",
                     "v_add_f32 v12, v12, v16", "v_add_f32 v13, v13, v17"]
        accu += ["v_fmac_f32 v14, v16, v16", "v_fmac_f32 v15, v17, v17"]
    n3 = (len(accu) + 3) // 4
    FILL = {0: accu[:n3], 1: accu[n3:2*n3], 2: accu[2*n3:3*n3], 3: accu[3*n3:],
            4: red4(12, 16) + ["ds_write_b128 v29, v[12:15]"],
            5: [f"ds_read_b128 {vr(16+4*w,4)}, v29 offset:{64*(w+1)}" for w in range(3)],
            6: [f"v_add_f32 v{12+e}, v{12+e}, v{16+e}" for e in range(4)] + [f"v_add_f32 v{20+e}, v{20+e}, v{24+e}" for e in range(4)]
               + [f"v_add_f32 v{12+e}, v{12+e}, v{20+e}" for e in range(4)] + stats_final(12, 16),
            7: [f"v_cmp_gt_u32 vcc, 4, v{vL}", f"v_and_b32 v29, 3, v{vL}", "v_lshlrev_b32 v29, 5, v29", f"v_bfe_u32 v21, v{vL}, 2, 1", "v_lshl_add_u32 v29, v21, 4, v29",
                "v_cndmask_b32 v16, v13, v12, vcc", "v_cndmask_b32 v17, v15, v14, vcc", "v_cmp_gt_u32 vcc, 8, v0",
                f"v_mov_b32 v18, s{sNON}", f"v_mov_b32 v19, s{sNON+1}", "v_mov_b32 v21, 0x7fff0000", "v_cndmask_b32 v29, v21, v29, vcc",
                f"s_lshl_b32 s{sT}, s{sG_R}, 4", f"buffer_store_dwordx4 v[16:19], v29, {sr(sST,4)}, s{sT} offen {SC}", "v_lshlrev_b32 v26, 4, v0"]}
    LFILL = [f"v_and_b32 v{vC}, 31, v{vL}", f"v_lshlrev_b32 v{vC}, 5, v{vC}", f"v_lshrrev_b32 v{vF2}, 5, v{vL}", f"v_lshl_add_u32 v{vC}, v{vF2}, 4, v{vC}",
             f"v_and_b32 v{vF2}, 7, v{vL}", f"v_lshlrev_b32 v{vF2}, 9, v{vF2}",
             f"s_and_b32 s{sT}, s2, 0xc7", f"s_lshl_b32 s{sT}, s{sT}, 6", f"s_add_u32 s{sT}, s{sT}, {3*16384}", f"v_add_u32 v{vF2}, s{sT}, v{vF2}"]
    def ld_flags_stats():
        return [f"buffer_load_dwordx2 {vr(vFl,2)}, v{vF2}, {sr(sFLG,4)}, 0 offen {SC}",
                f"buffer_load_dwordx4 {vr(vS,4)}, v{vST}, {sr(sST,4)}, 0 offen {SC}",
                f"buffer_load_dwordx4 {vr(vS+4,4)}, v{vST}, {sr(sST,4)}, 0 offen offset:512 {SC}"]
    def ld_cs(t):
        if t < 4: return f"buffer_load_dwordx4 {ar(CSF+4*t,4)}, v{vC}, {sr(sCS,4)}, s{sCSo} offen offset:{1024*t} {SC}"
        return f"buffer_load_dwordx4 {ar(CSF+4*t,4)}, v{vC}, {sr(sCS,4)}, s{sNS} offen offset:{1024*(t-4)} {SC}"
    DM = {3: [0, 1], 0: [2, 3], 1: [4, 5], 2: [6]}
    def body(kind, base_step):
        first = kind == "first"; last = kind == "last"; second = kind == "second"; mid = kind == "mid"
        for u in range(8):
            s = u % 4; st = u & 1
            w = vm.wait_for(f'X{base_step+u}')
            if second and u == 0: w = min(w, vm.wait_for("R"))
            if last and u == 2: w = min(w, vm.wait_for("S"))
            a(f"s_waitcnt vmcnt({w}) lgkmcnt(0)")
            if (s == 3 and not (last and u == 7)) or (second and u == 5): a("s_barrier")
            if first and u == 7: set_flag(g, 3, 22)
            gaps = {k: [] for k in range(14)}
            tags = {k: [] for k in range(14)}
            nu = (u + 1) % 8
            reg = vWn if u == 7 else vWc
            imm0 = (nu // 4) * SLOT + (nu % 4) * 16 * 224
            k = 0
            if not (last and u == 7):
                for t in range(7):
                    for j in range(2):
                        gaps[k // 2].append(wread(1 - st, t, j, reg, imm0)); k += 1
            xl = []
            while nxt_x[0] <= base_step + u + LA and len(xl) < 2 and not (last and nxt_x[0] >= base_step + 8):
                xl.append(nxt_x[0]); nxt_x[0] += 1
            g0 = 6 if len(xl) == 1 else 2
            for x in xl:
                for k in range(4):
                    gaps[g0+k].append(xload(x % 8, k)); tags[g0+k].append(f"X{x}")
                gaps[g0+3] += xadv_pair(x == 7) if x % 8 == 7 else xadv
                g0 += 4
            gi = 11
            if not last:
                for i in ([] if first and u < 3 else DM[s]):
                    if i in (0, 4):
                        e = 4096 if i else 0
                        if u in (3, 4, 5, 6): ins = f"s_add_u32 m0, s{sA}, {e}"
                        elif u == 7: ins = f"s_add_u32 m0, s{sA}, {SLOT + e}"
                        else: ins = f"s_add_u32 m0, s{sB}, {SLOT + e}"
                        gaps[gi-2].append(ins)
                    gaps[gi].append(g1_dma(vDMA, i, WNT)); tags[gi].append("D")
                    if i == 6:
                        gaps[gi+1] += g1_wadv("odd" if u == 2 else "even")
                    gi += 1
                if u == 0:
                    gaps[0].insert(0, f"s_add_u32 s{sA}, s{sM0}, s{sBase}")
                    gaps[1].insert(0, f"s_sub_u32 s{sBase}, {2*SLOT}, s{sBase}")
                    gaps[2].insert(0, f"s_add_u32 s{sB}, s{sM0}, s{sBase}")
                if mid and u in PU:
                    gaps[13] += [f"buffer_store_dwordx4 a[208:211], v26, s[52:55], s51 offen {SC}", f"s_add_u32 s51, s51, 4096"]; tags[13].append("P")
                if first and u in (2, 3, 4, 5):
                    gaps[13] += [f"buffer_load_dwordx4 {ar(RD+4*(u-2),4)}, v27, {sr(sX,4)}, s{sG_SR} offen {SC}", f"s_add_u32 s{sG_SR}, s{sG_SR}, {16*16384}"]; tags[13].append("R")
                if u == 7:
                    gaps[8].append(f"v_swap_b32 v{vWc}, v{vWn}")
                    if mid:
                        gaps[13].append(f"s_add_u32 s{sIt}, s{sIt}, 1"); gaps[13].append(f"s_cmp_lt_u32 s{sIt}, 8")
            else:
                if u == 0:
                    for n, ins in enumerate(LFILL): gaps[n].append(ins)
                    for n, ins in enumerate(ld_flags_stats()): gaps[11+n].append(ins); tags[11+n].append("S")
                if u == 1: gaps[8].append(f"s_add_u32 s{sNS}, s{sCSo}, 4096")
                if u == 2:
                    for t in range(7): gaps[7+t].append(ld_cs(t)); tags[7+t].append('CS')
                if u == TU:
                    for t in range(7):
                        gaps[7+t] += [f"buffer_load_dwordx4 a[200:203], v26, {sr(sW2,4)}, s16 offen", f"s_add_u32 s16, s16, 4096"]; tags[7+t].append("T")
                if u == 6:
                    pre = g2_dma_addr(sM0)
                    for n, ins in enumerate(pre): gaps[7 + n*7//len(pre)].append(ins)
                if u == 7:
                    gaps[0].append("s_barrier")
            if second and u in FILL:
                fl = FILL[u]
                for n, ins in enumerate(fl): gaps[n*14//len(fl) if len(fl) > 7 else 7+n].append(ins)
            k = 0
            for t in range(7):
                for j in range(2):
                    c = "0" if (first and u == 0) else vr(acc(j,t),16)
                    a(f"v_mfma_f32_32x32x16_bf16 {vr(acc(j,t),16)}, {ar(WF+st*28+t*4,4)}, {ar(XR+u*8+j*4,4)}, {c}")
                    for ins in gaps[k]:
                        if mid and 'x' in EXP and ins.startswith("buffer_load_dwordx2 a"): continue
                        if mid and 'd' in EXP and ins.endswith("lds"): continue
                        if mid and 'l' in EXP and ins.startswith("ds_read") : continue
                        if mid and 'h' in EXP and ins.startswith("ds_read") and k % 2: continue
                        a(ins)
                    for tg in tags[k]: vm.add(tg)
                    k += 1
    body("first", 0)
    g.stamp()
    body("second", 8)
    loop = a.label("g1loop")
    a(f"{loop}:")
    if g.dbg:
        a("s_memrealtime s[98:99]"); a("s_memtime s[100:101]"); a(f"s_add_u32 s97, s{sIt}, {g.nst-3}"); a("s_waitcnt lgkmcnt(0)")
        a("s_mov_b32 s99, m0"); a("s_mov_b32 m0, s97"); a("s_nop 1")
        a(f"v_writelane_b32 v{vSTAMP}, s98, m0"); a("s_add_u32 m0, m0, 32"); a("s_nop 1"); a(f"v_writelane_b32 v{vSTAMP}, s100, m0"); a("s_mov_b32 m0, s99")
        g.nst += 5
    body("mid", 16)
    a(f"s_cbranch_scc1 {loop}")
    g.stamp()
    body("last", 24)
    g.stamp()
    poll = a.label("sp"); ok = a.label("sok")
    a(f"s_mov_b32 s{sTO}, 0")
    a(f"{poll}:")
    a(f"v_cmp_ne_u64 vcc, {sr(sNON,2)}, {vr(vS+2,2)}")
    a(f"v_cmp_ne_u64 {sr(sT,2)}, {sr(sNON,2)}, {vr(vS+6,2)}")
    a(f"s_or_b64 vcc, vcc, {sr(sT,2)}")
    a(f"v_cmp_ne_u64 {sr(sT,2)}, {sr(sNON,2)}, {vr(vFl,2)}")
    a(f"s_or_b64 vcc, vcc, {sr(sT,2)}")
    a(f"s_cbranch_vccz {ok}")
    for ins in ld_flags_stats(): a(ins)
    a("s_waitcnt vmcnt(0)")
    for t in range(7): a(ld_cs(t))
    a("s_waitcnt vmcnt(0)")
    a(f"s_add_u32 s{sTO}, s{sTO}, 1"); a(f"s_cmp_lt_u32 s{sTO}, {TIMEOUT}"); a(f"s_cbranch_scc1 {poll}")
    a(f"{ok}:")
    for j in range(2):
        b = 20 + 4*j
        a(f"v_xor_b32 v{b+1}, 0x80000000, v{vS+4*j}")
        a(f"v_lshrrev_b32 v{b}, 16, v{b+1}")
        a(f"v_or_b32 v{b}, v{b}, v{b+1}")
        for e in range(1, 4): a(f"v_mov_b32 v{b+e}, v{b}")
    a(f"s_waitcnt vmcnt({7 if TU < 8 else 0})")
    a("s_nop 0")
    K0 = -2.0 * 0.7978845608028654 * LOG2E
    K1 = K0 * 0.044715
    C = {0: 2, 1: 6}
    cst = []
    for j in range(2):
        s_ = vS + 4*j + 1; c = C[j]
        cst += [f"v_mul_f32 v{c}, {f32(K0)}, v{s_}", f"v_mul_f32 v{c+2}, v{s_}, v{s_}", f"v_mul_f32 v{c+1}, v{c+2}, v{s_}",
                f"v_mul_f32 v{c+1}, {f32(K1)}, v{c+1}", f"v_rcp_f32 v{c+2}, v{c+2}"]
    for j in range(2):
        for t in range(7):
            a(f"v_mfma_f32_32x32x16_bf16 {vr(acc(j,t),16)}, {ar(CSF+t*4,4)}, {vr(20+4*j,4)}, {vr(acc(j,t),16)}")
            if cst: a(cst.pop(0))
    w2 = [g2_dma(stg, i) for stg in range(PRE1) for i in range(4)]
    def W2():
        if w2:
            for ins in w2.pop(0): a(ins)
    T = 12
    for j in range(2):
        c = C[j]
        for t in range(7):
            b = acc(j, t)
            prs = [(b, b+4), (b+2, b+6), (b+8, b+12), (b+10, b+14)]
            for i, (gt, u_) in enumerate(prs): a(f"v_pk_mul_f32 {vr(T+2*i,2)}, {vr(gt,2)}, {vr(gt,2)}")
            for i, (gt, u_) in enumerate(prs): a(f"v_pk_fma_f32 {vr(T+2*i,2)}, {vr(T+2*i,2)}, {vr(c,2)}, {vr(c,2)} op_sel:[0,1,0] op_sel_hi:[1,1,0]")
            for i, (gt, u_) in enumerate(prs): a(f"v_pk_mul_f32 {vr(T+2*i,2)}, {vr(T+2*i,2)}, {vr(gt,2)}")
            W2()
            for i in range(8): a(f"v_exp_f32 v{T+i}, v{T+i}")
            for i, (gt, u_) in enumerate(prs): a(f"v_pk_mul_f32 {vr(u_,2)}, {vr(u_,2)}, {vr(gt,2)}")
            for i, (gt, u_) in enumerate(prs): a(f"v_pk_fma_f32 {vr(T+2*i,2)}, {vr(T+2*i,2)}, {vr(c+2,2)}, {vr(c+2,2)} op_sel_hi:[1,0,0]")
            W2()
            for i in range(8): a(f"v_rcp_f32 v{T+i}, v{T+i}")
            a(f"s_mov_b32 s{sT}, {t*65536}")
            for i, (gt, u_) in enumerate(prs): a(f"v_pk_mul_f32 {vr(u_,2)}, {vr(u_,2)}, {vr(T+2*i,2)}")
            for i, (gt, u_) in enumerate(prs): a(f"v_cvt_pk_bf16_f32 v{b+i}, v{u_}, v{u_+1}")
            a(f"buffer_store_dwordx4 {vr(b,4)}, v{vO}, {sr(sACT,4)}, s{sT} offen offset:{512*j} {SC}")
    assert not w2
    g.stamp()

def gen_mega(dbg=False, as_list=False, p01={}, g1={}, g2={}, PRE1=6):
    g = G(dbg); a = g.a
    end = a.label("end")
    a(f"s_cmp_ge_u32 s2, 256"); a(f"s_cbranch_scc1 {end}")
    phase01(g, **p01); phase_gemm1(g, PRE1, **g1); phase_gemm2(g, PRE1, **g2)
    if dbg:
        g.stamp()
        a("s_waitcnt vmcnt(0)")
        g.stamp()
        srd(a, 4, pWS, 1 << 19, M_DBG)
        a(f"v_lshlrev_b32 v1, 2, v{vL}")
        a(f"s_lshl_b32 s{sT}, s2, 2"); a(f"s_add_u32 s{sT}, s{sT}, s{sWave}"); a(f"s_lshl_b32 s{sT}, s{sT}, 8")
        a(f"buffer_store_dword v{vSTAMP}, v1, s[4:7], s{sT} offen")
    a(f"{end}:")
    a("s_endpgm")
    k = f"kernel={NAME} " if as_list else ""
    launch = f"; @launch {k}grid=(256,1,1) block=(256,1,1) lds=163840\n"
    body = a.text()
    import subprocess, tempfile, os
    with tempfile.TemporaryDirectory() as td:
        open(td + "/x.s", "w").write('.amdgcn_target "amdgcn-amd-amdhsa--gfx950"\n.text\n' + body.replace("CODE_BYTES", "0x1234"))
        subprocess.run(["clang", "-x", "assembler", "-target", "amdgcn-amd-amdhsa", "-mcpu=gfx950", "-c", td + "/x.s", "-o", td + "/x.o"], check=True)
        subprocess.run(["llvm-objcopy", "-O", "binary", "-j", ".text", td + "/x.o", td + "/x.bin"], check=True)
        n = os.path.getsize(td + "/x.bin")
    assert n < 65536
    body = body.replace("CODE_BYTES", str((n - 768) & ~63))
    return launch, kernel_header(NAME) + body, kernel_desc(NAME, 512, 256)

if __name__ == "__main__":
    from mk import *
    mk([gen_mega(dbg=True, as_list=True)], 'mega_dbg.s')
    assemble([gen_mega()], 'm1.s')
    assemble([gen_mega(g1=dict(TU=9))], 'm2.s')
    assemble([gen_mega(p01=dict(DSTART=7, DPOST=0))], 'm3.s')
    assemble([gen_mega(g2=dict(OF='sc1'))], 'm4.s')
    assemble([gen_mega(g2=dict(OF='nt'))], 'm5.s')
```

```python
from common import *
LOG2E = 1.4426950408889634
NAME = "sequential_preLN__ssm_conv_s4d__geglu_ffn__prompt_kernel"

M_H4  = 0x0000000
M_ACT = 0x0400000
M_ST2 = 0x1200000
M_FLG = 0x1210000
M_CS  = 0x1220000
M_DBG = 0x1280000
M_U2  = 0x1300000
M_END = 0x1b00000

pU, pLOGA, pAIM, pCRE, pCIM, pLOGDT, pDSKIP, pBX, pWG, pWU, pWD, pOUT, pDBG, pWS = [64 + 2*i for i in range(14)]
sNON = 92; sWave = 94; sCG = 95; sTO = 96
sFLG = 60
sT = 48
vL = 30; vSTAMP = 31
SC = "sc0 sc1"

SLOT1 = 28800; UPOFF = 14464
UCS = 4512; UCH = 4*UCS; UPAD = 400
KCS = 4224; KCH = 8448; KPAD = 112
UBASE = 2*SLOT1
KBASE = UBASE + 4*UCH
SBASE = KBASE + 4*KCH
PBASE = 4*SLOT1
RS = 528; TOFF = 24*RS + 16
NBASE = SBASE + 240
assert SBASE + 256 <= 163840

class G:
    def __init__(self, dbg):
        self.a = Asm("mk"); self.dbg = dbg; self.nst = 0
    def stamp(self):
        if not self.dbg: return
        a = self.a
        a("s_memrealtime s[98:99]"); a("s_memtime s[100:101]"); a("s_waitcnt lgkmcnt(0)")
        a(f"v_writelane_b32 v{vSTAMP}, s98, {self.nst}"); a(f"v_writelane_b32 v{vSTAMP}, s100, {32+self.nst}")
        self.nst += 1

def cmul(a, d, x, y, conj_out=False):
    n1 = " neg_hi:[0,1]" if conj_out else ""
    n2 = " neg_hi:[0,1,0]" if conj_out else ""
    a(f"v_pk_mul_f32 {vr(d,2)}, {vr(x,2)}, {vr(y,2)} op_sel_hi:[0,1]{n1}")
    a(f"v_pk_fma_f32 {vr(d,2)}, {vr(x,2)}, {vr(y,2)}, {vr(d,2)} op_sel:[1,1,0] op_sel_hi:[1,0,1] neg_lo:[0,1,0]{n2}")

def red4(v, t):
    o = []
    for d in (4, 8):
        o += [f"v_add_f32_dpp v{v+e}, v{v+e}, v{v+e} row_ror:{d} row_mask:0xf bank_mask:0xf" for e in range(4)]
    for op in ("v_permlane16_swap_b32", "v_permlane32_swap_b32"):
        o += [f"v_mov_b32 v{t+e}, v{v+e}" for e in range(4)]
        o += [f"{op} v{t+e}, v{v+e}" for e in range(4)]
        o += [f"v_add_f32 v{v+e}, v{v+e}, v{t+e}" for e in range(4)]
    return o

def stats_final(W, t):
    o = [f"v_mul_f32 v{W+e}, {f32(1/1024)}, v{W+e}" for e in range(4)]
    o += [f"v_fma_f32 v{W+2+e}, -v{W+e}, v{W+e}, v{W+2+e}" for e in range(2)]
    o += [f"v_max_f32 v{W+2+e}, 0, v{W+2+e}" for e in range(2)]
    def rnd(b): return [f"v_cvt_pk_bf16_f32 v{t}, v{b}, v{b+1}", f"v_lshlrev_b32 v{b}, 16, v{t}", f"v_and_b32 v{b+1}, 0xffff0000, v{t}"]
    o += rnd(W+2)
    o += [f"v_add_f32 v{W+2+e}, {f32(1e-5)}, v{W+2+e}" for e in range(2)]
    o += rnd(W+2)
    o += [f"v_sqrt_f32 v{W+2+e}, v{W+2+e}" for e in range(2)]
    o += rnd(W)
    o += rnd(W+2)
    o += [f"v_rcp_f32 v{W+2+e}, v{W+2+e}" for e in range(2)]
    o += ["s_nop 0"]
    return o

def ln_stats8(a, pairs, T, W):
    for k, (r0, r1) in enumerate(pairs):
        a(f"v_lshlrev_b32 v{T+4*k}, 16, v{r0}"); a(f"v_lshlrev_b32 v{T+4*k+1}, 16, v{r1}")
        a(f"v_and_b32 v{T+4*k+2}, 0xffff0000, v{r0}"); a(f"v_and_b32 v{T+4*k+3}, 0xffff0000, v{r1}")
    a(f"v_pk_add_f32 {vr(W,2)}, {vr(T,2)}, {vr(T+4,2)}"); a(f"v_pk_mul_f32 {vr(W+2,2)}, {vr(T,2)}, {vr(T,2)}")
    a(f"v_pk_add_f32 {vr(W+4,2)}, {vr(T+2,2)}, {vr(T+6,2)}"); a(f"v_pk_mul_f32 {vr(W+6,2)}, {vr(T+2,2)}, {vr(T+2,2)}")
    for k in range(2, 16):
        b = W + 4*(k & 1)
        if k >= 4: a(f"v_pk_add_f32 {vr(b,2)}, {vr(b,2)}, {vr(T+2*k,2)}")
        a(f"v_pk_fma_f32 {vr(b+2,2)}, {vr(T+2*k,2)}, {vr(T+2*k,2)}, {vr(b+2,2)}")
    a(f"v_pk_add_f32 {vr(W,2)}, {vr(W,2)}, {vr(W+4,2)}"); a(f"v_pk_add_f32 {vr(W+2,2)}, {vr(W+2,2)}, {vr(W+6,2)}")
    a(f"v_and_b32 v{W+24}, 3, v{vL}"); a(f"v_lshlrev_b32 v{W+24}, 4, v{W+24}"); a(f"v_add_u32 v{W+24}, {SBASE}, v{W+24}")
    a(f"s_lshl_b32 s{sT}, s{sWave}, 6"); a(f"v_add_u32 v{W+25}, s{sT}, v{W+24}")
    for ins in red4(W, W+4): a(ins)
    a(f"ds_write_b128 v{W+25}, {vr(W,4)}")
    a("s_waitcnt lgkmcnt(0)"); a("s_barrier")
    E = W + 8
    for w in range(4): a(f"ds_read_b128 {vr(E+4*w,4)}, v{W+24} offset:{64*w}")
    a("s_waitcnt lgkmcnt(0)")
    a(f"v_pk_add_f32 {vr(W,2)}, {vr(E,2)}, {vr(E+4,2)}"); a(f"v_pk_add_f32 {vr(W+4,2)}, {vr(E+8,2)}, {vr(E+12,2)}")
    a(f"v_pk_add_f32 {vr(W+2,2)}, {vr(E+2,2)}, {vr(E+6,2)}"); a(f"v_pk_add_f32 {vr(W+6,2)}, {vr(E+10,2)}, {vr(E+14,2)}")
    a(f"v_pk_add_f32 {vr(W,2)}, {vr(W,2)}, {vr(W+4,2)}"); a(f"v_pk_add_f32 {vr(W+2,2)}, {vr(W+2,2)}, {vr(W+6,2)}")
    for ins in stats_final(W, W+4): a(ins)

TIMEOUT = 400000
def set_flag(g, which, tmp):
    a = g.a
    sk = a.label("fl")
    a(f"s_cmp_lg_u32 s{sWave}, 0"); a(f"s_cbranch_scc1 {sk}")
    a(f"s_lshl_b32 s{sT}, s2, 6"); a(f"s_add_u32 s{sT}, s{sT}, {which*16384}")
    a(f"v_mov_b32 v{tmp}, s{sNON}"); a(f"v_mov_b32 v{tmp+1}, s{sNON+1}"); a(f"v_mov_b32 v{tmp+2}, 0")
    a("s_mov_b64 exec, 1")
    a(f"buffer_store_dwordx2 {vr(tmp,2)}, v{tmp+2}, {sr(sFLG,4)}, s{sT} offen {SC}")
    a("s_mov_b64 exec, -1")
    a(f"{sk}:")

def poll_flags(g, voff, soff, tmp, preloaded=False):
    a = g.a
    lp = a.label("poll"); dn = a.label("pdone"); pre = a.label("ppre")
    a(f"s_mov_b32 s{sTO}, 0")
    if preloaded: a(f"s_branch {pre}")
    a(f"{lp}:")
    a(f"buffer_load_dwordx2 {vr(tmp,2)}, v{voff}, {sr(sFLG,4)}, s{soff} offen {SC}")
    if preloaded: a(f"{pre}:")
    a("s_waitcnt vmcnt(0)")
    a(f"v_cmp_ne_u64 vcc, {sr(sNON,2)}, {vr(tmp,2)}")
    a(f"s_cbranch_vccz {dn}")
    a("s_mov_b64 exec, vcc")
    a(f"s_add_u32 s{sTO}, s{sTO}, 1"); a(f"s_cmp_lt_u32 s{sTO}, {TIMEOUT}"); a(f"s_cbranch_scc1 {lp}")
    a(f"{dn}:")
    a("s_mov_b64 exec, -1")

class VM:
    def __init__(self): self.ops = []
    def add(self, tag): self.ops.append(tag)
    def wait_for(self, tag):
        idx = max(i for i, t in enumerate(self.ops) if t == tag)
        n = len(self.ops) - 1 - idx
        assert n <= 63, n
        return n


pDMA = 224
pX = 231; pST = 232; pWc = 233; pO = 234; pSR = 235; pTch = 236
sG_W = 4
sG_OW = 22; sG_M0 = 24; sG_F = 27; sG_R = 31; sG_SR = 35; sG_TN = 34; sG_TM = 33

def g1_dma(reg, i, fl=""):
    return f"buffer_load_dwordx4 v{reg+i}, {sr(sG_W,4)}, s{sG_OW} offen offset:{(i & 3)*1024} {fl} lds"
sG_OWN = 19; sG_OWN2 = 18
def g1_wadv(kind):
    if kind == "even": return [f"s_add_u32 s{sG_OW}, s{sG_OW}, {64*7168}"]
    first = f"s_mov_b32 s{sG_OW}, 0" if kind == "own" else f"s_add_u32 s{sG_OW}, s{sG_OW}, {64*7168}"
    return [first, f"s_cmp_eq_u32 s{sG_OW}, s{sG_OWN}", f"s_cselect_b32 s{sG_OW}, s{sG_OWN2}, s{sG_OW}"]

def gemm1_addr(g, part):
    a = g.a if part == 0 else (lambda x: None)
    t0 = 240; sM = 26
    a(f"s_and_b32 s{sT}, s2, 7")
    a(f"s_bfe_u32 s{sG_TM}, s2, 0x30003")
    a(f"s_lshl_b32 s{sG_TN}, s{sT}, 2"); a(f"s_lshr_b32 s{sT+2}, s2, 6"); a(f"s_add_u32 s{sG_TN}, s{sG_TN}, s{sT+2}")
    a(f"s_lshl_b32 s{sM}, s{sG_TM}, 8")
    a(f"s_lshl_b32 s{sG_R}, s{sG_TN}, 3"); a(f"s_add_u32 s{sG_R}, s{sG_R}, s{sM}")
    a(f"s_mul_i32 s{sG_F}, s{sG_TN}, 112")
    a(f"s_cmp_ge_u32 s{sWave}, 2")
    a(f"s_cselect_b32 s{sG_W}, s{pWU}, s{pWG}"); a(f"s_cselect_b32 s{sG_W+1}, s{pWU+1}, s{pWG+1}")
    a(f"s_mov_b32 s{sG_W+2}, {SZ_W}"); a(f"s_mov_b32 s{sG_W+3}, 0x20000")
    a(f"s_and_b32 s{sT}, s{sWave}, 1"); a(f"s_mul_i32 s{sT+1}, s{sT}, 448"); a(f"s_lshl_b32 s{sT+2}, s{sG_F}, 1")
    for i in range(7):
        imm = (i & 3) * 1024
        a(f"v_add_u32 v{t0}, s{sT+1}, v{vL}")
        if i: a(f"v_add_u32 v{t0}, {64*i}, v{t0}")
        a(f"v_mul_u32_u24 v{t0+1}, 4682, v{t0}"); a(f"v_lshrrev_b32 v{t0+1}, 16, v{t0+1}")
        a(f"v_mul_u32_u24 v{t0+1}, {7168-224}, v{t0+1}")
        a(f"v_lshl_add_u32 v{t0+1}, v{t0}, 4, v{t0+1}")
        a(f"v_add_u32 v{pDMA+i}, s{sT+2}, v{t0+1}")
        if imm: a(f"v_subrev_u32 v{pDMA+i}, {imm}, v{pDMA+i}")
    a(f"v_and_b32 v{t0+3}, 3, v{vL}")
    a(f"s_mul_i32 s{sG_M0}, s{sT}, 7168"); a(f"s_lshr_b32 s{sT}, s{sWave}, 1"); a(f"s_mul_i32 s{sT}, s{sT}, {UPOFF}")
    a(f"s_add_u32 s{sG_M0}, s{sG_M0}, s{sT}")
    a(f"s_mul_i32 s{sG_OW}, s{sG_TM}, {128*7168}")
    a(f"s_mov_b32 s{sG_OWN}, s{sG_OW}"); a(f"s_add_u32 s{sG_OWN2}, s{sG_OW}, {128*7168}")
    a = g.a if part == 1 else (lambda x: None)
    a(f"s_lshl_b32 s{sT}, s{sWave}, 6"); a(f"s_add_u32 s{sM}, s{sM}, s{sT}")
    a(f"v_and_b32 v{t0}, 31, v{vL}"); a(f"v_add_u32 v{t0}, s{sM}, v{t0}")
    a(f"v_lshlrev_b32 v{pST}, 4, v{t0}")
    a(f"v_lshrrev_b32 v{t0+1}, 5, v{vL}")
    a(f"v_lshlrev_b32 v{pX}, 3, v{t0}"); a(f"v_lshl_add_u32 v{pX}, v{t0+1}, 15, v{pX}")
    a(f"v_lshl_add_u32 v{pO}, v{t0+1}, 15, v{pST}"); a(f"s_lshl_b32 s{sT}, s{sG_F}, 12"); a(f"v_add_u32 v{pO}, s{sT}, v{pO}")
    a(f"v_bfe_u32 v{t0+2}, v{vL}, 2, 2"); a(f"v_lshl_add_u32 v{t0+2}, v{t0+1}, 3, v{t0+2}")
    a(f"v_mul_u32_u24 v{pWc}, 224, v{t0+2}")
    a(f"v_bfe_u32 v{t0+2}, v{vL}, 1, 1"); a(f"v_mul_u32_u24 v{t0+2}, {UPOFF}, v{t0+2}"); a(f"v_add_u32 v{pWc}, v{pWc}, v{t0+2}")
    a(f"v_and_b32 v{t0+2}, 1, v{vL}"); a(f"v_lshl_add_u32 v{pWc}, v{t0+2}, 4, v{pWc}")
    a(f"v_bfe_u32 v{t0+2}, v{vL}, 4, 1"); a(f"v_lshl_add_u32 v{pWc}, v{t0+2}, 3, v{pWc}")
    a(f"v_lshrrev_b32 v{pSR}, 2, v{vL}"); a(f"v_lshlrev_b32 v{pSR}, 14, v{pSR}"); a(f"v_lshl_add_u32 v{pSR}, v{t0+3}, 4, v{pSR}")
    a(f"s_lshl_b32 s{sG_SR}, s{sWave}, 20"); a(f"s_lshl_b32 s{sT}, s{sG_R}, 3"); a(f"s_add_u32 s{sG_SR}, s{sG_SR}, s{sT}")

def phase01(g, ORDER="LSM", KMID=0, DPOST=7, XNT="nt", TOUCH=False, DNT="", DSP=18, CPF=True, DSTART=0):
    a = g.a
    vm = VM()
    a("s_load_dwordx16 s[64:79], s[0:1], 0")
    a("s_load_dwordx8 s[80:87], s[0:1], 64")
    a("s_load_dwordx4 s[88:91], s[0:1], 96")
    a(f"s_memrealtime {sr(sT+2,2)}")
    a(f"v_lshrrev_b32 v2, 6, v0")
    a(f"v_and_b32 v{vL}, 63, v0")
    a(f"v_readfirstlane_b32 s{sWave}, v2")
    a(f"s_and_b32 s{sT}, s2, 7"); a(f"s_lshl_b32 s{sT}, s{sT}, 5")
    a(f"s_lshr_b32 s{sCG}, s2, 3"); a(f"s_add_u32 s{sCG}, s{sCG}, s{sT}")
    if g.dbg: a(f"v_mov_b32 v{vSTAMP}, 0")
    a(f"v_and_b32 v3, 3, v{vL}"); a(f"v_lshrrev_b32 v4, 2, v{vL}")
    a(f"v_lshlrev_b32 v5, 12, v3"); a(f"v_lshl_add_u32 v5, v4, 4, v5")
    a(f"s_lshl_b32 s{sT}, s2, 14"); a(f"s_lshl_b32 s{sT+1}, s{sWave}, 9"); a(f"s_add_u32 s{sT}, s{sT}, s{sT+1}")
    a(f"v_mov_b32 v1, 0")
    sD = 97
    a(f"s_lshl_b32 s{sD}, s{sCG}, 2"); a(f"s_add_u32 s{sD}, s{sD}, s{sWave}")
    a(f"s_lshl_b32 s{sT+4}, s{sD}, 8"); a(f"v_lshlrev_b32 v2, 2, v{vL}")
    a(f"s_lshl_b32 s{sT+5}, s{sD}, 1")
    vF = 29; vR = 8
    a(f"v_lshlrev_b32 v{vF}, 6, v0"); a(f"v_lshlrev_b32 v{vR}, 4, v0")
    a("s_waitcnt lgkmcnt(0)")
    g.stamp()
    sX = 36; sDB = 8; sU2 = 40; sH = 44; sP = 12
    srd(a, sDB, pDBG, 256)
    nn = a.label("nn")
    a(f"s_or_b32 s{sT+1}, s2, s{sWave}"); a(f"s_cmp_lg_u32 s{sT+1}, 0"); a(f"s_cbranch_scc1 {nn}")
    a(f"s_or_b32 s{sT+2}, s{sT+2}, 1")
    a(f"v_mov_b32 v6, s{sT+2}"); a(f"v_mov_b32 v7, s{sT+3}")
    a("s_mov_b64 exec, 0xf")
    a(f"buffer_store_dwordx2 v[6:7], v{vF}, {sr(sDB,4)}, 0 offen {SC}")
    a("s_mov_b64 exec, -1")
    a(f"{nn}:")
    PR = 24; XD = 32
    def ld_params():
        for i, p in enumerate((pLOGA, pAIM, pCRE, pCIM)):
            srd(a, sP+4*i, p, 1024*256)
            a(f"buffer_load_dword v{PR+i}, v2, {sr(sP+4*i,4)}, s{sT+4} offen"); vm.add("P")
        srd(a, 28, pLOGDT, 2048)
        a(f"buffer_load_ushort v{PR+4}, v1, s[28:31], s{sT+5} offen"); vm.add("P")
    def ld_x():
        srd(a, sX, pU, 2048*2048)
        for e in range(2):
            for i in range(2):
                a(f"buffer_load_dwordx4 {vr(XD+8*e+4*i,4)}, v5, {sr(sX,4)}, s{sT} offen offset:{2048*e+256*i} {XNT}"); vm.add("X")
    if ORDER[0] == "S": ld_params(); ld_x()
    else: ld_x(); ld_params()
    if CPF:
        a("s_getpc_b64 s[36:37]"); a("s_and_b32 s36, s36, 0xffffff00"); a(f"s_mov_b32 s38, CODE_BYTES"); a("s_mov_b32 s39, 0x20000")
        a(f"s_lshr_b32 s{sT+1}, s2, 3"); a(f"s_and_b32 s{sT+1}, s{sT+1}, 3"); a(f"s_lshl_b32 s{sT+1}, s{sT+1}, 14")
        a(f"buffer_load_dword a204, v{vF}, s[36:39], s{sT+1} offen"); vm.add("T")
    if TOUCH:
        sh = TOUCH
        a(f"v_lshlrev_b32 v6, {sh}, v0")
        for n, (p, sz) in enumerate(((pWS, M_XCH + SZ_XCH), (pOUT, 4 << 20), (pWG, SZ_W), (pWU, SZ_W), (pWD, SZ_W))):
            srd(a, sX, p, sz)
            for o in range(0, sz, 256 << sh):
                a(f"s_mov_b32 s{sT+1}, {o}")
                a(f"buffer_load_dword a{205+n}, v6, {sr(sX,4)}, s{sT+1} offen"); vm.add("T")
        a(f"buffer_load_dword a212, v1, {sr(sDB,4)}, 0 offen sc1"); vm.add("T")
    gemm1_addr(g, 0)
    bgl = []
    for stg in range(2):
        for i in range(7):
            grp = []
            if i in (0, 4): grp += [(f"s_add_u32 m0, s{sG_M0}, {stg*SLOT1 + (4096 if i else 0)}", None), ("s_nop 0", None)]
            grp.append((g1_dma(pDMA, i, DNT), "D"))
            if i == 6: grp += [(x, None) for x in g1_wadv('own' if stg else 'even')]
            bgl.append(grp)
    def take(n):
        out = bgl[:n]; del bgl[:n]; return out
    for grp in take(DSTART):
        for ins, tag in grp:
            a(ins)
            if tag: vm.add(tag)
    gemm1_addr(g, 1)
    srd(a, sFLG, pWS, 4*16384, M_FLG)
    srd(a, sU2, pWS, 8 << 20, M_U2); srd(a, sH, pWS, 4 << 20, M_H4)
    a(f"s_lshl_b32 s{sT+1}, s{sCG}, 3")
    a(f"s_load_dwordx2 s[58:59], {sr(pDSKIP,2)}, s{sT+1}")
    a(f"v_lshlrev_b32 v6, 15, v4"); a(f"v_lshl_add_u32 v6, v3, 4, v6")
    nu = 9; vG = 19
    a(f"v_and_b32 v{nu}, 15, v{vL}"); a(f"v_lshrrev_b32 v{vG}, 4, v{vL}")
    sUB = sT+8; sKB = sT+9; sTB = sT+7
    a(f"s_mul_i32 s{sUB}, s{sWave}, {UCH}"); a(f"s_add_u32 s{sUB}, s{sUB}, {UBASE}")
    a(f"s_mul_i32 s{sKB}, s{sWave}, {KCH}"); a(f"s_add_u32 s{sKB}, s{sKB}, {KBASE}")
    a(f"s_add_u32 s{sTB}, s{sUB}, {TOFF}")
    vTa = 10; vTb = 11; vTc = 12; vTw = 13; vO1 = 15; vO2 = 18
    a(f"v_lshlrev_b32 v16, 7, v{vG}"); a(f"v_add_u32 v16, s{sUB}, v16")
    a(f"v_bfe_u32 v17, v{vL}, 2, 2"); a(f"v_mul_u32_u24 v{vTa}, {RS}, v17"); a(f"v_add_u32 v{vTa}, v{vTa}, v16")
    a(f"v_mul_u32_u24 v{vTb}, {RS}, v3")
    a(f"v_bfe_u32 v17, v{vL}, 3, 1"); a(f"v_lshlrev_b32 v{vTc}, v17, v{vTb}")
    a(f"v_add_u32 v{vTb}, v{vTb}, v16"); a(f"v_add_u32 v{vTc}, v{vTc}, v16")
    a(f"v_lshlrev_b32 v{vTw}, 3, v{vL}"); a(f"v_add_u32 v{vTw}, s{sUB}, v{vTw}")
    a(f"v_mov_b32 v16, 0x3c00"); a(f"v_mov_b32 v17, 0x3c00")
    for e in (0, 4, 12): a(f"ds_write_b64 v{vTw}, v[16:17] offset:{e*RS}")
    a(f"v_lshlrev_b32 v{vO1}, 6, v{nu}"); a(f"v_lshl_add_u32 v{vO1}, v{vG}, 3, v{vO1}"); a(f"v_add_u32 v{vO1}, s{sTB}, v{vO1}")
    a(f"v_lshlrev_b32 v22, 4, v{nu}"); a(f"v_lshl_add_u32 v22, v{vG}, 3, v22"); a(f"v_add_u32 v22, 1024, v22")
    a(f"v_lshlrev_b32 v23, 3, v{nu}"); a(f"v_lshl_add_u32 v23, v{vG}, 7, v23"); a(f"v_add_u32 v23, {1280-256}, v23")
    a(f"v_cmp_gt_u32 vcc, 32, v{vL}"); a("s_nop 1")
    a(f"v_cndmask_b32 v{vO2}, v23, v22, vcc"); a(f"v_add_u32 v{vO2}, s{sTB}, v{vO2}")
    SA = 184
    def sel(dst, lo32, hi32):
        a(f"v_mov_b32 v{dst}, {hi32:#x}"); a(f"v_mov_b32 v22, {lo32:#x}"); a(f"v_cndmask_b32 v{dst}, v{dst}, v22, vcc")
    sel(SA, 0x01000302, 0x01000100); sel(SA+1, 0x01000302, 0x01000504); sel(SA+2, 0x03020504, 0x01000504); sel(SA+3, 0x03020504, 0x05040504)
    a(f"v_mov_b32 v{SA+4}, v{SA+3}")
    a(f"s_mov_b32 s{sT+3}, 0x03020504"); a(f"v_writelane_b32 v{SA+4}, s{sT+3}, 32")
    a(f"s_mov_b32 s{sT+2}, 0x0c0c0504"); a(f"v_writelane_b32 v{SA+4}, s{sT+2}, 0")
    vK = 20; vK2 = 21; vZ = 14
    a(f"v_lshlrev_b32 v22, 4, v{vL}"); a(f"v_add_u32 v{vK}, s{sKB}, v22"); a(f"v_add_u32 v{vK2}, v{vK}, v22")
    a(f"v_add_u32 v{vZ}, s{sUB}, v22")
    ZR = 180
    for r in range(ZR, ZR+4): a(f"v_mov_b32 v{r}, 0")
    a("s_mov_b64 exec, 0x7f")
    a(f"ds_write_b128 v{vK}, {vr(ZR,4)}"); a(f"ds_write_b128 v{vK}, {vr(ZR,4)} offset:{KCS}")
    a("s_mov_b64 exec, -1")
    vA = 4; vB = 5; vY = 7
    a(f"v_and_b32 v22, 1, v{vL}"); a(f"v_mul_u32_u24 v{vA}, {KCS}, v22")
    a(f"v_bfe_u32 v22, v{vL}, 1, 3"); a(f"v_sub_u32 v22, v22, v{vG}"); a(f"v_add_u32 v22, 3, v22")
    a(f"v_lshl_add_u32 v{vA}, v22, 4, v{vA}"); a(f"v_add_u32 v{vA}, s{sKB}, v{vA}")
    a(f"v_mul_u32_u24 v{vB}, {UCS}, v3")
    a(f"v_bfe_u32 v22, v{vL}, 2, 2"); a(f"v_lshl_add_u32 v23, v22, 3, v{vG}")
    a(f"v_lshl_add_u32 v{vB}, v23, 4, v{vB}"); a(f"v_add_u32 v{vB}, s{sUB}, v{vB}")
    a(f"v_lshlrev_b32 v{vY}, 5, v22"); a(f"v_lshl_add_u32 v{vY}, v{vG}, 3, v{vY}"); a(f"v_add_u32 v{vY}, v{vY}, v3")
    a(f"v_lshlrev_b32 v{vY}, 2, v{vY}"); a(f"v_add_u32 v{vY}, s{sKB}, v{vY}")
    vUC = 190
    a(f"v_lshlrev_b32 v22, 2, v0")
    for c in range(4):
        for ch in range(2): a(f"v_add_u32 v{vUC+2*c+ch}, {UBASE + ch*UCH + c*UCS + UPAD - 4*(c+1)}, v22")
    ACC = 48; vSC = 60

    def setup():
        a(f"s_waitcnt vmcnt({vm.wait_for('P')})")
        g.stamp()
        dt = PR+4
        Z = 64; C = 68; TT = 72
        a(f"v_lshlrev_b32 v{dt}, 16, v{dt}"); a(f"v_lshlrev_b32 v{TT}, 16, v{PR}"); a(f"v_and_b32 v{TT+1}, 0xffff0000, v{PR}")
        for r in (dt, TT, TT+1): a(f"v_mul_f32 v{r}, {f32(LOG2E)}, v{r}")
        for r in (dt, TT, TT+1): a(f"v_exp_f32 v{r}, v{r}")
        for k, b in ((1, Z+1), (2, C), (3, C+1)):
            a(f"v_lshlrev_b32 v{b}, 16, v{PR+k}"); a(f"v_and_b32 v{b+2}, 0xffff0000, v{PR+k}")
        a(f"v_cvt_pk_bf16_f32 v{dt}, v{dt}, v{dt}"); a(f"v_cvt_pk_bf16_f32 v{PR}, v{TT}, v{TT+1}")
        a(f"v_max3_f32 v{vSC}, |v{C}|, |v{C+1}|, |v{C+2}|"); a(f"v_max_f32 v{vSC}, |v{C+3}|, v{vSC}")
        a(f"v_lshlrev_b32 v{dt}, 16, v{dt}")
        a(f"v_lshlrev_b32 v{Z}, 16, v{PR}"); a(f"v_and_b32 v{Z+2}, 0xffff0000, v{PR}")
        red = [f"v_max_f32_dpp v{vSC}, v{vSC}, v{vSC} {m} row_mask:0xf bank_mask:0xf" for m in ("quad_perm:[1,0,3,2]", "quad_perm:[2,3,0,1]", "row_ror:4", "row_ror:8")]
        a(red[0])
        for i in range(4): a(f"v_mul_f32 v{Z+i}, v{Z+i}, v{dt}")
        a(red[1])
        for m in range(2):
            a(f"v_mul_f32 v{Z+2*m}, {f32(-LOG2E)}, v{Z+2*m}"); a(f"v_mul_f32 v{Z+2*m+1}, 0.15915494, v{Z+2*m+1}")
        a(red[2])
        names = [1, 2, 3, 4, 8, 12, 16, 20, 24, 28, 32, 64, 96, 128, 256, 512, 528, 1024, 1536, 2048, "R1", "R2", "R3"]
        E = {n: 88 + 4*i for i, n in enumerate(names)}
        AR = 76
        for i, p in enumerate((1, 32, 512)):
            for k in range(4):
                if p == 1: a(f"v_mov_b32 v{AR+4*i+k}, v{Z+k}")
                else: a(f"v_mul_f32 v{AR+4*i+k}, {f32(p)}, v{Z+k}")
            if i == 0: a(red[3])
        for i in range(6): a(f"v_fract_f32 v{AR+2*i+1}, v{AR+2*i+1}")
        for op in ("v_permlane16_swap_b32", "v_permlane32_swap_b32"):
            a(f"v_mov_b32 v{TT}, v{vSC}"); a("s_nop 1"); a(f"{op} v{TT}, v{vSC}"); a("s_nop 0"); a(f"v_max_f32 v{vSC}, v{vSC}, v{TT}")
        for i, p in enumerate((1, 32, 512)):
            for m in range(2):
                r = AR+4*i+2*m
                a(f"v_cos_f32 v{E[p]+2*m}, v{r+1}"); a(f"v_sin_f32 v{E[p]+2*m+1}, v{r+1}"); a(f"v_exp_f32 v{r}, v{r}")
        a(f"v_frexp_exp_i32_f32 v{TT}, v{vSC}")
        a(f"v_add_f32 v{dt}, v{dt}, v{dt}")
        a(f"v_ldexp_f32 v{vSC}, v{dt}, v{TT}")
        a(f"v_sub_u32 v{TT}, 0, v{TT}")
        for i, p in enumerate((1, 32, 512)):
            for m in range(2):
                a(f"v_pk_mul_f32 {vr(E[p]+2*m,2)}, {vr(E[p]+2*m,2)}, {vr(AR+4*i+2*m,2)} op_sel_hi:[1,0]")
        for k in range(4): a(f"v_ldexp_f32 v{C+k}, v{C+k}, v{TT}")
        E["C"] = C
        ent = {1: 1, 2: 2, 3: 3, 4: 5, 8: 6, 12: 7, 16: 8, 20: 9, 24: 10, 28: 11, 32: 13, 64: 14, 96: 15, "C": 16, "R1": 17, "R2": 18, "R3": 19,
               512: 20, 528: 21, 1024: 22, 1536: 23}
        wt = [0]
        def emit(n):
            if n not in ent: return
            t = AR + 2*(wt[0] % 6); wt[0] += 1
            ng = "-" if 12 <= ent[n] < 20 else ""
            for m in range(2): a(f"v_cvt_pk_f16_f32 v{t+m}, v{E[n]+2*m}, {ng}v{E[n]+2*m+1}")
            a(f"ds_write_b64 v{vTw}, {vr(t,2)} offset:{ent[n]*RS}")
        levels = [[(2,1,1), (64,32,32), (1024,512,512)], [(3,2,1), (4,2,2), (96,64,32), (128,64,64), (1536,1024,512), (2048,1024,1024)],
                  [(8,4,4), (256,128,128), ("R1","C",128)], [(12,8,4), (16,8,8), ("R2","C",256)],
                  [(20,16,4), (24,16,8), (28,16,12), (528,512,16), ("R3","R2",128)]]
        pend = [1, 32, 512, "C"]
        for lv in levels:
            for d, x, y in lv:
                for m in range(2): a(f"v_pk_mul_f32 {vr(E[d]+2*m,2)}, {vr(E[x]+2*m,2)}, {vr(E[y]+2*m,2)} op_sel_hi:[0,1]")
            for d, x, y in lv:
                for m in range(2):
                    a(f"v_pk_fma_f32 {vr(E[d]+2*m,2)}, {vr(E[x]+2*m,2)}, {vr(E[y]+2*m,2)}, {vr(E[d]+2*m,2)} op_sel:[1,1,0] op_sel_hi:[1,0,1] neg_lo:[0,1,0]")
            for n in pend: emit(n)
            pend = [d for d, x, y in lv]
        for n in pend: emit(n)
        e = E[2048]
        a(f"v_mul_f32 v61, v{e}, v{C}"); a(f"v_fma_f32 v61, -v{e+1}, v{C+1}, v61")
        a(f"v_fma_f32 v61, v{e+2}, v{C+2}, v61"); a(f"v_fma_f32 v61, -v{e+3}, v{C+3}, v61")
        wave_sum(a, 61, 62, 1)
        a(f"v_mul_f32 v61, v61, v{vSC}")
        a("v_cvt_pk_bf16_f32 v61, v61, v61")
        a(f"v_mov_b32 v62, s{sTB}")
        a(f"ds_write_b32 v62, v61 offset:1536")

    FB = 64
    srcs = [(vTa, 4), (vTa, 8), (vTb, 0), (vTa, 16), (vTb, 12), (vTa, 20), (vTc, 4)]
    def rdf(step):
        return [f"ds_read_b128 {vr(FB+28*(step&1)+4*i,4)}, v{r} offset:{e*RS+16*step}" for i, (r, e) in enumerate(srcs)]
    OB = 120
    def kstep(step, bg):
        f = FB + 28*(step & 1); o = OB + 16*(step & 1)
        a("s_waitcnt lgkmcnt(0)")
        nxt = rdf(step+1) if step < 7 else []
        prods = [(o, f+12, f+16), (o+4, f, f+8), (o+8, f+4, f+8), (o+12, f+20, f+24)]
        for d, x, y in prods:
            for m in range(4): a(f"v_pk_mul_f16 v{d+m}, v{x+m}, v{y+m} op_sel_hi:[0,1]")
            for _ in range(2):
                if nxt: a(nxt.pop(0))
        for grp in bg:
            for ins, tag in grp:
                a(ins)
                if tag: vm.add(tag)
        for i, (d, x, y) in enumerate(prods):
            for m in range(4): a(f"v_pk_fma_f16 v{d+m}, v{x+m}, v{y+m}, v{d+m} op_sel:[1,1,0] op_sel_hi:[1,0,1] neg_lo:[0,1,0]")
            if i >= 2:
                c = "0" if step == 0 else vr(ACC+4*(i-2),4)
                a(f"v_mfma_f32_16x16x32_f16 {vr(ACC+4*(i-2),4)}, {vr(o+4*(i-1),4)}, {vr(o,4)}, {c}")
        a("s_nop 0")
        c = "0" if step == 0 else vr(ACC+8,4)
        a(f"v_mfma_f32_16x16x32_f16 {vr(ACC+8,4)}, {vr(o+12,4)}, {vr(o,4)}, {c}")

    def ln1():
        a(f"s_waitcnt vmcnt({vm.wait_for('X')})")
        g.stamp()
        T = 64; W = 96; XP = 144; XO = 160
        a(f"s_lshl_b32 s{sT}, s{sWave}, 20"); a(f"s_lshl_b32 s{sT+1}, s2, 6"); a(f"s_add_u32 s{sT}, s{sT}, s{sT+1}")
        a(f"s_mov_b32 s{sT+2}, 0x05040100"); a(f"s_mov_b32 s{sT+3}, 0x07060302")
        for q in range(4):
            for k in range(4*q, 4*q+4): a(f"v_perm_b32 v{XP+k}, v{XD+8+(k>>1)}, v{XD+(k>>1)}, s{sT+2+(k&1)}")
            a(f"s_add_u32 s{sT+1}, s{sT}, {((q>>1)*32 + (q&1))*16384 + (4 << 20)}")
            a(f"buffer_store_dwordx4 {vr(XP+4*q,4)}, v6, {sr(sU2,4)}, s{sT+1} offen {SC}"); vm.add("U")
        ln_stats8(a, [(XD+k, XD+8+k) for k in range(8)], T, W)
        for k in range(16): a(f"v_pk_add_f32 {vr(T+2*k,2)}, {vr(T+2*k,2)}, {vr(W,2)} neg_lo:[0,1] neg_hi:[0,1]")
        for k in range(16): a(f"v_cvt_pk_bf16_f32 v{XO+k}, v{T+2*k}, v{T+2*k+1}")
        for k in range(16):
            a(f"v_lshlrev_b32 v{T+2*k}, 16, v{XO+k}"); a(f"v_and_b32 v{T+2*k+1}, 0xffff0000, v{XO+k}")
        for k in range(16): a(f"v_pk_mul_f32 {vr(T+2*k,2)}, {vr(T+2*k,2)}, {vr(W+2,2)}")
        a(f"s_lshl_b32 s{sT}, s{sWave}, 20"); a(f"s_lshl_b32 s{sT+1}, s2, 6"); a(f"s_add_u32 s{sT}, s{sT}, s{sT+1}")
        for q in range(4):
            for k in range(4*q, 4*q+4): a(f"v_cvt_pk_bf16_f32 v{XO+k}, v{T+2*k}, v{T+2*k+1}")
            a(f"s_add_u32 s{sT+1}, s{sT}, {((q>>1)*32 + (q&1))*16384}")
            a(f"buffer_store_dwordx4 {vr(XO+4*q,4)}, v6, {sr(sU2,4)}, s{sT+1} offen {SC}"); vm.add("U")
        nl = a.label("nl")
        a(f"s_and_b32 s{sT+6}, s2, 3"); a(f"s_lshl_b32 s{sT+6}, s{sT+6}, 6")
        a(f"s_cmp_lg_u32 s{sWave}, 0"); a(f"s_cbranch_scc1 {nl}")
        a(f"buffer_load_dwordx2 v[22:23], v1, {sr(sDB,4)}, s{sT+6} offen sc1")
        a(f"{nl}:")
        a("s_nop 1")
        g.stamp()

    if ORDER == "SLM": setup(); ln1()
    else: ln1(); setup()
    for ins in rdf(0): a(ins)
    step = 0
    for _ in range(KMID): kstep(step, []); step += 1
    a(f"s_waitcnt vmcnt(0)")
    gn = a.label("gn"); gn2 = a.label("gn2"); gn3 = a.label("gn3")
    a(f"s_cmp_lg_u32 s{sWave}, 0"); a(f"s_cbranch_scc1 {gn3}")
    a(f"s_mov_b32 s{sTO}, 0")
    a(f"{gn}:")
    a(f"v_readfirstlane_b32 s{sNON}, v22"); a(f"v_readfirstlane_b32 s{sNON+1}, v23")
    a(f"s_cmp_lg_u32 s{sNON}, 0"); a(f"s_cbranch_scc1 {gn2}")
    a(f"buffer_load_dwordx2 v[22:23], v1, {sr(sDB,4)}, s{sT+6} offen sc1")
    a("s_waitcnt vmcnt(0)")
    a(f"s_add_u32 s{sTO}, s{sTO}, 1"); a(f"s_cmp_lt_u32 s{sTO}, {TIMEOUT}"); a(f"s_cbranch_scc1 {gn}")
    a(f"{gn2}:")
    a(f"v_mov_b32 v24, {KBASE + KCH - 16}")
    a(f"ds_write_b64 v24, v[22:23]")
    a("s_waitcnt lgkmcnt(0)")
    a(f"{gn3}:")
    a("s_barrier")
    set_flag(g, 0, 22)
    g.stamp()
    a(f"v_mov_b32 v24, {KBASE + KCH - 16}")
    a(f"ds_read_b64 v[26:27], v24")
    first = True
    while step < 8:
        n = min(2, DPOST); DPOST -= n
        kstep(step, take(n)); step += 1
        if first:
            a(f"v_readfirstlane_b32 s{sNON}, v26"); a(f"v_readfirstlane_b32 s{sNON+1}, v27"); first = False
    assert not first
    Eb = 72
    a(f"v_lshlrev_b32 v16, 4, v{vL}"); a(f"v_add_u32 v16, s{sTB}, v16"); a(f"v_subrev_u32 v17, 4, v16")
    a(f"v_add_u32 v2, s{sTB}, v2")
    s00 = sT; s11 = sT+1; s10 = sT+2; s21 = sT+3
    a(f"s_mov_b32 s{s00}, 0x01000100"); a(f"s_mov_b32 s{s11}, 0x03020302"); a(f"s_mov_b32 s{s10}, 0x01000302"); a(f"s_mov_b32 s{s21}, 0x03020504")
    for t in (0, 1, 2):
        for e in range(2): a(f"v_pk_mul_f32 {vr(ACC+4*t+2*e,2)}, {vr(ACC+4*t+2*e,2)}, {vr(vSC,2)} op_sel_hi:[1,0]")
        a(f"v_cvt_pk_bf16_f32 v{64+2*t}, v{ACC+4*t}, v{ACC+4*t+1}")
        a(f"v_cvt_pk_bf16_f32 v{65+2*t}, v{ACC+4*t+2}, v{ACC+4*t+3}")
    a(f"ds_write_b64 v{vO1}, v[64:65]"); a(f"ds_write_b64 v{vO1}, v[66:67] offset:32"); a(f"ds_write_b64 v{vO2}, v[68:69]")
    a(f"ds_read_b128 {vr(Eb,4)}, v16"); a(f"ds_read_b32 v{Eb+4}, v16 offset:16"); a(f"ds_read_b32 v{Eb-1}, v17")
    a(f"ds_read_b32 v78, v2 offset:1024"); a(f"ds_read_b32 v79, v2 offset:1028")
    a(f"ds_read_b32 v80, v2 offset:1280"); a(f"ds_read_b32 v81, v2 offset:1284")
    a("s_mov_b64 exec, 0x1ffffff")
    for c in range(4): a(f"ds_write_b128 v{vZ}, {vr(ZR,4)} offset:{c*UCS}")
    a("s_mov_b64 exec, -1")
    a(f"buffer_load_dwordx2 v[22:23], v{vF}, {sr(sFLG,4)}, 0 offen {SC}")
    a("s_waitcnt lgkmcnt(0)")
    O = 84
    for d, s0, s1, sl in ((0,3,2,2),(1,2,1,3),(2,1,0,2),(3,0,-1,4),(4,4,3,1),(5,2,2,0),(6,2,1,1),(7,0,0,0)):
        a(f"v_perm_b32 v{O+d}, v{Eb+s0}, v{Eb+s1}, v{SA+sl}")
    a(f"ds_write_b128 v{vK}, {vr(O,4)} offset:{KPAD}")
    a(f"ds_write_b128 v{vK}, {vr(O+4,4)} offset:{KPAD+KCS}")
    def mk(dst, kind, p01, p2):
        if kind == "00": a(f"v_perm_b32 v{dst}, v{p01}, v{p01}, s{s00}")
        elif kind == "11": a(f"v_perm_b32 v{dst}, v{p01}, v{p01}, s{s11}")
        elif kind == "22": a(f"v_perm_b32 v{dst}, v{p2}, v{p2}, s{s00}")
        elif kind == "10": a(f"v_perm_b32 v{dst}, v{p01}, v{p01}, s{s10}")
        elif kind == "21": a(f"v_perm_b32 v{dst}, v{p2}, v{p01}, s{s21}")
    chunks = [(78, ["21","11","00","00"], vK, KPAD + 1024), (78, ["22","11","10","00"], vK, KPAD + 1024 + KCS),
              (80, ["11","00","00","00"], vK2, KPAD + 2048), (80, ["22","21","11","11"], vK2, KPAD + 2048 + 16),
              (80, ["11","10","00","00"], vK2, KPAD + 2048 + KCS), (80, ["22","22","11","11"], vK2, KPAD + 2048 + KCS + 16)]
    for ci, (p, kinds, ad, off) in enumerate(chunks):
        b = O + 8 + 4*ci
        for e, kd in enumerate(kinds): mk(b+e, kd, p, p+1)
        a(f"ds_write_b128 v{ad}, {vr(b,4)} offset:{off}")
    g.stamp()
    a(f"s_mov_b32 s{sT}, 0")
    sCGo = sT+7
    a(f"s_lshl_b32 s{sCGo}, s{sCG}, 14")
    poll_flags(g, vF, sT, 22, preloaded=True)
    a("s_barrier")
    g.stamp()
    UR = 32
    for i in range(4):
        a(f"s_add_u32 s{sT}, s{sCGo}, {4096*i}")
        a(f"buffer_load_dwordx4 {vr(UR+4*i,4)}, v{vR}, {sr(sU2,4)}, s{sT} offen {SC}")
    def rdA(st, p, q): return f"ds_read_b128 {ar(64*st+4*p,4)}, v{vA} offset:{(8*p+q)*64}"
    def rdB(st, r, q): return f"ds_read_b128 {ar(64*st+32+4*r,4)}, v{vB} offset:{(8*r-q+7)*64}"
    for i in range(8): a(rdA(0, i, 0))
    XG = 48
    for i in range(4):
        a(f"s_add_u32 s{sT}, s{sCGo}, {4096*i + (4 << 20)}")
        a(f"buffer_load_dwordx4 {vr(XG+4*i,4)}, v{vR}, {sr(sU2,4)}, s{sT} offen {SC}")
    for ii in range(4):
        a(f"s_waitcnt vmcnt({7-ii})")
        for c in range(4):
            for ch in range(2):
                a(f"ds_write2st64_b32 v{vUC+2*c+ch}, v{UR+4*ii+ch}, v{UR+4*ii+ch+2} offset0:{4*ii} offset1:{4*ii+141}")
    a("s_waitcnt lgkmcnt(0)")
    a("s_barrier")
    g.stamp()
    CA = 64
    for i in range(8): a(rdB(0, i, 0))
    fill = []
    F = fill.append
    TD = 96; XU = 128
    F(f"s_lshl_b32 s{sT}, s58, 16"); F(f"s_and_b32 s{sT+1}, s58, 0xffff0000"); F(f"s_lshl_b32 s{sT+2}, s59, 16"); F(f"s_and_b32 s{sT+3}, s59, 0xffff0000")
    for i in range(4):
        for ch in range(4):
            u = UR+4*i+ch; d = TD+8*i+2*ch
            F(f"v_lshlrev_b32 v{d}, 16, v{u}"); F(f"v_and_b32 v{d+1}, 0xffff0000, v{u}")
            F(f"v_mul_f32 v{d}, s{sT+ch}, v{d}"); F(f"v_mul_f32 v{d+1}, s{sT+ch}, v{d+1}")
            F(f"v_cvt_pk_bf16_f32 v{u}, v{d}, v{d+1}")
            F(f"v_lshlrev_b32 v{d}, 16, v{u}"); F(f"v_and_b32 v{d+1}, 0xffff0000, v{u}")
    F(f"v_lshlrev_b32 v16, 2, v0"); F(f"v_add_u32 v16, {KBASE}, v16")
    fill2 = ["s_waitcnt vmcnt(0)"]
    for k in range(16):
        fill2 += [f"v_lshlrev_b32 v{XU+2*k}, 16, v{XG+k}", f"v_and_b32 v{XU+2*k+1}, 0xffff0000, v{XG+k}"]
    sched = {}
    nb = len(bgl)
    for n in range(nb):
        pos = n * DSP + 9
        sched[(pos // 36, pos % 36)] = [ins for ins, tag in bgl[n]]
    fill2[0] = f"s_waitcnt vmcnt({nb})"
    fi = 0
    for q in range(8):
        st = q & 1
        a("s_waitcnt lgkmcnt(0)")
        nxt = []
        if q < 7:
            for i in range(8): nxt += [rdA(1-st, i, q+1), rdB(1-st, i, q+1)]
        else:
            assert fi == len(fill), (fi, len(fill))
            fill = fill2; fi = 0
        k = 0
        for p in range(8):
            for r in range(8 - p):
                t = p + r
                c = "0" if (q == 0 and p == 0) else vr(CA+4*t, 4)
                a(f"v_mfma_f32_16x16x32_bf16 {vr(CA+4*t,4)}, {ar(64*st+4*p,4)}, {ar(64*st+32+4*r,4)}, {c}")
                if (q, k) in sched:
                    for ins in sched.pop((q, k)): a(ins)
                elif nxt and (k % 2 == 0 or (k < 8)): a(nxt.pop(0))
                elif fi < len(fill): a(fill[fi]); fi += 1
                k += 1
        assert not nxt
    assert fi == len(fill) and not sched, (fi, len(fill), sched)
    for t in range(8):
        a(f"v_cvt_pk_bf16_f32 v{168+2*t}, v{CA+4*t}, v{CA+4*t+1}")
        a(f"v_cvt_pk_bf16_f32 v{169+2*t}, v{CA+4*t+2}, v{CA+4*t+3}")
        a(f"ds_write2_b32 v{vY}, v{168+2*t}, v{169+2*t} offset0:{128*(t&1)} offset1:{128*(t&1)+4}")
        if t & 1 and t < 7: a(f"v_add_u32 v{vY}, 1024, v{vY}")
    a("s_waitcnt vmcnt(0) lgkmcnt(0)")
    g.stamp()
    a("s_barrier")
    Y = 64; YU = 160
    for i in range(4):
        for ch in (0, 2):
            a(f"ds_read2st64_b32 {vr(Y+4*i+ch,2)}, v16 offset0:{4*i+33*ch} offset1:{4*i+33*(ch+1)}")
    for i in range(4):
        a(f"s_waitcnt lgkmcnt({6-2*i})")
        for ch in range(4):
            a(f"v_lshlrev_b32 v{YU+2*ch}, 16, v{Y+4*i+ch}"); a(f"v_and_b32 v{YU+2*ch+1}, 0xffff0000, v{Y+4*i+ch}")
        b = TD+8*i
        for ch in range(4): a(f"v_pk_add_f32 {vr(b+2*ch,2)}, {vr(b+2*ch,2)}, {vr(YU+2*ch,2)}")
        for ch in range(4): a(f"v_cvt_pk_bf16_f32 v{YU+ch}, v{b+2*ch}, v{b+2*ch+1}")
        for ch in range(4):
            a(f"v_lshlrev_b32 v{b+2*ch}, 16, v{YU+ch}"); a(f"v_and_b32 v{b+2*ch+1}, 0xffff0000, v{YU+ch}")
        for ch in range(4): a(f"v_pk_add_f32 {vr(b+2*ch,2)}, {vr(b+2*ch,2)}, {vr(XU+8*i+2*ch,2)}")
        for e in range(2):
            for hp in range(2):
                a(f"v_cvt_pk_bf16_f32 v{Y+4*i+2*e+hp}, v{b+4*hp+e}, v{b+4*hp+2+e}")
        a(f"s_add_u32 s{sT}, s{sCGo}, {4096*i}")
        a(f"buffer_store_dwordx4 {vr(Y+4*i,4)}, v{vR}, {sr(sH,4)}, s{sT} offen {SC}")
    g.stamp()

M_XCH = 0x1b00000
XSL = 16384; XWG = 3*XSL; SZ_XCH = 256*XWG
s2_TM = sT+4; s2_TN = sT+5; s2_KQ = sT+6
def g2_dma_addr(sM0):
    return [f"s_bfe_u32 s{s2_KQ}, s2, 0x20001",
        f"s_and_b32 s{s2_TM}, s2, 1", f"s_lshl_b32 s{s2_TM}, s{s2_TM}, 2", f"s_bfe_u32 s{sT}, s2, 0x20003", f"s_add_u32 s{s2_TM}, s{s2_TM}, s{sT}",
        f"s_lshr_b32 s{s2_TN}, s2, 5",
        f"v_lshrrev_b32 v2, 4, v{vL}", f"s_mul_i32 s{sT}, s{s2_KQ}, 896", f"s_lshl_b32 s{sT+1}, s{sWave}, 4", f"s_add_u32 s{sT}, s{sT}, s{sT+1}",
        f"v_add_u32 v1, s{sT}, v2", f"v_lshlrev_b32 v1, 11, v1",
        f"v_lshlrev_b32 v2, 2, v2", f"v_and_b32 v3, 15, v{vL}", f"v_xor_b32 v2, v2, v3",
        f"v_lshl_add_u32 v1, v2, 4, v1", f"s_lshl_b32 s{sT}, s{s2_TN}, 8", f"v_add_u32 v1, s{sT}, v1", f"s_lshl_b32 s{sM0}, s{sWave}, 12"]
G2_STG = 64*2048; G2_I = 4*2048 - 1024
def g2_dma(stage, i, sM0=24, sW=12):
    grp = []
    if i == 0: grp.append(f"s_add_u32 m0, s{sM0}, {(stage % 10)*16384}")
    grp.append(f"s_mov_b32 s{sT+1}, {stage*G2_STG + i*G2_I}")
    grp.append(f"buffer_load_dwordx4 v1, {sr(sW,4)}, s{sT+1} offen offset:{1024*i} lds")
    return grp

def phase_gemm2(g, PRE1, LA=8, TAIL=16, XSLEEP=4, OF='nt'):
    a = g.a
    ACC = 32
    def acc(j, t): return ACC + (t*2 + j)*16
    HR = 160; IN = 176; XR = 0; WF = 192; NX = 24
    vX = 2; vW = 4; vO = 16; vI = 17; vH = 18; vFl = 19; vT = 232; vM = 20
    sX = 8; sH = 44; sO = 4; sIB = 36
    sOX = 20; sM = 26; sN = 27; sI = 31; sFo = 33
    a(f"s_lshl_b32 s{sM}, s{s2_TM}, 8"); a(f"s_lshl_b32 s{sT}, s{sWave}, 6"); a(f"s_add_u32 s{sM}, s{sM}, s{sT}")
    a(f"s_lshl_b32 s{sN}, s{s2_TN}, 7"); a(f"s_lshl_b32 s{sT}, s{s2_KQ}, 5"); a(f"s_add_u32 s{sN}, s{sN}, s{sT}")
    a(f"v_and_b32 v{vT}, 31, v{vL}"); a(f"v_add_u32 v{vT}, s{sM}, v{vT}")
    a(f"v_lshrrev_b32 v{vT+1}, 5, v{vL}")
    a(f"v_lshl_add_u32 v{vX}, v{vT+1}, 11, v{vT}"); a(f"v_lshlrev_b32 v{vX}, 4, v{vX}")
    a(f"s_mul_i32 s{sOX}, s{s2_KQ}, {112*32768}")
    a(f"v_lshlrev_b32 v{vH}, 3, v{vT}"); a(f"v_lshl_add_u32 v{vH}, v{vT+1}, 15, v{vH}")
    a(f"s_lshl_b32 s{sT}, s{sN}, 12"); a(f"v_add_u32 v{vH}, s{sT}, v{vH}")
    a(f"v_lshlrev_b32 v{vO}, 11, v{vT}"); a(f"v_lshl_add_u32 v{vO}, v{vT+1}, 4, v{vO}")
    a(f"s_lshl_b32 s{sT}, s{sN}, 1"); a(f"v_add_u32 v{vO}, s{sT}, v{vO}")
    a(f"v_bfe_u32 v{vT+3}, v{vL}, 2, 2"); a(f"v_lshl_add_u32 v{vT+4}, v{vT+1}, 3, v{vT+3}"); a(f"v_lshlrev_b32 v{vW}, 8, v{vT+4}")
    a(f"v_xor_b32 v{vT+3}, s{s2_KQ}, v{vT+3}"); a(f"v_lshl_add_u32 v{vW}, v{vT+3}, 6, v{vW}")
    a(f"v_bfe_u32 v{vT+3}, v{vL}, 4, 1"); a(f"v_lshl_add_u32 v{vW}, v{vT+3}, 5, v{vW}")
    a(f"v_and_b32 v{vT+3}, 1, v{vL}"); a(f"v_lshl_add_u32 v{vW}, v{vT+3}, 4, v{vW}")
    a(f"v_bfe_u32 v{vT+3}, v{vL}, 1, 1"); a(f"v_lshl_add_u32 v{vW}, v{vT+3}, 3, v{vW}")
    for t in range(1, 4): a(f"v_xor_b32 v{vW+t}, {64*t}, v{vW}")
    for b in range(1, 3):
        for t in range(4): a(f"v_add_u32 v{vW+4*b+t}, {65536*b}, v{vW+t}")
    a(f"v_lshlrev_b32 v{vI}, 4, v{vL}"); a(f"s_lshl_b32 s{sT}, s{sWave}, 12"); a(f"v_add_u32 v{vI}, s{sT}, v{vI}"); a(f"v_mov_b32 v{vM}, -2")
    srd(a, sO, pOUT, 2048*1024*2); srd(a, sIB, pWS, SZ_XCH, M_XCH)
    a(f"s_mul_i32 s{sI}, s2, {XWG}")
    for t in range(1, 4):
        a(f"s_xor_b32 s{27+t}, s2, {2*t}"); a(f"s_mul_i32 s{27+t}, s{27+t}, {XWG}"); a(f"s_add_u32 s{27+t}, s{27+t}, {XSL*(t-1)}")
    a(f"v_bfe_u32 v{vT+4}, v{vL}, 2, 1"); a(f"v_and_b32 v{vT+3}, 3, v{vL}"); a(f"v_lshl_add_u32 v{vT+4}, v{vT+3}, 6, v{vT+4}")
    a(f"s_lshl_b32 s{sT}, s{s2_TM}, 2"); a(f"s_add_u32 s{sT}, s{sT}, s{s2_KQ}"); a(f"s_lshl_b32 s{sT}, s{sT}, 1")
    a(f"v_add_u32 v{vT+4}, s{sT}, v{vT+4}")
    a(f"v_lshlrev_b32 v{vT+3}, 1, v{vT+3}"); a(f"v_xor_b32 v{vT+3}, s2, v{vT+3}")
    a(f"v_and_b32 v{vT+2}, 8, v{vL}"); a(f"v_cmp_eq_u32 vcc, 0, v{vT+2}"); a("s_nop 1")
    a(f"v_cndmask_b32 v{vFl}, v{vT+3}, v{vT+4}, vcc"); a(f"v_lshlrev_b32 v{vFl}, 6, v{vFl}")
    a(f"s_mov_b32 s{sFo}, {2*16384}")
    a("s_waitcnt vmcnt(0)")
    a("s_barrier")
    set_flag(g, 2, 22)
    g.stamp()
    def wread(st, f, t, step, j):
        off = ((step >> 2) % 10)*16384 + (step & 3)*4096 + j*1024
        return f"ds_read_b64_tr_b16 {ar(WF+st*16+f*4+j*2,2)}, v{vW + 4*(off >> 16) + t} offset:{off & 0xffff}"
    T0 = 56 - TAIL; TG = TAIL // 4
    sup = [[(t, s) for t in range(4)] for s in range(T0)]
    for t in (1, 2, 3, 0):
        for hf in range(TG): sup.append([(t, T0 + 4*hf + k) for k in range(4)])
    SEND = [T0 + TG*k for k in (1, 2, 3)]
    def need_of(n): return max(s for t, s in sup[min(n, 55)])
    def reads(n):
        return [wread(n & 1, f, t, s, j) for f, (t, s) in enumerate(sup[n]) for j in range(2)]
    for ins in reads(0): a(ins)
    for stg in range(PRE1, 10):
        for i in range(4):
            for ins in g2_dma(stg, i): a(ins)
    poll_flags(g, vFl, sFo, 22)
    g.stamp()
    vm = VM()
    def xload(x):
        return [f"buffer_load_dwordx4 {ar(XR+(x % NX)*8+j*4,4)}, v{vX}, {sr(sX,4)}, s{sOX} offen offset:{512*j} {SC}" for j in range(2)]
    xadv = f"s_add_u32 s{sOX}, s{sOX}, 65536"
    nx = 0
    for x in range(4):
        for ins in xload(x): a(ins); vm.add(f"X{x}")
        a(xadv); nx += 1
    dl = [(stg, i) for stg in range(10, 14) for i in range(4)]
    started = set()
    send = []
    for n, fr in enumerate(sup):
        need = max(s for t, s in fr)
        w = vm.wait_for(f"X{need}")
        if n == 39:
            assert not dl
            w = min(w, vm.wait_for("D"))
        a(f"s_waitcnt vmcnt({w}) lgkmcnt(0)")
        if n in (min(4*PRE1 - 1, 15), 15, 39): a("s_barrier")
        gaps = {k: [] for k in range(8)}; tags = {k: [] for k in range(8)}
        if n + 1 < len(sup):
            for k, ins in enumerate(reads(n + 1)): gaps[k // 2].append(ins)
        gi = 4
        for rep in range(2):
            if nx < 56 and nx <= max(need_of(k_) for k_ in range(n, n + LA + 1)) and gi <= 6:
                for j, ins in enumerate(xload(nx)): gaps[gi+j].append(ins); tags[gi+j].append(f"X{nx}")
                gaps[gi+1].append(xadv); nx += 1; gi += 2
        if n >= 15 and dl and gi <= 6:
            grp = g2_dma(*dl.pop(0))
            gaps[gi] += grp[:-1]; gaps[gi+1].append(grp[-1]); tags[gi+1].append("D")
        if n in (34, 35, 36, 37):
            for e in range(2):
                i = 2*(n-34) + e
                gj, gq = (i >> 2), (i >> 1) & 1
                gaps[6+e] += [f"s_mov_b32 s{sT}, {(4*gq + e)*16384}", f"buffer_load_dwordx2 {vr(HR+2*i,2)}, v{vH}, {sr(sH,4)}, s{sT} offen offset:{256*gj} {SC}"]
                tags[6+e].append("R")
        if n in SEND:
            t = sup[n-1][0][0]; b = acc(0, t)
            send = []
            for i in range(4):
                send += [f"v_cvt_pk_bf16_f32 v{b+4*i+e}, v{b+8*i+2*e}, v{b+8*i+2*e+1}" for e in range(4)]
                send += [f"v_min_u32 v{b+4*i+e}, v{b+4*i+e}, v{vM}" for e in range(4)]
                send += [f"buffer_store_dwordx4 {vr(b+4*i,4)}, v{vI}, {sr(sIB,4)}, s{27+t} offen offset:{1024*i} {SC}"]
        k = 0
        for f, (t, s) in enumerate(fr):
            for j in ((0, 1) if f % 2 == 0 else (1, 0)):
                c = vr(acc(j,t),16) if (j, t) in started else "0"
                started.add((j, t))
                a(f"v_mfma_f32_32x32x16_bf16 {vr(acc(j,t),16)}, {ar(WF+(n&1)*16+f*4,4)}, {ar(XR+(s % NX)*8+j*4,4)}, {c}")
                for ins in gaps[k]: a(ins)
                for tg in tags[k]: vm.add(tg)
                if send and not (n in SEND and k < 4):
                    for _ in range(4 if k >= 4 or n == 55 else 2):
                        if send:
                            ins = send.pop(0); a(ins)
                            if ins.startswith("buffer"): vm.add("S")
                k += 1
        if n - 1 in SEND: assert not send, len(send)
    assert nx == 56 and not dl
    g.stamp()
    P = acc(0, 1)
    a(f"s_add_u32 s28, s{sI}, {XSL}"); a(f"s_add_u32 s29, s{sI}, {2*XSL}")
    def ld_slot(sl):
        for i in range(4): a(f"buffer_load_dwordx4 {vr(IN+16*sl+4*i,4)}, v{vI}, {sr(sIB,4)}, s{(sI, 28, 29)[sl]} offen offset:{1024*i} {SC}")
    a(f"s_waitcnt vmcnt({vm.wait_for('R')})")
    for sl in range(3): ld_slot(sl)
    for k in range(16):
        a(f"v_lshlrev_b32 v{P+2*k}, 16, v{HR+k}"); a(f"v_and_b32 v{P+2*k+1}, 0xffff0000, v{HR+k}")
    a(f"s_mov_b32 s{sTO}, 0")
    Q = acc(0, 2); B = acc(0, 0)
    for sl in range(3):
        lp = a.label("xp"); dn = a.label("xd")
        a(f"s_waitcnt vmcnt({8-4*sl})")
        a(f"{lp}:")
        I = IN + 16*sl
        a(f"v_max3_u32 v21, v{I}, v{I+1}, v{I+2}"); a(f"v_max3_u32 v22, v{I+3}, v{I+4}, v{I+5}")
        for k in range(6, 16, 2): a(f"v_max3_u32 v{21 + ((k>>1)&1)}, v{21 + ((k>>1)&1)}, v{I+k}, v{I+k+1}")
        a(f"v_max_u32 v21, v21, v22")
        a(f"v_cmp_eq_u32 vcc, -1, v21")
        a(f"s_cbranch_vccz {dn}")
        a(f"s_sleep {XSLEEP}")
        ld_slot(sl)
        a(f"s_add_u32 s{sTO}, s{sTO}, 1"); a(f"s_cmp_lt_u32 s{sTO}, {TIMEOUT}")
        a("s_waitcnt vmcnt(0)")
        a(f"s_cbranch_scc1 {lp}")
        a(f"{dn}:")
        if sl == 2: break
        for k in range(16):
            a(f"v_lshlrev_b32 v{Q+2*k}, 16, v{I+k}"); a(f"v_and_b32 v{Q+2*k+1}, 0xffff0000, v{I+k}")
        for k in range(16): a(f"v_pk_add_f32 {vr(B+2*k,2)}, {vr(B+2*k,2)}, {vr(Q+2*k,2)}")
    g.stamp()
    a(f"s_mov_b32 s{sT}, 65536")
    for i in range(4):
        b = B + 8*i
        for e in range(4):
            a(f"v_lshlrev_b32 v{Q+2*e}, 16, v{IN+32+4*i+e}"); a(f"v_and_b32 v{Q+2*e+1}, 0xffff0000, v{IN+32+4*i+e}")
        for e in range(4): a(f"v_pk_add_f32 {vr(b+2*e,2)}, {vr(b+2*e,2)}, {vr(Q+2*e,2)}")
        for e in range(4): a(f"v_cvt_pk_bf16_f32 v{Q+e}, v{b+2*e}, v{b+2*e+1}")
        for e in range(4):
            a(f"v_lshlrev_b32 v{b+2*e}, 16, v{Q+e}"); a(f"v_and_b32 v{b+2*e+1}, 0xffff0000, v{Q+e}")
        for e in range(4): a(f"v_pk_add_f32 {vr(b+2*e,2)}, {vr(b+2*e,2)}, {vr(P+8*i+2*e,2)}")
        for e in range(4): a(f"v_cvt_pk_bf16_f32 v{HR+4*i+e}, v{b+2*e}, v{b+2*e+1}")
        so = f"s{sT}" if i >= 2 else "0"
        a(f"buffer_store_dwordx4 {vr(HR+4*i,4)}, v{vO}, {sr(sO,4)}, {so} offen offset:{32*(i&1)} {OF}")

def phase_gemm1(g, PRE1, XF=SC, LA=7, X0=3, TU=3, PU=(0,2,6), EXP='', WNT=''):
    a = g.a
    SLOT = SLOT1
    ACC = 32
    def acc(j, t): return ACC + (j*7 + t)*16
    XR = 0; WF = 64; CSF = 120
    vDMA = 1; vX = 8; vST = 9; vWc = 10; vWn = 11; vS = 12; vO = 28; vFl = 20; vC = 22; vF2 = 23
    sX = 44; sACT = 8; sST = 36; sCS = 40; sW2 = 12
    sOX = 20; sOX2 = 21; sBase = 23; sIt = 25; sA = 28; sB = 29; sNS = 30; sCSo = 32
    sOW = sG_OW; sM0 = sG_M0
    vm = VM()
    for i in range(4): vm.add("H")
    def pro_dma(stage, idxs):
        for i in idxs:
            if i in (0, 4): a(f"s_add_u32 m0, s{sM0}, {stage*SLOT + (4096 if i else 0)}"); a("s_nop 0")
            a(g1_dma(pDMA, i, WNT)); vm.add(f"D{stage}")
            if i == 6:
                for ins in g1_wadv("odd" if stage & 1 else "even"): a(ins)
    a(f"v_and_b32 v160, 31, v{vL}"); a(f"v_mov_b32 v161, 0x3f803f80")
    for t in range(7):
        a(f"v_cmp_eq_u32 vcc, {t}, v160"); a("s_nop 1")
        for e in range(4): a(f"v_cndmask_b32 v{96+4*t+e}, 0, v161, vcc")
    for i in range(7): a(f"v_mov_b32 v{vDMA+i}, v{pDMA+i}")
    for d, s_ in ((vX, pX), (vST, pST), (vWc, pWc), (vO, pO)): a(f"v_mov_b32 v{d}, v{s_}")
    a(f"v_add_u32 v{vWn}, {2*SLOT}, v{vWc}")
    srd(a, sACT, pWS, SZ_ACT, M_ACT); srd(a, sST, pWS, 2048*16, M_ST2); srd(a, sCS, pWS, 32*224*32, M_CS)
    srd(a, sW2, pWD, SZ_W)
    a(f"s_mul_i32 s16, s2, 28672")
    a(f"v_mov_b32 v27, v{pSR}")
    for e in range(4): a(f"v_accvgpr_write_b32 a{208+e}, -1")
    srd(a, 52, pWS, SZ_XCH, M_XCH)
    a(f"s_mul_i32 s51, s2, {XWG}"); a(f"s_add_u32 s54, s51, {XWG}")
    a(f"s_mul_i32 s{sCSo}, s{sG_TN}, {224*32}")
    a(f"v_lshrrev_b32 v163, 5, v{vL}")
    a(f"s_lshl_b32 s{sOX}, s{sG_TM}, 19"); a(f"s_add_u32 s{sOX2}, s{sOX}, 16384")
    a(f"s_mov_b32 s17, s{sOX}"); a(f"s_add_u32 s26, s{sOX}, {1 << 19}")
    a(f"s_mov_b32 s{sBase}, 0"); a(f"s_mov_b32 s{sIt}, 3"); a(f"s_mov_b32 s{sNS}, 3")
    a(f"s_lshr_b32 s{sT}, s{sWave}, 1"); a(f"s_mul_i32 s{sT}, s{sT}, {SLOT}")
    a(f"s_and_b32 s{sT+1}, s{sWave}, 1"); a(f"s_mul_i32 s{sT+1}, s{sT+1}, {2*3584}"); a(f"s_add_u32 s{sT}, s{sT}, s{sT+1}")
    a(f"v_add_u32 v164, s{sT}, v{vWc}")
    a(f"s_mul_i32 s{sT}, s{sWave}, 896"); a(f"s_add_u32 s{sT}, s{sT}, {PBASE}")
    a(f"v_lshlrev_b32 v165, 7, v160"); a(f"v_lshl_add_u32 v165, v163, 4, v165"); a(f"v_add_u32 v165, s{sT}, v165")
    def wread(st, t, j, reg, imm0):
        return f"ds_read_b64_tr_b16 {ar(WF+st*28+t*4+j*2,2)}, v{reg} offset:{imm0 + 4*j*224 + 32*t}"
    for st in range(2):
        for t in range(7):
            for j in range(2): a(wread(st, t, j, 164, st*3584))
    a(f"s_waitcnt vmcnt({vm.wait_for('H')})")
    a("s_barrier")
    set_flag(g, 1, 174)
    g.stamp()
    a("s_waitcnt lgkmcnt(0)")
    for st in range(2):
        for t in range(7):
            c = "0" if (st == 0 and t == 0) else "v[128:143]"
            a(f"v_mfma_f32_32x32x16_bf16 v[128:143], {ar(WF+st*28+t*4,4)}, {vr(96+4*t,4)}, {c}")
            pro_dma(2 + st, [t])
    for t in range(7):
        for j in range(2): a(wread(0, t, j, vWc, 0))
    a(f"v_cmp_gt_u32 vcc, 7, v160")
    a("s_and_saveexec_b64 s[56:57], vcc")
    for q in range(4): a(f"ds_write_b128 v165, {vr(128+4*q,4)} offset:{32*q}")
    a("s_mov_b64 exec, -1")
    a(f"s_mov_b32 s{sT+1}, 16384")
    a("s_waitcnt lgkmcnt(0)")
    g.stamp()
    poll_flags(g, 29, sT+1, 166)
    a("s_barrier")
    g.stamp()
    vm = VM()
    SD = 64
    def xload(slot, k):
        j, hf = k >> 1, k & 1
        return f"buffer_load_dwordx2 {ar(XR+slot*8+j*4+hf*2,2)}, v{vX}, {sr(sX,4)}, s{sOX2 if hf else sOX} offen offset:{256*j} {XF}"
    xadv = [f"s_add_u32 s{sOX}, s{sOX}, 65536", f"s_add_u32 s{sOX2}, s{sOX}, 16384"]
    def xadv_pair(own):
        return [f"s_mov_b32 s{sOX}, 0" if own else xadv[0], f"s_cmp_eq_u32 s{sOX}, s17", f"s_cselect_b32 s{sOX}, s26, s{sOX}", xadv[1]]
    RD = 148
    def pro_x(x):
        for k in range(4): a(xload(x, k)); vm.add(f"X{x}")
        for ins in xadv: a(ins)
    for x in range(X0): pro_x(x)
    nxt_x = [X0]
    a(f"v_lshlrev_b32 v168, 2, v0"); a(f"v_add_u32 v168, {PBASE}, v168")
    for w in range(4): a(f"ds_read_b32 v{170+w}, v168 offset:{896*w}")
    a(f"v_lshlrev_b32 v169, 5, v0")
    a(f"s_lshl_b32 s{sT}, s{sG_TM}, 2"); a(f"s_add_u32 s{sT}, s{sT}, s{sCSo}")
    a(f"v_cmp_gt_u32 vcc, 224, v0")
    a(f"v_and_b32 v29, 3, v{vL}"); a(f"v_lshlrev_b32 v29, 4, v29"); a(f"s_lshl_b32 s{sT+1}, s{sWave}, 6"); a(f"s_add_u32 s{sT+1}, s{sT+1}, {SBASE}")
    a(f"v_add_u32 v29, s{sT+1}, v29")
    a("s_waitcnt lgkmcnt(0)")
    a("v_add_f32 v170, v170, v171"); a("v_add_f32 v172, v172, v173"); a("v_add_f32 v170, v170, v172")
    a("v_cvt_pk_bf16_f32 v171, v170, v170"); a("v_lshlrev_b32 v171, 16, v171")
    a("v_sub_f32 v170, v170, v171")
    a("v_cvt_pk_bf16_f32 v170, v171, v170")
    a("s_and_saveexec_b64 s[56:57], vcc")
    a(f"buffer_store_dword v170, v169, {sr(sCS,4)}, s{sT} offen {SC}"); vm.add("C")
    a("s_mov_b64 exec, -1")
    g.stamp()
    accu = []
    for k in range(8):
        r0 = RD+4*(k>>1)+(k&1); r1 = r0+2
        accu += [f"v_accvgpr_read_b32 v16, a{r0}", f"v_accvgpr_read_b32 v17, a{r1}",
                 "v_lshlrev_b32 v18, 16, v16", "v_lshlrev_b32 v19, 16, v17", "v_and_b32 v16, 0xffff0000, v16", "v_and_b32 v17, 0xffff0000, v17"]
        if k == 0:
            accu += ["v_add_f32 v12, v18, v16", "v_add_f32 v13, v19, v17", "v_mul_f32 v14, v18, v18", "v_mul_f32 v15, v19, v19"]
        else:
            accu += ["v_add_f32 v12, v12, v18", "v_add_f32 v13, v13, v19", "v_fmac_f32 v14, v18, v18", "v_fmac_f32 v15, v19, v19",
                     "v_add_f32 v12, v12, v16", "v_add_f32 v13, v13, v17"]
        accu += ["v_fmac_f32 v14, v16, v16", "v_fmac_f32 v15, v17, v17"]
    n3 = (len(accu) + 3) // 4
    FILL = {0: accu[:n3], 1: accu[n3:2*n3], 2: accu[2*n3:3*n3], 3: accu[3*n3:],
            4: red4(12, 16) + ["ds_write_b128 v29, v[12:15]"],
            5: [f"ds_read_b128 {vr(16+4*w,4)}, v29 offset:{64*(w+1)}" for w in range(3)],
            6: [f"v_add_f32 v{12+e}, v{12+e}, v{16+e}" for e in range(4)] + [f"v_add_f32 v{20+e}, v{20+e}, v{24+e}" for e in range(4)]
               + [f"v_add_f32 v{12+e}, v{12+e}, v{20+e}" for e in range(4)] + stats_final(12, 16),
            7: [f"v_cmp_gt_u32 vcc, 4, v{vL}", f"v_and_b32 v29, 3, v{vL}", "v_lshlrev_b32 v29, 5, v29", f"v_bfe_u32 v21, v{vL}, 2, 1", "v_lshl_add_u32 v29, v21, 4, v29",
                "v_cndmask_b32 v16, v13, v12, vcc", "v_cndmask_b32 v17, v15, v14, vcc", "v_cmp_gt_u32 vcc, 8, v0",
                f"v_mov_b32 v18, s{sNON}", f"v_mov_b32 v19, s{sNON+1}", "v_mov_b32 v21, 0x7fff0000", "v_cndmask_b32 v29, v21, v29, vcc",
                f"s_lshl_b32 s{sT}, s{sG_R}, 4", f"buffer_store_dwordx4 v[16:19], v29, {sr(sST,4)}, s{sT} offen {SC}", "v_lshlrev_b32 v26, 4, v0"]}
    LFILL = [f"v_and_b32 v{vC}, 31, v{vL}", f"v_lshlrev_b32 v{vC}, 5, v{vC}", f"v_lshrrev_b32 v{vF2}, 5, v{vL}", f"v_lshl_add_u32 v{vC}, v{vF2}, 4, v{vC}",
             f"v_and_b32 v{vF2}, 7, v{vL}", f"v_lshlrev_b32 v{vF2}, 9, v{vF2}",
             f"s_and_b32 s{sT}, s2, 0xc7", f"s_lshl_b32 s{sT}, s{sT}, 6", f"s_add_u32 s{sT}, s{sT}, {3*16384}", f"v_add_u32 v{vF2}, s{sT}, v{vF2}"]
    def ld_flags_stats():
        return [f"buffer_load_dwordx2 {vr(vFl,2)}, v{vF2}, {sr(sFLG,4)}, 0 offen {SC}",
                f"buffer_load_dwordx4 {vr(vS,4)}, v{vST}, {sr(sST,4)}, 0 offen {SC}",
                f"buffer_load_dwordx4 {vr(vS+4,4)}, v{vST}, {sr(sST,4)}, 0 offen offset:512 {SC}"]
    def ld_cs(t):
        if t < 4: return f"buffer_load_dwordx4 {ar(CSF+4*t,4)}, v{vC}, {sr(sCS,4)}, s{sCSo} offen offset:{1024*t} {SC}"
        return f"buffer_load_dwordx4 {ar(CSF+4*t,4)}, v{vC}, {sr(sCS,4)}, s{sNS} offen offset:{1024*(t-4)} {SC}"
    DM = {3: [0, 1], 0: [2, 3], 1: [4, 5], 2: [6]}
    def body(kind, base_step):
        first = kind == "first"; last = kind == "last"; second = kind == "second"; mid = kind == "mid"
        for u in range(8):
            s = u % 4; st = u & 1
            w = vm.wait_for(f'X{base_step+u}')
            if second and u == 0: w = min(w, vm.wait_for("R"))
            if last and u == 2: w = min(w, vm.wait_for("S"))
            a(f"s_waitcnt vmcnt({w}) lgkmcnt(0)")
            if (s == 3 and not (last and u == 7)) or (second and u == 5): a("s_barrier")
            if first and u == 7: set_flag(g, 3, 22)
            gaps = {k: [] for k in range(14)}
            tags = {k: [] for k in range(14)}
            nu = (u + 1) % 8
            reg = vWn if u == 7 else vWc
            imm0 = (nu // 4) * SLOT + (nu % 4) * 16 * 224
            k = 0
            if not (last and u == 7):
                for t in range(7):
                    for j in range(2):
                        gaps[k // 2].append(wread(1 - st, t, j, reg, imm0)); k += 1
            xl = []
            while nxt_x[0] <= base_step + u + LA and len(xl) < 2 and not (last and nxt_x[0] >= base_step + 8):
                xl.append(nxt_x[0]); nxt_x[0] += 1
            g0 = 6 if len(xl) == 1 else 2
            for x in xl:
                for k in range(4):
                    gaps[g0+k].append(xload(x % 8, k)); tags[g0+k].append(f"X{x}")
                gaps[g0+3] += xadv_pair(x == 7) if x % 8 == 7 else xadv
                g0 += 4
            gi = 11
            if not last:
                for i in ([] if first and u < 3 else DM[s]):
                    if i in (0, 4):
                        e = 4096 if i else 0
                        if u in (3, 4, 5, 6): ins = f"s_add_u32 m0, s{sA}, {e}"
                        elif u == 7: ins = f"s_add_u32 m0, s{sA}, {SLOT + e}"
                        else: ins = f"s_add_u32 m0, s{sB}, {SLOT + e}"
                        gaps[gi-2].append(ins)
                    gaps[gi].append(g1_dma(vDMA, i, WNT)); tags[gi].append("D")
                    if i == 6:
                        gaps[gi+1] += g1_wadv("odd" if u == 2 else "even")
                    gi += 1
                if u == 0:
                    gaps[0].insert(0, f"s_add_u32 s{sA}, s{sM0}, s{sBase}")
                    gaps[1].insert(0, f"s_sub_u32 s{sBase}, {2*SLOT}, s{sBase}")
                    gaps[2].insert(0, f"s_add_u32 s{sB}, s{sM0}, s{sBase}")
                if mid and u in PU:
                    gaps[13] += [f"buffer_store_dwordx4 a[208:211], v26, s[52:55], s51 offen {SC}", f"s_add_u32 s51, s51, 4096"]; tags[13].append("P")
                if first and u in (2, 3, 4, 5):
                    gaps[13] += [f"buffer_load_dwordx4 {ar(RD+4*(u-2),4)}, v27, {sr(sX,4)}, s{sG_SR} offen {SC}", f"s_add_u32 s{sG_SR}, s{sG_SR}, {16*16384}"]; tags[13].append("R")
                if u == 7:
                    gaps[8].append(f"v_swap_b32 v{vWc}, v{vWn}")
                    if mid:
                        gaps[13].append(f"s_add_u32 s{sIt}, s{sIt}, 1"); gaps[13].append(f"s_cmp_lt_u32 s{sIt}, 8")
            else:
                if u == 0:
                    for n, ins in enumerate(LFILL): gaps[n].append(ins)
                    for n, ins in enumerate(ld_flags_stats()): gaps[11+n].append(ins); tags[11+n].append("S")
                if u == 1: gaps[8].append(f"s_add_u32 s{sNS}, s{sCSo}, 4096")
                if u == 2:
                    for t in range(7): gaps[7+t].append(ld_cs(t)); tags[7+t].append('CS')
                if u == TU:
                    for t in range(7):
                        gaps[7+t] += [f"buffer_load_dwordx4 a[200:203], v26, {sr(sW2,4)}, s16 offen", f"s_add_u32 s16, s16, 4096"]; tags[7+t].append("T")
                if u == 6:
                    pre = g2_dma_addr(sM0)
                    for n, ins in enumerate(pre): gaps[7 + n*7//len(pre)].append(ins)
                if u == 7:
                    gaps[0].append("s_barrier")
            if second and u in FILL:
                fl = FILL[u]
                for n, ins in enumerate(fl): gaps[n*14//len(fl) if len(fl) > 7 else 7+n].append(ins)
            k = 0
            for t in range(7):
                for j in range(2):
                    c = "0" if (first and u == 0) else vr(acc(j,t),16)
                    a(f"v_mfma_f32_32x32x16_bf16 {vr(acc(j,t),16)}, {ar(WF+st*28+t*4,4)}, {ar(XR+u*8+j*4,4)}, {c}")
                    for ins in gaps[k]:
                        if mid and 'x' in EXP and ins.startswith("buffer_load_dwordx2 a"): continue
                        if mid and 'd' in EXP and ins.endswith("lds"): continue
                        if mid and 'l' in EXP and ins.startswith("ds_read") : continue
                        if mid and 'h' in EXP and ins.startswith("ds_read") and k % 2: continue
                        a(ins)
                    for tg in tags[k]: vm.add(tg)
                    k += 1
    body("first", 0)
    g.stamp()
    body("second", 8)
    loop = a.label("g1loop")
    a(f"{loop}:")
    if g.dbg:
        a("s_memrealtime s[98:99]"); a("s_memtime s[100:101]"); a(f"s_add_u32 s97, s{sIt}, {g.nst-3}"); a("s_waitcnt lgkmcnt(0)")
        a("s_mov_b32 s99, m0"); a("s_mov_b32 m0, s97"); a("s_nop 1")
        a(f"v_writelane_b32 v{vSTAMP}, s98, m0"); a("s_add_u32 m0, m0, 32"); a("s_nop 1"); a(f"v_writelane_b32 v{vSTAMP}, s100, m0"); a("s_mov_b32 m0, s99")
        g.nst += 5
    body("mid", 16)
    a(f"s_cbranch_scc1 {loop}")
    g.stamp()
    body("last", 24)
    g.stamp()
    poll = a.label("sp"); ok = a.label("sok")
    a(f"s_mov_b32 s{sTO}, 0")
    a(f"{poll}:")
    a(f"v_cmp_ne_u64 vcc, {sr(sNON,2)}, {vr(vS+2,2)}")
    a(f"v_cmp_ne_u64 {sr(sT,2)}, {sr(sNON,2)}, {vr(vS+6,2)}")
    a(f"s_or_b64 vcc, vcc, {sr(sT,2)}")
    a(f"v_cmp_ne_u64 {sr(sT,2)}, {sr(sNON,2)}, {vr(vFl,2)}")
    a(f"s_or_b64 vcc, vcc, {sr(sT,2)}")
    a(f"s_cbranch_vccz {ok}")
    for ins in ld_flags_stats(): a(ins)
    a("s_waitcnt vmcnt(0)")
    for t in range(7): a(ld_cs(t))
    a("s_waitcnt vmcnt(0)")
    a(f"s_add_u32 s{sTO}, s{sTO}, 1"); a(f"s_cmp_lt_u32 s{sTO}, {TIMEOUT}"); a(f"s_cbranch_scc1 {poll}")
    a(f"{ok}:")
    for j in range(2):
        b = 20 + 4*j
        a(f"v_xor_b32 v{b+1}, 0x80000000, v{vS+4*j}")
        a(f"v_lshrrev_b32 v{b}, 16, v{b+1}")
        a(f"v_or_b32 v{b}, v{b}, v{b+1}")
        for e in range(1, 4): a(f"v_mov_b32 v{b+e}, v{b}")
    a(f"s_waitcnt vmcnt({7 if TU < 8 else 0})")
    a("s_nop 0")
    K0 = -2.0 * 0.7978845608028654 * LOG2E
    K1 = K0 * 0.044715
    C = {0: 2, 1: 6}
    cst = []
    for j in range(2):
        s_ = vS + 4*j + 1; c = C[j]
        cst += [f"v_mul_f32 v{c}, {f32(K0)}, v{s_}", f"v_mul_f32 v{c+2}, v{s_}, v{s_}", f"v_mul_f32 v{c+1}, v{c+2}, v{s_}",
                f"v_mul_f32 v{c+1}, {f32(K1)}, v{c+1}", f"v_rcp_f32 v{c+2}, v{c+2}"]
    for j in range(2):
        for t in range(7):
            a(f"v_mfma_f32_32x32x16_bf16 {vr(acc(j,t),16)}, {ar(CSF+t*4,4)}, {vr(20+4*j,4)}, {vr(acc(j,t),16)}")
            if cst: a(cst.pop(0))
    w2 = [g2_dma(stg, i) for stg in range(PRE1) for i in range(4)]
    def W2():
        if w2:
            for ins in w2.pop(0): a(ins)
    T = 12
    for j in range(2):
        c = C[j]
        for t in range(7):
            b = acc(j, t)
            prs = [(b, b+4), (b+2, b+6), (b+8, b+12), (b+10, b+14)]
            for i, (gt, u_) in enumerate(prs): a(f"v_pk_mul_f32 {vr(T+2*i,2)}, {vr(gt,2)}, {vr(gt,2)}")
            for i, (gt, u_) in enumerate(prs): a(f"v_pk_fma_f32 {vr(T+2*i,2)}, {vr(T+2*i,2)}, {vr(c,2)}, {vr(c,2)} op_sel:[0,1,0] op_sel_hi:[1,1,0]")
            for i, (gt, u_) in enumerate(prs): a(f"v_pk_mul_f32 {vr(T+2*i,2)}, {vr(T+2*i,2)}, {vr(gt,2)}")
            W2()
            for i in range(8): a(f"v_exp_f32 v{T+i}, v{T+i}")
            for i, (gt, u_) in enumerate(prs): a(f"v_pk_mul_f32 {vr(u_,2)}, {vr(u_,2)}, {vr(gt,2)}")
            for i, (gt, u_) in enumerate(prs): a(f"v_pk_fma_f32 {vr(T+2*i,2)}, {vr(T+2*i,2)}, {vr(c+2,2)}, {vr(c+2,2)} op_sel_hi:[1,0,0]")
            W2()
            for i in range(8): a(f"v_rcp_f32 v{T+i}, v{T+i}")
            a(f"s_mov_b32 s{sT}, {t*65536}")
            for i, (gt, u_) in enumerate(prs): a(f"v_pk_mul_f32 {vr(u_,2)}, {vr(u_,2)}, {vr(T+2*i,2)}")
            for i, (gt, u_) in enumerate(prs): a(f"v_cvt_pk_bf16_f32 v{b+i}, v{u_}, v{u_+1}")
            a(f"buffer_store_dwordx4 {vr(b,4)}, v{vO}, {sr(sACT,4)}, s{sT} offen offset:{512*j} {SC}")
    assert not w2
    g.stamp()

def gen_mega(dbg=False, as_list=False, p01={}, g1={}, g2={}, PRE1=6):
    g = G(dbg); a = g.a
    end = a.label("end")
    a(f"s_cmp_ge_u32 s2, 256"); a(f"s_cbranch_scc1 {end}")
    phase01(g, **p01); phase_gemm1(g, PRE1, **g1); phase_gemm2(g, PRE1, **g2)
    if dbg:
        g.stamp()
        a("s_waitcnt vmcnt(0)")
        g.stamp()
        srd(a, 4, pWS, 1 << 19, M_DBG)
        a(f"v_lshlrev_b32 v1, 2, v{vL}")
        a(f"s_lshl_b32 s{sT}, s2, 2"); a(f"s_add_u32 s{sT}, s{sT}, s{sWave}"); a(f"s_lshl_b32 s{sT}, s{sT}, 8")
        a(f"buffer_store_dword v{vSTAMP}, v1, s[4:7], s{sT} offen")
    a(f"{end}:")
    a("s_endpgm")
    k = f"kernel={NAME} " if as_list else ""
    launch = f"; @launch {k}grid=(256,1,1) block=(256,1,1) lds=163840\n"
    body = a.text()
    import subprocess, tempfile, os
    with tempfile.TemporaryDirectory() as td:
        open(td + "/x.s", "w").write('.amdgcn_target "amdgcn-amd-amdhsa--gfx950"\n.text\n' + body.replace("CODE_BYTES", "0x1234"))
        subprocess.run(["clang", "-x", "assembler", "-target", "amdgcn-amd-amdhsa", "-mcpu=gfx950", "-c", td + "/x.s", "-o", td + "/x.o"], check=True)
        subprocess.run(["llvm-objcopy", "-O", "binary", "-j", ".text", td + "/x.o", td + "/x.bin"], check=True)
        n = os.path.getsize(td + "/x.bin")
    assert n < 65536
    body = body.replace("CODE_BYTES", str((n - 768) & ~63))
    return launch, kernel_header(NAME) + body, kernel_desc(NAME, 512, 256)

if __name__ == "__main__":
    from mk import *
    mk([gen_mega(dbg=True, as_list=True)], 'mega_dbg.s')
    assemble([gen_mega()], 'm1.s')
    assemble([gen_mega(p01=dict(TOUCH=21))], 'm2.s')
    assemble([gen_mega(p01=dict(TOUCH=18))], 'm3.s')
```

```python
from common import *
LOG2E = 1.4426950408889634
NAME = "sequential_preLN__ssm_conv_s4d__geglu_ffn__prompt_kernel"

M_H4  = 0x0000000
M_ACT = 0x0400000
M_ST2 = 0x1200000
M_FLG = 0x1210000
M_CS  = 0x1220000
M_DBG = 0x1280000
M_U2  = 0x1300000
M_END = 0x1b00000

pU, pLOGA, pAIM, pCRE, pCIM, pLOGDT, pDSKIP, pBX, pWG, pWU, pWD, pOUT, pDBG, pWS = [64 + 2*i for i in range(14)]
sNON = 92; sWave = 94; sCG = 95; sTO = 96
sFLG = 60
sT = 48
vL = 30; vSTAMP = 31
SC = "sc0 sc1"

SLOT1 = 28800; UPOFF = 14464
UCS = 4512; UCH = 4*UCS; UPAD = 400
KCS = 4224; KCH = 8448; KPAD = 112
UBASE = 2*SLOT1
KBASE = UBASE + 4*UCH
SBASE = KBASE + 4*KCH
PBASE = 4*SLOT1
RS = 528; TOFF = 24*RS + 16
NBASE = SBASE + 240
assert SBASE + 256 <= 163840

class G:
    def __init__(self, dbg):
        self.a = Asm("mk"); self.dbg = dbg; self.nst = 0
    def stamp(self):
        if not self.dbg: return
        a = self.a
        a("s_memrealtime s[98:99]"); a("s_memtime s[100:101]"); a("s_waitcnt lgkmcnt(0)")
        a(f"v_writelane_b32 v{vSTAMP}, s98, {self.nst}"); a(f"v_writelane_b32 v{vSTAMP}, s100, {32+self.nst}")
        self.nst += 1

def cmul(a, d, x, y, conj_out=False):
    n1 = " neg_hi:[0,1]" if conj_out else ""
    n2 = " neg_hi:[0,1,0]" if conj_out else ""
    a(f"v_pk_mul_f32 {vr(d,2)}, {vr(x,2)}, {vr(y,2)} op_sel_hi:[0,1]{n1}")
    a(f"v_pk_fma_f32 {vr(d,2)}, {vr(x,2)}, {vr(y,2)}, {vr(d,2)} op_sel:[1,1,0] op_sel_hi:[1,0,1] neg_lo:[0,1,0]{n2}")

def red4(v, t):
    o = []
    for d in (4, 8):
        o += [f"v_add_f32_dpp v{v+e}, v{v+e}, v{v+e} row_ror:{d} row_mask:0xf bank_mask:0xf" for e in range(4)]
    for op in ("v_permlane16_swap_b32", "v_permlane32_swap_b32"):
        o += [f"v_mov_b32 v{t+e}, v{v+e}" for e in range(4)]
        o += [f"{op} v{t+e}, v{v+e}" for e in range(4)]
        o += [f"v_add_f32 v{v+e}, v{v+e}, v{t+e}" for e in range(4)]
    return o

def stats_final(W, t, packed=False):
    o = [f"v_mul_f32 v{W+e}, {f32(1/1024)}, v{W+e}" for e in range(4)]
    o += [f"v_fma_f32 v{W+2+e}, -v{W+e}, v{W+e}, v{W+2+e}" for e in range(2)]
    o += [f"v_max_f32 v{W+2+e}, 0, v{W+2+e}" for e in range(2)]
    def rnd(b): return [f"v_cvt_pk_bf16_f32 v{t}, v{b}, v{b+1}", f"v_lshlrev_b32 v{b}, 16, v{t}", f"v_and_b32 v{b+1}, 0xffff0000, v{t}"]
    o += rnd(W+2)
    o += [f"v_add_f32 v{W+2+e}, {f32(1e-5)}, v{W+2+e}" for e in range(2)]
    o += rnd(W+2)
    o += [f"v_sqrt_f32 v{W+2+e}, v{W+2+e}" for e in range(2)]
    if packed:
        return o + [f"v_cvt_pk_bf16_f32 v{t}, v{W}, v{W+1}", f"v_cvt_pk_bf16_f32 v{t+1}, v{W+2}, v{W+3}"]
    o += rnd(W)
    o += rnd(W+2)
    o += [f"v_rcp_f32 v{W+2+e}, v{W+2+e}" for e in range(2)]
    o += ["s_nop 0"]
    return o

def ln_stats8(a, pairs, T, W, pre_barrier):
    for k, (r0, r1) in enumerate(pairs):
        a(f"v_lshlrev_b32 v{T+4*k}, 16, v{r0}"); a(f"v_lshlrev_b32 v{T+4*k+1}, 16, v{r1}")
        a(f"v_and_b32 v{T+4*k+2}, 0xffff0000, v{r0}"); a(f"v_and_b32 v{T+4*k+3}, 0xffff0000, v{r1}")
    a(f"v_pk_add_f32 {vr(W,2)}, {vr(T,2)}, {vr(T+4,2)}"); a(f"v_pk_mul_f32 {vr(W+2,2)}, {vr(T,2)}, {vr(T,2)}")
    a(f"v_pk_add_f32 {vr(W+4,2)}, {vr(T+2,2)}, {vr(T+6,2)}"); a(f"v_pk_mul_f32 {vr(W+6,2)}, {vr(T+2,2)}, {vr(T+2,2)}")
    for k in range(2, 16):
        b = W + 4*(k & 1)
        if k >= 4: a(f"v_pk_add_f32 {vr(b,2)}, {vr(b,2)}, {vr(T+2*k,2)}")
        a(f"v_pk_fma_f32 {vr(b+2,2)}, {vr(T+2*k,2)}, {vr(T+2*k,2)}, {vr(b+2,2)}")
    a(f"v_pk_add_f32 {vr(W,2)}, {vr(W,2)}, {vr(W+4,2)}"); a(f"v_pk_add_f32 {vr(W+2,2)}, {vr(W+2,2)}, {vr(W+6,2)}")
    a(f"v_and_b32 v{W+24}, 3, v{vL}"); a(f"v_lshlrev_b32 v{W+24}, 4, v{W+24}"); a(f"v_add_u32 v{W+24}, {SBASE}, v{W+24}")
    a(f"s_lshl_b32 s{sT}, s{sWave}, 6"); a(f"v_add_u32 v{W+25}, s{sT}, v{W+24}")
    for ins in red4(W, W+4): a(ins)
    a(f"ds_write_b128 v{W+25}, {vr(W,4)}")
    pre_barrier()
    a("s_waitcnt lgkmcnt(0)"); a("s_barrier")
    E = W + 8
    for w in range(4): a(f"ds_read_b128 {vr(E+4*w,4)}, v{W+24} offset:{64*w}")
    a("s_waitcnt lgkmcnt(0)")
    a(f"v_pk_add_f32 {vr(W,2)}, {vr(E,2)}, {vr(E+4,2)}"); a(f"v_pk_add_f32 {vr(W+4,2)}, {vr(E+8,2)}, {vr(E+12,2)}")
    a(f"v_pk_add_f32 {vr(W+2,2)}, {vr(E+2,2)}, {vr(E+6,2)}"); a(f"v_pk_add_f32 {vr(W+6,2)}, {vr(E+10,2)}, {vr(E+14,2)}")
    a(f"v_pk_add_f32 {vr(W,2)}, {vr(W,2)}, {vr(W+4,2)}"); a(f"v_pk_add_f32 {vr(W+2,2)}, {vr(W+2,2)}, {vr(W+6,2)}")
    for ins in stats_final(W, W+4, True): a(ins)

TIMEOUT = 400000
def set_flag(g, which, tmp):
    a = g.a
    sk = a.label("fl")
    a(f"s_cmp_lg_u32 s{sWave}, 0"); a(f"s_cbranch_scc1 {sk}")
    a(f"s_lshl_b32 s{sT}, s2, 6"); a(f"s_add_u32 s{sT}, s{sT}, {which*16384}")
    a(f"v_mov_b32 v{tmp}, s{sNON}"); a(f"v_mov_b32 v{tmp+1}, s{sNON+1}"); a(f"v_mov_b32 v{tmp+2}, 0")
    a("s_mov_b64 exec, 1")
    a(f"buffer_store_dwordx2 {vr(tmp,2)}, v{tmp+2}, {sr(sFLG,4)}, s{sT} offen {SC}")
    a("s_mov_b64 exec, -1")
    a(f"{sk}:")

def poll_flags(g, voff, soff, tmp, preloaded=False):
    a = g.a
    lp = a.label("poll"); dn = a.label("pdone"); pre = a.label("ppre")
    a(f"s_mov_b32 s{sTO}, 0")
    if preloaded: a(f"s_branch {pre}")
    a(f"{lp}:")
    a(f"buffer_load_dwordx2 {vr(tmp,2)}, v{voff}, {sr(sFLG,4)}, s{soff} offen {SC}")
    if preloaded: a(f"{pre}:")
    a("s_waitcnt vmcnt(0)")
    a(f"v_cmp_ne_u64 vcc, {sr(sNON,2)}, {vr(tmp,2)}")
    a(f"s_cbranch_vccz {dn}")
    a("s_mov_b64 exec, vcc")
    a(f"s_add_u32 s{sTO}, s{sTO}, 1"); a(f"s_cmp_lt_u32 s{sTO}, {TIMEOUT}"); a(f"s_cbranch_scc1 {lp}")
    a(f"{dn}:")
    a("s_mov_b64 exec, -1")

class VM:
    def __init__(self): self.ops = []
    def add(self, tag): self.ops.append(tag)
    def wait_for(self, tag):
        idx = max(i for i, t in enumerate(self.ops) if t == tag)
        n = len(self.ops) - 1 - idx
        assert n <= 63, n
        return n


pDMA = 224
pX = 231; pST = 232; pWc = 233; pO = 234; pSR = 235; pTch = 236
sG_W = 4
sG_OW = 22; sG_M0 = 24; sG_F = 27; sG_R = 31; sG_SR = 35; sG_TN = 34; sG_TM = 33

def g1_dma(reg, i, fl=""):
    return f"buffer_load_dwordx4 v{reg+i}, {sr(sG_W,4)}, s{sG_OW} offen offset:{(i & 3)*1024} {fl} lds"
sG_OWN = 19; sG_OWN2 = 18
def g1_wadv(kind):
    if kind == "even": return [f"s_add_u32 s{sG_OW}, s{sG_OW}, {64*7168}"]
    first = f"s_mov_b32 s{sG_OW}, 0" if kind == "own" else f"s_add_u32 s{sG_OW}, s{sG_OW}, {64*7168}"
    return [first, f"s_cmp_eq_u32 s{sG_OW}, s{sG_OWN}", f"s_cselect_b32 s{sG_OW}, s{sG_OWN2}, s{sG_OW}"]

def gemm1_addr(g, part):
    a = g.a if part == 0 else (lambda x: None)
    t0 = 240; sM = 26
    a(f"s_and_b32 s{sT}, s2, 7")
    a(f"s_bfe_u32 s{sG_TM}, s2, 0x30003")
    a(f"s_lshl_b32 s{sG_TN}, s{sT}, 2"); a(f"s_lshr_b32 s{sT+2}, s2, 6"); a(f"s_add_u32 s{sG_TN}, s{sG_TN}, s{sT+2}")
    a(f"s_lshl_b32 s{sM}, s{sG_TM}, 8")
    a(f"s_lshl_b32 s{sG_R}, s{sG_TN}, 3"); a(f"s_add_u32 s{sG_R}, s{sG_R}, s{sM}")
    a(f"s_mul_i32 s{sG_F}, s{sG_TN}, 112")
    a(f"s_cmp_ge_u32 s{sWave}, 2")
    a(f"s_cselect_b32 s{sG_W}, s{pWU}, s{pWG}"); a(f"s_cselect_b32 s{sG_W+1}, s{pWU+1}, s{pWG+1}")
    a(f"s_mov_b32 s{sG_W+2}, {SZ_W}"); a(f"s_mov_b32 s{sG_W+3}, 0x20000")
    a(f"s_and_b32 s{sT}, s{sWave}, 1"); a(f"s_mul_i32 s{sT+1}, s{sT}, 448"); a(f"s_lshl_b32 s{sT+2}, s{sG_F}, 1")
    for i in range(7):
        imm = (i & 3) * 1024
        a(f"v_add_u32 v{t0}, s{sT+1}, v{vL}")
        if i: a(f"v_add_u32 v{t0}, {64*i}, v{t0}")
        a(f"v_mul_u32_u24 v{t0+1}, 4682, v{t0}"); a(f"v_lshrrev_b32 v{t0+1}, 16, v{t0+1}")
        a(f"v_mul_u32_u24 v{t0+1}, {7168-224}, v{t0+1}")
        a(f"v_lshl_add_u32 v{t0+1}, v{t0}, 4, v{t0+1}")
        a(f"v_add_u32 v{pDMA+i}, s{sT+2}, v{t0+1}")
        if imm: a(f"v_subrev_u32 v{pDMA+i}, {imm}, v{pDMA+i}")
    a(f"v_and_b32 v{t0+3}, 3, v{vL}")
    a(f"s_mul_i32 s{sG_M0}, s{sT}, 7168"); a(f"s_lshr_b32 s{sT}, s{sWave}, 1"); a(f"s_mul_i32 s{sT}, s{sT}, {UPOFF}")
    a(f"s_add_u32 s{sG_M0}, s{sG_M0}, s{sT}")
    a(f"s_mul_i32 s{sG_OW}, s{sG_TM}, {128*7168}")
    a(f"s_mov_b32 s{sG_OWN}, s{sG_OW}"); a(f"s_add_u32 s{sG_OWN2}, s{sG_OW}, {128*7168}")
    a = g.a if part == 1 else (lambda x: None)
    a(f"s_lshl_b32 s{sT}, s{sWave}, 6"); a(f"s_add_u32 s{sM}, s{sM}, s{sT}")
    a(f"v_and_b32 v{t0}, 31, v{vL}"); a(f"v_add_u32 v{t0}, s{sM}, v{t0}")
    a(f"v_lshlrev_b32 v{pST}, 4, v{t0}")
    a(f"v_lshrrev_b32 v{t0+1}, 5, v{vL}")
    a(f"v_lshlrev_b32 v{pX}, 3, v{t0}"); a(f"v_lshl_add_u32 v{pX}, v{t0+1}, 15, v{pX}")
    a(f"v_lshl_add_u32 v{pO}, v{t0+1}, 15, v{pST}"); a(f"s_lshl_b32 s{sT}, s{sG_F}, 12"); a(f"v_add_u32 v{pO}, s{sT}, v{pO}")
    a(f"v_bfe_u32 v{t0+2}, v{vL}, 2, 2"); a(f"v_lshl_add_u32 v{t0+2}, v{t0+1}, 3, v{t0+2}")
    a(f"v_mul_u32_u24 v{pWc}, 224, v{t0+2}")
    a(f"v_bfe_u32 v{t0+2}, v{vL}, 1, 1"); a(f"v_mul_u32_u24 v{t0+2}, {UPOFF}, v{t0+2}"); a(f"v_add_u32 v{pWc}, v{pWc}, v{t0+2}")
    a(f"v_and_b32 v{t0+2}, 1, v{vL}"); a(f"v_lshl_add_u32 v{pWc}, v{t0+2}, 4, v{pWc}")
    a(f"v_bfe_u32 v{t0+2}, v{vL}, 4, 1"); a(f"v_lshl_add_u32 v{pWc}, v{t0+2}, 3, v{pWc}")
    a(f"v_lshrrev_b32 v{pSR}, 2, v{vL}"); a(f"v_lshlrev_b32 v{pSR}, 14, v{pSR}"); a(f"v_lshl_add_u32 v{pSR}, v{t0+3}, 4, v{pSR}")
    a(f"s_lshl_b32 s{sG_SR}, s{sWave}, 20"); a(f"s_lshl_b32 s{sT}, s{sG_R}, 3"); a(f"s_add_u32 s{sG_SR}, s{sG_SR}, s{sT}")

def phase01(g, ORDER="LSM", KMID=0, DPOST=0, XNT="nt", TOUCH=False, DNT="", DSP=18, CPF=True, DSTART=0, CT=0, DPS=2, DSET=7):
    a = g.a
    vm = VM()
    a(f"s_memrealtime {sr(sT+2,2)}")
    a("s_load_dwordx16 s[64:79], s[0:1], 0")
    a("s_load_dwordx8 s[80:87], s[0:1], 64")
    a("s_load_dwordx4 s[88:91], s[0:1], 96")
    a(f"v_lshrrev_b32 v2, 6, v0")
    a(f"v_and_b32 v{vL}, 63, v0")
    a(f"v_readfirstlane_b32 s{sWave}, v2")
    a(f"s_and_b32 s{sT}, s2, 7"); a(f"s_lshl_b32 s{sT}, s{sT}, 5")
    a(f"s_lshr_b32 s{sCG}, s2, 3"); a(f"s_add_u32 s{sCG}, s{sCG}, s{sT}")
    if g.dbg: a(f"v_mov_b32 v{vSTAMP}, 0")
    a(f"v_and_b32 v3, 3, v{vL}"); a(f"v_lshrrev_b32 v4, 2, v{vL}")
    a(f"v_lshlrev_b32 v5, 12, v3"); a(f"v_lshl_add_u32 v5, v4, 4, v5")
    a(f"s_lshl_b32 s{sT}, s2, 14"); a(f"s_lshl_b32 s{sT+1}, s{sWave}, 9"); a(f"s_add_u32 s{sT}, s{sT}, s{sT+1}")
    a(f"v_mov_b32 v1, 0")
    sD = 97
    a(f"s_lshl_b32 s{sD}, s{sCG}, 2"); a(f"s_add_u32 s{sD}, s{sD}, s{sWave}")
    a(f"s_lshl_b32 s{sT+4}, s{sD}, 8"); a(f"v_lshlrev_b32 v2, 2, v{vL}")
    a(f"s_lshl_b32 s{sT+5}, s{sD}, 1")
    vF = 29; vR = 8
    a(f"v_lshlrev_b32 v{vF}, 6, v0"); a(f"v_lshlrev_b32 v{vR}, 4, v0")
    if CPF:
        a("s_getpc_b64 s[36:37]"); a("s_and_b32 s36, s36, 0xffffff00"); a(f"s_mov_b32 s38, CODE_BYTES"); a("s_mov_b32 s39, 0x20000")
        a(f"s_lshr_b32 s{sT+1}, s2, 3"); a(f"s_and_b32 s{sT+1}, s{sT+1}, 3"); a(f"s_lshl_b32 s{sT+1}, s{sT+1}, 14")
        a(f"buffer_load_dword a204, v{vF}, s[36:39], s{sT+1} offen"); vm.add("T")
    a("s_waitcnt lgkmcnt(0)")
    if g.dbg: a(f"v_writelane_b32 v{vSTAMP}, s{sT+2}, 31")
    g.stamp()
    sX = 36; sDB = 8; sU2 = 40; sH = 44; sP = 12
    srd(a, sDB, pDBG, 256)
    nn = a.label("nn")
    a(f"s_or_b32 s{sT+1}, s2, s{sWave}"); a(f"s_cmp_lg_u32 s{sT+1}, 0"); a(f"s_cbranch_scc1 {nn}")
    a(f"s_or_b32 s{sT+2}, s{sT+2}, 1")
    a(f"v_mov_b32 v6, s{sT+2}"); a(f"v_mov_b32 v7, s{sT+3}")
    a("s_mov_b64 exec, 0xf")
    a(f"buffer_store_dwordx2 v[6:7], v{vF}, {sr(sDB,4)}, 0 offen {SC}")
    a("s_mov_b64 exec, -1")
    a(f"{nn}:")
    PR = 24; XD = 32
    def ld_params():
        for i, p in enumerate((pLOGA, pAIM, pCRE, pCIM)):
            srd(a, sP+4*i, p, 1024*256)
            a(f"buffer_load_dword v{PR+i}, v2, {sr(sP+4*i,4)}, s{sT+4} offen"); vm.add("P")
        srd(a, 28, pLOGDT, 2048)
        a(f"buffer_load_ushort v{PR+4}, v1, s[28:31], s{sT+5} offen"); vm.add("P")
    def ld_x():
        srd(a, sX, pU, 2048*2048)
        for e in range(2):
            for i in range(2):
                a(f"buffer_load_dwordx4 {vr(XD+8*e+4*i,4)}, v5, {sr(sX,4)}, s{sT} offen offset:{2048*e+256*i} {XNT}"); vm.add("X")
    if ORDER[0] == "S": ld_params(); ld_x()
    else: ld_x(); ld_params()
    if TOUCH:
        sh = TOUCH
        a(f"v_lshlrev_b32 v6, {sh}, v0")
        for n, (p, sz) in enumerate(((pWS, M_XCH + SZ_XCH), (pOUT, 4 << 20), (pWG, SZ_W), (pWU, SZ_W), (pWD, SZ_W))):
            srd(a, sX, p, sz)
            for o in range(0, sz, 256 << sh):
                a(f"s_mov_b32 s{sT+1}, {o}")
                a(f"buffer_load_dword a{205+n}, v6, {sr(sX,4)}, s{sT+1} offen"); vm.add("T")
        a(f"buffer_load_dword a212, v1, {sr(sDB,4)}, 0 offen sc1"); vm.add("T")
    gemm1_addr(g, 0)
    bgl = []
    for stg in range(2):
        for i in range(7):
            grp = []
            if i in (0, 4): grp += [(f"s_add_u32 m0, s{sG_M0}, {stg*SLOT1 + (4096 if i else 0)}", None), ("s_nop 0", None)]
            grp.append((g1_dma(pDMA, i, DNT), "D"))
            if i == 6: grp += [(x, None) for x in g1_wadv('own' if stg else 'even')]
            bgl.append(grp)
    if CT:
        a(f"s_lshl_b32 s16, s2, 1"); a(f"s_and_b32 s17, s{sWave}, 1"); a(f"s_add_u32 s16, s16, s17"); a(f"s_mul_i32 s16, s16, 14336")
        a(f"v_lshlrev_b32 v237, 4, v{vL}")
        tl = []
        for i in range(14):
            grp = [(f"buffer_load_dwordx4 a[200:203], v237, {sr(sG_W,4)}, s16 offen offset:{1024*(i&3)}", "T")]
            if i & 3 == 3: grp.append((f"s_add_u32 s16, s16, 4096", None))
            tl.append(grp)
        bgl = tl + bgl
    def take(n):
        out = bgl[:n]; del bgl[:n]; return out
    for grp in take(DSTART):
        for ins, tag in grp:
            a(ins)
            if tag: vm.add(tag)
    gemm1_addr(g, 1)
    srd(a, sFLG, pWS, 4*16384, M_FLG)
    srd(a, sU2, pWS, 4 << 20, M_U2); srd(a, sH, pWS, 4 << 20, M_H4)
    a(f"s_lshl_b32 s{sT+1}, s{sCG}, 3")
    a(f"s_load_dwordx2 s[58:59], {sr(pDSKIP,2)}, s{sT+1}")
    a(f"v_lshlrev_b32 v6, 15, v4"); a(f"v_lshl_add_u32 v6, v3, 4, v6")
    nu = 9; vG = 19
    a(f"v_and_b32 v{nu}, 15, v{vL}"); a(f"v_lshrrev_b32 v{vG}, 4, v{vL}")
    sUB = sT+8; sKB = sT+9; sTB = sT+7
    a(f"s_mul_i32 s{sUB}, s{sWave}, {UCH}"); a(f"s_add_u32 s{sUB}, s{sUB}, {UBASE}")
    a(f"s_mul_i32 s{sKB}, s{sWave}, {KCH}"); a(f"s_add_u32 s{sKB}, s{sKB}, {KBASE}")
    a(f"s_add_u32 s{sTB}, s{sUB}, {TOFF}")
    vTa = 10; vTb = 11; vTc = 12; vTw = 13; vO1 = 15; vO2 = 18
    a(f"v_lshlrev_b32 v16, 7, v{vG}"); a(f"v_add_u32 v16, s{sUB}, v16")
    a(f"v_bfe_u32 v17, v{vL}, 2, 2"); a(f"v_mul_u32_u24 v{vTa}, {RS}, v17"); a(f"v_add_u32 v{vTa}, v{vTa}, v16")
    a(f"v_mul_u32_u24 v{vTb}, {RS}, v3")
    a(f"v_bfe_u32 v17, v{vL}, 3, 1"); a(f"v_lshlrev_b32 v{vTc}, v17, v{vTb}")
    a(f"v_add_u32 v{vTb}, v{vTb}, v16"); a(f"v_add_u32 v{vTc}, v{vTc}, v16")
    a(f"v_lshlrev_b32 v{vTw}, 3, v{vL}"); a(f"v_add_u32 v{vTw}, s{sUB}, v{vTw}")
    a(f"v_mov_b32 v16, 0x3c00"); a(f"v_mov_b32 v17, 0x3c00")
    for e in (0, 4, 12): a(f"ds_write_b64 v{vTw}, v[16:17] offset:{e*RS}")
    a(f"v_lshlrev_b32 v{vO1}, 6, v{nu}"); a(f"v_lshl_add_u32 v{vO1}, v{vG}, 3, v{vO1}"); a(f"v_add_u32 v{vO1}, s{sTB}, v{vO1}")
    a(f"v_lshlrev_b32 v22, 4, v{nu}"); a(f"v_lshl_add_u32 v22, v{vG}, 3, v22"); a(f"v_add_u32 v22, 1024, v22")
    a(f"v_lshlrev_b32 v23, 3, v{nu}"); a(f"v_lshl_add_u32 v23, v{vG}, 7, v23"); a(f"v_add_u32 v23, {1280-256}, v23")
    a(f"v_cmp_gt_u32 vcc, 32, v{vL}"); a("s_nop 1")
    a(f"v_cndmask_b32 v{vO2}, v23, v22, vcc"); a(f"v_add_u32 v{vO2}, s{sTB}, v{vO2}")
    SA = 184
    def sel(dst, lo32, hi32):
        a(f"v_mov_b32 v{dst}, {hi32:#x}"); a(f"v_mov_b32 v22, {lo32:#x}"); a(f"v_cndmask_b32 v{dst}, v{dst}, v22, vcc")
    sel(SA, 0x01000302, 0x01000100); sel(SA+1, 0x01000302, 0x01000504); sel(SA+2, 0x03020504, 0x01000504); sel(SA+3, 0x03020504, 0x05040504)
    a(f"v_mov_b32 v{SA+4}, v{SA+3}")
    a(f"s_mov_b32 s{sT+3}, 0x03020504"); a(f"v_writelane_b32 v{SA+4}, s{sT+3}, 32")
    a(f"s_mov_b32 s{sT+2}, 0x0c0c0504"); a(f"v_writelane_b32 v{SA+4}, s{sT+2}, 0")
    vK = 20; vK2 = 21; vZ = 14
    a(f"v_lshlrev_b32 v22, 4, v{vL}"); a(f"v_add_u32 v{vK}, s{sKB}, v22"); a(f"v_add_u32 v{vK2}, v{vK}, v22")
    a(f"v_add_u32 v{vZ}, s{sUB}, v22")
    ZR = 180
    for r in range(ZR, ZR+4): a(f"v_mov_b32 v{r}, 0")
    a("s_mov_b64 exec, 0x7f")
    a(f"ds_write_b128 v{vK}, {vr(ZR,4)}"); a(f"ds_write_b128 v{vK}, {vr(ZR,4)} offset:{KCS}")
    a("s_mov_b64 exec, -1")
    vA = 4; vB = 5; vY = 7
    a(f"v_and_b32 v22, 1, v{vL}"); a(f"v_mul_u32_u24 v{vA}, {KCS}, v22")
    a(f"v_bfe_u32 v22, v{vL}, 1, 3"); a(f"v_sub_u32 v22, v22, v{vG}"); a(f"v_add_u32 v22, 3, v22")
    a(f"v_lshl_add_u32 v{vA}, v22, 4, v{vA}"); a(f"v_add_u32 v{vA}, s{sKB}, v{vA}")
    a(f"v_mul_u32_u24 v{vB}, {UCS}, v3")
    a(f"v_bfe_u32 v22, v{vL}, 2, 2"); a(f"v_lshl_add_u32 v23, v22, 3, v{vG}")
    a(f"v_lshl_add_u32 v{vB}, v23, 4, v{vB}"); a(f"v_add_u32 v{vB}, s{sUB}, v{vB}")
    a(f"v_lshlrev_b32 v{vY}, 5, v22"); a(f"v_lshl_add_u32 v{vY}, v{vG}, 3, v{vY}"); a(f"v_add_u32 v{vY}, v{vY}, v3")
    a(f"v_lshlrev_b32 v{vY}, 2, v{vY}"); a(f"v_add_u32 v{vY}, s{sKB}, v{vY}")
    vUC = 190
    a(f"v_lshlrev_b32 v22, 2, v0")
    for c in range(4):
        for ch in range(2): a(f"v_add_u32 v{vUC+2*c+ch}, {UBASE + ch*UCH + c*UCS + UPAD - 4*(c+1)}, v22")
    ACC = 48; vSC = 60

    def setup():
        dt = PR+4
        Z = 64; C = 68; TT = 72
        a(f"v_lshlrev_b32 v{dt}, 16, v{dt}"); a(f"v_lshlrev_b32 v{TT}, 16, v{PR}"); a(f"v_and_b32 v{TT+1}, 0xffff0000, v{PR}")
        for r in (dt, TT, TT+1): a(f"v_mul_f32 v{r}, {f32(LOG2E)}, v{r}")
        for r in (dt, TT, TT+1): a(f"v_exp_f32 v{r}, v{r}")
        for k, b in ((1, Z+1), (2, C), (3, C+1)):
            a(f"v_lshlrev_b32 v{b}, 16, v{PR+k}"); a(f"v_and_b32 v{b+2}, 0xffff0000, v{PR+k}")
        a(f"v_cvt_pk_bf16_f32 v{dt}, v{dt}, v{dt}"); a(f"v_cvt_pk_bf16_f32 v{PR}, v{TT}, v{TT+1}")
        a(f"v_max3_f32 v{vSC}, |v{C}|, |v{C+1}|, |v{C+2}|"); a(f"v_max_f32 v{vSC}, |v{C+3}|, v{vSC}")
        a(f"v_lshlrev_b32 v{dt}, 16, v{dt}")
        a(f"v_lshlrev_b32 v{Z}, 16, v{PR}"); a(f"v_and_b32 v{Z+2}, 0xffff0000, v{PR}")
        red = [f"v_max_f32_dpp v{vSC}, v{vSC}, v{vSC} {m} row_mask:0xf bank_mask:0xf" for m in ("quad_perm:[1,0,3,2]", "quad_perm:[2,3,0,1]", "row_ror:4", "row_ror:8")]
        a(red[0])
        for i in range(4): a(f"v_mul_f32 v{Z+i}, v{Z+i}, v{dt}")
        a(red[1])
        for m in range(2):
            a(f"v_mul_f32 v{Z+2*m}, {f32(-LOG2E)}, v{Z+2*m}"); a(f"v_mul_f32 v{Z+2*m+1}, 0.15915494, v{Z+2*m+1}")
        a(red[2])
        names = [1, 2, 3, 4, 8, 12, 16, 20, 24, 28, 32, 64, 96, 128, 256, 512, 528, 1024, 1536, 2048, "R1", "R2", "R3"]
        E = {n: 88 + 4*i for i, n in enumerate(names)}
        AR = 76
        for i, p in enumerate((1, 32, 512)):
            for k in range(4):
                if p == 1: a(f"v_mov_b32 v{AR+4*i+k}, v{Z+k}")
                else: a(f"v_mul_f32 v{AR+4*i+k}, {f32(p)}, v{Z+k}")
            if i == 0: a(red[3])
        for i in range(6): a(f"v_fract_f32 v{AR+2*i+1}, v{AR+2*i+1}")
        for op in ("v_permlane16_swap_b32", "v_permlane32_swap_b32"):
            a(f"v_mov_b32 v{TT}, v{vSC}"); a("s_nop 1"); a(f"{op} v{TT}, v{vSC}"); a("s_nop 0"); a(f"v_max_f32 v{vSC}, v{vSC}, v{TT}")
        for i, p in enumerate((1, 32, 512)):
            for m in range(2):
                r = AR+4*i+2*m
                a(f"v_cos_f32 v{E[p]+2*m}, v{r+1}"); a(f"v_sin_f32 v{E[p]+2*m+1}, v{r+1}"); a(f"v_exp_f32 v{r}, v{r}")
        a(f"v_frexp_exp_i32_f32 v{TT}, v{vSC}")
        a(f"v_add_f32 v{dt}, v{dt}, v{dt}")
        a(f"v_ldexp_f32 v{vSC}, v{dt}, v{TT}")
        a(f"v_sub_u32 v{TT}, 0, v{TT}")
        for i, p in enumerate((1, 32, 512)):
            for m in range(2):
                a(f"v_pk_mul_f32 {vr(E[p]+2*m,2)}, {vr(E[p]+2*m,2)}, {vr(AR+4*i+2*m,2)} op_sel_hi:[1,0]")
        for k in range(4): a(f"v_ldexp_f32 v{C+k}, v{C+k}, v{TT}")
        E["C"] = C
        ent = {1: 1, 2: 2, 3: 3, 4: 5, 8: 6, 12: 7, 16: 8, 20: 9, 24: 10, 28: 11, 32: 13, 64: 14, 96: 15, "C": 16, "R1": 17, "R2": 18, "R3": 19,
               512: 20, 528: 21, 1024: 22, 1536: 23}
        wt = [0]
        def emit(n):
            if n not in ent: return
            t = AR + 2*(wt[0] % 6); wt[0] += 1
            ng = "-" if 12 <= ent[n] < 20 else ""
            for m in range(2): a(f"v_cvt_pk_f16_f32 v{t+m}, v{E[n]+2*m}, {ng}v{E[n]+2*m+1}")
            a(f"ds_write_b64 v{vTw}, {vr(t,2)} offset:{ent[n]*RS}")
        levels = [[(2,1,1), (64,32,32), (1024,512,512)], [(3,2,1), (4,2,2), (96,64,32), (128,64,64), (1536,1024,512), (2048,1024,1024)],
                  [(8,4,4), (256,128,128), ("R1","C",128)], [(12,8,4), (16,8,8), ("R2","C",256)],
                  [(20,16,4), (24,16,8), (28,16,12), (528,512,16), ("R3","R2",128)]]
        pend = [1, 32, 512, "C"]
        for lv in levels:
            for d, x, y in lv:
                for m in range(2): a(f"v_pk_mul_f32 {vr(E[d]+2*m,2)}, {vr(E[x]+2*m,2)}, {vr(E[y]+2*m,2)} op_sel_hi:[0,1]")
            for d, x, y in lv:
                for m in range(2):
                    a(f"v_pk_fma_f32 {vr(E[d]+2*m,2)}, {vr(E[x]+2*m,2)}, {vr(E[y]+2*m,2)}, {vr(E[d]+2*m,2)} op_sel:[1,1,0] op_sel_hi:[1,0,1] neg_lo:[0,1,0]")
            for n in pend: emit(n)
            pend = [d for d, x, y in lv]
        for n in pend: emit(n)
        e = E[2048]
        a(f"v_mul_f32 v61, v{e}, v{C}"); a(f"v_fma_f32 v61, -v{e+1}, v{C+1}, v61")
        a(f"v_fma_f32 v61, v{e+2}, v{C+2}, v61"); a(f"v_fma_f32 v61, -v{e+3}, v{C+3}, v61")
        wave_sum(a, 61, 62, 1)
        a(f"v_mul_f32 v61, v61, v{vSC}")
        a("v_cvt_pk_bf16_f32 v61, v61, v61")
        a(f"v_mov_b32 v62, s{sTB}")
        a(f"ds_write_b32 v62, v61 offset:1536")

    FB = 64
    srcs = [(vTa, 4), (vTa, 8), (vTb, 0), (vTa, 16), (vTb, 12), (vTa, 20), (vTc, 4)]
    def rdf(step):
        return [f"ds_read_b128 {vr(FB+28*(step&1)+4*i,4)}, v{r} offset:{e*RS+16*step}" for i, (r, e) in enumerate(srcs)]
    OB = 120
    def kstep(step, bg):
        f = FB + 28*(step & 1); o = OB + 16*(step & 1)
        a("s_waitcnt lgkmcnt(0)")
        nxt = rdf(step+1) if step < 7 else []
        prods = [(o, f+12, f+16), (o+4, f, f+8), (o+8, f+4, f+8), (o+12, f+20, f+24)]
        for d, x, y in prods:
            for m in range(4): a(f"v_pk_mul_f16 v{d+m}, v{x+m}, v{y+m} op_sel_hi:[0,1]")
            for _ in range(2):
                if nxt: a(nxt.pop(0))
        for grp in bg:
            for ins, tag in grp:
                a(ins)
                if tag: vm.add(tag)
        for i, (d, x, y) in enumerate(prods):
            for m in range(4): a(f"v_pk_fma_f16 v{d+m}, v{x+m}, v{y+m}, v{d+m} op_sel:[1,1,0] op_sel_hi:[1,0,1] neg_lo:[0,1,0]")
            if i >= 2:
                c = "0" if step == 0 else vr(ACC+4*(i-2),4)
                a(f"v_mfma_f32_16x16x32_f16 {vr(ACC+4*(i-2),4)}, {vr(o+4*(i-1),4)}, {vr(o,4)}, {c}")
        a("s_nop 0")
        c = "0" if step == 0 else vr(ACC+8,4)
        a(f"v_mfma_f32_16x16x32_f16 {vr(ACC+8,4)}, {vr(o+12,4)}, {vr(o,4)}, {c}")

    def ln1():
        a(f"s_lshl_b32 s{sT}, s{sWave}, 20"); a(f"s_lshl_b32 s{sT+1}, s2, 6"); a(f"s_add_u32 s{sT}, s{sT}, s{sT+1}")
        a(f"s_mov_b32 s{sT+2}, 0x05040100"); a(f"s_mov_b32 s{sT+3}, 0x07060302")
        a(f"s_and_b32 s{sT+6}, s2, 3"); a(f"s_lshl_b32 s{sT+6}, s{sT+6}, 6")
        a(f"v_mov_b32 v63, {KBASE + KCH - 16}")
        a(f"s_waitcnt vmcnt({vm.wait_for('X')})")
        g.stamp()
        T = 64; W = 152; XP = 200
        nl = a.label("nl")
        a(f"s_cmp_lg_u32 s{sWave}, 0"); a(f"s_cbranch_scc1 {nl}")
        a(f"buffer_load_dwordx2 v[22:23], v1, {sr(sDB,4)}, s{sT+6} offen sc1")
        a(f"{nl}:")
        for q in range(4):
            for k in range(4*q, 4*q+4): a(f"v_perm_b32 v{XP+k}, v{XD+8+(k>>1)}, v{XD+(k>>1)}, s{sT+2+(k&1)}")
            a(f"s_add_u32 s{sT+1}, s{sT}, {((q>>1)*32 + (q&1))*16384}")
            a(f"buffer_store_dwordx4 {vr(XP+4*q,4)}, v6, {sr(sU2,4)}, s{sT+1} offen {SC}"); vm.add("U")
        def pre():
            if KMID:
                for ins in rdf(0): a(ins)
                for st_ in range(KMID): kstep(st_, [])
            a(f"s_waitcnt vmcnt(0)")
            gn = a.label("gn"); gn2 = a.label("gn2"); gn3 = a.label("gn3")
            a(f"s_cmp_lg_u32 s{sWave}, 0"); a(f"s_cbranch_scc1 {gn3}")
            a(f"s_mov_b32 s{sTO}, 0")
            a(f"{gn}:")
            a(f"v_readfirstlane_b32 s{sNON}, v22")
            a(f"s_cmp_lg_u32 s{sNON}, 0"); a(f"s_cbranch_scc1 {gn2}")
            a(f"buffer_load_dwordx2 v[22:23], v1, {sr(sDB,4)}, s{sT+6} offen sc1")
            a("s_waitcnt vmcnt(0)")
            a(f"s_add_u32 s{sTO}, s{sTO}, 1"); a(f"s_cmp_lt_u32 s{sTO}, {TIMEOUT}"); a(f"s_cbranch_scc1 {gn}")
            a(f"{gn2}:")
            a(f"ds_write_b64 v63, v[22:23]")
            a(f"{gn3}:")
        ln_stats8(a, [(XD+k, XD+8+k) for k in range(8)], T, W, pre)
        sk = a.label("sg")
        a(f"ds_read_b64 v[32:33], v63")
        a(f"s_cmp_lg_u32 s{sWave}, 0"); a(f"s_cbranch_scc1 {sk}")
        a(f"v_mov_b32 v{W+6}, v22"); a(f"v_mov_b32 v{W+7}, v23")
        a(f"s_lshl_b32 s{sT}, s2, 6")
        a("s_mov_b64 exec, 0xf")
        a(f"buffer_store_dwordx4 {vr(W+4,4)}, v{vR}, {sr(sFLG,4)}, s{sT} offen {SC}")
        a("s_mov_b64 exec, -1")
        a(f"{sk}:")
        g.stamp()

    if ORDER[0] == "S":
        a(f"s_waitcnt vmcnt({vm.wait_for('P')})")
        g.stamp()
        setup()
    else: assert KMID == 0
    ln1()
    for grp in take(DSET):
        for ins, tag in grp: a(ins)
    if ORDER[0] != "S":
        setup()
        g.stamp()
    if KMID == 0:
        for ins in rdf(0): a(ins)
    step = KMID
    while step < 8:
        n = min(DPS, DPOST); DPOST -= n
        kstep(step, take(n)); step += 1
        if step == KMID + 1:
            a(f"v_readfirstlane_b32 s{sNON}, v32"); a(f"v_readfirstlane_b32 s{sNON+1}, v33")
    Eb = 72
    a(f"v_lshlrev_b32 v16, 4, v{vL}"); a(f"v_add_u32 v16, s{sTB}, v16"); a(f"v_subrev_u32 v17, 4, v16")
    a(f"v_add_u32 v2, s{sTB}, v2")
    s00 = sT; s11 = sT+1; s10 = sT+2; s21 = sT+3
    a(f"s_mov_b32 s{s00}, 0x01000100"); a(f"s_mov_b32 s{s11}, 0x03020302"); a(f"s_mov_b32 s{s10}, 0x01000302"); a(f"s_mov_b32 s{s21}, 0x03020504")
    for t in (0, 1, 2):
        for e in range(2): a(f"v_pk_mul_f32 {vr(ACC+4*t+2*e,2)}, {vr(ACC+4*t+2*e,2)}, {vr(vSC,2)} op_sel_hi:[1,0]")
        a(f"v_cvt_pk_bf16_f32 v{64+2*t}, v{ACC+4*t}, v{ACC+4*t+1}")
        a(f"v_cvt_pk_bf16_f32 v{65+2*t}, v{ACC+4*t+2}, v{ACC+4*t+3}")
    a(f"ds_write_b64 v{vO1}, v[64:65]"); a(f"ds_write_b64 v{vO1}, v[66:67] offset:32"); a(f"ds_write_b64 v{vO2}, v[68:69]")
    a(f"ds_read_b128 {vr(Eb,4)}, v16"); a(f"ds_read_b32 v{Eb+4}, v16 offset:16"); a(f"ds_read_b32 v{Eb-1}, v17")
    a(f"ds_read_b32 v78, v2 offset:1024"); a(f"ds_read_b32 v79, v2 offset:1028")
    a(f"ds_read_b32 v80, v2 offset:1280"); a(f"ds_read_b32 v81, v2 offset:1284")
    a("s_mov_b64 exec, 0x1ffffff")
    for c in range(4): a(f"ds_write_b128 v{vZ}, {vr(ZR,4)} offset:{c*UCS}")
    a("s_mov_b64 exec, -1")
    SG = 160
    for i in range(1, 4): a(f"s_mov_b32 s{36+i}, {4096*i}")
    def ld_sg():
        for i in range(4): a(f"buffer_load_dwordx4 {vr(SG+4*i,4)}, v{vR}, {sr(sFLG,4)}, {'s%d' % (36+i) if i else '0'} offen {SC}")
    ld_sg()
    a("s_waitcnt lgkmcnt(0)")
    O = 84
    for d, s0, s1, sl in ((0,3,2,2),(1,2,1,3),(2,1,0,2),(3,0,-1,4),(4,4,3,1),(5,2,2,0),(6,2,1,1),(7,0,0,0)):
        a(f"v_perm_b32 v{O+d}, v{Eb+s0}, v{Eb+s1}, v{SA+sl}")
    a(f"ds_write_b128 v{vK}, {vr(O,4)} offset:{KPAD}")
    a(f"ds_write_b128 v{vK}, {vr(O+4,4)} offset:{KPAD+KCS}")
    def mk(dst, kind, p01, p2):
        if kind == "00": a(f"v_perm_b32 v{dst}, v{p01}, v{p01}, s{s00}")
        elif kind == "11": a(f"v_perm_b32 v{dst}, v{p01}, v{p01}, s{s11}")
        elif kind == "22": a(f"v_perm_b32 v{dst}, v{p2}, v{p2}, s{s00}")
        elif kind == "10": a(f"v_perm_b32 v{dst}, v{p01}, v{p01}, s{s10}")
        elif kind == "21": a(f"v_perm_b32 v{dst}, v{p2}, v{p01}, s{s21}")
    chunks = [(78, ["21","11","00","00"], vK, KPAD + 1024), (78, ["22","11","10","00"], vK, KPAD + 1024 + KCS),
              (80, ["11","00","00","00"], vK2, KPAD + 2048), (80, ["22","21","11","11"], vK2, KPAD + 2048 + 16),
              (80, ["11","10","00","00"], vK2, KPAD + 2048 + KCS), (80, ["22","22","11","11"], vK2, KPAD + 2048 + KCS + 16)]
    for ci, (p, kinds, ad, off) in enumerate(chunks):
        b = O + 8 + 4*ci
        for e, kd in enumerate(kinds): mk(b+e, kd, p, p+1)
        a(f"ds_write_b128 v{ad}, {vr(b,4)} offset:{off}")
    g.stamp()
    sCGo = sT+7
    a(f"s_lshl_b32 s{sCGo}, s{sCG}, 14")
    lp = a.label("p1"); dn = a.label("p1d")
    a(f"s_mov_b32 s{sTO}, 0")
    a(f"{lp}:")
    a("s_waitcnt vmcnt(0)")
    a(f"v_cmp_ne_u64 vcc, {sr(sNON,2)}, {vr(SG+2,2)}")
    for i in range(1, 4):
        a(f"v_cmp_ne_u64 {sr(sT,2)}, {sr(sNON,2)}, {vr(SG+4*i+2,2)}"); a(f"s_or_b64 vcc, vcc, {sr(sT,2)}")
    a(f"s_cbranch_vccz {dn}")
    a("s_mov_b64 exec, vcc")
    ld_sg()
    a(f"s_add_u32 s{sTO}, s{sTO}, 1"); a(f"s_cmp_lt_u32 s{sTO}, {TIMEOUT}"); a(f"s_cbranch_scc1 {lp}")
    a(f"{dn}:")
    a("s_mov_b64 exec, -1")
    g.stamp()
    UR = 32; XG = 48; XU = 128; TD = 96
    for i in range(4):
        a(f"s_add_u32 s{sT}, s{sCGo}, {4096*i}")
        a(f"buffer_load_dwordx4 {vr(XG+4*i,4)}, v{vR}, {sr(sU2,4)}, s{sT} offen {SC}")
    def rdA(st, p, q): return f"ds_read_b128 {ar(64*st+4*p,4)}, v{vA} offset:{(8*p+q)*64}"
    def rdB(st, r, q): return f"ds_read_b128 {ar(64*st+32+4*r,4)}, v{vB} offset:{(8*r-q+7)*64}"
    for i in range(8): a(rdA(0, i, 0))
    for i in range(4):
        b = SG+4*i
        a(f"v_lshlrev_b32 v{b+2}, 16, v{b+1}"); a(f"v_and_b32 v{b+3}, 0xffff0000, v{b+1}")
        a(f"v_and_b32 v{b+1}, 0xffff0000, v{b}"); a(f"v_lshlrev_b32 v{b}, 16, v{b}")
        a(f"v_rcp_f32 v{b+2}, v{b+2}"); a(f"v_rcp_f32 v{b+3}, v{b+3}")
    a("s_barrier")
    for ii in range(4):
        a(f"s_waitcnt vmcnt({3-ii})")
        x = XU+8*ii; t = TD+8*ii; u = UR+4*ii
        for ch in range(4):
            a(f"v_lshlrev_b32 v{x+2*ch}, 16, v{XG+4*ii+ch}"); a(f"v_and_b32 v{x+2*ch+1}, 0xffff0000, v{XG+4*ii+ch}")
        for ch in range(4): a(f"v_pk_add_f32 {vr(t+2*ch,2)}, {vr(x+2*ch,2)}, {vr(SG+4*ii,2)} neg_lo:[0,1] neg_hi:[0,1]")
        for ch in range(4): a(f"v_cvt_pk_bf16_f32 v{u+ch}, v{t+2*ch}, v{t+2*ch+1}")
        for ch in range(4):
            a(f"v_lshlrev_b32 v{t+2*ch}, 16, v{u+ch}"); a(f"v_and_b32 v{t+2*ch+1}, 0xffff0000, v{u+ch}")
        for ch in range(4): a(f"v_pk_mul_f32 {vr(t+2*ch,2)}, {vr(t+2*ch,2)}, {vr(SG+4*ii+2,2)}")
        for ch in range(4): a(f"v_cvt_pk_bf16_f32 v{u+ch}, v{t+2*ch}, v{t+2*ch+1}")
        for c in range(4):
            for ch in range(2):
                a(f"ds_write2st64_b32 v{vUC+2*c+ch}, v{UR+4*ii+ch}, v{UR+4*ii+ch+2} offset0:{4*ii} offset1:{4*ii+141}")
    a("s_waitcnt lgkmcnt(0)")
    a("s_barrier")
    g.stamp()
    CA = 64
    for i in range(8): a(rdB(0, i, 0))
    fill = []
    F = fill.append
    TD = 96; XU = 128
    F(f"s_lshl_b32 s{sT}, s58, 16"); F(f"s_and_b32 s{sT+1}, s58, 0xffff0000"); F(f"s_lshl_b32 s{sT+2}, s59, 16"); F(f"s_and_b32 s{sT+3}, s59, 0xffff0000")
    for i in range(4):
        for ch in range(4):
            u = UR+4*i+ch; d = TD+8*i+2*ch
            F(f"v_lshlrev_b32 v{d}, 16, v{u}"); F(f"v_and_b32 v{d+1}, 0xffff0000, v{u}")
            F(f"v_mul_f32 v{d}, s{sT+ch}, v{d}"); F(f"v_mul_f32 v{d+1}, s{sT+ch}, v{d+1}")
            F(f"v_cvt_pk_bf16_f32 v{u}, v{d}, v{d+1}")
            F(f"v_lshlrev_b32 v{d}, 16, v{u}"); F(f"v_and_b32 v{d+1}, 0xffff0000, v{u}")
    F(f"v_lshlrev_b32 v16, 2, v0"); F(f"v_add_u32 v16, {KBASE}, v16")
    fill2 = []
    sched = {}
    nb = len(bgl)
    for n in range(nb):
        pos = n * DSP + 9
        sched[(pos // 36, pos % 36)] = [ins for ins, tag in bgl[n]]
    fi = 0
    npre = max(0, len(fill) - (7*20 - nb))
    for ins in fill[:npre]: a(ins)
    fill = fill[npre:]
    for q in range(8):
        st = q & 1
        a("s_waitcnt lgkmcnt(0)")
        nxt = []
        if q < 7:
            for i in range(8): nxt += [rdA(1-st, i, q+1), rdB(1-st, i, q+1)]
        else:
            assert fi == len(fill), (fi, len(fill))
            fill = fill2; fi = 0
        k = 0
        for p in range(8):
            for r in range(8 - p):
                t = p + r
                c = "0" if (q == 0 and p == 0) else vr(CA+4*t, 4)
                a(f"v_mfma_f32_16x16x32_bf16 {vr(CA+4*t,4)}, {ar(64*st+4*p,4)}, {ar(64*st+32+4*r,4)}, {c}")
                if (q, k) in sched:
                    for ins in sched.pop((q, k)): a(ins)
                elif nxt and (k % 2 == 0 or (k < 8)): a(nxt.pop(0))
                elif fi < len(fill): a(fill[fi]); fi += 1
                k += 1
        assert not nxt
    assert fi == len(fill) and not sched, (fi, len(fill), sched)
    for t in range(8):
        a(f"v_cvt_pk_bf16_f32 v{168+2*t}, v{CA+4*t}, v{CA+4*t+1}")
        a(f"v_cvt_pk_bf16_f32 v{169+2*t}, v{CA+4*t+2}, v{CA+4*t+3}")
        a(f"ds_write2_b32 v{vY}, v{168+2*t}, v{169+2*t} offset0:{128*(t&1)} offset1:{128*(t&1)+4}")
        if t & 1 and t < 7: a(f"v_add_u32 v{vY}, 1024, v{vY}")
    a("s_waitcnt vmcnt(0) lgkmcnt(0)")
    g.stamp()
    a("s_barrier")
    Y = 64; YU = 160
    for i in range(4):
        for ch in (0, 2):
            a(f"ds_read2st64_b32 {vr(Y+4*i+ch,2)}, v16 offset0:{4*i+33*ch} offset1:{4*i+33*(ch+1)}")
    for i in range(4):
        a(f"s_waitcnt lgkmcnt({6-2*i})")
        for ch in range(4):
            a(f"v_lshlrev_b32 v{YU+2*ch}, 16, v{Y+4*i+ch}"); a(f"v_and_b32 v{YU+2*ch+1}, 0xffff0000, v{Y+4*i+ch}")
        b = TD+8*i
        for ch in range(4): a(f"v_pk_add_f32 {vr(b+2*ch,2)}, {vr(b+2*ch,2)}, {vr(YU+2*ch,2)}")
        for ch in range(4): a(f"v_cvt_pk_bf16_f32 v{YU+ch}, v{b+2*ch}, v{b+2*ch+1}")
        for ch in range(4):
            a(f"v_lshlrev_b32 v{b+2*ch}, 16, v{YU+ch}"); a(f"v_and_b32 v{b+2*ch+1}, 0xffff0000, v{YU+ch}")
        for ch in range(4): a(f"v_pk_add_f32 {vr(b+2*ch,2)}, {vr(b+2*ch,2)}, {vr(XU+8*i+2*ch,2)}")
        for e in range(2):
            for hp in range(2):
                a(f"v_cvt_pk_bf16_f32 v{Y+4*i+2*e+hp}, v{b+4*hp+e}, v{b+4*hp+2+e}")
        a(f"s_add_u32 s{sT}, s{sCGo}, {4096*i}")
        a(f"buffer_store_dwordx4 {vr(Y+4*i,4)}, v{vR}, {sr(sH,4)}, s{sT} offen {SC}")
    g.stamp()

M_XCH = 0x1b00000
XSL = 16384; XWG = 3*XSL; SZ_XCH = 256*XWG
s2_TM = sT+4; s2_TN = sT+5; s2_KQ = sT+6
def g2_dma_addr(sM0):
    return [f"s_bfe_u32 s{s2_KQ}, s2, 0x20001",
        f"s_and_b32 s{s2_TM}, s2, 1", f"s_lshl_b32 s{s2_TM}, s{s2_TM}, 2", f"s_bfe_u32 s{sT}, s2, 0x20003", f"s_add_u32 s{s2_TM}, s{s2_TM}, s{sT}",
        f"s_lshr_b32 s{s2_TN}, s2, 5",
        f"v_lshrrev_b32 v2, 4, v{vL}", f"s_mul_i32 s{sT}, s{s2_KQ}, 896", f"s_lshl_b32 s{sT+1}, s{sWave}, 4", f"s_add_u32 s{sT}, s{sT}, s{sT+1}",
        f"v_add_u32 v1, s{sT}, v2", f"v_lshlrev_b32 v1, 11, v1",
        f"v_lshlrev_b32 v2, 2, v2", f"v_and_b32 v3, 15, v{vL}", f"v_xor_b32 v2, v2, v3",
        f"v_lshl_add_u32 v1, v2, 4, v1", f"s_lshl_b32 s{sT}, s{s2_TN}, 8", f"v_add_u32 v1, s{sT}, v1", f"s_lshl_b32 s{sM0}, s{sWave}, 12"]
G2_STG = 64*2048; G2_I = 4*2048 - 1024
def g2_dma(stage, i, sM0=24, sW=12):
    grp = []
    if i == 0: grp.append(f"s_add_u32 m0, s{sM0}, {(stage % 10)*16384}")
    grp.append(f"s_mov_b32 s{sT+1}, {stage*G2_STG + i*G2_I}")
    grp.append(f"buffer_load_dwordx4 v1, {sr(sW,4)}, s{sT+1} offen offset:{1024*i} lds")
    return grp

def phase_gemm2(g, PRE1, LA=8, TAIL=16, XSLEEP=4, OF='nt'):
    a = g.a
    ACC = 32
    def acc(j, t): return ACC + (t*2 + j)*16
    HR = 160; IN = 176; XR = 0; WF = 192; NX = 24
    vX = 2; vW = 4; vO = 16; vI = 17; vH = 18; vFl = 19; vT = 232; vM = 20
    sX = 8; sH = 44; sO = 4; sIB = 36
    sOX = 20; sM = 26; sN = 27; sI = 31; sFo = 33
    a(f"s_lshl_b32 s{sM}, s{s2_TM}, 8"); a(f"s_lshl_b32 s{sT}, s{sWave}, 6"); a(f"s_add_u32 s{sM}, s{sM}, s{sT}")
    a(f"s_lshl_b32 s{sN}, s{s2_TN}, 7"); a(f"s_lshl_b32 s{sT}, s{s2_KQ}, 5"); a(f"s_add_u32 s{sN}, s{sN}, s{sT}")
    a(f"v_and_b32 v{vT}, 31, v{vL}"); a(f"v_add_u32 v{vT}, s{sM}, v{vT}")
    a(f"v_lshrrev_b32 v{vT+1}, 5, v{vL}")
    a(f"v_lshl_add_u32 v{vX}, v{vT+1}, 11, v{vT}"); a(f"v_lshlrev_b32 v{vX}, 4, v{vX}")
    a(f"s_mul_i32 s{sOX}, s{s2_KQ}, {112*32768}")
    a(f"v_lshlrev_b32 v{vH}, 3, v{vT}"); a(f"v_lshl_add_u32 v{vH}, v{vT+1}, 15, v{vH}")
    a(f"s_lshl_b32 s{sT}, s{sN}, 12"); a(f"v_add_u32 v{vH}, s{sT}, v{vH}")
    a(f"v_lshlrev_b32 v{vO}, 11, v{vT}"); a(f"v_lshl_add_u32 v{vO}, v{vT+1}, 4, v{vO}")
    a(f"s_lshl_b32 s{sT}, s{sN}, 1"); a(f"v_add_u32 v{vO}, s{sT}, v{vO}")
    a(f"v_bfe_u32 v{vT+3}, v{vL}, 2, 2"); a(f"v_lshl_add_u32 v{vT+4}, v{vT+1}, 3, v{vT+3}"); a(f"v_lshlrev_b32 v{vW}, 8, v{vT+4}")
    a(f"v_xor_b32 v{vT+3}, s{s2_KQ}, v{vT+3}"); a(f"v_lshl_add_u32 v{vW}, v{vT+3}, 6, v{vW}")
    a(f"v_bfe_u32 v{vT+3}, v{vL}, 4, 1"); a(f"v_lshl_add_u32 v{vW}, v{vT+3}, 5, v{vW}")
    a(f"v_and_b32 v{vT+3}, 1, v{vL}"); a(f"v_lshl_add_u32 v{vW}, v{vT+3}, 4, v{vW}")
    a(f"v_bfe_u32 v{vT+3}, v{vL}, 1, 1"); a(f"v_lshl_add_u32 v{vW}, v{vT+3}, 3, v{vW}")
    for t in range(1, 4): a(f"v_xor_b32 v{vW+t}, {64*t}, v{vW}")
    for b in range(1, 3):
        for t in range(4): a(f"v_add_u32 v{vW+4*b+t}, {65536*b}, v{vW+t}")
    a(f"v_lshlrev_b32 v{vI}, 4, v{vL}"); a(f"s_lshl_b32 s{sT}, s{sWave}, 12"); a(f"v_add_u32 v{vI}, s{sT}, v{vI}"); a(f"v_mov_b32 v{vM}, -2")
    srd(a, sO, pOUT, 2048*1024*2); srd(a, sIB, pWS, SZ_XCH, M_XCH)
    a(f"s_mul_i32 s{sI}, s2, {XWG}")
    for t in range(1, 4):
        a(f"s_xor_b32 s{27+t}, s2, {2*t}"); a(f"s_mul_i32 s{27+t}, s{27+t}, {XWG}"); a(f"s_add_u32 s{27+t}, s{27+t}, {XSL*(t-1)}")
    a(f"v_bfe_u32 v{vT+4}, v{vL}, 2, 1"); a(f"v_and_b32 v{vT+3}, 3, v{vL}"); a(f"v_lshl_add_u32 v{vT+4}, v{vT+3}, 6, v{vT+4}")
    a(f"s_lshl_b32 s{sT}, s{s2_TM}, 2"); a(f"s_add_u32 s{sT}, s{sT}, s{s2_KQ}"); a(f"s_lshl_b32 s{sT}, s{sT}, 1")
    a(f"v_add_u32 v{vT+4}, s{sT}, v{vT+4}")
    a(f"v_lshlrev_b32 v{vT+3}, 1, v{vT+3}"); a(f"v_xor_b32 v{vT+3}, s2, v{vT+3}")
    a(f"v_and_b32 v{vT+2}, 8, v{vL}"); a(f"v_cmp_eq_u32 vcc, 0, v{vT+2}"); a("s_nop 1")
    a(f"v_cndmask_b32 v{vFl}, v{vT+3}, v{vT+4}, vcc"); a(f"v_lshlrev_b32 v{vFl}, 6, v{vFl}")
    a(f"s_mov_b32 s{sFo}, {2*16384}")
    a("s_waitcnt vmcnt(0)")
    a("s_barrier")
    set_flag(g, 2, 22)
    g.stamp()
    def wread(st, f, t, step, j):
        off = ((step >> 2) % 10)*16384 + (step & 3)*4096 + j*1024
        return f"ds_read_b64_tr_b16 {ar(WF+st*16+f*4+j*2,2)}, v{vW + 4*(off >> 16) + t} offset:{off & 0xffff}"
    T0 = 56 - TAIL; TG = TAIL // 4
    sup = [[(t, s) for t in range(4)] for s in range(T0)]
    for t in (1, 2, 3, 0):
        for hf in range(TG): sup.append([(t, T0 + 4*hf + k) for k in range(4)])
    SEND = [T0 + TG*k for k in (1, 2, 3)]
    def need_of(n): return max(s for t, s in sup[min(n, 55)])
    def reads(n):
        return [wread(n & 1, f, t, s, j) for f, (t, s) in enumerate(sup[n]) for j in range(2)]
    for ins in reads(0): a(ins)
    for stg in range(PRE1, 10):
        for i in range(4):
            for ins in g2_dma(stg, i): a(ins)
    poll_flags(g, vFl, sFo, 22)
    g.stamp()
    vm = VM()
    def xload(x):
        return [f"buffer_load_dwordx4 {ar(XR+(x % NX)*8+j*4,4)}, v{vX}, {sr(sX,4)}, s{sOX} offen offset:{512*j} {SC}" for j in range(2)]
    xadv = f"s_add_u32 s{sOX}, s{sOX}, 65536"
    nx = 0
    for x in range(4):
        for ins in xload(x): a(ins); vm.add(f"X{x}")
        a(xadv); nx += 1
    dl = [(stg, i) for stg in range(10, 14) for i in range(4)]
    started = set()
    send = []
    for n, fr in enumerate(sup):
        need = max(s for t, s in fr)
        w = vm.wait_for(f"X{need}")
        if n == 39:
            assert not dl
            w = min(w, vm.wait_for("D"))
        a(f"s_waitcnt vmcnt({w}) lgkmcnt(0)")
        if n in (min(4*PRE1 - 1, 15), 15, 39): a("s_barrier")
        gaps = {k: [] for k in range(8)}; tags = {k: [] for k in range(8)}
        if n + 1 < len(sup):
            for k, ins in enumerate(reads(n + 1)): gaps[k // 2].append(ins)
        gi = 4
        for rep in range(2):
            if nx < 56 and nx <= max(need_of(k_) for k_ in range(n, n + LA + 1)) and gi <= 6:
                for j, ins in enumerate(xload(nx)): gaps[gi+j].append(ins); tags[gi+j].append(f"X{nx}")
                gaps[gi+1].append(xadv); nx += 1; gi += 2
        if n >= 15 and dl and gi <= 6:
            grp = g2_dma(*dl.pop(0))
            gaps[gi] += grp[:-1]; gaps[gi+1].append(grp[-1]); tags[gi+1].append("D")
        if n in (34, 35, 36, 37):
            for e in range(2):
                i = 2*(n-34) + e
                gj, gq = (i >> 2), (i >> 1) & 1
                gaps[6+e] += [f"s_mov_b32 s{sT}, {(4*gq + e)*16384}", f"buffer_load_dwordx2 {vr(HR+2*i,2)}, v{vH}, {sr(sH,4)}, s{sT} offen offset:{256*gj} {SC}"]
                tags[6+e].append("R")
        if n in SEND:
            t = sup[n-1][0][0]; b = acc(0, t)
            send = []
            for i in range(4):
                send += [f"v_cvt_pk_bf16_f32 v{b+4*i+e}, v{b+8*i+2*e}, v{b+8*i+2*e+1}" for e in range(4)]
                send += [f"v_min_u32 v{b+4*i+e}, v{b+4*i+e}, v{vM}" for e in range(4)]
                send += [f"buffer_store_dwordx4 {vr(b+4*i,4)}, v{vI}, {sr(sIB,4)}, s{27+t} offen offset:{1024*i} {SC}"]
        k = 0
        for f, (t, s) in enumerate(fr):
            for j in ((0, 1) if f % 2 == 0 else (1, 0)):
                c = vr(acc(j,t),16) if (j, t) in started else "0"
                started.add((j, t))
                a(f"v_mfma_f32_32x32x16_bf16 {vr(acc(j,t),16)}, {ar(WF+(n&1)*16+f*4,4)}, {ar(XR+(s % NX)*8+j*4,4)}, {c}")
                for ins in gaps[k]: a(ins)
                for tg in tags[k]: vm.add(tg)
                if send and not (n in SEND and k < 4):
                    for _ in range(4 if k >= 4 or n == 55 else 2):
                        if send:
                            ins = send.pop(0); a(ins)
                            if ins.startswith("buffer"): vm.add("S")
                k += 1
        if n - 1 in SEND: assert not send, len(send)
    assert nx == 56 and not dl
    g.stamp()
    P = acc(0, 1)
    a(f"s_add_u32 s28, s{sI}, {XSL}"); a(f"s_add_u32 s29, s{sI}, {2*XSL}")
    def ld_slot(sl):
        for i in range(4): a(f"buffer_load_dwordx4 {vr(IN+16*sl+4*i,4)}, v{vI}, {sr(sIB,4)}, s{(sI, 28, 29)[sl]} offen offset:{1024*i} {SC}")
    a(f"s_waitcnt vmcnt({vm.wait_for('R')})")
    for sl in range(3): ld_slot(sl)
    for k in range(16):
        a(f"v_lshlrev_b32 v{P+2*k}, 16, v{HR+k}"); a(f"v_and_b32 v{P+2*k+1}, 0xffff0000, v{HR+k}")
    a(f"s_mov_b32 s{sTO}, 0")
    Q = acc(0, 2); B = acc(0, 0)
    for sl in range(3):
        lp = a.label("xp"); dn = a.label("xd")
        a(f"s_waitcnt vmcnt({8-4*sl})")
        a(f"{lp}:")
        I = IN + 16*sl
        a(f"v_max3_u32 v21, v{I}, v{I+1}, v{I+2}"); a(f"v_max3_u32 v22, v{I+3}, v{I+4}, v{I+5}")
        for k in range(6, 16, 2): a(f"v_max3_u32 v{21 + ((k>>1)&1)}, v{21 + ((k>>1)&1)}, v{I+k}, v{I+k+1}")
        a(f"v_max_u32 v21, v21, v22")
        a(f"v_cmp_eq_u32 vcc, -1, v21")
        a(f"s_cbranch_vccz {dn}")
        a(f"s_sleep {XSLEEP}")
        ld_slot(sl)
        a(f"s_add_u32 s{sTO}, s{sTO}, 1"); a(f"s_cmp_lt_u32 s{sTO}, {TIMEOUT}")
        a("s_waitcnt vmcnt(0)")
        a(f"s_cbranch_scc1 {lp}")
        a(f"{dn}:")
        if sl == 2: break
        for k in range(16):
            a(f"v_lshlrev_b32 v{Q+2*k}, 16, v{I+k}"); a(f"v_and_b32 v{Q+2*k+1}, 0xffff0000, v{I+k}")
        for k in range(16): a(f"v_pk_add_f32 {vr(B+2*k,2)}, {vr(B+2*k,2)}, {vr(Q+2*k,2)}")
    g.stamp()
    a(f"s_mov_b32 s{sT}, 65536")
    for i in range(4):
        b = B + 8*i
        for e in range(4):
            a(f"v_lshlrev_b32 v{Q+2*e}, 16, v{IN+32+4*i+e}"); a(f"v_and_b32 v{Q+2*e+1}, 0xffff0000, v{IN+32+4*i+e}")
        for e in range(4): a(f"v_pk_add_f32 {vr(b+2*e,2)}, {vr(b+2*e,2)}, {vr(Q+2*e,2)}")
        for e in range(4): a(f"v_cvt_pk_bf16_f32 v{Q+e}, v{b+2*e}, v{b+2*e+1}")
        for e in range(4):
            a(f"v_lshlrev_b32 v{b+2*e}, 16, v{Q+e}"); a(f"v_and_b32 v{b+2*e+1}, 0xffff0000, v{Q+e}")
        for e in range(4): a(f"v_pk_add_f32 {vr(b+2*e,2)}, {vr(b+2*e,2)}, {vr(P+8*i+2*e,2)}")
        for e in range(4): a(f"v_cvt_pk_bf16_f32 v{HR+4*i+e}, v{b+2*e}, v{b+2*e+1}")
        so = f"s{sT}" if i >= 2 else "0"
        a(f"buffer_store_dwordx4 {vr(HR+4*i,4)}, v{vO}, {sr(sO,4)}, {so} offen offset:{32*(i&1)} {OF}")

def phase_gemm1(g, PRE1, XF=SC, LA=7, X0=3, TU=3, PU=(0,2,6), EXP='', WNT=''):
    a = g.a
    SLOT = SLOT1
    ACC = 32
    def acc(j, t): return ACC + (j*7 + t)*16
    XR = 0; WF = 64; CSF = 120
    vDMA = 1; vX = 8; vST = 9; vWc = 10; vWn = 11; vS = 12; vO = 28; vFl = 20; vC = 22; vF2 = 23
    sX = 44; sACT = 8; sST = 36; sCS = 40; sW2 = 12
    sOX = 20; sOX2 = 21; sBase = 23; sIt = 25; sA = 28; sB = 29; sNS = 30; sCSo = 32
    sOW = sG_OW; sM0 = sG_M0
    vm = VM()
    for i in range(4): vm.add("H")
    def pro_dma(stage, idxs):
        for i in idxs:
            if i in (0, 4): a(f"s_add_u32 m0, s{sM0}, {stage*SLOT + (4096 if i else 0)}"); a("s_nop 0")
            a(g1_dma(pDMA, i, WNT)); vm.add(f"D{stage}")
            if i == 6:
                for ins in g1_wadv("odd" if stage & 1 else "even"): a(ins)
    a(f"v_and_b32 v160, 31, v{vL}"); a(f"v_mov_b32 v161, 0x3f803f80")
    for t in range(7):
        a(f"v_cmp_eq_u32 vcc, {t}, v160"); a("s_nop 1")
        for e in range(4): a(f"v_cndmask_b32 v{96+4*t+e}, 0, v161, vcc")
    for i in range(7): a(f"v_mov_b32 v{vDMA+i}, v{pDMA+i}")
    for d, s_ in ((vX, pX), (vST, pST), (vWc, pWc), (vO, pO)): a(f"v_mov_b32 v{d}, v{s_}")
    a(f"v_add_u32 v{vWn}, {2*SLOT}, v{vWc}")
    srd(a, sACT, pWS, SZ_ACT, M_ACT); srd(a, sST, pWS, 2048*16, M_ST2); srd(a, sCS, pWS, 32*224*32, M_CS)
    srd(a, sW2, pWD, SZ_W)
    a(f"s_mul_i32 s16, s2, 28672")
    a(f"v_mov_b32 v27, v{pSR}")
    for e in range(4): a(f"v_accvgpr_write_b32 a{208+e}, -1")
    srd(a, 52, pWS, SZ_XCH, M_XCH)
    a(f"s_mul_i32 s51, s2, {XWG}"); a(f"s_add_u32 s54, s51, {XWG}")
    a(f"s_mul_i32 s{sCSo}, s{sG_TN}, {224*32}")
    a(f"v_lshrrev_b32 v163, 5, v{vL}")
    a(f"s_lshl_b32 s{sOX}, s{sG_TM}, 19"); a(f"s_add_u32 s{sOX2}, s{sOX}, 16384")
    a(f"s_mov_b32 s17, s{sOX}"); a(f"s_add_u32 s26, s{sOX}, {1 << 19}")
    a(f"s_mov_b32 s{sBase}, 0"); a(f"s_mov_b32 s{sIt}, 3"); a(f"s_mov_b32 s{sNS}, 3")
    a(f"s_lshr_b32 s{sT}, s{sWave}, 1"); a(f"s_mul_i32 s{sT}, s{sT}, {SLOT}")
    a(f"s_and_b32 s{sT+1}, s{sWave}, 1"); a(f"s_mul_i32 s{sT+1}, s{sT+1}, {2*3584}"); a(f"s_add_u32 s{sT}, s{sT}, s{sT+1}")
    a(f"v_add_u32 v164, s{sT}, v{vWc}")
    a(f"s_mul_i32 s{sT}, s{sWave}, 896"); a(f"s_add_u32 s{sT}, s{sT}, {PBASE}")
    a(f"v_lshlrev_b32 v165, 7, v160"); a(f"v_lshl_add_u32 v165, v163, 4, v165"); a(f"v_add_u32 v165, s{sT}, v165")
    def wread(st, t, j, reg, imm0):
        return f"ds_read_b64_tr_b16 {ar(WF+st*28+t*4+j*2,2)}, v{reg} offset:{imm0 + 4*j*224 + 32*t}"
    for st in range(2):
        for t in range(7):
            for j in range(2): a(wread(st, t, j, 164, st*3584))
    a(f"s_waitcnt vmcnt({vm.wait_for('H')})")
    a("s_barrier")
    set_flag(g, 1, 174)
    g.stamp()
    a("s_waitcnt lgkmcnt(0)")
    for st in range(2):
        for t in range(7):
            c = "0" if (st == 0 and t == 0) else "v[128:143]"
            a(f"v_mfma_f32_32x32x16_bf16 v[128:143], {ar(WF+st*28+t*4,4)}, {vr(96+4*t,4)}, {c}")
            pro_dma(2 + st, [t])
    for t in range(7):
        for j in range(2): a(wread(0, t, j, vWc, 0))
    a(f"v_cmp_gt_u32 vcc, 7, v160")
    a("s_and_saveexec_b64 s[56:57], vcc")
    for q in range(4): a(f"ds_write_b128 v165, {vr(128+4*q,4)} offset:{32*q}")
    a("s_mov_b64 exec, -1")
    a(f"s_mov_b32 s{sT+1}, 16384")
    a("s_waitcnt lgkmcnt(0)")
    g.stamp()
    poll_flags(g, 29, sT+1, 166)
    a("s_barrier")
    g.stamp()
    vm = VM()
    SD = 64
    def xload(slot, k):
        j, hf = k >> 1, k & 1
        return f"buffer_load_dwordx2 {ar(XR+slot*8+j*4+hf*2,2)}, v{vX}, {sr(sX,4)}, s{sOX2 if hf else sOX} offen offset:{256*j} {XF}"
    xadv = [f"s_add_u32 s{sOX}, s{sOX}, 65536", f"s_add_u32 s{sOX2}, s{sOX}, 16384"]
    def xadv_pair(own):
        return [f"s_mov_b32 s{sOX}, 0" if own else xadv[0], f"s_cmp_eq_u32 s{sOX}, s17", f"s_cselect_b32 s{sOX}, s26, s{sOX}", xadv[1]]
    RD = 148
    def pro_x(x):
        for k in range(4): a(xload(x, k)); vm.add(f"X{x}")
        for ins in xadv: a(ins)
    for x in range(X0): pro_x(x)
    nxt_x = [X0]
    a(f"v_lshlrev_b32 v168, 2, v0"); a(f"v_add_u32 v168, {PBASE}, v168")
    for w in range(4): a(f"ds_read_b32 v{170+w}, v168 offset:{896*w}")
    a(f"v_lshlrev_b32 v169, 5, v0")
    a(f"s_lshl_b32 s{sT}, s{sG_TM}, 2"); a(f"s_add_u32 s{sT}, s{sT}, s{sCSo}")
    a(f"v_cmp_gt_u32 vcc, 224, v0")
    a(f"v_and_b32 v29, 3, v{vL}"); a(f"v_lshlrev_b32 v29, 4, v29"); a(f"s_lshl_b32 s{sT+1}, s{sWave}, 6"); a(f"s_add_u32 s{sT+1}, s{sT+1}, {SBASE}")
    a(f"v_add_u32 v29, s{sT+1}, v29")
    a("s_waitcnt lgkmcnt(0)")
    a("v_add_f32 v170, v170, v171"); a("v_add_f32 v172, v172, v173"); a("v_add_f32 v170, v170, v172")
    a("v_cvt_pk_bf16_f32 v171, v170, v170"); a("v_lshlrev_b32 v171, 16, v171")
    a("v_sub_f32 v170, v170, v171")
    a("v_cvt_pk_bf16_f32 v170, v171, v170")
    a("s_and_saveexec_b64 s[56:57], vcc")
    a(f"buffer_store_dword v170, v169, {sr(sCS,4)}, s{sT} offen {SC}"); vm.add("C")
    a("s_mov_b64 exec, -1")
    g.stamp()
    accu = []
    for k in range(8):
        r0 = RD+4*(k>>1)+(k&1); r1 = r0+2
        accu += [f"v_accvgpr_read_b32 v16, a{r0}", f"v_accvgpr_read_b32 v17, a{r1}",
                 "v_lshlrev_b32 v18, 16, v16", "v_lshlrev_b32 v19, 16, v17", "v_and_b32 v16, 0xffff0000, v16", "v_and_b32 v17, 0xffff0000, v17"]
        if k == 0:
            accu += ["v_add_f32 v12, v18, v16", "v_add_f32 v13, v19, v17", "v_mul_f32 v14, v18, v18", "v_mul_f32 v15, v19, v19"]
        else:
            accu += ["v_add_f32 v12, v12, v18", "v_add_f32 v13, v13, v19", "v_fmac_f32 v14, v18, v18", "v_fmac_f32 v15, v19, v19",
                     "v_add_f32 v12, v12, v16", "v_add_f32 v13, v13, v17"]
        accu += ["v_fmac_f32 v14, v16, v16", "v_fmac_f32 v15, v17, v17"]
    n3 = (len(accu) + 3) // 4
    FILL = {0: accu[:n3], 1: accu[n3:2*n3], 2: accu[2*n3:3*n3], 3: accu[3*n3:],
            4: red4(12, 16) + ["ds_write_b128 v29, v[12:15]"],
            5: [f"ds_read_b128 {vr(16+4*w,4)}, v29 offset:{64*(w+1)}" for w in range(3)],
            6: [f"v_add_f32 v{12+e}, v{12+e}, v{16+e}" for e in range(4)] + [f"v_add_f32 v{20+e}, v{20+e}, v{24+e}" for e in range(4)]
               + [f"v_add_f32 v{12+e}, v{12+e}, v{20+e}" for e in range(4)] + stats_final(12, 16),
            7: [f"v_cmp_gt_u32 vcc, 4, v{vL}", f"v_and_b32 v29, 3, v{vL}", "v_lshlrev_b32 v29, 5, v29", f"v_bfe_u32 v21, v{vL}, 2, 1", "v_lshl_add_u32 v29, v21, 4, v29",
                "v_cndmask_b32 v16, v13, v12, vcc", "v_cndmask_b32 v17, v15, v14, vcc", "v_cmp_gt_u32 vcc, 8, v0",
                f"v_mov_b32 v18, s{sNON}", f"v_mov_b32 v19, s{sNON+1}", "v_mov_b32 v21, 0x7fff0000", "v_cndmask_b32 v29, v21, v29, vcc",
                f"s_lshl_b32 s{sT}, s{sG_R}, 4", f"buffer_store_dwordx4 v[16:19], v29, {sr(sST,4)}, s{sT} offen {SC}", "v_lshlrev_b32 v26, 4, v0"]}
    LFILL = [f"v_and_b32 v{vC}, 31, v{vL}", f"v_lshlrev_b32 v{vC}, 5, v{vC}", f"v_lshrrev_b32 v{vF2}, 5, v{vL}", f"v_lshl_add_u32 v{vC}, v{vF2}, 4, v{vC}",
             f"v_and_b32 v{vF2}, 7, v{vL}", f"v_lshlrev_b32 v{vF2}, 9, v{vF2}",
             f"s_and_b32 s{sT}, s2, 0xc7", f"s_lshl_b32 s{sT}, s{sT}, 6", f"s_add_u32 s{sT}, s{sT}, {3*16384}", f"v_add_u32 v{vF2}, s{sT}, v{vF2}"]
    def ld_flags_stats():
        return [f"buffer_load_dwordx2 {vr(vFl,2)}, v{vF2}, {sr(sFLG,4)}, 0 offen {SC}",
                f"buffer_load_dwordx4 {vr(vS,4)}, v{vST}, {sr(sST,4)}, 0 offen {SC}",
                f"buffer_load_dwordx4 {vr(vS+4,4)}, v{vST}, {sr(sST,4)}, 0 offen offset:512 {SC}"]
    def ld_cs(t):
        if t < 4: return f"buffer_load_dwordx4 {ar(CSF+4*t,4)}, v{vC}, {sr(sCS,4)}, s{sCSo} offen offset:{1024*t} {SC}"
        return f"buffer_load_dwordx4 {ar(CSF+4*t,4)}, v{vC}, {sr(sCS,4)}, s{sNS} offen offset:{1024*(t-4)} {SC}"
    DM = {3: [0, 1], 0: [2, 3], 1: [4, 5], 2: [6]}
    def body(kind, base_step):
        first = kind == "first"; last = kind == "last"; second = kind == "second"; mid = kind == "mid"
        for u in range(8):
            s = u % 4; st = u & 1
            w = vm.wait_for(f'X{base_step+u}')
            if second and u == 0: w = min(w, vm.wait_for("R"))
            if last and u == 2: w = min(w, vm.wait_for("S"))
            a(f"s_waitcnt vmcnt({w}) lgkmcnt(0)")
            if (s == 3 and not (last and u == 7)) or (second and u == 5): a("s_barrier")
            if first and u == 7: set_flag(g, 3, 22)
            gaps = {k: [] for k in range(14)}
            tags = {k: [] for k in range(14)}
            nu = (u + 1) % 8
            reg = vWn if u == 7 else vWc
            imm0 = (nu // 4) * SLOT + (nu % 4) * 16 * 224
            k = 0
            if not (last and u == 7):
                for t in range(7):
                    for j in range(2):
                        gaps[k // 2].append(wread(1 - st, t, j, reg, imm0)); k += 1
            xl = []
            while nxt_x[0] <= base_step + u + LA and len(xl) < 2 and not (last and nxt_x[0] >= base_step + 8):
                xl.append(nxt_x[0]); nxt_x[0] += 1
            g0 = 6 if len(xl) == 1 else 2
            for x in xl:
                for k in range(4):
                    gaps[g0+k].append(xload(x % 8, k)); tags[g0+k].append(f"X{x}")
                gaps[g0+3] += xadv_pair(x == 7) if x % 8 == 7 else xadv
                g0 += 4
            gi = 11
            if not last:
                for i in ([] if first and u < 3 else DM[s]):
                    if i in (0, 4):
                        e = 4096 if i else 0
                        if u in (3, 4, 5, 6): ins = f"s_add_u32 m0, s{sA}, {e}"
                        elif u == 7: ins = f"s_add_u32 m0, s{sA}, {SLOT + e}"
                        else: ins = f"s_add_u32 m0, s{sB}, {SLOT + e}"
                        gaps[gi-2].append(ins)
                    gaps[gi].append(g1_dma(vDMA, i, WNT)); tags[gi].append("D")
                    if i == 6:
                        gaps[gi+1] += g1_wadv("odd" if u == 2 else "even")
                    gi += 1
                if u == 0:
                    gaps[0].insert(0, f"s_add_u32 s{sA}, s{sM0}, s{sBase}")
                    gaps[1].insert(0, f"s_sub_u32 s{sBase}, {2*SLOT}, s{sBase}")
                    gaps[2].insert(0, f"s_add_u32 s{sB}, s{sM0}, s{sBase}")
                if mid and u in PU:
                    gaps[13] += [f"buffer_store_dwordx4 a[208:211], v26, s[52:55], s51 offen {SC}", f"s_add_u32 s51, s51, 4096"]; tags[13].append("P")
                if first and u in (2, 3, 4, 5):
                    gaps[13] += [f"buffer_load_dwordx4 {ar(RD+4*(u-2),4)}, v27, {sr(sX,4)}, s{sG_SR} offen {SC}", f"s_add_u32 s{sG_SR}, s{sG_SR}, {16*16384}"]; tags[13].append("R")
                if u == 7:
                    gaps[8].append(f"v_swap_b32 v{vWc}, v{vWn}")
                    if mid:
                        gaps[13].append(f"s_add_u32 s{sIt}, s{sIt}, 1"); gaps[13].append(f"s_cmp_lt_u32 s{sIt}, 8")
            else:
                if u == 0:
                    for n, ins in enumerate(LFILL): gaps[n].append(ins)
                    for n, ins in enumerate(ld_flags_stats()): gaps[11+n].append(ins); tags[11+n].append("S")
                if u == 1: gaps[8].append(f"s_add_u32 s{sNS}, s{sCSo}, 4096")
                if u == 2:
                    for t in range(7): gaps[7+t].append(ld_cs(t)); tags[7+t].append('CS')
                if u == TU:
                    for t in range(7):
                        gaps[7+t] += [f"buffer_load_dwordx4 a[200:203], v26, {sr(sW2,4)}, s16 offen", f"s_add_u32 s16, s16, 4096"]; tags[7+t].append("T")
                if u == 6:
                    pre = g2_dma_addr(sM0)
                    for n, ins in enumerate(pre): gaps[7 + n*7//len(pre)].append(ins)
                if u == 7:
                    gaps[0].append("s_barrier")
            if second and u in FILL:
                fl = FILL[u]
                for n, ins in enumerate(fl): gaps[n*14//len(fl) if len(fl) > 7 else 7+n].append(ins)
            k = 0
            for t in range(7):
                for j in range(2):
                    c = "0" if (first and u == 0) else vr(acc(j,t),16)
                    a(f"v_mfma_f32_32x32x16_bf16 {vr(acc(j,t),16)}, {ar(WF+st*28+t*4,4)}, {ar(XR+u*8+j*4,4)}, {c}")
                    for ins in gaps[k]:
                        if mid and 'x' in EXP and ins.startswith("buffer_load_dwordx2 a"): continue
                        if mid and 'd' in EXP and ins.endswith("lds"): continue
                        if mid and 'l' in EXP and ins.startswith("ds_read") : continue
                        if mid and 'h' in EXP and ins.startswith("ds_read") and k % 2: continue
                        a(ins)
                    for tg in tags[k]: vm.add(tg)
                    k += 1
    body("first", 0)
    g.stamp()
    body("second", 8)
    loop = a.label("g1loop")
    a(f"{loop}:")
    if g.dbg:
        a("s_memrealtime s[98:99]"); a("s_memtime s[100:101]"); a(f"s_add_u32 s97, s{sIt}, {g.nst-3}"); a("s_waitcnt lgkmcnt(0)")
        a("s_mov_b32 s99, m0"); a("s_mov_b32 m0, s97"); a("s_nop 1")
        a(f"v_writelane_b32 v{vSTAMP}, s98, m0"); a("s_add_u32 m0, m0, 32"); a("s_nop 1"); a(f"v_writelane_b32 v{vSTAMP}, s100, m0"); a("s_mov_b32 m0, s99")
        g.nst += 5
    body("mid", 16)
    a(f"s_cbranch_scc1 {loop}")
    g.stamp()
    body("last", 24)
    g.stamp()
    poll = a.label("sp"); ok = a.label("sok")
    a(f"s_mov_b32 s{sTO}, 0")
    a(f"{poll}:")
    a(f"v_cmp_ne_u64 vcc, {sr(sNON,2)}, {vr(vS+2,2)}")
    a(f"v_cmp_ne_u64 {sr(sT,2)}, {sr(sNON,2)}, {vr(vS+6,2)}")
    a(f"s_or_b64 vcc, vcc, {sr(sT,2)}")
    a(f"v_cmp_ne_u64 {sr(sT,2)}, {sr(sNON,2)}, {vr(vFl,2)}")
    a(f"s_or_b64 vcc, vcc, {sr(sT,2)}")
    a(f"s_cbranch_vccz {ok}")
    for ins in ld_flags_stats(): a(ins)
    a("s_waitcnt vmcnt(0)")
    for t in range(7): a(ld_cs(t))
    a("s_waitcnt vmcnt(0)")
    a(f"s_add_u32 s{sTO}, s{sTO}, 1"); a(f"s_cmp_lt_u32 s{sTO}, {TIMEOUT}"); a(f"s_cbranch_scc1 {poll}")
    a(f"{ok}:")
    for j in range(2):
        b = 20 + 4*j
        a(f"v_xor_b32 v{b+1}, 0x80000000, v{vS+4*j}")
        a(f"v_lshrrev_b32 v{b}, 16, v{b+1}")
        a(f"v_or_b32 v{b}, v{b}, v{b+1}")
        for e in range(1, 4): a(f"v_mov_b32 v{b+e}, v{b}")
    a(f"s_waitcnt vmcnt({7 if TU < 8 else 0})")
    a("s_nop 0")
    K0 = -2.0 * 0.7978845608028654 * LOG2E
    K1 = K0 * 0.044715
    C = {0: 2, 1: 6}
    cst = []
    for j in range(2):
        s_ = vS + 4*j + 1; c = C[j]
        cst += [f"v_mul_f32 v{c}, {f32(K0)}, v{s_}", f"v_mul_f32 v{c+2}, v{s_}, v{s_}", f"v_mul_f32 v{c+1}, v{c+2}, v{s_}",
                f"v_mul_f32 v{c+1}, {f32(K1)}, v{c+1}", f"v_rcp_f32 v{c+2}, v{c+2}"]
    for j in range(2):
        for t in range(7):
            a(f"v_mfma_f32_32x32x16_bf16 {vr(acc(j,t),16)}, {ar(CSF+t*4,4)}, {vr(20+4*j,4)}, {vr(acc(j,t),16)}")
            if cst: a(cst.pop(0))
    w2 = [g2_dma(stg, i) for stg in range(PRE1) for i in range(4)]
    def W2():
        if w2:
            for ins in w2.pop(0): a(ins)
    T = 12
    for j in range(2):
        c = C[j]
        for t in range(7):
            b = acc(j, t)
            prs = [(b, b+4), (b+2, b+6), (b+8, b+12), (b+10, b+14)]
            for i, (gt, u_) in enumerate(prs): a(f"v_pk_mul_f32 {vr(T+2*i,2)}, {vr(gt,2)}, {vr(gt,2)}")
            for i, (gt, u_) in enumerate(prs): a(f"v_pk_fma_f32 {vr(T+2*i,2)}, {vr(T+2*i,2)}, {vr(c,2)}, {vr(c,2)} op_sel:[0,1,0] op_sel_hi:[1,1,0]")
            for i, (gt, u_) in enumerate(prs): a(f"v_pk_mul_f32 {vr(T+2*i,2)}, {vr(T+2*i,2)}, {vr(gt,2)}")
            W2()
            for i in range(8): a(f"v_exp_f32 v{T+i}, v{T+i}")
            for i, (gt, u_) in enumerate(prs): a(f"v_pk_mul_f32 {vr(u_,2)}, {vr(u_,2)}, {vr(gt,2)}")
            for i, (gt, u_) in enumerate(prs): a(f"v_pk_fma_f32 {vr(T+2*i,2)}, {vr(T+2*i,2)}, {vr(c+2,2)}, {vr(c+2,2)} op_sel_hi:[1,0,0]")
            W2()
            for i in range(8): a(f"v_rcp_f32 v{T+i}, v{T+i}")
            a(f"s_mov_b32 s{sT}, {t*65536}")
            for i, (gt, u_) in enumerate(prs): a(f"v_pk_mul_f32 {vr(u_,2)}, {vr(u_,2)}, {vr(T+2*i,2)}")
            for i, (gt, u_) in enumerate(prs): a(f"v_cvt_pk_bf16_f32 v{b+i}, v{u_}, v{u_+1}")
            a(f"buffer_store_dwordx4 {vr(b,4)}, v{vO}, {sr(sACT,4)}, s{sT} offen offset:{512*j} {SC}")
    assert not w2
    g.stamp()

def gen_mega(dbg=False, as_list=False, p01={}, g1={}, g2={}, PRE1=6):
    g = G(dbg); a = g.a
    end = a.label("end")
    a(f"s_cmp_ge_u32 s2, 256"); a(f"s_cbranch_scc1 {end}")
    phase01(g, **p01); phase_gemm1(g, PRE1, **g1); phase_gemm2(g, PRE1, **g2)
    if dbg:
        g.stamp()
        a("s_waitcnt vmcnt(0)")
        g.stamp()
        srd(a, 4, pWS, 1 << 19, M_DBG)
        a(f"v_lshlrev_b32 v1, 2, v{vL}")
        a(f"s_lshl_b32 s{sT}, s2, 2"); a(f"s_add_u32 s{sT}, s{sT}, s{sWave}"); a(f"s_lshl_b32 s{sT}, s{sT}, 8")
        a(f"buffer_store_dword v{vSTAMP}, v1, s[4:7], s{sT} offen")
    a(f"{end}:")
    a("s_endpgm")
    k = f"kernel={NAME} " if as_list else ""
    launch = f"; @launch {k}grid=(256,1,1) block=(256,1,1) lds=163840\n"
    body = a.text()
    import subprocess, tempfile, os
    with tempfile.TemporaryDirectory() as td:
        open(td + "/x.s", "w").write('.amdgcn_target "amdgcn-amd-amdhsa--gfx950"\n.text\n' + body.replace("CODE_BYTES", "0x1234"))
        subprocess.run(["clang", "-x", "assembler", "-target", "amdgcn-amd-amdhsa", "-mcpu=gfx950", "-c", td + "/x.s", "-o", td + "/x.o"], check=True)
        subprocess.run(["llvm-objcopy", "-O", "binary", "-j", ".text", td + "/x.o", td + "/x.bin"], check=True)
        n = os.path.getsize(td + "/x.bin")
    assert n < 65536
    body = body.replace("CODE_BYTES", str((n - 768) & ~63))
    return launch, kernel_header(NAME) + body, kernel_desc(NAME, 512, 256)

if __name__ == "__main__":
    from mk import *
    mk([gen_mega(dbg=True, as_list=True)], 'mega_dbg.s')
    mk([gen_mega(dbg=True, as_list=True, p01=dict(ORDER="S"))], 'mega_b.s')
    mk([gen_mega(dbg=True, as_list=True, p01=dict(ORDER="S", KMID=2))], 'mega_c.s')
    mk([gen_mega(dbg=True, as_list=True, p01=dict(ORDER="S", KMID=3, DSET=5, DSP=14))], 'mega_d.s')
    assemble([gen_mega()], 'm1.s')
    assemble([gen_mega(p01=dict(ORDER="S"))], 'm2.s')
    assemble([gen_mega(p01=dict(ORDER="S", KMID=2))], 'm3.s')
    assemble([gen_mega(p01=dict(ORDER="S", KMID=3, DSET=5, DSP=14))], 'm4.s')
```

```python
from common import *
LOG2E = 1.4426950408889634
NAME = "sequential_preLN__ssm_conv_s4d__geglu_ffn__prompt_kernel"

M_H4  = 0x0000000
M_ACT = 0x0400000
M_ST2 = 0x1200000
M_FLG = 0x1210000
M_CS  = 0x1220000
M_DBG = 0x1280000
M_U2  = 0x1300000
M_END = 0x1b00000

pU, pLOGA, pAIM, pCRE, pCIM, pLOGDT, pDSKIP, pBX, pWG, pWU, pWD, pOUT, pDBG, pWS = [64 + 2*i for i in range(14)]
sNON = 92; sWave = 94; sCG = 95; sTO = 96
sFLG = 60
sT = 48
vL = 30; vSTAMP = 31
SC = "sc1"

SLOT1 = 28800; UPOFF = 14464
UCS = 4512; UCH = 4*UCS; UPAD = 400
KCS = 4224; KCH = 8448; KPAD = 112
UBASE = 2*SLOT1
KBASE = UBASE + 4*UCH
SBASE = KBASE + 4*KCH
PBASE = 4*SLOT1
RS = 528; TOFF = 24*RS + 16
NBASE = SBASE + 240
assert SBASE + 256 <= 163840

class G:
    def __init__(self, dbg):
        self.a = Asm("mk"); self.dbg = dbg; self.nst = 0
    def stamp(self):
        if not self.dbg: return
        a = self.a
        a("s_memrealtime s[98:99]"); a("s_memtime s[100:101]"); a("s_waitcnt lgkmcnt(0)")
        a(f"v_writelane_b32 v{vSTAMP}, s98, {self.nst}"); a(f"v_writelane_b32 v{vSTAMP}, s100, {32+self.nst}")
        self.nst += 1

def cmul(a, d, x, y, conj_out=False):
    n1 = " neg_hi:[0,1]" if conj_out else ""
    n2 = " neg_hi:[0,1,0]" if conj_out else ""
    a(f"v_pk_mul_f32 {vr(d,2)}, {vr(x,2)}, {vr(y,2)} op_sel_hi:[0,1]{n1}")
    a(f"v_pk_fma_f32 {vr(d,2)}, {vr(x,2)}, {vr(y,2)}, {vr(d,2)} op_sel:[1,1,0] op_sel_hi:[1,0,1] neg_lo:[0,1,0]{n2}")

def red4(v, t):
    o = []
    for d in (4, 8):
        o += [f"v_add_f32_dpp v{v+e}, v{v+e}, v{v+e} row_ror:{d} row_mask:0xf bank_mask:0xf" for e in range(4)]
    for op in ("v_permlane16_swap_b32", "v_permlane32_swap_b32"):
        o += [f"v_mov_b32 v{t+e}, v{v+e}" for e in range(4)]
        o += [f"{op} v{t+e}, v{v+e}" for e in range(4)]
        o += [f"v_add_f32 v{v+e}, v{v+e}, v{t+e}" for e in range(4)]
    return o

def stats_final(W, t, packed=False):
    o = [f"v_mul_f32 v{W+e}, {f32(1/1024)}, v{W+e}" for e in range(4)]
    o += [f"v_fma_f32 v{W+2+e}, -v{W+e}, v{W+e}, v{W+2+e}" for e in range(2)]
    o += [f"v_max_f32 v{W+2+e}, 0, v{W+2+e}" for e in range(2)]
    def rnd(b): return [f"v_cvt_pk_bf16_f32 v{t}, v{b}, v{b+1}", f"v_lshlrev_b32 v{b}, 16, v{t}", f"v_and_b32 v{b+1}, 0xffff0000, v{t}"]
    o += rnd(W+2)
    o += [f"v_add_f32 v{W+2+e}, {f32(1e-5)}, v{W+2+e}" for e in range(2)]
    o += rnd(W+2)
    o += [f"v_sqrt_f32 v{W+2+e}, v{W+2+e}" for e in range(2)]
    if packed:
        return o + [f"v_cvt_pk_bf16_f32 v{t}, v{W}, v{W+1}", f"v_cvt_pk_bf16_f32 v{t+1}, v{W+2}, v{W+3}"]
    o += rnd(W)
    o += rnd(W+2)
    o += [f"v_rcp_f32 v{W+2+e}, v{W+2+e}" for e in range(2)]
    o += ["s_nop 0"]
    return o

def ln_stats8(a, pairs, T, W, pre_barrier):
    for k, (r0, r1) in enumerate(pairs):
        a(f"v_lshlrev_b32 v{T+4*k}, 16, v{r0}"); a(f"v_lshlrev_b32 v{T+4*k+1}, 16, v{r1}")
        a(f"v_and_b32 v{T+4*k+2}, 0xffff0000, v{r0}"); a(f"v_and_b32 v{T+4*k+3}, 0xffff0000, v{r1}")
    a(f"v_pk_add_f32 {vr(W,2)}, {vr(T,2)}, {vr(T+4,2)}"); a(f"v_pk_mul_f32 {vr(W+2,2)}, {vr(T,2)}, {vr(T,2)}")
    a(f"v_pk_add_f32 {vr(W+4,2)}, {vr(T+2,2)}, {vr(T+6,2)}"); a(f"v_pk_mul_f32 {vr(W+6,2)}, {vr(T+2,2)}, {vr(T+2,2)}")
    for k in range(2, 16):
        b = W + 4*(k & 1)
        if k >= 4: a(f"v_pk_add_f32 {vr(b,2)}, {vr(b,2)}, {vr(T+2*k,2)}")
        a(f"v_pk_fma_f32 {vr(b+2,2)}, {vr(T+2*k,2)}, {vr(T+2*k,2)}, {vr(b+2,2)}")
    a(f"v_pk_add_f32 {vr(W,2)}, {vr(W,2)}, {vr(W+4,2)}"); a(f"v_pk_add_f32 {vr(W+2,2)}, {vr(W+2,2)}, {vr(W+6,2)}")
    a(f"v_and_b32 v{W+24}, 3, v{vL}"); a(f"v_lshlrev_b32 v{W+24}, 4, v{W+24}"); a(f"v_add_u32 v{W+24}, {SBASE}, v{W+24}")
    a(f"s_lshl_b32 s{sT}, s{sWave}, 6"); a(f"v_add_u32 v{W+25}, s{sT}, v{W+24}")
    for ins in red4(W, W+4): a(ins)
    a(f"ds_write_b128 v{W+25}, {vr(W,4)}")
    pre_barrier()
    a("s_waitcnt lgkmcnt(0)"); a("s_barrier")
    E = W + 8
    for w in range(4): a(f"ds_read_b128 {vr(E+4*w,4)}, v{W+24} offset:{64*w}")
    a("s_waitcnt lgkmcnt(0)")
    a(f"v_pk_add_f32 {vr(W,2)}, {vr(E,2)}, {vr(E+4,2)}"); a(f"v_pk_add_f32 {vr(W+4,2)}, {vr(E+8,2)}, {vr(E+12,2)}")
    a(f"v_pk_add_f32 {vr(W+2,2)}, {vr(E+2,2)}, {vr(E+6,2)}"); a(f"v_pk_add_f32 {vr(W+6,2)}, {vr(E+10,2)}, {vr(E+14,2)}")
    a(f"v_pk_add_f32 {vr(W,2)}, {vr(W,2)}, {vr(W+4,2)}"); a(f"v_pk_add_f32 {vr(W+2,2)}, {vr(W+2,2)}, {vr(W+6,2)}")
    for ins in stats_final(W, W+4, True): a(ins)

TIMEOUT = 400000
def set_flag(g, which, tmp):
    a = g.a
    sk = a.label("fl")
    a(f"s_cmp_lg_u32 s{sWave}, 0"); a(f"s_cbranch_scc1 {sk}")
    a(f"s_lshl_b32 s{sT}, s2, 6"); a(f"s_add_u32 s{sT}, s{sT}, {which*16384}")
    a(f"v_mov_b32 v{tmp}, s{sNON}"); a(f"v_mov_b32 v{tmp+1}, s{sNON+1}"); a(f"v_mov_b32 v{tmp+2}, 0")
    a("s_mov_b64 exec, 1")
    a(f"buffer_store_dwordx2 {vr(tmp,2)}, v{tmp+2}, {sr(sFLG,4)}, s{sT} offen {SC}")
    a("s_mov_b64 exec, -1")
    a(f"{sk}:")

def poll_flags(g, voff, soff, tmp, preloaded=False):
    a = g.a
    lp = a.label("poll"); dn = a.label("pdone"); pre = a.label("ppre")
    a(f"s_mov_b32 s{sTO}, 0")
    if preloaded: a(f"s_branch {pre}")
    a(f"{lp}:")
    a(f"buffer_load_dwordx2 {vr(tmp,2)}, v{voff}, {sr(sFLG,4)}, s{soff} offen {SC}")
    if preloaded: a(f"{pre}:")
    a("s_waitcnt vmcnt(0)")
    a(f"v_cmp_ne_u64 vcc, {sr(sNON,2)}, {vr(tmp,2)}")
    a(f"s_cbranch_vccz {dn}")
    a("s_mov_b64 exec, vcc")
    a(f"s_add_u32 s{sTO}, s{sTO}, 1"); a(f"s_cmp_lt_u32 s{sTO}, {TIMEOUT}"); a(f"s_cbranch_scc1 {lp}")
    a(f"{dn}:")
    a("s_mov_b64 exec, -1")

class VM:
    def __init__(self): self.ops = []
    def add(self, tag): self.ops.append(tag)
    def wait_for(self, tag):
        idx = max(i for i, t in enumerate(self.ops) if t == tag)
        n = len(self.ops) - 1 - idx
        assert n <= 63, n
        return n


pDMA = 224
pX = 231; pST = 232; pWc = 233; pO = 234; pSR = 235; pTch = 236
sG_W = 4
sG_OW = 22; sG_M0 = 24; sG_F = 27; sG_R = 31; sG_SR = 35; sG_TN = 34; sG_TM = 33

def g1_dma(reg, i, fl=""):
    return f"buffer_load_dwordx4 v{reg+i}, {sr(sG_W,4)}, s{sG_OW} offen offset:{(i & 3)*1024} {fl} lds"
sG_OWN = 19; sG_OWN2 = 18
def g1_wadv(kind):
    if kind == "even": return [f"s_add_u32 s{sG_OW}, s{sG_OW}, {64*7168}"]
    first = f"s_mov_b32 s{sG_OW}, 0" if kind == "own" else f"s_add_u32 s{sG_OW}, s{sG_OW}, {64*7168}"
    return [first, f"s_cmp_eq_u32 s{sG_OW}, s{sG_OWN}", f"s_cselect_b32 s{sG_OW}, s{sG_OWN2}, s{sG_OW}"]

def gemm1_addr(g, part):
    a = g.a if part == 0 else (lambda x: None)
    t0 = 240; sM = 26
    a(f"s_and_b32 s{sT}, s2, 7")
    a(f"s_bfe_u32 s{sG_TM}, s2, 0x30003")
    a(f"s_lshl_b32 s{sG_TN}, s{sT}, 2"); a(f"s_lshr_b32 s{sT+2}, s2, 6"); a(f"s_add_u32 s{sG_TN}, s{sG_TN}, s{sT+2}")
    a(f"s_lshl_b32 s{sM}, s{sG_TM}, 8")
    a(f"s_lshl_b32 s{sG_R}, s{sG_TN}, 3"); a(f"s_add_u32 s{sG_R}, s{sG_R}, s{sM}")
    a(f"s_mul_i32 s{sG_F}, s{sG_TN}, 112")
    a(f"s_cmp_ge_u32 s{sWave}, 2")
    a(f"s_cselect_b32 s{sG_W}, s{pWU}, s{pWG}"); a(f"s_cselect_b32 s{sG_W+1}, s{pWU+1}, s{pWG+1}")
    a(f"s_mov_b32 s{sG_W+2}, {SZ_W}"); a(f"s_mov_b32 s{sG_W+3}, 0x20000")
    a(f"s_and_b32 s{sT}, s{sWave}, 1"); a(f"s_mul_i32 s{sT+1}, s{sT}, 448"); a(f"s_lshl_b32 s{sT+2}, s{sG_F}, 1")
    for i in range(7):
        imm = (i & 3) * 1024
        a(f"v_add_u32 v{t0}, s{sT+1}, v{vL}")
        if i: a(f"v_add_u32 v{t0}, {64*i}, v{t0}")
        a(f"v_mul_u32_u24 v{t0+1}, 4682, v{t0}"); a(f"v_lshrrev_b32 v{t0+1}, 16, v{t0+1}")
        a(f"v_mul_u32_u24 v{t0+1}, {7168-224}, v{t0+1}")
        a(f"v_lshl_add_u32 v{t0+1}, v{t0}, 4, v{t0+1}")
        a(f"v_add_u32 v{pDMA+i}, s{sT+2}, v{t0+1}")
        if imm: a(f"v_subrev_u32 v{pDMA+i}, {imm}, v{pDMA+i}")
    a(f"v_and_b32 v{t0+3}, 3, v{vL}")
    a(f"s_mul_i32 s{sG_M0}, s{sT}, 7168"); a(f"s_lshr_b32 s{sT}, s{sWave}, 1"); a(f"s_mul_i32 s{sT}, s{sT}, {UPOFF}")
    a(f"s_add_u32 s{sG_M0}, s{sG_M0}, s{sT}")
    a(f"s_mul_i32 s{sG_OW}, s{sG_TM}, {128*7168}")
    a(f"s_mov_b32 s{sG_OWN}, s{sG_OW}"); a(f"s_add_u32 s{sG_OWN2}, s{sG_OW}, {128*7168}")
    a = g.a if part == 1 else (lambda x: None)
    a(f"s_lshl_b32 s{sT}, s{sWave}, 6"); a(f"s_add_u32 s{sM}, s{sM}, s{sT}")
    a(f"v_and_b32 v{t0}, 31, v{vL}"); a(f"v_add_u32 v{t0}, s{sM}, v{t0}"); a(f"v_lshlrev_b32 v{t0}, 4, v{t0}")
    a(f"v_lshrrev_b32 v{t0+1}, 5, v{vL}")
    a(f"v_lshl_add_u32 v{pO}, v{t0+1}, 15, v{t0}"); a(f"s_lshl_b32 s{sT}, s{sG_F}, 12"); a(f"v_add_u32 v{pO}, s{sT}, v{pO}")
    a(f"v_and_b32 v{t0}, 15, v{vL}"); a(f"v_add_u32 v{t0}, s{sM}, v{t0}")
    a(f"v_lshlrev_b32 v{pST}, 4, v{t0}")
    a(f"v_lshrrev_b32 v{t0+1}, 4, v{vL}")
    a(f"v_lshlrev_b32 v{pX}, 3, v{t0}"); a(f"v_lshl_add_u32 v{pX}, v{t0+1}, 14, v{pX}")
    a(f"v_lshrrev_b32 v{t0+2}, 2, v{vL}"); a(f"v_mul_u32_u24 v{pWc}, 224, v{t0+2}")
    a(f"v_lshl_add_u32 v{pWc}, v{t0+3}, 3, v{pWc}")
    a(f"v_lshrrev_b32 v{pSR}, 2, v{vL}"); a(f"v_lshlrev_b32 v{pSR}, 14, v{pSR}"); a(f"v_lshl_add_u32 v{pSR}, v{t0+3}, 4, v{pSR}")
    a(f"s_lshl_b32 s{sG_SR}, s{sWave}, 20"); a(f"s_lshl_b32 s{sT}, s{sG_R}, 3"); a(f"s_add_u32 s{sG_SR}, s{sG_SR}, s{sT}")

def phase01(g, ORDER="S", KMID=2, DPOST=0, XNT="nt", TOUCH=False, DNT="", DSP=18, CPF=True, DSTART=0, CT=0, DPS=2, DSET=7):
    a = g.a
    vm = VM()
    a(f"s_memrealtime {sr(sT+2,2)}")
    a("s_load_dwordx16 s[64:79], s[0:1], 0")
    a("s_load_dwordx8 s[80:87], s[0:1], 64")
    a("s_load_dwordx4 s[88:91], s[0:1], 96")
    a(f"v_lshrrev_b32 v2, 6, v0")
    a(f"v_and_b32 v{vL}, 63, v0")
    a(f"v_readfirstlane_b32 s{sWave}, v2")
    a(f"s_and_b32 s{sT}, s2, 7"); a(f"s_lshl_b32 s{sT}, s{sT}, 5")
    a(f"s_lshr_b32 s{sCG}, s2, 3"); a(f"s_add_u32 s{sCG}, s{sCG}, s{sT}")
    if g.dbg: a(f"v_mov_b32 v{vSTAMP}, 0")
    a(f"v_and_b32 v3, 3, v{vL}"); a(f"v_lshrrev_b32 v4, 2, v{vL}")
    a(f"v_lshlrev_b32 v5, 12, v3"); a(f"v_lshl_add_u32 v5, v4, 4, v5")
    a(f"s_lshl_b32 s{sT}, s2, 14"); a(f"s_lshl_b32 s{sT+1}, s{sWave}, 9"); a(f"s_add_u32 s{sT}, s{sT}, s{sT+1}")
    a(f"v_mov_b32 v1, 0")
    sD = 97
    a(f"s_lshl_b32 s{sD}, s{sCG}, 2"); a(f"s_add_u32 s{sD}, s{sD}, s{sWave}")
    a(f"s_lshl_b32 s{sT+4}, s{sD}, 8"); a(f"v_lshlrev_b32 v2, 2, v{vL}")
    a(f"s_lshl_b32 s{sT+5}, s{sD}, 1")
    vF = 29; vR = 8
    a(f"v_lshlrev_b32 v{vF}, 6, v0"); a(f"v_lshlrev_b32 v{vR}, 4, v0")
    if CPF:
        a("s_getpc_b64 s[36:37]"); a("s_and_b32 s36, s36, 0xffffff00"); a(f"s_mov_b32 s38, CODE_BYTES"); a("s_mov_b32 s39, 0x20000")
        a(f"s_lshr_b32 s{sT+1}, s2, 3"); a(f"s_and_b32 s{sT+1}, s{sT+1}, 3"); a(f"s_lshl_b32 s{sT+1}, s{sT+1}, 14")
        a(f"buffer_load_dword a204, v{vF}, s[36:39], s{sT+1} offen"); vm.add("T")
    a("s_waitcnt lgkmcnt(0)")
    pass
    g.stamp()
    sX = 36; sDB = 8; sU2 = 40; sH = 44; sP = 12
    srd(a, sDB, pDBG, 256)
    nn = a.label("nn")
    a(f"s_or_b32 s{sT+1}, s2, s{sWave}"); a(f"s_cmp_lg_u32 s{sT+1}, 0"); a(f"s_cbranch_scc1 {nn}")
    a(f"s_or_b32 s{sT+2}, s{sT+2}, 1")
    a(f"v_mov_b32 v6, s{sT+2}"); a(f"v_mov_b32 v7, s{sT+3}")
    a("s_mov_b64 exec, 0xf")
    a(f"buffer_store_dwordx2 v[6:7], v{vF}, {sr(sDB,4)}, 0 offen {SC}")
    a("s_mov_b64 exec, -1")
    a(f"{nn}:")
    PR = 24; XD = 32
    def ld_params():
        for i, p in enumerate((pLOGA, pAIM, pCRE, pCIM)):
            srd(a, sP+4*i, p, 1024*256)
            a(f"buffer_load_dword v{PR+i}, v2, {sr(sP+4*i,4)}, s{sT+4} offen"); vm.add("P")
        srd(a, 28, pLOGDT, 2048)
        a(f"buffer_load_ushort v{PR+4}, v1, s[28:31], s{sT+5} offen"); vm.add("P")
    def ld_x():
        srd(a, sX, pU, 2048*2048)
        for e in range(2):
            for i in range(2):
                a(f"buffer_load_dwordx4 {vr(XD+8*e+4*i,4)}, v5, {sr(sX,4)}, s{sT} offen offset:{2048*e+256*i} {XNT}"); vm.add("X")
    if ORDER[0] == "S": ld_params(); ld_x()
    else: ld_x(); ld_params()
    if TOUCH:
        sh = TOUCH
        a(f"v_lshlrev_b32 v6, {sh}, v0")
        for n, (p, sz) in enumerate(((pWS, M_XCH + SZ_XCH), (pOUT, 4 << 20), (pWG, SZ_W), (pWU, SZ_W), (pWD, SZ_W))):
            srd(a, sX, p, sz)
            for o in range(0, sz, 256 << sh):
                a(f"s_mov_b32 s{sT+1}, {o}")
                a(f"buffer_load_dword a{205+n}, v6, {sr(sX,4)}, s{sT+1} offen"); vm.add("T")
        a(f"buffer_load_dword a212, v1, {sr(sDB,4)}, 0 offen sc1"); vm.add("T")
    gemm1_addr(g, 0)
    bgl = []
    for stg in range(2):
        for i in range(7):
            grp = []
            if i in (0, 4): grp += [(f"s_add_u32 m0, s{sG_M0}, {stg*SLOT1 + (4096 if i else 0)}", None), ("s_nop 0", None)]
            grp.append((g1_dma(pDMA, i, DNT), "D"))
            if i == 6: grp += [(x, None) for x in g1_wadv('own' if stg else 'even')]
            bgl.append(grp)
    if CT:
        a(f"s_lshl_b32 s16, s2, 1"); a(f"s_and_b32 s17, s{sWave}, 1"); a(f"s_add_u32 s16, s16, s17"); a(f"s_mul_i32 s16, s16, 14336")
        a(f"v_lshlrev_b32 v237, 4, v{vL}")
        tl = []
        for i in range(14):
            grp = [(f"buffer_load_dwordx4 a[200:203], v237, {sr(sG_W,4)}, s16 offen offset:{1024*(i&3)}", "T")]
            if i & 3 == 3: grp.append((f"s_add_u32 s16, s16, 4096", None))
            tl.append(grp)
        bgl = tl + bgl
    def take(n):
        out = bgl[:n]; del bgl[:n]; return out
    for grp in take(DSTART):
        for ins, tag in grp:
            a(ins)
            if tag: vm.add(tag)
    gemm1_addr(g, 1)
    srd(a, sFLG, pWS, 4*16384, M_FLG)
    srd(a, sU2, pWS, 4 << 20, M_U2); srd(a, sH, pWS, 4 << 20, M_H4)
    a(f"s_lshl_b32 s{sT+1}, s{sCG}, 3")
    a(f"s_load_dwordx2 s[58:59], {sr(pDSKIP,2)}, s{sT+1}")
    a(f"v_lshlrev_b32 v6, 15, v4"); a(f"v_lshl_add_u32 v6, v3, 4, v6")
    nu = 9; vG = 19
    a(f"v_and_b32 v{nu}, 15, v{vL}"); a(f"v_lshrrev_b32 v{vG}, 4, v{vL}")
    sUB = sT+8; sKB = sT+9; sTB = sT+7
    a(f"s_mul_i32 s{sUB}, s{sWave}, {UCH}"); a(f"s_add_u32 s{sUB}, s{sUB}, {UBASE}")
    a(f"s_mul_i32 s{sKB}, s{sWave}, {KCH}"); a(f"s_add_u32 s{sKB}, s{sKB}, {KBASE}")
    a(f"s_add_u32 s{sTB}, s{sUB}, {TOFF}")
    vTa = 10; vTb = 11; vTc = 12; vTw = 13; vO1 = 15; vO2 = 18
    a(f"v_lshlrev_b32 v16, 7, v{vG}"); a(f"v_add_u32 v16, s{sUB}, v16")
    a(f"v_bfe_u32 v17, v{vL}, 2, 2"); a(f"v_mul_u32_u24 v{vTa}, {RS}, v17"); a(f"v_add_u32 v{vTa}, v{vTa}, v16")
    a(f"v_mul_u32_u24 v{vTb}, {RS}, v3")
    a(f"v_bfe_u32 v17, v{vL}, 3, 1"); a(f"v_lshlrev_b32 v{vTc}, v17, v{vTb}")
    a(f"v_add_u32 v{vTb}, v{vTb}, v16"); a(f"v_add_u32 v{vTc}, v{vTc}, v16")
    a(f"v_lshlrev_b32 v{vTw}, 3, v{vL}"); a(f"v_add_u32 v{vTw}, s{sUB}, v{vTw}")
    a(f"v_mov_b32 v16, 0x3c00"); a(f"v_mov_b32 v17, 0x3c00")
    for e in (0, 4, 12): a(f"ds_write_b64 v{vTw}, v[16:17] offset:{e*RS}")
    a(f"v_lshlrev_b32 v{vO1}, 6, v{nu}"); a(f"v_lshl_add_u32 v{vO1}, v{vG}, 3, v{vO1}"); a(f"v_add_u32 v{vO1}, s{sTB}, v{vO1}")
    a(f"v_lshlrev_b32 v22, 4, v{nu}"); a(f"v_lshl_add_u32 v22, v{vG}, 3, v22"); a(f"v_add_u32 v22, 1024, v22")
    a(f"v_lshlrev_b32 v23, 3, v{nu}"); a(f"v_lshl_add_u32 v23, v{vG}, 7, v23"); a(f"v_add_u32 v23, {1280-256}, v23")
    a(f"v_cmp_gt_u32 vcc, 32, v{vL}"); a("s_nop 1")
    a(f"v_cndmask_b32 v{vO2}, v23, v22, vcc"); a(f"v_add_u32 v{vO2}, s{sTB}, v{vO2}")
    SA = 184
    def sel(dst, lo32, hi32):
        a(f"v_mov_b32 v{dst}, {hi32:#x}"); a(f"v_mov_b32 v22, {lo32:#x}"); a(f"v_cndmask_b32 v{dst}, v{dst}, v22, vcc")
    sel(SA, 0x01000302, 0x01000100); sel(SA+1, 0x01000302, 0x01000504); sel(SA+2, 0x03020504, 0x01000504); sel(SA+3, 0x03020504, 0x05040504)
    a(f"v_mov_b32 v{SA+4}, v{SA+3}")
    a(f"s_mov_b32 s{sT+3}, 0x03020504"); a(f"v_writelane_b32 v{SA+4}, s{sT+3}, 32")
    a(f"s_mov_b32 s{sT+2}, 0x0c0c0504"); a(f"v_writelane_b32 v{SA+4}, s{sT+2}, 0")
    vK = 20; vK2 = 21; vZ = 14
    a(f"v_lshlrev_b32 v22, 4, v{vL}"); a(f"v_add_u32 v{vK}, s{sKB}, v22"); a(f"v_add_u32 v{vK2}, v{vK}, v22")
    a(f"v_add_u32 v{vZ}, s{sUB}, v22")
    ZR = 180
    for r in range(ZR, ZR+4): a(f"v_mov_b32 v{r}, 0")
    a("s_mov_b64 exec, 0x7f")
    a(f"ds_write_b128 v{vK}, {vr(ZR,4)}"); a(f"ds_write_b128 v{vK}, {vr(ZR,4)} offset:{KCS}")
    a("s_mov_b64 exec, -1")
    vA = 4; vB = 5; vY = 7
    a(f"v_and_b32 v22, 1, v{vL}"); a(f"v_mul_u32_u24 v{vA}, {KCS}, v22")
    a(f"v_bfe_u32 v22, v{vL}, 1, 3"); a(f"v_sub_u32 v22, v22, v{vG}"); a(f"v_add_u32 v22, 3, v22")
    a(f"v_lshl_add_u32 v{vA}, v22, 4, v{vA}"); a(f"v_add_u32 v{vA}, s{sKB}, v{vA}")
    a(f"v_mul_u32_u24 v{vB}, {UCS}, v3")
    a(f"v_bfe_u32 v22, v{vL}, 2, 2"); a(f"v_lshl_add_u32 v23, v22, 3, v{vG}")
    a(f"v_lshl_add_u32 v{vB}, v23, 4, v{vB}"); a(f"v_add_u32 v{vB}, s{sUB}, v{vB}")
    a(f"v_lshlrev_b32 v{vY}, 5, v22"); a(f"v_lshl_add_u32 v{vY}, v{vG}, 3, v{vY}"); a(f"v_add_u32 v{vY}, v{vY}, v3")
    a(f"v_lshlrev_b32 v{vY}, 2, v{vY}"); a(f"v_add_u32 v{vY}, s{sKB}, v{vY}")
    vUC = 190
    a(f"v_lshlrev_b32 v22, 2, v0")
    for c in range(4):
        for ch in range(2): a(f"v_add_u32 v{vUC+2*c+ch}, {UBASE + ch*UCH + c*UCS + UPAD - 4*(c+1)}, v22")
    ACC = 48; vSC = 60

    def setup():
        dt = PR+4
        Z = 64; C = 68; TT = 72
        a(f"v_lshlrev_b32 v{dt}, 16, v{dt}"); a(f"v_lshlrev_b32 v{TT}, 16, v{PR}"); a(f"v_and_b32 v{TT+1}, 0xffff0000, v{PR}")
        for r in (dt, TT, TT+1): a(f"v_mul_f32 v{r}, {f32(LOG2E)}, v{r}")
        for r in (dt, TT, TT+1): a(f"v_exp_f32 v{r}, v{r}")
        for k, b in ((1, Z+1), (2, C), (3, C+1)):
            a(f"v_lshlrev_b32 v{b}, 16, v{PR+k}"); a(f"v_and_b32 v{b+2}, 0xffff0000, v{PR+k}")
        a(f"v_cvt_pk_bf16_f32 v{dt}, v{dt}, v{dt}"); a(f"v_cvt_pk_bf16_f32 v{PR}, v{TT}, v{TT+1}")
        a(f"v_max3_f32 v{vSC}, |v{C}|, |v{C+1}|, |v{C+2}|"); a(f"v_max_f32 v{vSC}, |v{C+3}|, v{vSC}")
        a(f"v_lshlrev_b32 v{dt}, 16, v{dt}")
        a(f"v_lshlrev_b32 v{Z}, 16, v{PR}"); a(f"v_and_b32 v{Z+2}, 0xffff0000, v{PR}")
        red = [f"v_max_f32_dpp v{vSC}, v{vSC}, v{vSC} {m} row_mask:0xf bank_mask:0xf" for m in ("quad_perm:[1,0,3,2]", "quad_perm:[2,3,0,1]", "row_ror:4", "row_ror:8")]
        a(red[0])
        for i in range(4): a(f"v_mul_f32 v{Z+i}, v{Z+i}, v{dt}")
        a(red[1])
        for m in range(2):
            a(f"v_mul_f32 v{Z+2*m}, {f32(-LOG2E)}, v{Z+2*m}"); a(f"v_mul_f32 v{Z+2*m+1}, 0.15915494, v{Z+2*m+1}")
        a(red[2])
        names = [1, 2, 3, 4, 8, 12, 16, 20, 24, 28, 32, 64, 96, 128, 256, 512, 528, 1024, 1536, 2048, "R1", "R2", "R3"]
        E = {n: 88 + 4*i for i, n in enumerate(names)}
        AR = 76
        for i, p in enumerate((1, 32, 512)):
            for k in range(4):
                if p == 1: a(f"v_mov_b32 v{AR+4*i+k}, v{Z+k}")
                else: a(f"v_mul_f32 v{AR+4*i+k}, {f32(p)}, v{Z+k}")
            if i == 0: a(red[3])
        for i in range(6): a(f"v_fract_f32 v{AR+2*i+1}, v{AR+2*i+1}")
        for op in ("v_permlane16_swap_b32", "v_permlane32_swap_b32"):
            a(f"v_mov_b32 v{TT}, v{vSC}"); a("s_nop 1"); a(f"{op} v{TT}, v{vSC}"); a("s_nop 0"); a(f"v_max_f32 v{vSC}, v{vSC}, v{TT}")
        for i, p in enumerate((1, 32, 512)):
            for m in range(2):
                r = AR+4*i+2*m
                a(f"v_cos_f32 v{E[p]+2*m}, v{r+1}"); a(f"v_sin_f32 v{E[p]+2*m+1}, v{r+1}"); a(f"v_exp_f32 v{r}, v{r}")
        a(f"v_frexp_exp_i32_f32 v{TT}, v{vSC}")
        a(f"v_add_f32 v{dt}, v{dt}, v{dt}")
        a(f"v_ldexp_f32 v{vSC}, v{dt}, v{TT}")
        a(f"v_sub_u32 v{TT}, 0, v{TT}")
        for i, p in enumerate((1, 32, 512)):
            for m in range(2):
                a(f"v_pk_mul_f32 {vr(E[p]+2*m,2)}, {vr(E[p]+2*m,2)}, {vr(AR+4*i+2*m,2)} op_sel_hi:[1,0]")
        for k in range(4): a(f"v_ldexp_f32 v{C+k}, v{C+k}, v{TT}")
        E["C"] = C
        ent = {1: 1, 2: 2, 3: 3, 4: 5, 8: 6, 12: 7, 16: 8, 20: 9, 24: 10, 28: 11, 32: 13, 64: 14, 96: 15, "C": 16, "R1": 17, "R2": 18, "R3": 19,
               512: 20, 528: 21, 1024: 22, 1536: 23}
        wt = [0]
        def emit(n):
            if n not in ent: return
            t = AR + 2*(wt[0] % 6); wt[0] += 1
            ng = "-" if 12 <= ent[n] < 20 else ""
            for m in range(2): a(f"v_cvt_pk_f16_f32 v{t+m}, v{E[n]+2*m}, {ng}v{E[n]+2*m+1}")
            a(f"ds_write_b64 v{vTw}, {vr(t,2)} offset:{ent[n]*RS}")
        levels = [[(2,1,1), (64,32,32), (1024,512,512)], [(3,2,1), (4,2,2), (96,64,32), (128,64,64), (1536,1024,512), (2048,1024,1024)],
                  [(8,4,4), (256,128,128), ("R1","C",128)], [(12,8,4), (16,8,8), ("R2","C",256)],
                  [(20,16,4), (24,16,8), (28,16,12), (528,512,16), ("R3","R2",128)]]
        pend = [1, 32, 512, "C"]
        for lv in levels:
            for d, x, y in lv:
                for m in range(2): a(f"v_pk_mul_f32 {vr(E[d]+2*m,2)}, {vr(E[x]+2*m,2)}, {vr(E[y]+2*m,2)} op_sel_hi:[0,1]")
            for d, x, y in lv:
                for m in range(2):
                    a(f"v_pk_fma_f32 {vr(E[d]+2*m,2)}, {vr(E[x]+2*m,2)}, {vr(E[y]+2*m,2)}, {vr(E[d]+2*m,2)} op_sel:[1,1,0] op_sel_hi:[1,0,1] neg_lo:[0,1,0]")
            for n in pend: emit(n)
            pend = [d for d, x, y in lv]
        for n in pend: emit(n)
        e = E[2048]
        a(f"v_mul_f32 v61, v{e}, v{C}"); a(f"v_fma_f32 v61, -v{e+1}, v{C+1}, v61")
        a(f"v_fma_f32 v61, v{e+2}, v{C+2}, v61"); a(f"v_fma_f32 v61, -v{e+3}, v{C+3}, v61")
        wave_sum(a, 61, 62, 1)
        a(f"v_mul_f32 v61, v61, v{vSC}")
        a("v_cvt_pk_bf16_f32 v61, v61, v61")
        a(f"v_mov_b32 v62, s{sTB}")
        a(f"ds_write_b32 v62, v61 offset:1536")

    FB = 64
    srcs = [(vTa, 4), (vTa, 8), (vTb, 0), (vTa, 16), (vTb, 12), (vTa, 20), (vTc, 4)]
    def rdf(step):
        return [f"ds_read_b128 {vr(FB+28*(step&1)+4*i,4)}, v{r} offset:{e*RS+16*step}" for i, (r, e) in enumerate(srcs)]
    OB = 120
    def kstep(step, bg):
        f = FB + 28*(step & 1); o = OB + 16*(step & 1)
        a("s_waitcnt lgkmcnt(0)")
        nxt = rdf(step+1) if step < 7 else []
        prods = [(o, f+12, f+16), (o+4, f, f+8), (o+8, f+4, f+8), (o+12, f+20, f+24)]
        for d, x, y in prods:
            for m in range(4): a(f"v_pk_mul_f16 v{d+m}, v{x+m}, v{y+m} op_sel_hi:[0,1]")
            for _ in range(2):
                if nxt: a(nxt.pop(0))
        for grp in bg:
            for ins, tag in grp:
                a(ins)
                if tag: vm.add(tag)
        for i, (d, x, y) in enumerate(prods):
            for m in range(4): a(f"v_pk_fma_f16 v{d+m}, v{x+m}, v{y+m}, v{d+m} op_sel:[1,1,0] op_sel_hi:[1,0,1] neg_lo:[0,1,0]")
            if i >= 2:
                c = "0" if step == 0 else vr(ACC+4*(i-2),4)
                a(f"v_mfma_f32_16x16x32_f16 {vr(ACC+4*(i-2),4)}, {vr(o+4*(i-1),4)}, {vr(o,4)}, {c}")
        a("s_nop 0")
        c = "0" if step == 0 else vr(ACC+8,4)
        a(f"v_mfma_f32_16x16x32_f16 {vr(ACC+8,4)}, {vr(o+12,4)}, {vr(o,4)}, {c}")

    def ln1():
        a(f"s_lshl_b32 s{sT}, s{sWave}, 20"); a(f"s_lshl_b32 s{sT+1}, s2, 6"); a(f"s_add_u32 s{sT}, s{sT}, s{sT+1}")
        a(f"s_mov_b32 s{sT+2}, 0x05040100"); a(f"s_mov_b32 s{sT+3}, 0x07060302")
        a(f"s_and_b32 s{sT+6}, s2, 3"); a(f"s_lshl_b32 s{sT+6}, s{sT+6}, 6")
        a(f"v_mov_b32 v63, {KBASE + KCH - 16}")
        a(f"s_waitcnt vmcnt({vm.wait_for('X')})")
        g.stamp()
        T = 64; W = 152; XP = 200
        nl = a.label("nl")
        a(f"s_cmp_lg_u32 s{sWave}, 0"); a(f"s_cbranch_scc1 {nl}")
        a(f"buffer_load_dwordx2 v[22:23], v1, {sr(sDB,4)}, s{sT+6} offen sc1")
        a(f"{nl}:")
        for q in range(4):
            for k in range(4*q, 4*q+4): a(f"v_perm_b32 v{XP+k}, v{XD+8+(k>>1)}, v{XD+(k>>1)}, s{sT+2+(k&1)}")
            a(f"s_add_u32 s{sT+1}, s{sT}, {((q>>1)*32 + (q&1))*16384}")
            a(f"buffer_store_dwordx4 {vr(XP+4*q,4)}, v6, {sr(sU2,4)}, s{sT+1} offen {SC}"); vm.add("U")
        def pre():
            if KMID:
                for ins in rdf(0): a(ins)
                for st_ in range(KMID): kstep(st_, [])
            a(f"s_waitcnt vmcnt(0)")
            gn = a.label("gn"); gn2 = a.label("gn2"); gn3 = a.label("gn3")
            a(f"s_cmp_lg_u32 s{sWave}, 0"); a(f"s_cbranch_scc1 {gn3}")
            a(f"s_mov_b32 s{sTO}, 0")
            a(f"{gn}:")
            a(f"v_readfirstlane_b32 s{sNON}, v22")
            a(f"s_cmp_lg_u32 s{sNON}, 0"); a(f"s_cbranch_scc1 {gn2}")
            a(f"buffer_load_dwordx2 v[22:23], v1, {sr(sDB,4)}, s{sT+6} offen sc1")
            a("s_waitcnt vmcnt(0)")
            a(f"s_add_u32 s{sTO}, s{sTO}, 1"); a(f"s_cmp_lt_u32 s{sTO}, {TIMEOUT}"); a(f"s_cbranch_scc1 {gn}")
            a(f"{gn2}:")
            a(f"ds_write_b64 v63, v[22:23]")
            a(f"{gn3}:")
        ln_stats8(a, [(XD+k, XD+8+k) for k in range(8)], T, W, pre)
        sk = a.label("sg")
        a(f"ds_read_b64 v[32:33], v63")
        a(f"s_cmp_lg_u32 s{sWave}, 0"); a(f"s_cbranch_scc1 {sk}")
        a(f"v_mov_b32 v{W+6}, v22"); a(f"v_mov_b32 v{W+7}, v23")
        a(f"s_lshl_b32 s{sT}, s2, 6")
        a("s_mov_b64 exec, 0xf")
        a(f"buffer_store_dwordx4 {vr(W+4,4)}, v{vR}, {sr(sFLG,4)}, s{sT} offen {SC}")
        a("s_mov_b64 exec, -1")
        a(f"{sk}:")
        g.stamp()

    if ORDER[0] == "S":
        a(f"s_waitcnt vmcnt({vm.wait_for('P')})")
        g.stamp()
        setup()
    else: assert KMID == 0
    ln1()
    for grp in take(DSET):
        for ins, tag in grp: a(ins)
    if ORDER[0] != "S":
        setup()
        g.stamp()
    if KMID == 0:
        for ins in rdf(0): a(ins)
    step = KMID
    while step < 8:
        n = min(DPS, DPOST); DPOST -= n
        kstep(step, take(n)); step += 1
        if step == KMID + 1:
            a(f"v_readfirstlane_b32 s{sNON}, v32"); a(f"v_readfirstlane_b32 s{sNON+1}, v33")
    Eb = 72
    a(f"v_lshlrev_b32 v16, 4, v{vL}"); a(f"v_add_u32 v16, s{sTB}, v16"); a(f"v_subrev_u32 v17, 4, v16")
    a(f"v_add_u32 v2, s{sTB}, v2")
    s00 = sT; s11 = sT+1; s10 = sT+2; s21 = sT+3
    a(f"s_mov_b32 s{s00}, 0x01000100"); a(f"s_mov_b32 s{s11}, 0x03020302"); a(f"s_mov_b32 s{s10}, 0x01000302"); a(f"s_mov_b32 s{s21}, 0x03020504")
    for t in (0, 1, 2):
        for e in range(2): a(f"v_pk_mul_f32 {vr(ACC+4*t+2*e,2)}, {vr(ACC+4*t+2*e,2)}, {vr(vSC,2)} op_sel_hi:[1,0]")
        a(f"v_cvt_pk_bf16_f32 v{64+2*t}, v{ACC+4*t}, v{ACC+4*t+1}")
        a(f"v_cvt_pk_bf16_f32 v{65+2*t}, v{ACC+4*t+2}, v{ACC+4*t+3}")
    a(f"ds_write_b64 v{vO1}, v[64:65]"); a(f"ds_write_b64 v{vO1}, v[66:67] offset:32"); a(f"ds_write_b64 v{vO2}, v[68:69]")
    a(f"ds_read_b128 {vr(Eb,4)}, v16"); a(f"ds_read_b32 v{Eb+4}, v16 offset:16"); a(f"ds_read_b32 v{Eb-1}, v17")
    a(f"ds_read_b32 v78, v2 offset:1024"); a(f"ds_read_b32 v79, v2 offset:1028")
    a(f"ds_read_b32 v80, v2 offset:1280"); a(f"ds_read_b32 v81, v2 offset:1284")
    a("s_mov_b64 exec, 0x1ffffff")
    for c in range(4): a(f"ds_write_b128 v{vZ}, {vr(ZR,4)} offset:{c*UCS}")
    a("s_mov_b64 exec, -1")
    SG = 160
    for i in range(1, 4): a(f"s_mov_b32 s{36+i}, {4096*i}")
    def ld_sg():
        for i in range(4): a(f"buffer_load_dwordx4 {vr(SG+4*i,4)}, v{vR}, {sr(sFLG,4)}, {'s%d' % (36+i) if i else '0'} offen {SC}")
    ld_sg()
    a("s_waitcnt lgkmcnt(0)")
    O = 84
    for d, s0, s1, sl in ((0,3,2,2),(1,2,1,3),(2,1,0,2),(3,0,-1,4),(4,4,3,1),(5,2,2,0),(6,2,1,1),(7,0,0,0)):
        a(f"v_perm_b32 v{O+d}, v{Eb+s0}, v{Eb+s1}, v{SA+sl}")
    a(f"ds_write_b128 v{vK}, {vr(O,4)} offset:{KPAD}")
    a(f"ds_write_b128 v{vK}, {vr(O+4,4)} offset:{KPAD+KCS}")
    def mk(dst, kind, p01, p2):
        if kind == "00": a(f"v_perm_b32 v{dst}, v{p01}, v{p01}, s{s00}")
        elif kind == "11": a(f"v_perm_b32 v{dst}, v{p01}, v{p01}, s{s11}")
        elif kind == "22": a(f"v_perm_b32 v{dst}, v{p2}, v{p2}, s{s00}")
        elif kind == "10": a(f"v_perm_b32 v{dst}, v{p01}, v{p01}, s{s10}")
        elif kind == "21": a(f"v_perm_b32 v{dst}, v{p2}, v{p01}, s{s21}")
    chunks = [(78, ["21","11","00","00"], vK, KPAD + 1024), (78, ["22","11","10","00"], vK, KPAD + 1024 + KCS),
              (80, ["11","00","00","00"], vK2, KPAD + 2048), (80, ["22","21","11","11"], vK2, KPAD + 2048 + 16),
              (80, ["11","10","00","00"], vK2, KPAD + 2048 + KCS), (80, ["22","22","11","11"], vK2, KPAD + 2048 + KCS + 16)]
    for ci, (p, kinds, ad, off) in enumerate(chunks):
        b = O + 8 + 4*ci
        for e, kd in enumerate(kinds): mk(b+e, kd, p, p+1)
        a(f"ds_write_b128 v{ad}, {vr(b,4)} offset:{off}")
    g.stamp()
    sCGo = sT+7
    a(f"s_lshl_b32 s{sCGo}, s{sCG}, 14")
    lp = a.label("p1"); dn = a.label("p1d")
    a(f"s_mov_b32 s{sTO}, 0")
    a(f"{lp}:")
    a("s_waitcnt vmcnt(0)")
    a(f"v_cmp_ne_u64 vcc, {sr(sNON,2)}, {vr(SG+2,2)}")
    for i in range(1, 4):
        a(f"v_cmp_ne_u64 {sr(sT,2)}, {sr(sNON,2)}, {vr(SG+4*i+2,2)}"); a(f"s_or_b64 vcc, vcc, {sr(sT,2)}")
    a(f"s_cbranch_vccz {dn}")
    a("s_mov_b64 exec, vcc")
    ld_sg()
    a(f"s_add_u32 s{sTO}, s{sTO}, 1"); a(f"s_cmp_lt_u32 s{sTO}, {TIMEOUT}"); a(f"s_cbranch_scc1 {lp}")
    a(f"{dn}:")
    a("s_mov_b64 exec, -1")
    g.stamp()
    UR = 32; XG = 48; XU = 128; TD = 96
    for i in range(4):
        a(f"s_add_u32 s{sT}, s{sCGo}, {4096*i}")
        a(f"buffer_load_dwordx4 {vr(XG+4*i,4)}, v{vR}, {sr(sU2,4)}, s{sT} offen {SC}")
    def rdA(st, p, q): return f"ds_read_b128 {ar(64*st+4*p,4)}, v{vA} offset:{(8*p+q)*64}"
    def rdB(st, r, q): return f"ds_read_b128 {ar(64*st+32+4*r,4)}, v{vB} offset:{(8*r-q+7)*64}"
    for i in range(8): a(rdA(0, i, 0))
    for i in range(4):
        b = SG+4*i
        a(f"v_lshlrev_b32 v{b+2}, 16, v{b+1}"); a(f"v_and_b32 v{b+3}, 0xffff0000, v{b+1}")
        a(f"v_and_b32 v{b+1}, 0xffff0000, v{b}"); a(f"v_lshlrev_b32 v{b}, 16, v{b}")
        a(f"v_rcp_f32 v{b+2}, v{b+2}"); a(f"v_rcp_f32 v{b+3}, v{b+3}")
    a("s_barrier")
    for ii in range(4):
        a(f"s_waitcnt vmcnt({3-ii})")
        x = XU+8*ii; t = TD+8*ii; u = UR+4*ii
        for ch in range(4):
            a(f"v_lshlrev_b32 v{x+2*ch}, 16, v{XG+4*ii+ch}"); a(f"v_and_b32 v{x+2*ch+1}, 0xffff0000, v{XG+4*ii+ch}")
        for ch in range(4): a(f"v_pk_add_f32 {vr(t+2*ch,2)}, {vr(x+2*ch,2)}, {vr(SG+4*ii,2)} neg_lo:[0,1] neg_hi:[0,1]")
        for ch in range(4): a(f"v_cvt_pk_bf16_f32 v{u+ch}, v{t+2*ch}, v{t+2*ch+1}")
        for ch in range(4):
            a(f"v_lshlrev_b32 v{t+2*ch}, 16, v{u+ch}"); a(f"v_and_b32 v{t+2*ch+1}, 0xffff0000, v{u+ch}")
        for ch in range(4): a(f"v_pk_mul_f32 {vr(t+2*ch,2)}, {vr(t+2*ch,2)}, {vr(SG+4*ii+2,2)}")
        for ch in range(4): a(f"v_cvt_pk_bf16_f32 v{u+ch}, v{t+2*ch}, v{t+2*ch+1}")
        for c in range(4):
            for ch in range(2):
                a(f"ds_write2st64_b32 v{vUC+2*c+ch}, v{UR+4*ii+ch}, v{UR+4*ii+ch+2} offset0:{4*ii} offset1:{4*ii+141}")
    a("s_waitcnt lgkmcnt(0)")
    a("s_barrier")
    g.stamp()
    CA = 64
    for i in range(8): a(rdB(0, i, 0))
    fill = []
    F = fill.append
    TD = 96; XU = 128
    F(f"s_lshl_b32 s{sT}, s58, 16"); F(f"s_and_b32 s{sT+1}, s58, 0xffff0000"); F(f"s_lshl_b32 s{sT+2}, s59, 16"); F(f"s_and_b32 s{sT+3}, s59, 0xffff0000")
    for i in range(4):
        for ch in range(4):
            u = UR+4*i+ch; d = TD+8*i+2*ch
            F(f"v_lshlrev_b32 v{d}, 16, v{u}"); F(f"v_and_b32 v{d+1}, 0xffff0000, v{u}")
            F(f"v_mul_f32 v{d}, s{sT+ch}, v{d}"); F(f"v_mul_f32 v{d+1}, s{sT+ch}, v{d+1}")
            F(f"v_cvt_pk_bf16_f32 v{u}, v{d}, v{d+1}")
            F(f"v_lshlrev_b32 v{d}, 16, v{u}"); F(f"v_and_b32 v{d+1}, 0xffff0000, v{u}")
    F(f"v_lshlrev_b32 v16, 2, v0"); F(f"v_add_u32 v16, {KBASE}, v16")
    fill2 = []
    sched = {}
    nb = len(bgl)
    for n in range(nb):
        pos = n * DSP + 9
        sched[(pos // 36, pos % 36)] = [ins for ins, tag in bgl[n]]
    fi = 0
    npre = max(0, len(fill) - (7*20 - nb))
    for ins in fill[:npre]: a(ins)
    fill = fill[npre:]
    for q in range(8):
        st = q & 1
        a("s_waitcnt lgkmcnt(0)")
        nxt = []
        if q < 7:
            for i in range(8): nxt += [rdA(1-st, i, q+1), rdB(1-st, i, q+1)]
        else:
            assert fi == len(fill), (fi, len(fill))
            fill = fill2; fi = 0
        k = 0
        for p in range(8):
            for r in range(8 - p):
                t = p + r
                c = "0" if (q == 0 and p == 0) else vr(CA+4*t, 4)
                a(f"v_mfma_f32_16x16x32_bf16 {vr(CA+4*t,4)}, {ar(64*st+4*p,4)}, {ar(64*st+32+4*r,4)}, {c}")
                if (q, k) in sched:
                    for ins in sched.pop((q, k)): a(ins)
                elif nxt and (k % 2 == 0 or (k < 8)): a(nxt.pop(0))
                elif fi < len(fill): a(fill[fi]); fi += 1
                k += 1
        assert not nxt
    assert fi == len(fill) and not sched, (fi, len(fill), sched)
    for t in range(8):
        a(f"v_cvt_pk_bf16_f32 v{168+2*t}, v{CA+4*t}, v{CA+4*t+1}")
        a(f"v_cvt_pk_bf16_f32 v{169+2*t}, v{CA+4*t+2}, v{CA+4*t+3}")
        a(f"ds_write2_b32 v{vY}, v{168+2*t}, v{169+2*t} offset0:{128*(t&1)} offset1:{128*(t&1)+4}")
        if t & 1 and t < 7: a(f"v_add_u32 v{vY}, 1024, v{vY}")
    a("s_waitcnt vmcnt(0) lgkmcnt(0)")
    g.stamp()
    a("s_barrier")
    Y = 64; YU = 160
    for i in range(4):
        for ch in (0, 2):
            a(f"ds_read2st64_b32 {vr(Y+4*i+ch,2)}, v16 offset0:{4*i+33*ch} offset1:{4*i+33*(ch+1)}")
    for i in range(4):
        a(f"s_waitcnt lgkmcnt({6-2*i})")
        for ch in range(4):
            a(f"v_lshlrev_b32 v{YU+2*ch}, 16, v{Y+4*i+ch}"); a(f"v_and_b32 v{YU+2*ch+1}, 0xffff0000, v{Y+4*i+ch}")
        b = TD+8*i
        for ch in range(4): a(f"v_pk_add_f32 {vr(b+2*ch,2)}, {vr(b+2*ch,2)}, {vr(YU+2*ch,2)}")
        for ch in range(4): a(f"v_cvt_pk_bf16_f32 v{YU+ch}, v{b+2*ch}, v{b+2*ch+1}")
        for ch in range(4):
            a(f"v_lshlrev_b32 v{b+2*ch}, 16, v{YU+ch}"); a(f"v_and_b32 v{b+2*ch+1}, 0xffff0000, v{YU+ch}")
        for ch in range(4): a(f"v_pk_add_f32 {vr(b+2*ch,2)}, {vr(b+2*ch,2)}, {vr(XU+8*i+2*ch,2)}")
        for e in range(2):
            for hp in range(2):
                a(f"v_cvt_pk_bf16_f32 v{Y+4*i+2*e+hp}, v{b+4*hp+e}, v{b+4*hp+2+e}")
        a(f"s_add_u32 s{sT}, s{sCGo}, {4096*i}")
        a(f"buffer_store_dwordx4 {vr(Y+4*i,4)}, v{vR}, {sr(sH,4)}, s{sT} offen {SC}")
    g.stamp()

M_XCH = 0x1b00000
XSL = 16384; XWG = 3*XSL; SZ_XCH = 256*XWG
s2_TM = sT+4; s2_TN = sT+5; s2_KQ = sT+6
def g2_dma_addr(sM0, tv=2):
    return [f"s_bfe_u32 s{s2_KQ}, s2, 0x20001",
        f"s_and_b32 s{s2_TM}, s2, 1", f"s_lshl_b32 s{s2_TM}, s{s2_TM}, 2", f"s_bfe_u32 s{sT}, s2, 0x20003", f"s_add_u32 s{s2_TM}, s{s2_TM}, s{sT}",
        f"s_lshr_b32 s{s2_TN}, s2, 5",
        f"v_lshrrev_b32 v{tv}, 4, v{vL}", f"s_mul_i32 s{sT}, s{s2_KQ}, 896", f"s_lshl_b32 s{sT+1}, s{sWave}, 4", f"s_add_u32 s{sT}, s{sT}, s{sT+1}",
        f"v_add_u32 v1, s{sT}, v{tv}", f"v_lshlrev_b32 v1, 11, v1",
        f"v_lshlrev_b32 v{tv}, 2, v{tv}", f"v_and_b32 v{tv+1}, 15, v{vL}", f"v_xor_b32 v{tv}, v{tv}, v{tv+1}",
        f"v_lshl_add_u32 v1, v{tv}, 4, v1", f"s_lshl_b32 s{sT}, s{s2_TN}, 8", f"v_add_u32 v1, s{sT}, v1", f"s_lshl_b32 s{sM0}, s{sWave}, 12"]
G2_STG = 64*2048; G2_I = 4*2048 - 1024
G2_SLOT = [0, 1, 2, 8, 9, 3, 4, 5, 6, 7, 0, 1, 2, 8]
def g2_dma(stage, i, sM0=24, sW=12):
    grp = []
    if i == 0: grp.append(f"s_add_u32 m0, s{sM0}, {G2_SLOT[stage]*16384}")
    grp.append(f"s_mov_b32 s{sT+1}, {stage*G2_STG + i*G2_I}")
    grp.append(f"buffer_load_dwordx4 v1, {sr(sW,4)}, s{sT+1} offen offset:{1024*i} lds")
    return grp

def phase_gemm2(g, PRE1=6, LA=8, TAIL=16, XSLEEP=4, OF='nt'):
    a = g.a
    ACC = 32
    def acc(j, t): return ACC + (t*2 + j)*16
    HR = 160; IN = 176; XR = 0; WF = 192; NX = 24
    vX = 2; vW = 4; vO = 16; vI = 17; vH = 18; vFl = 19; vT = 232; vM = 20
    sX = 8; sH = 44; sO = 4; sIB = 36
    sOX = 20; sM = 26; sN = 27; sI = 31; sFo = 33
    a(f"s_lshl_b32 s{sM}, s{s2_TM}, 8"); a(f"s_lshl_b32 s{sT}, s{sWave}, 6"); a(f"s_add_u32 s{sM}, s{sM}, s{sT}")
    a(f"s_lshl_b32 s{sN}, s{s2_TN}, 7"); a(f"s_lshl_b32 s{sT}, s{s2_KQ}, 5"); a(f"s_add_u32 s{sN}, s{sN}, s{sT}")
    a(f"v_and_b32 v{vT}, 31, v{vL}"); a(f"v_add_u32 v{vT}, s{sM}, v{vT}")
    a(f"v_lshrrev_b32 v{vT+1}, 5, v{vL}")
    a(f"v_lshl_add_u32 v{vX}, v{vT+1}, 11, v{vT}"); a(f"v_lshlrev_b32 v{vX}, 4, v{vX}")
    a(f"s_mul_i32 s{sOX}, s{s2_KQ}, {112*32768}")
    a(f"v_lshlrev_b32 v{vH}, 3, v{vT}"); a(f"v_lshl_add_u32 v{vH}, v{vT+1}, 15, v{vH}")
    a(f"s_lshl_b32 s{sT}, s{sN}, 12"); a(f"v_add_u32 v{vH}, s{sT}, v{vH}")
    a(f"v_lshlrev_b32 v{vO}, 11, v{vT}"); a(f"v_lshl_add_u32 v{vO}, v{vT+1}, 4, v{vO}")
    a(f"s_lshl_b32 s{sT}, s{sN}, 1"); a(f"v_add_u32 v{vO}, s{sT}, v{vO}")
    a(f"v_bfe_u32 v{vT+3}, v{vL}, 2, 2"); a(f"v_lshl_add_u32 v{vT+4}, v{vT+1}, 3, v{vT+3}"); a(f"v_lshlrev_b32 v{vW}, 8, v{vT+4}")
    a(f"v_xor_b32 v{vT+3}, s{s2_KQ}, v{vT+3}"); a(f"v_lshl_add_u32 v{vW}, v{vT+3}, 6, v{vW}")
    a(f"v_bfe_u32 v{vT+3}, v{vL}, 4, 1"); a(f"v_lshl_add_u32 v{vW}, v{vT+3}, 5, v{vW}")
    a(f"v_and_b32 v{vT+3}, 1, v{vL}"); a(f"v_lshl_add_u32 v{vW}, v{vT+3}, 4, v{vW}")
    a(f"v_bfe_u32 v{vT+3}, v{vL}, 1, 1"); a(f"v_lshl_add_u32 v{vW}, v{vT+3}, 3, v{vW}")
    for t in range(1, 4): a(f"v_xor_b32 v{vW+t}, {64*t}, v{vW}")
    for b in range(1, 3):
        for t in range(4): a(f"v_add_u32 v{vW+4*b+t}, {65536*b}, v{vW+t}")
    a(f"v_lshlrev_b32 v{vI}, 4, v{vL}"); a(f"s_lshl_b32 s{sT}, s{sWave}, 12"); a(f"v_add_u32 v{vI}, s{sT}, v{vI}"); a(f"v_mov_b32 v{vM}, -2")
    srd(a, sO, pOUT, 2048*1024*2); srd(a, sIB, pWS, SZ_XCH, M_XCH)
    a(f"s_mul_i32 s{sI}, s2, {XWG}")
    for t in range(1, 4):
        a(f"s_xor_b32 s{27+t}, s2, {2*t}"); a(f"s_mul_i32 s{27+t}, s{27+t}, {XWG}"); a(f"s_add_u32 s{27+t}, s{27+t}, {XSL*(t-1)}")
    a(f"v_bfe_u32 v{vT+4}, v{vL}, 2, 1"); a(f"v_and_b32 v{vT+3}, 3, v{vL}"); a(f"v_lshl_add_u32 v{vT+4}, v{vT+3}, 6, v{vT+4}")
    a(f"s_lshl_b32 s{sT}, s{s2_TM}, 2"); a(f"s_add_u32 s{sT}, s{sT}, s{s2_KQ}"); a(f"s_lshl_b32 s{sT}, s{sT}, 1")
    a(f"v_add_u32 v{vT+4}, s{sT}, v{vT+4}")
    a(f"v_lshlrev_b32 v{vT+3}, 1, v{vT+3}"); a(f"v_xor_b32 v{vT+3}, s2, v{vT+3}")
    a(f"v_and_b32 v{vT+2}, 8, v{vL}"); a(f"v_cmp_eq_u32 vcc, 0, v{vT+2}"); a("s_nop 1")
    a(f"v_cndmask_b32 v{vFl}, v{vT+3}, v{vT+4}, vcc"); a(f"v_lshlrev_b32 v{vFl}, 6, v{vFl}")
    a(f"s_mov_b32 s{sFo}, {2*16384}")
    a("s_waitcnt vmcnt(0)")
    a("s_barrier")
    set_flag(g, 2, 22)
    g.stamp()
    def wread(st, f, t, step, j):
        off = G2_SLOT[step >> 2]*16384 + (step & 3)*4096 + j*1024
        return f"ds_read_b64_tr_b16 {ar(WF+st*16+f*4+j*2,2)}, v{vW + 4*(off >> 16) + t} offset:{off & 0xffff}"
    T0 = 56 - TAIL; TG = TAIL // 4
    sup = [[(t, s) for t in range(4)] for s in range(T0)]
    for t in (1, 2, 3, 0):
        for hf in range(TG): sup.append([(t, T0 + 4*hf + k) for k in range(4)])
    SEND = [T0 + TG*k for k in (1, 2, 3)]
    def need_of(n): return max(s for t, s in sup[min(n, 55)])
    def reads(n):
        return [wread(n & 1, f, t, s, j) for f, (t, s) in enumerate(sup[n]) for j in range(2)]
    for ins in reads(0): a(ins)
    for stg in range(PRE1, 10):
        for i in range(4):
            for ins in g2_dma(stg, i): a(ins)
    assert PRE1 >= 4
    poll_flags(g, vFl, sFo, 22)
    g.stamp()
    vm = VM()
    def xload(x):
        return [f"buffer_load_dwordx4 {ar(XR+(x % NX)*8+j*4,4)}, v{vX}, {sr(sX,4)}, s{sOX} offen offset:{512*j} {SC}" for j in range(2)]
    xadv = f"s_add_u32 s{sOX}, s{sOX}, 65536"
    nx = 0
    for x in range(4):
        for ins in xload(x): a(ins); vm.add(f"X{x}")
        a(xadv); nx += 1
    dl = [(stg, i) for stg in range(10, 14) for i in range(4)]
    started = set()
    send = []
    for n, fr in enumerate(sup):
        need = max(s for t, s in fr)
        w = vm.wait_for(f"X{need}")
        if n == 39:
            assert not dl
            w = min(w, vm.wait_for("D"))
        a(f"s_waitcnt vmcnt({w}) lgkmcnt(0)")
        if n in (15, 39): a("s_barrier")
        gaps = {k: [] for k in range(8)}; tags = {k: [] for k in range(8)}
        if n + 1 < len(sup):
            for k, ins in enumerate(reads(n + 1)): gaps[k // 2].append(ins)
        gi = 4
        for rep in range(2):
            if nx < 56 and nx <= max(need_of(k_) for k_ in range(n, n + LA + 1)) and gi <= 6:
                for j, ins in enumerate(xload(nx)): gaps[gi+j].append(ins); tags[gi+j].append(f"X{nx}")
                gaps[gi+1].append(xadv); nx += 1; gi += 2
        if n >= 15 and dl and gi <= 6:
            grp = g2_dma(*dl.pop(0))
            gaps[gi] += grp[:-1]; gaps[gi+1].append(grp[-1]); tags[gi+1].append("D")
        if n in (34, 35, 36, 37):
            for e in range(2):
                i = 2*(n-34) + e
                gj, gq = (i >> 2), (i >> 1) & 1
                gaps[6+e] += [f"s_mov_b32 s{sT}, {(4*gq + e)*16384}", f"buffer_load_dwordx2 {vr(HR+2*i,2)}, v{vH}, {sr(sH,4)}, s{sT} offen offset:{256*gj} {SC}"]
                tags[6+e].append("R")
        if n in SEND:
            t = sup[n-1][0][0]; b = acc(0, t)
            send = []
            for i in range(4):
                send += [f"v_cvt_pk_bf16_f32 v{b+4*i+e}, v{b+8*i+2*e}, v{b+8*i+2*e+1}" for e in range(4)]
                send += [f"v_min_u32 v{b+4*i+e}, v{b+4*i+e}, v{vM}" for e in range(4)]
                send += [f"buffer_store_dwordx4 {vr(b+4*i,4)}, v{vI}, {sr(sIB,4)}, s{27+t} offen offset:{1024*i} {SC}"]
        k = 0
        for f, (t, s) in enumerate(fr):
            for j in ((0, 1) if f % 2 == 0 else (1, 0)):
                c = vr(acc(j,t),16) if (j, t) in started else "0"
                started.add((j, t))
                a(f"v_mfma_f32_32x32x16_bf16 {vr(acc(j,t),16)}, {ar(WF+(n&1)*16+f*4,4)}, {ar(XR+(s % NX)*8+j*4,4)}, {c}")
                for ins in gaps[k]: a(ins)
                for tg in tags[k]: vm.add(tg)
                if send and not (n in SEND and k < 4):
                    for _ in range(4 if k >= 4 or n == 55 else 2):
                        if send:
                            ins = send.pop(0); a(ins)
                            if ins.startswith("buffer"): vm.add("S")
                k += 1
        if n - 1 in SEND: assert not send, len(send)
    assert nx == 56 and not dl
    g.stamp()
    P = acc(0, 1)
    a(f"s_add_u32 s28, s{sI}, {XSL}"); a(f"s_add_u32 s29, s{sI}, {2*XSL}")
    def ld_slot(sl):
        for i in range(4): a(f"buffer_load_dwordx4 {vr(IN+16*sl+4*i,4)}, v{vI}, {sr(sIB,4)}, s{(sI, 28, 29)[sl]} offen offset:{1024*i} {SC}")
    a(f"s_waitcnt vmcnt({vm.wait_for('R')})")
    for sl in range(3): ld_slot(sl)
    for k in range(16):
        a(f"v_lshlrev_b32 v{P+2*k}, 16, v{HR+k}"); a(f"v_and_b32 v{P+2*k+1}, 0xffff0000, v{HR+k}")
    a(f"s_mov_b32 s{sTO}, 0")
    Q = acc(0, 2); B = acc(0, 0)
    for sl in range(3):
        lp = a.label("xp"); dn = a.label("xd")
        a(f"s_waitcnt vmcnt({8-4*sl})")
        a(f"{lp}:")
        I = IN + 16*sl
        a(f"v_max3_u32 v21, v{I}, v{I+1}, v{I+2}"); a(f"v_max3_u32 v22, v{I+3}, v{I+4}, v{I+5}")
        for k in range(6, 16, 2): a(f"v_max3_u32 v{21 + ((k>>1)&1)}, v{21 + ((k>>1)&1)}, v{I+k}, v{I+k+1}")
        a(f"v_max_u32 v21, v21, v22")
        a(f"v_cmp_eq_u32 vcc, -1, v21")
        a(f"s_cbranch_vccz {dn}")
        a(f"s_sleep {XSLEEP}")
        ld_slot(sl)
        a(f"s_add_u32 s{sTO}, s{sTO}, 1"); a(f"s_cmp_lt_u32 s{sTO}, {TIMEOUT}")
        a("s_waitcnt vmcnt(0)")
        a(f"s_cbranch_scc1 {lp}")
        a(f"{dn}:")
        if sl == 2: break
        for k in range(16):
            a(f"v_lshlrev_b32 v{Q+2*k}, 16, v{I+k}"); a(f"v_and_b32 v{Q+2*k+1}, 0xffff0000, v{I+k}")
        for k in range(16): a(f"v_pk_add_f32 {vr(B+2*k,2)}, {vr(B+2*k,2)}, {vr(Q+2*k,2)}")
    g.stamp()
    a(f"s_mov_b32 s{sT}, 65536")
    for i in range(4):
        b = B + 8*i
        for e in range(4):
            a(f"v_lshlrev_b32 v{Q+2*e}, 16, v{IN+32+4*i+e}"); a(f"v_and_b32 v{Q+2*e+1}, 0xffff0000, v{IN+32+4*i+e}")
        for e in range(4): a(f"v_pk_add_f32 {vr(b+2*e,2)}, {vr(b+2*e,2)}, {vr(Q+2*e,2)}")
        for e in range(4): a(f"v_cvt_pk_bf16_f32 v{Q+e}, v{b+2*e}, v{b+2*e+1}")
        for e in range(4):
            a(f"v_lshlrev_b32 v{b+2*e}, 16, v{Q+e}"); a(f"v_and_b32 v{b+2*e+1}, 0xffff0000, v{Q+e}")
        for e in range(4): a(f"v_pk_add_f32 {vr(b+2*e,2)}, {vr(b+2*e,2)}, {vr(P+8*i+2*e,2)}")
        for e in range(4): a(f"v_cvt_pk_bf16_f32 v{HR+4*i+e}, v{b+2*e}, v{b+2*e+1}")
        so = f"s{sT}" if i >= 2 else "0"
        a(f"buffer_store_dwordx4 {vr(HR+4*i,4)}, v{vO}, {sr(sO,4)}, {so} offen offset:{32*(i&1)} {OF}")

def phase_gemm1(g, XF=SC, X0=2, PU=(0,2,6), LU=8, FS=False, TK='last', TU=3, PRE1=6):
    a = g.a
    SLOT = SLOT1
    ACC = 32
    MF = "v_mfma_f32_16x16x32_bf16"
    def acc(j, mt, t): return ACC + ((t*2 + (j >> 1))*4 + (j & 1)*2 + mt)*4
    XR = 0; WF = 64; CSF = 120; RD = 176; MB = 192
    vDMA = 1; vX = 8; vST = 9; vWc = 10; vWn = 11; vS = 12; vO = 28; vFl = 2; vC = 4; vF2 = 5
    sX = 44; sACT = 8; sST = 36; sCS = 40; sW2 = 12
    sOX = 20; sOX2 = 21; sBase = 23; sIt = 25; sA = 28; sB = 29; sNS = 30; sCSo = 32
    sOW = sG_OW; sM0 = sG_M0
    vm = VM()
    for i in range(4): vm.add("H")
    def pro_dma(stage, idxs):
        for i in idxs:
            if i in (0, 4): a(f"s_add_u32 m0, s{sM0}, {stage*SLOT + (4096 if i else 0)}"); a("s_nop 0")
            a(g1_dma(pDMA, i)); vm.add(f"D{stage}")
            if i == 6:
                for ins in g1_wadv("odd" if stage & 1 else "even"): a(ins)
    def wread(st, t, jj, reg, imm0):
        return f"ds_read_b64_tr_b16 {ar(WF+st*28+t*4+jj*2,2)}, v{reg} offset:{imm0 + st*UPOFF + 16*jj*224 + 32*t}"
    a(f"s_lshr_b32 s{sT}, s{sWave}, 1"); a(f"s_mul_i32 s{sT}, s{sT}, {SLOT}")
    a(f"s_and_b32 s{sT+1}, s{sWave}, 1"); a(f"s_mul_i32 s{sT+1}, s{sT+1}, {32*224}"); a(f"s_add_u32 s{sT}, s{sT}, s{sT+1}")
    a(f"v_add_u32 v164, s{sT}, v{pWc}")
    for st in range(2):
        for t in range(7):
            for jj in range(2): a(wread(st, t, jj, 164, 0))
    a(f"v_and_b32 v160, 15, v{vL}"); a(f"v_mov_b32 v161, 0x3f803f80")
    for i in range(7): a(f"v_mov_b32 v{vDMA+i}, v{pDMA+i}")
    for d, s_ in ((vX, pX), (vST, pST), (vWc, pWc), (vO, pO)): a(f"v_mov_b32 v{d}, v{s_}")
    a(f"v_add_u32 v{vWn}, {2*SLOT}, v{vWc}")
    srd(a, sACT, pWS, SZ_ACT, M_ACT); srd(a, sST, pWS, 2048*16, M_ST2); srd(a, sCS, pWS, 32*8192, M_CS)
    srd(a, sW2, pWD, SZ_W)
    a(f"s_mul_i32 s16, s2, 28672")
    a(f"v_mov_b32 v27, v{pSR}"); a("v_lshlrev_b32 v26, 4, v0")
    for e in range(4): a(f"v_accvgpr_write_b32 a{208+e}, -1")
    srd(a, 52, pWS, SZ_XCH, M_XCH)
    a(f"s_mul_i32 s51, s2, {XWG}"); a(f"s_add_u32 s54, s51, {XWG}")
    a(f"s_lshl_b32 s{sCSo}, s{sG_TN}, 13")
    a(f"s_lshl_b32 s{sOX}, s{sG_TM}, 19"); a(f"s_add_u32 s{sOX2}, s{sOX}, 65536")
    a(f"s_mov_b32 s17, s{sOX}"); a(f"s_add_u32 s26, s{sOX}, {1 << 19}")
    a(f"s_mov_b32 s{sBase}, 0"); a(f"s_mov_b32 s{sIt}, 3")
    a(f"s_mul_i32 s{sT}, s{sWave}, 896"); a(f"s_add_u32 s{sT}, s{sT}, {PBASE}")
    a(f"v_lshrrev_b32 v163, 4, v{vL}")
    a(f"v_lshlrev_b32 v165, 6, v160"); a(f"v_lshl_add_u32 v165, v163, 4, v165"); a(f"v_add_u32 v165, s{sT}, v165")
    a(f"s_waitcnt vmcnt({vm.wait_for('H')})")
    a("s_barrier")
    set_flag(g, 1, 174)
    g.stamp()
    a("s_waitcnt lgkmcnt(0)")
    for n in range(14):
        b = 96 + 4*n
        a(f"v_cmp_eq_u32 vcc, {n}, v160")
        pro_dma(2 + n//7, [n % 7])
        a("s_nop 0")
        for e in range(4): a(f"v_cndmask_b32 v{b+e}, 0, v161, vcc")
    a("s_nop 0")
    for n in range(14):
        c = "0" if n == 0 else "v[156:159]"
        a(f"{MF} v[156:159], {ar(WF+n*4,4)}, {vr(96+4*n,4)}, {c}")
    for t in range(7):
        for jj in range(2): a(wread(0, t, jj, vWc, 0))
    a(f"v_cmp_gt_u32 vcc, 14, v160")
    a("s_and_saveexec_b64 s[56:57], vcc")
    a(f"ds_write_b128 v165, v[156:159]")
    a("s_mov_b64 exec, -1")
    a(f"s_mov_b32 s{sT+1}, 16384")
    a("s_waitcnt lgkmcnt(0)")
    g.stamp()
    poll_flags(g, 29, sT+1, 166)
    a("s_barrier")
    g.stamp()
    vm = VM()
    def xslot(x): return XR + ((x>>1)&3)*16
    def xload(x, k):
        j, hf = 2*(x & 1) + (k >> 1), k & 1
        return f"buffer_load_dwordx2 {ar(xslot(x)+j*4+hf*2,2)}, v{vX}, {sr(sX,4)}, s{sOX2 if hf else sOX} offen offset:{128*j} {XF}"
    def xadv(x):
        if x & 1 == 0: return []
        if x % 8 == 7:
            return [f"s_mov_b32 s{sOX}, 0" if x == 7 else f"s_add_u32 s{sOX}, s{sOX}, 131072", f"s_cmp_eq_u32 s{sOX}, s17", f"s_cselect_b32 s{sOX}, s26, s{sOX}",
                    f"s_add_u32 s{sOX2}, s{sOX}, 65536"]
        return [f"s_add_u32 s{sOX}, s{sOX}, 131072", f"s_add_u32 s{sOX2}, s{sOX}, 65536"]
    for x in range(X0):
        for k in range(4): a(xload(x, k)); vm.add(f"X{x}")
        for ins in xadv(x): a(ins)
    nxt_x = [X0]
    a(f"v_min_u32 v168, 13, v160"); a(f"v_lshlrev_b32 v168, 6, v168"); a(f"v_lshrrev_b32 v169, 4, v0"); a(f"v_lshl_add_u32 v168, v169, 2, v168")
    a(f"v_add_u32 v168, {PBASE}, v168")
    for w in range(4): a(f"ds_read_b32 v{170+w}, v168 offset:{896*w}")
    a(f"v_lshlrev_b32 v169, 2, v0")
    a(f"s_lshl_b32 s{sT}, s{sG_TM}, 10"); a(f"s_add_u32 s{sT}, s{sT}, s{sCSo}")
    a(f"v_and_b32 v29, 3, v{vL}"); a(f"v_lshlrev_b32 v29, 4, v29"); a(f"s_lshl_b32 s{sT+1}, s{sWave}, 6"); a(f"s_add_u32 s{sT+1}, s{sT+1}, {SBASE}")
    a(f"v_add_u32 v29, s{sT+1}, v29")
    a("s_waitcnt lgkmcnt(0)")
    a("v_add_f32 v170, v170, v171"); a("v_add_f32 v172, v172, v173"); a("v_add_f32 v170, v170, v172")
    a("v_cvt_pk_bf16_f32 v171, v170, v170"); a("v_lshlrev_b32 v171, 16, v171")
    a("v_sub_f32 v170, v170, v171")
    a("v_cvt_pk_bf16_f32 v170, v171, v170")
    a(f"buffer_store_dword v170, v169, {sr(sCS,4)}, s{sT} offen {SC}"); vm.add("C")
    g.stamp()
    accu = []
    for k in range(8):
        r0 = RD+4*(k>>1)+(k&1); r1 = r0+2
        accu += [f"v_accvgpr_read_b32 v16, a{r0}", f"v_accvgpr_read_b32 v17, a{r1}",
                 "v_lshlrev_b32 v18, 16, v16", "v_lshlrev_b32 v19, 16, v17", "v_and_b32 v16, 0xffff0000, v16", "v_and_b32 v17, 0xffff0000, v17"]
        if k == 0:
            accu += ["v_add_f32 v12, v18, v16", "v_add_f32 v13, v19, v17", "v_mul_f32 v14, v18, v18", "v_mul_f32 v15, v19, v19"]
        else:
            accu += ["v_add_f32 v12, v12, v18", "v_add_f32 v13, v13, v19", "v_fmac_f32 v14, v18, v18", "v_fmac_f32 v15, v19, v19",
                     "v_add_f32 v12, v12, v16", "v_add_f32 v13, v13, v17"]
        accu += ["v_fmac_f32 v14, v16, v16", "v_fmac_f32 v15, v17, v17"]
    n3 = (len(accu) + 3) // 4
    FILL = {0: accu[:n3], 1: accu[n3:2*n3], 2: accu[2*n3:3*n3], 3: accu[3*n3:],
            4: red4(12, 16) + ["ds_write_b128 v29, v[12:15]"],
            5: [f"ds_read_b128 {vr(16+4*w,4)}, v29 offset:{64*(w+1)}" for w in range(3)],
            6: [f"v_add_f32 v{12+e}, v{12+e}, v{16+e}" for e in range(4)] + [f"v_add_f32 v{20+e}, v{20+e}, v{24+e}" for e in range(4)]
               + [f"v_add_f32 v{12+e}, v{12+e}, v{20+e}" for e in range(4)] + stats_final(12, 16),
            7: [f"v_cmp_gt_u32 vcc, 4, v{vL}", f"v_and_b32 v29, 3, v{vL}", "v_lshlrev_b32 v29, 5, v29", f"v_bfe_u32 v21, v{vL}, 2, 1", "v_lshl_add_u32 v29, v21, 4, v29",
                "v_cndmask_b32 v16, v13, v12, vcc", "v_cndmask_b32 v17, v15, v14, vcc", "v_cmp_gt_u32 vcc, 8, v0",
                f"v_mov_b32 v18, s{sNON}", f"v_mov_b32 v19, s{sNON+1}", "v_mov_b32 v21, 0x7fff0000", "v_cndmask_b32 v21, v21, v29, vcc",
                f"s_lshl_b32 s{sT}, s{sG_R}, 4", f"buffer_store_dwordx4 v[16:19], v21, {sr(sST,4)}, s{sT} offen {SC}", "v_lshlrev_b32 v29, 4, v0"]}
    LFILL = [f"v_and_b32 v{vC}, 15, v{vL}", f"v_lshlrev_b32 v{vC}, 6, v{vC}", f"v_lshrrev_b32 v{vF2}, 4, v{vL}", f"v_lshl_add_u32 v{vC}, v{vF2}, 11, v{vC}",
             f"v_and_b32 v{vF2}, 7, v{vL}", f"v_lshlrev_b32 v{vF2}, 9, v{vF2}",
             f"s_and_b32 s{sT}, s2, 0xc7", f"s_lshl_b32 s{sT}, s{sT}, 6", f"s_add_u32 s{sT}, s{sT}, {3*16384}", f"v_add_u32 v{vF2}, s{sT}, v{vF2}"]
    def ld_flags_stats():
        return [f"buffer_load_dwordx2 {vr(vFl,2)}, v{vF2}, {sr(sFLG,4)}, 0 offen {SC}"] + \
               [f"buffer_load_dwordx4 {vr(vS+4*j,4)}, v{vST}, {sr(sST,4)}, 0 offen offset:{256*j} {SC}" for j in range(4)]
    CSG = 120; CSF = 152 - 4
    CSG = 248 - 128
    CSF = 152
    def ld_cs(n):
        return f"buffer_load_dwordx4 {ar(CSG+4*n,4)}, v{vC}, {sr(sCS,4)}, s{sCSo} offen offset:{1024*(n >> 2) + 16*(n & 3)} {SC}"
    def csreg(n): return CSF + 2*n if n < 12 else 248 + 2*(n - 12)
    cs_mov = [f"v_accvgpr_mov_b32 a{csreg(n)+e}, a{CSG+16*e+n}" for n in range(14) for e in range(2)]
    w2 = [g2_dma(stg, i) for stg in range(PRE1) for i in range(4)]
    DM = {3: [0, 1], 0: [2, 3], 1: [4, 5], 2: [6]}
    def body(kind, base):
        first = kind == "first"; last = kind == "last"; second = kind == "second"; mid = kind == "mid"; pen = kind == "pen"
        for u in range(8):
            s = u % 4; st = u & 1
            w = vm.wait_for(f'X{(base+u) | 1}')
            if second and u == 0: w = min(w, vm.wait_for("R"))
            if last and u == 2: w = min(w, vm.wait_for("S"))
            if last and u == 4: w = min(w, vm.wait_for("CS"))
            a(f"s_waitcnt vmcnt({w}) lgkmcnt(0)")
            if FS and first and u in (0, 2, 4, 6): g.stamp()
            if (s == 3 and not (last and u == 7)) or (second and u == 5): a("s_barrier")
            if first and u == 7: set_flag(g, 3, 22)
            gaps = {k: [] for k in range(28)}
            nu = (u + 1) % 8
            reg = vWn if u == 7 else vWc
            imm0 = (nu // 4) * SLOT + ((nu % 4) >> 1) * 32 * 224
            rpos = [0, 1, 3, 4, 6, 7, 9, 10, 12, 13, 15, 16, 18, 19]
            if not (last and u == 7):
                k = 0
                for t in range(7):
                    for jj in range(2):
                        gaps[rpos[k]].append((wread(1 - st, t, jj, reg, imm0), None)); k += 1
            vq = []
            while nxt_x[0] < 32 and ((nxt_x[0] <= ((base + u) & ~1) + 6 + (u & 1) and len(vq) < 8)):
                x = nxt_x[0]; nxt_x[0] += 1
                for k in range(4): vq.append(([], xload(x, k), f"X{x}", xadv(x) if k == 3 else []))
            extra = []
            if not last:
                for i in ([] if (first and u < 3) or (pen and u > 2) else DM[s]):
                    pre = []
                    if i in (0, 4):
                        e = 4096 if i else 0
                        if u in (3, 4, 5, 6): pre = [f"s_add_u32 m0, s{sA}, {e}"]
                        elif u == 7: pre = [f"s_add_u32 m0, s{sA}, {SLOT + e}"]
                        else: pre = [f"s_add_u32 m0, s{sB}, {SLOT + e}"]
                    vq.append((pre, g1_dma(vDMA, i), "D", g1_wadv("odd" if u == 2 else "even") if i == 6 else []))
                if u == 0:
                    extra += [f"s_add_u32 s{sA}, s{sM0}, s{sBase}", f"s_sub_u32 s{sBase}, {2*SLOT}, s{sBase}", f"s_add_u32 s{sB}, s{sM0}, s{sBase}"]
                if mid and u in PU:
                    vq.append(([], f"buffer_store_dwordx4 a[208:211], v29, s[52:55], s51 offen {SC}", "P", [f"s_add_u32 s51, s51, 4096"]))
                if first and u in (2, 3, 4, 5):
                    vq.append(([], f"buffer_load_dwordx4 {ar(RD+4*(u-2),4)}, v27, {sr(sX,4)}, s{sG_SR} offen {SC}", "R", [f"s_add_u32 s{sG_SR}, s{sG_SR}, {16*16384}"]))
                if u == 7:
                    extra.append(f"v_swap_b32 v{vWc}, v{vWn}")
            else:
                if u == 0:
                    for n, ins in enumerate(LFILL): gaps[n].append((ins, None))
                    for ins in ld_flags_stats(): vq.append(([], ins, "S", []))
                if u == 1:
                    for n, ins in enumerate(g2_dma_addr(sM0, 6)): gaps[8 + n].append((ins, None))
                if u == 2:
                    for n in range(8): vq.append(([], ld_cs(n), "CS", []))
                if u >= LU:
                    for i in range(4):
                        grp = w2.pop(0)
                        vq.append((grp[:-1], grp[-1], "W", []))
                if u in (4, 5):
                    free = [k_ for k_ in range(28) if k_ not in rpos]
                    for n, ins in enumerate(cs_mov[14*(u-4):14*(u-3)]): gaps[free[n]].append((ins, None))
                if u == 7: gaps[0].append(("s_barrier", None))
            if kind == TK and u == TU:
                for t in range(7): vq.append(([], f"buffer_load_dwordx4 a[212:215], v{29 if last else 26}, {sr(sW2,4)}, s16 offen", "T", [f"s_add_u32 s16, s16, 4096"]))
            vpos = [2, 5, 8, 11, 14, 17, 20, 22, 24, 26] if len(vq) <= 10 else list(range(1, 28, 2))
            for n, (pre, ins, tag, post) in enumerate(vq):
                p = vpos[n]
                for x_ in pre: gaps[p-1].append((x_, None))
                gaps[p].append((ins, tag))
                for x_ in post: gaps[min(p+1, 27)].insert(0, None); gaps[min(p+1,27)].pop(0); gaps[min(p+1, 27)].append((x_, None))
            for n, ins in enumerate(extra): gaps[21 + 2*n].append((ins, None))
            if second and u in FILL:
                fl = FILL[u]
                for n, ins in enumerate(fl): gaps[n*28//len(fl) if len(fl) > 7 else 21+n].append((ins, None))
            if mid and u == 7:
                gaps[27] += [(f"s_add_u32 s{sIt}, s{sIt}, 1", None), (f"s_cmp_lt_u32 s{sIt}, 8", None)]
            k = 0
            for t in range(7):
                for j in ((0, 1, 2, 3) if t % 2 == 0 else (3, 2, 1, 0)):
                    d = vr(acc(j, st, t), 4)
                    c = "0" if (first and u < 2) else d
                    a(f"{MF} {d}, {ar(WF+st*28+t*4,4)}, {ar(xslot(base+u)+j*4,4)}, {c}")
                    for ins, tag in gaps[k]:
                        a(ins)
                        if tag: vm.add(tag)
                    k += 1
    body("first", 0)
    g.stamp()
    body("second", 8)
    loop = a.label("g1loop")
    a(f"{loop}:")
    if g.dbg:
        a("s_memrealtime s[98:99]"); a("s_memtime s[100:101]"); a(f"s_add_u32 s97, s{sIt}, {g.nst-3}"); a("s_waitcnt lgkmcnt(0)")
        a("s_mov_b32 s99, m0"); a("s_mov_b32 m0, s97"); a("s_nop 1")
        a(f"v_writelane_b32 v{vSTAMP}, s98, m0"); a("s_add_u32 m0, m0, 32"); a("s_nop 1"); a(f"v_writelane_b32 v{vSTAMP}, s100, m0"); a("s_mov_b32 m0, s99")
        g.nst += 5
    body("mid", 16)
    a(f"s_cbranch_scc1 {loop}")
    g.stamp()
    body("last", 24)
    g.stamp()
    poll = a.label("sp"); ok = a.label("sok")
    a(f"s_mov_b32 s{sTO}, 0")
    a(f"{poll}:")
    a(f"v_cmp_ne_u64 vcc, {sr(sNON,2)}, {vr(vFl,2)}")
    for j in range(4):
        a(f"v_cmp_ne_u64 {sr(sT,2)}, {sr(sNON,2)}, {vr(vS+4*j+2,2)}"); a(f"s_or_b64 vcc, vcc, {sr(sT,2)}")
    a(f"s_cbranch_vccz {ok}")
    for ins in ld_flags_stats(): a(ins)
    a("s_waitcnt vmcnt(0)")
    for n in range(8): a(ld_cs(n))
    a("s_waitcnt vmcnt(0)")
    for ins in cs_mov: a(ins)
    a(f"s_add_u32 s{sTO}, s{sTO}, 1"); a(f"s_cmp_lt_u32 s{sTO}, {TIMEOUT}"); a(f"s_cbranch_scc1 {poll}")
    a(f"{ok}:")
    K0 = -2.0 * 0.7978845608028654 * LOG2E
    K1 = K0 * 0.044715
    for j in range(4):
        c = vS + 4*j
        a(f"v_xor_b32 v{c+3}, 0x80000000, v{c}"); a(f"v_lshrrev_b32 v{c+2}, 16, v{c+3}"); a(f"v_or_b32 v{c+3}, v{c+2}, v{c+3}")
        a(f"v_mul_f32 v{c}, {f32(K0)}, v{c+1}"); a(f"v_mul_f32 v{c+2}, v{c+1}, v{c+1}")
        for e in range(2): a(f"v_accvgpr_write_b32 a{MB+2*j+e}, v{c+3}")
        a(f"v_mul_f32 v{c+1}, v{c+2}, v{c+1}"); a(f"v_rcp_f32 v{c+2}, v{c+2}"); a(f"v_mul_f32 v{c+1}, {f32(K1)}, v{c+1}")
    units = [(t, jp) for t in range(7) for jp in range(2)]
    def corr(n):
        t, jp = units[n]
        return [f"v_mfma_f32_16x16x16_bf16 {vr(acc(j,mt,t),4)}, {ar(csreg(7*mt+t),2)}, {ar(MB+2*j,2)}, {vr(acc(j,mt,t),4)}" for j in (2*jp, 2*jp+1) for mt in range(2)]
    for ins in corr(0) + corr(1): a(ins)
    a("s_nop 3")
    def W2():
        if w2:
            for ins in w2.pop(0): a(ins)
    T = 2
    for n, (t, jp) in enumerate(units):
        b = acc(2*jp, 0, t)
        cm = corr(n+2) if n + 2 < 14 else []
        prs = [(b, b+4, vS+8*jp), (b+2, b+6, vS+8*jp), (b+8, b+12, vS+8*jp+4), (b+10, b+14, vS+8*jp+4)]
        for i, (gt, u_, c) in enumerate(prs): a(f"v_pk_mul_f32 {vr(T+2*i,2)}, {vr(gt,2)}, {vr(gt,2)}")
        for i, (gt, u_, c) in enumerate(prs): a(f"v_pk_fma_f32 {vr(T+2*i,2)}, {vr(T+2*i,2)}, {vr(c,2)}, {vr(c,2)} op_sel:[0,1,0] op_sel_hi:[1,1,0]")
        for i, (gt, u_, c) in enumerate(prs): a(f"v_pk_mul_f32 {vr(T+2*i,2)}, {vr(T+2*i,2)}, {vr(gt,2)}")
        W2()
        for i in range(8):
            a(f"v_exp_f32 v{T+i}, v{T+i}")
            if cm and i % 2 == 0: a(cm.pop(0))
        for i, (gt, u_, c) in enumerate(prs): a(f"v_pk_mul_f32 {vr(u_,2)}, {vr(u_,2)}, {vr(gt,2)}")
        for i, (gt, u_, c) in enumerate(prs): a(f"v_pk_fma_f32 {vr(T+2*i,2)}, {vr(T+2*i,2)}, {vr(c+2,2)}, {vr(c+2,2)} op_sel_hi:[1,0,0]")
        W2()
        for i in range(8): a(f"v_rcp_f32 v{T+i}, v{T+i}")
        a(f"s_mov_b32 s{sT}, {t*65536}")
        for i, (gt, u_, c) in enumerate(prs): a(f"v_pk_mul_f32 {vr(u_,2)}, {vr(u_,2)}, {vr(T+2*i,2)}")
        for i in (0, 2, 1, 3):
            u_ = prs[i][1]
            a(f"v_cvt_pk_bf16_f32 v{b+i}, v{u_}, v{u_+1}")
        a(f"v_permlane16_swap_b32 v{b}, v{b+2}")
        a("s_nop 0")
        a(f"v_permlane16_swap_b32 v{b+1}, v{b+3}")
        a(f"buffer_store_dwordx4 {vr(b,4)}, v{vO}, {sr(sACT,4)}, s{sT} offen offset:{512*jp} {SC}")
    assert not w2
    g.stamp()

def gen_mega(dbg=False, as_list=False, p01={}, g1={}, g2={}):
    g = G(dbg); a = g.a
    end = a.label("end")
    a(f"s_cmp_ge_u32 s2, 256"); a(f"s_cbranch_scc1 {end}")
    phase01(g, **p01); phase_gemm1(g, **g1); phase_gemm2(g, **g2)
    if dbg:
        g.stamp()
        a("s_waitcnt vmcnt(0)")
        g.stamp()
        srd(a, 4, pWS, 1 << 19, M_DBG)
        a(f"v_lshlrev_b32 v1, 2, v{vL}")
        a(f"s_lshl_b32 s{sT}, s2, 2"); a(f"s_add_u32 s{sT}, s{sT}, s{sWave}"); a(f"s_lshl_b32 s{sT}, s{sT}, 8")
        a(f"buffer_store_dword v{vSTAMP}, v1, s[4:7], s{sT} offen")
    a(f"{end}:")
    a("s_endpgm")
    k = f"kernel={NAME} " if as_list else ""
    launch = f"; @launch {k}grid=(256,1,1) block=(256,1,1) lds=163840\n"
    body = a.text()
    import subprocess, tempfile, os
    with tempfile.TemporaryDirectory() as td:
        open(td + "/x.s", "w").write('.amdgcn_target "amdgcn-amd-amdhsa--gfx950"\n.text\n' + body.replace("CODE_BYTES", "0x1234"))
        subprocess.run(["clang", "-x", "assembler", "-target", "amdgcn-amd-amdhsa", "-mcpu=gfx950", "-c", td + "/x.s", "-o", td + "/x.o"], check=True)
        subprocess.run(["llvm-objcopy", "-O", "binary", "-j", ".text", td + "/x.o", td + "/x.bin"], check=True)
        n = os.path.getsize(td + "/x.bin")
    assert n < 65536
    body = body.replace("CODE_BYTES", str((n - 768) & ~63))
    return launch, kernel_header(NAME) + body, kernel_desc(NAME, 512, 256)

if __name__ == "__main__":
    from mk import *
    V = {1: {}, 2: dict(g1=dict(TK='second', TU=2, LU=3, PRE1=10), g2=dict(PRE1=10)), 3: dict(g1=dict(TK='first', TU=6, LU=3, PRE1=10), g2=dict(PRE1=10)),
         4: dict(g1=dict(TK='second', TU=2))}
    for k, v in V.items():
        mk([gen_mega(dbg=True, as_list=True, **v)], f'd{k}.s')
        assemble([gen_mega(**v)], f'm{k}.s')
```

```python
from common import *
LOG2E = 1.4426950408889634
NAME = "sequential_preLN__ssm_conv_s4d__geglu_ffn__prompt_kernel"

M_H4  = 0x0000000
M_ACT = 0x0400000
M_ST2 = 0x1200000
M_FLG = 0x1210000
M_CS  = 0x1220000
M_DBG = 0x1280000
M_U2  = 0x1300000
M_END = 0x1b00000

pU, pLOGA, pAIM, pCRE, pCIM, pLOGDT, pDSKIP, pBX, pWG, pWU, pWD, pOUT, pDBG, pWS = [64 + 2*i for i in range(14)]
sNON = 92; sWave = 94; sCG = 95; sTO = 96
sFLG = 60
sT = 48
vL = 30; vSTAMP = 31
SC = "sc0 sc1"

SLOT1 = 28800; UPOFF = 14464
UCS = 4512; UCH = 4*UCS; UPAD = 400
KCS = 4224; KCH = 8448; KPAD = 112
UBASE = 2*SLOT1
KBASE = UBASE + 4*UCH
SBASE = KBASE + 4*KCH
PBASE = 4*SLOT1
RS = 528; TOFF = 24*RS + 16
NBASE = SBASE + 240
assert SBASE + 256 <= 163840

class G:
    def __init__(self, dbg):
        self.a = Asm("mk"); self.dbg = dbg; self.nst = 0
    def stamp(self):
        if not self.dbg: return
        a = self.a
        a("s_memrealtime s[98:99]"); a("s_memtime s[100:101]"); a("s_waitcnt lgkmcnt(0)")
        a(f"v_writelane_b32 v{vSTAMP}, s98, {self.nst}"); a(f"v_writelane_b32 v{vSTAMP}, s100, {32+self.nst}")
        self.nst += 1

def cmul(a, d, x, y, conj_out=False):
    n1 = " neg_hi:[0,1]" if conj_out else ""
    n2 = " neg_hi:[0,1,0]" if conj_out else ""
    a(f"v_pk_mul_f32 {vr(d,2)}, {vr(x,2)}, {vr(y,2)} op_sel_hi:[0,1]{n1}")
    a(f"v_pk_fma_f32 {vr(d,2)}, {vr(x,2)}, {vr(y,2)}, {vr(d,2)} op_sel:[1,1,0] op_sel_hi:[1,0,1] neg_lo:[0,1,0]{n2}")

def red4(v, t):
    o = []
    for d in (4, 8):
        o += [f"v_add_f32_dpp v{v+e}, v{v+e}, v{v+e} row_ror:{d} row_mask:0xf bank_mask:0xf" for e in range(4)]
    for op in ("v_permlane16_swap_b32", "v_permlane32_swap_b32"):
        o += [f"v_mov_b32 v{t+e}, v{v+e}" for e in range(4)]
        o += [f"{op} v{t+e}, v{v+e}" for e in range(4)]
        o += [f"v_add_f32 v{v+e}, v{v+e}, v{t+e}" for e in range(4)]
    return o

def stats_final(W, t, packed=False):
    o = [f"v_mul_f32 v{W+e}, {f32(1/1024)}, v{W+e}" for e in range(4)]
    o += [f"v_fma_f32 v{W+2+e}, -v{W+e}, v{W+e}, v{W+2+e}" for e in range(2)]
    o += [f"v_max_f32 v{W+2+e}, 0, v{W+2+e}" for e in range(2)]
    def rnd(b): return [f"v_cvt_pk_bf16_f32 v{t}, v{b}, v{b+1}", f"v_lshlrev_b32 v{b}, 16, v{t}", f"v_and_b32 v{b+1}, 0xffff0000, v{t}"]
    o += rnd(W+2)
    o += [f"v_add_f32 v{W+2+e}, {f32(1e-5)}, v{W+2+e}" for e in range(2)]
    o += rnd(W+2)
    o += [f"v_sqrt_f32 v{W+2+e}, v{W+2+e}" for e in range(2)]
    if packed:
        return o + [f"v_cvt_pk_bf16_f32 v{t}, v{W}, v{W+1}", f"v_cvt_pk_bf16_f32 v{t+1}, v{W+2}, v{W+3}"]
    o += rnd(W)
    o += rnd(W+2)
    o += [f"v_rcp_f32 v{W+2+e}, v{W+2+e}" for e in range(2)]
    o += ["s_nop 0"]
    return o

def ln_stats8(a, pairs, T, W, pre_barrier):
    for k, (r0, r1) in enumerate(pairs):
        a(f"v_lshlrev_b32 v{T+4*k}, 16, v{r0}"); a(f"v_lshlrev_b32 v{T+4*k+1}, 16, v{r1}")
        a(f"v_and_b32 v{T+4*k+2}, 0xffff0000, v{r0}"); a(f"v_and_b32 v{T+4*k+3}, 0xffff0000, v{r1}")
    a(f"v_pk_add_f32 {vr(W,2)}, {vr(T,2)}, {vr(T+4,2)}"); a(f"v_pk_mul_f32 {vr(W+2,2)}, {vr(T,2)}, {vr(T,2)}")
    a(f"v_pk_add_f32 {vr(W+4,2)}, {vr(T+2,2)}, {vr(T+6,2)}"); a(f"v_pk_mul_f32 {vr(W+6,2)}, {vr(T+2,2)}, {vr(T+2,2)}")
    for k in range(2, 16):
        b = W + 4*(k & 1)
        if k >= 4: a(f"v_pk_add_f32 {vr(b,2)}, {vr(b,2)}, {vr(T+2*k,2)}")
        a(f"v_pk_fma_f32 {vr(b+2,2)}, {vr(T+2*k,2)}, {vr(T+2*k,2)}, {vr(b+2,2)}")
    a(f"v_pk_add_f32 {vr(W,2)}, {vr(W,2)}, {vr(W+4,2)}"); a(f"v_pk_add_f32 {vr(W+2,2)}, {vr(W+2,2)}, {vr(W+6,2)}")
    a(f"v_and_b32 v{W+24}, 3, v{vL}"); a(f"v_lshlrev_b32 v{W+24}, 4, v{W+24}"); a(f"v_add_u32 v{W+24}, {SBASE}, v{W+24}")
    a(f"s_lshl_b32 s{sT}, s{sWave}, 6"); a(f"v_add_u32 v{W+25}, s{sT}, v{W+24}")
    for ins in red4(W, W+4): a(ins)
    a(f"ds_write_b128 v{W+25}, {vr(W,4)}")
    pre_barrier()
    a("s_waitcnt lgkmcnt(0)"); a("s_barrier")
    E = W + 8
    for w in range(4): a(f"ds_read_b128 {vr(E+4*w,4)}, v{W+24} offset:{64*w}")
    a("s_waitcnt lgkmcnt(0)")
    a(f"v_pk_add_f32 {vr(W,2)}, {vr(E,2)}, {vr(E+4,2)}"); a(f"v_pk_add_f32 {vr(W+4,2)}, {vr(E+8,2)}, {vr(E+12,2)}")
    a(f"v_pk_add_f32 {vr(W+2,2)}, {vr(E+2,2)}, {vr(E+6,2)}"); a(f"v_pk_add_f32 {vr(W+6,2)}, {vr(E+10,2)}, {vr(E+14,2)}")
    a(f"v_pk_add_f32 {vr(W,2)}, {vr(W,2)}, {vr(W+4,2)}"); a(f"v_pk_add_f32 {vr(W+2,2)}, {vr(W+2,2)}, {vr(W+6,2)}")
    for ins in stats_final(W, W+4, True): a(ins)

TIMEOUT = 400000
def set_flag(g, which, tmp):
    a = g.a
    sk = a.label("fl")
    a(f"s_cmp_lg_u32 s{sWave}, 0"); a(f"s_cbranch_scc1 {sk}")
    a(f"s_lshl_b32 s{sT}, s2, 6"); a(f"s_add_u32 s{sT}, s{sT}, {which*16384}")
    a(f"v_mov_b32 v{tmp}, s{sNON}"); a(f"v_mov_b32 v{tmp+1}, s{sNON+1}"); a(f"v_mov_b32 v{tmp+2}, 0")
    a("s_mov_b64 exec, 1")
    a(f"buffer_store_dwordx2 {vr(tmp,2)}, v{tmp+2}, {sr(sFLG,4)}, s{sT} offen {SC}")
    a("s_mov_b64 exec, -1")
    a(f"{sk}:")

def poll_flags(g, voff, soff, tmp, preloaded=False):
    a = g.a
    lp = a.label("poll"); dn = a.label("pdone"); pre = a.label("ppre")
    a(f"s_mov_b32 s{sTO}, 0")
    if preloaded: a(f"s_branch {pre}")
    a(f"{lp}:")
    a(f"buffer_load_dwordx2 {vr(tmp,2)}, v{voff}, {sr(sFLG,4)}, s{soff} offen {SC}")
    if preloaded: a(f"{pre}:")
    a("s_waitcnt vmcnt(0)")
    a(f"v_cmp_ne_u64 vcc, {sr(sNON,2)}, {vr(tmp,2)}")
    a(f"s_cbranch_vccz {dn}")
    a("s_mov_b64 exec, vcc")
    a(f"s_add_u32 s{sTO}, s{sTO}, 1"); a(f"s_cmp_lt_u32 s{sTO}, {TIMEOUT}"); a(f"s_cbranch_scc1 {lp}")
    a(f"{dn}:")
    a("s_mov_b64 exec, -1")

class VM:
    def __init__(self): self.ops = []
    def add(self, tag): self.ops.append(tag)
    def wait_for(self, tag):
        idx = max(i for i, t in enumerate(self.ops) if t == tag)
        n = len(self.ops) - 1 - idx
        assert n <= 63, n
        return n


pDMA = 224
pX = 231; pST = 232; pWc = 233; pO = 234; pSR = 235; pTch = 236
sG_W = 4
sG_OW = 22; sG_M0 = 24; sG_F = 27; sG_R = 31; sG_SR = 35; sG_TN = 34; sG_TM = 33

def g1_dma(reg, i, fl=""):
    return f"buffer_load_dwordx4 v{reg+i}, {sr(sG_W,4)}, s{sG_OW} offen offset:{(i & 3)*1024} {fl} lds"
sG_OWN = 19; sG_OWN2 = 18
def g1_wadv(kind):
    if kind == "even": return [f"s_add_u32 s{sG_OW}, s{sG_OW}, {64*7168}"]
    first = f"s_mov_b32 s{sG_OW}, 0" if kind == "own" else f"s_add_u32 s{sG_OW}, s{sG_OW}, {64*7168}"
    return [first, f"s_cmp_eq_u32 s{sG_OW}, s{sG_OWN}", f"s_cselect_b32 s{sG_OW}, s{sG_OWN2}, s{sG_OW}"]

def gemm1_addr(g, part):
    a = g.a if part == 0 else (lambda x: None)
    t0 = 240; sM = 26
    a(f"s_and_b32 s{sT}, s2, 7")
    a(f"s_bfe_u32 s{sG_TM}, s2, 0x30003")
    a(f"s_lshl_b32 s{sG_TN}, s{sT}, 2"); a(f"s_lshr_b32 s{sT+2}, s2, 6"); a(f"s_add_u32 s{sG_TN}, s{sG_TN}, s{sT+2}")
    a(f"s_lshl_b32 s{sM}, s{sG_TM}, 8")
    a(f"s_lshl_b32 s{sG_R}, s{sG_TN}, 3"); a(f"s_add_u32 s{sG_R}, s{sG_R}, s{sM}")
    a(f"s_mul_i32 s{sG_F}, s{sG_TN}, 112")
    a(f"s_cmp_ge_u32 s{sWave}, 2")
    a(f"s_cselect_b32 s{sG_W}, s{pWU}, s{pWG}"); a(f"s_cselect_b32 s{sG_W+1}, s{pWU+1}, s{pWG+1}")
    a(f"s_mov_b32 s{sG_W+2}, {SZ_W}"); a(f"s_mov_b32 s{sG_W+3}, 0x20000")
    a(f"s_and_b32 s{sT}, s{sWave}, 1"); a(f"s_mul_i32 s{sT+1}, s{sT}, 448"); a(f"s_lshl_b32 s{sT+2}, s{sG_F}, 1")
    for i in range(7):
        imm = (i & 3) * 1024
        a(f"v_add_u32 v{t0}, s{sT+1}, v{vL}")
        if i: a(f"v_add_u32 v{t0}, {64*i}, v{t0}")
        a(f"v_mul_u32_u24 v{t0+1}, 4682, v{t0}"); a(f"v_lshrrev_b32 v{t0+1}, 16, v{t0+1}")
        a(f"v_mul_u32_u24 v{t0+1}, {7168-224}, v{t0+1}")
        a(f"v_lshl_add_u32 v{t0+1}, v{t0}, 4, v{t0+1}")
        a(f"v_add_u32 v{pDMA+i}, s{sT+2}, v{t0+1}")
        if imm: a(f"v_subrev_u32 v{pDMA+i}, {imm}, v{pDMA+i}")
    a(f"v_and_b32 v{t0+3}, 3, v{vL}")
    a(f"s_mul_i32 s{sG_M0}, s{sT}, 7168"); a(f"s_lshr_b32 s{sT}, s{sWave}, 1"); a(f"s_mul_i32 s{sT}, s{sT}, {UPOFF}")
    a(f"s_add_u32 s{sG_M0}, s{sG_M0}, s{sT}")
    a(f"s_mul_i32 s{sG_OW}, s{sG_TM}, {128*7168}")
    a(f"s_mov_b32 s{sG_OWN}, s{sG_OW}"); a(f"s_add_u32 s{sG_OWN2}, s{sG_OW}, {128*7168}")
    a = g.a if part == 1 else (lambda x: None)
    a(f"s_lshl_b32 s{sT}, s{sWave}, 6"); a(f"s_add_u32 s{sM}, s{sM}, s{sT}")
    a(f"v_and_b32 v{t0}, 31, v{vL}"); a(f"v_add_u32 v{t0}, s{sM}, v{t0}")
    a(f"v_lshlrev_b32 v{pST}, 4, v{t0}")
    a(f"v_lshrrev_b32 v{t0+1}, 5, v{vL}")
    a(f"v_lshlrev_b32 v{pX}, 3, v{t0}"); a(f"v_lshl_add_u32 v{pX}, v{t0+1}, 15, v{pX}")
    a(f"v_lshl_add_u32 v{pO}, v{t0+1}, 15, v{pST}"); a(f"s_lshl_b32 s{sT}, s{sG_F}, 12"); a(f"v_add_u32 v{pO}, s{sT}, v{pO}")
    a(f"v_bfe_u32 v{t0+2}, v{vL}, 2, 2"); a(f"v_lshl_add_u32 v{t0+2}, v{t0+1}, 3, v{t0+2}")
    a(f"v_mul_u32_u24 v{pWc}, 224, v{t0+2}")
    a(f"v_bfe_u32 v{t0+2}, v{vL}, 1, 1"); a(f"v_mul_u32_u24 v{t0+2}, {UPOFF}, v{t0+2}"); a(f"v_add_u32 v{pWc}, v{pWc}, v{t0+2}")
    a(f"v_and_b32 v{t0+2}, 1, v{vL}"); a(f"v_lshl_add_u32 v{pWc}, v{t0+2}, 4, v{pWc}")
    a(f"v_bfe_u32 v{t0+2}, v{vL}, 4, 1"); a(f"v_lshl_add_u32 v{pWc}, v{t0+2}, 3, v{pWc}")
    a(f"v_lshrrev_b32 v{pSR}, 2, v{vL}"); a(f"v_lshlrev_b32 v{pSR}, 14, v{pSR}"); a(f"v_lshl_add_u32 v{pSR}, v{t0+3}, 4, v{pSR}")
    a(f"s_lshl_b32 s{sG_SR}, s{sWave}, 20"); a(f"s_lshl_b32 s{sT}, s{sG_R}, 3"); a(f"s_add_u32 s{sG_SR}, s{sG_SR}, s{sT}")

def phase01(g, ORDER="S", KMID=2, DPOST=0, XNT="nt", TOUCH=False, DNT="", DSP=18, CPF=True, DSTART=0, CT=0, DPS=2, DSET=7):
    a = g.a
    vm = VM()
    a(f"s_memrealtime {sr(sT+2,2)}")
    a("s_load_dwordx16 s[64:79], s[0:1], 0")
    a("s_load_dwordx8 s[80:87], s[0:1], 64")
    a("s_load_dwordx4 s[88:91], s[0:1], 96")
    a(f"v_lshrrev_b32 v2, 6, v0")
    a(f"v_and_b32 v{vL}, 63, v0")
    a(f"v_readfirstlane_b32 s{sWave}, v2")
    a(f"s_and_b32 s{sT}, s2, 7"); a(f"s_lshl_b32 s{sT}, s{sT}, 5")
    a(f"s_lshr_b32 s{sCG}, s2, 3"); a(f"s_add_u32 s{sCG}, s{sCG}, s{sT}")
    if g.dbg: a(f"v_mov_b32 v{vSTAMP}, 0")
    a(f"v_and_b32 v3, 3, v{vL}"); a(f"v_lshrrev_b32 v4, 2, v{vL}")
    a(f"v_lshlrev_b32 v5, 12, v3"); a(f"v_lshl_add_u32 v5, v4, 4, v5")
    a(f"s_lshl_b32 s{sT}, s2, 14"); a(f"s_lshl_b32 s{sT+1}, s{sWave}, 9"); a(f"s_add_u32 s{sT}, s{sT}, s{sT+1}")
    a(f"v_mov_b32 v1, 0")
    sD = 97
    a(f"s_lshl_b32 s{sD}, s{sCG}, 2"); a(f"s_add_u32 s{sD}, s{sD}, s{sWave}")
    a(f"s_lshl_b32 s{sT+4}, s{sD}, 8"); a(f"v_lshlrev_b32 v2, 2, v{vL}")
    a(f"s_lshl_b32 s{sT+5}, s{sD}, 1")
    vF = 29; vR = 8
    a(f"v_lshlrev_b32 v{vF}, 6, v0"); a(f"v_lshlrev_b32 v{vR}, 4, v0")
    if CPF:
        a("s_getpc_b64 s[36:37]"); a("s_and_b32 s36, s36, 0xffffff00"); a(f"s_mov_b32 s38, CODE_BYTES"); a("s_mov_b32 s39, 0x20000")
        a(f"s_lshr_b32 s{sT+1}, s2, 3"); a(f"s_and_b32 s{sT+1}, s{sT+1}, 3"); a(f"s_lshl_b32 s{sT+1}, s{sT+1}, 14")
        a(f"buffer_load_dword a204, v{vF}, s[36:39], s{sT+1} offen"); vm.add("T")
    a("s_waitcnt lgkmcnt(0)")
    if g.dbg: a(f"v_writelane_b32 v{vSTAMP}, s{sT+2}, 31")
    g.stamp()
    sX = 36; sDB = 8; sU2 = 40; sH = 44; sP = 12
    srd(a, sDB, pDBG, 256)
    nn = a.label("nn")
    a(f"s_or_b32 s{sT+1}, s2, s{sWave}"); a(f"s_cmp_lg_u32 s{sT+1}, 0"); a(f"s_cbranch_scc1 {nn}")
    a(f"s_or_b32 s{sT+2}, s{sT+2}, 1")
    a(f"v_mov_b32 v6, s{sT+2}"); a(f"v_mov_b32 v7, s{sT+3}")
    a("s_mov_b64 exec, 0xf")
    a(f"buffer_store_dwordx2 v[6:7], v{vF}, {sr(sDB,4)}, 0 offen {SC}")
    a("s_mov_b64 exec, -1")
    a(f"{nn}:")
    PR = 24; XD = 32
    def ld_params():
        for i, p in enumerate((pLOGA, pAIM, pCRE, pCIM)):
            srd(a, sP+4*i, p, 1024*256)
            a(f"buffer_load_dword v{PR+i}, v2, {sr(sP+4*i,4)}, s{sT+4} offen"); vm.add("P")
        srd(a, 28, pLOGDT, 2048)
        a(f"buffer_load_ushort v{PR+4}, v1, s[28:31], s{sT+5} offen"); vm.add("P")
    def ld_x():
        srd(a, sX, pU, 2048*2048)
        for e in range(2):
            for i in range(2):
                a(f"buffer_load_dwordx4 {vr(XD+8*e+4*i,4)}, v5, {sr(sX,4)}, s{sT} offen offset:{2048*e+256*i} {XNT}"); vm.add("X")
    if ORDER[0] == "S": ld_params(); ld_x()
    else: ld_x(); ld_params()
    if TOUCH:
        sh = TOUCH
        a(f"v_lshlrev_b32 v6, {sh}, v0")
        for n, (p, sz) in enumerate(((pWS, M_XCH + SZ_XCH), (pOUT, 4 << 20), (pWG, SZ_W), (pWU, SZ_W), (pWD, SZ_W))):
            srd(a, sX, p, sz)
            for o in range(0, sz, 256 << sh):
                a(f"s_mov_b32 s{sT+1}, {o}")
                a(f"buffer_load_dword a{205+n}, v6, {sr(sX,4)}, s{sT+1} offen"); vm.add("T")
        a(f"buffer_load_dword a212, v1, {sr(sDB,4)}, 0 offen sc1"); vm.add("T")
    gemm1_addr(g, 0)
    bgl = []
    for stg in range(2):
        for i in range(7):
            grp = []
            if i in (0, 4): grp += [(f"s_add_u32 m0, s{sG_M0}, {stg*SLOT1 + (4096 if i else 0)}", None), ("s_nop 0", None)]
            grp.append((g1_dma(pDMA, i, DNT), "D"))
            if i == 6: grp += [(x, None) for x in g1_wadv('own' if stg else 'even')]
            bgl.append(grp)
    if CT:
        a(f"s_lshl_b32 s16, s2, 1"); a(f"s_and_b32 s17, s{sWave}, 1"); a(f"s_add_u32 s16, s16, s17"); a(f"s_mul_i32 s16, s16, 14336")
        a(f"v_lshlrev_b32 v237, 4, v{vL}")
        tl = []
        for i in range(14):
            grp = [(f"buffer_load_dwordx4 a[200:203], v237, {sr(sG_W,4)}, s16 offen offset:{1024*(i&3)}", "T")]
            if i & 3 == 3: grp.append((f"s_add_u32 s16, s16, 4096", None))
            tl.append(grp)
        bgl = tl + bgl
    def take(n):
        out = bgl[:n]; del bgl[:n]; return out
    for grp in take(DSTART):
        for ins, tag in grp:
            a(ins)
            if tag: vm.add(tag)
    gemm1_addr(g, 1)
    srd(a, sFLG, pWS, 4*16384, M_FLG)
    srd(a, sU2, pWS, 4 << 20, M_U2); srd(a, sH, pWS, 4 << 20, M_H4)
    a(f"s_lshl_b32 s{sT+1}, s{sCG}, 3")
    a(f"s_load_dwordx2 s[58:59], {sr(pDSKIP,2)}, s{sT+1}")
    a(f"v_lshlrev_b32 v6, 15, v4"); a(f"v_lshl_add_u32 v6, v3, 4, v6")
    nu = 9; vG = 19
    a(f"v_and_b32 v{nu}, 15, v{vL}"); a(f"v_lshrrev_b32 v{vG}, 4, v{vL}")
    sUB = sT+8; sKB = sT+9; sTB = sT+7
    a(f"s_mul_i32 s{sUB}, s{sWave}, {UCH}"); a(f"s_add_u32 s{sUB}, s{sUB}, {UBASE}")
    a(f"s_mul_i32 s{sKB}, s{sWave}, {KCH}"); a(f"s_add_u32 s{sKB}, s{sKB}, {KBASE}")
    a(f"s_add_u32 s{sTB}, s{sUB}, {TOFF}")
    vTa = 10; vTb = 11; vTc = 12; vTw = 13; vO1 = 15; vO2 = 18
    a(f"v_lshlrev_b32 v16, 7, v{vG}"); a(f"v_add_u32 v16, s{sUB}, v16")
    a(f"v_bfe_u32 v17, v{vL}, 2, 2"); a(f"v_mul_u32_u24 v{vTa}, {RS}, v17"); a(f"v_add_u32 v{vTa}, v{vTa}, v16")
    a(f"v_mul_u32_u24 v{vTb}, {RS}, v3")
    a(f"v_bfe_u32 v17, v{vL}, 3, 1"); a(f"v_lshlrev_b32 v{vTc}, v17, v{vTb}")
    a(f"v_add_u32 v{vTb}, v{vTb}, v16"); a(f"v_add_u32 v{vTc}, v{vTc}, v16")
    a(f"v_lshlrev_b32 v{vTw}, 3, v{vL}"); a(f"v_add_u32 v{vTw}, s{sUB}, v{vTw}")
    a(f"v_mov_b32 v16, 0x3c00"); a(f"v_mov_b32 v17, 0x3c00")
    for e in (0, 4, 12): a(f"ds_write_b64 v{vTw}, v[16:17] offset:{e*RS}")
    a(f"v_lshlrev_b32 v{vO1}, 6, v{nu}"); a(f"v_lshl_add_u32 v{vO1}, v{vG}, 3, v{vO1}"); a(f"v_add_u32 v{vO1}, s{sTB}, v{vO1}")
    a(f"v_lshlrev_b32 v22, 4, v{nu}"); a(f"v_lshl_add_u32 v22, v{vG}, 3, v22"); a(f"v_add_u32 v22, 1024, v22")
    a(f"v_lshlrev_b32 v23, 3, v{nu}"); a(f"v_lshl_add_u32 v23, v{vG}, 7, v23"); a(f"v_add_u32 v23, {1280-256}, v23")
    a(f"v_cmp_gt_u32 vcc, 32, v{vL}"); a("s_nop 1")
    a(f"v_cndmask_b32 v{vO2}, v23, v22, vcc"); a(f"v_add_u32 v{vO2}, s{sTB}, v{vO2}")
    SA = 184
    def sel(dst, lo32, hi32):
        a(f"v_mov_b32 v{dst}, {hi32:#x}"); a(f"v_mov_b32 v22, {lo32:#x}"); a(f"v_cndmask_b32 v{dst}, v{dst}, v22, vcc")
    sel(SA, 0x01000302, 0x01000100); sel(SA+1, 0x01000302, 0x01000504); sel(SA+2, 0x03020504, 0x01000504); sel(SA+3, 0x03020504, 0x05040504)
    a(f"v_mov_b32 v{SA+4}, v{SA+3}")
    a(f"s_mov_b32 s{sT+3}, 0x03020504"); a(f"v_writelane_b32 v{SA+4}, s{sT+3}, 32")
    a(f"s_mov_b32 s{sT+2}, 0x0c0c0504"); a(f"v_writelane_b32 v{SA+4}, s{sT+2}, 0")
    vK = 20; vK2 = 21; vZ = 14
    a(f"v_lshlrev_b32 v22, 4, v{vL}"); a(f"v_add_u32 v{vK}, s{sKB}, v22"); a(f"v_add_u32 v{vK2}, v{vK}, v22")
    a(f"v_add_u32 v{vZ}, s{sUB}, v22")
    ZR = 180
    for r in range(ZR, ZR+4): a(f"v_mov_b32 v{r}, 0")
    a("s_mov_b64 exec, 0x7f")
    a(f"ds_write_b128 v{vK}, {vr(ZR,4)}"); a(f"ds_write_b128 v{vK}, {vr(ZR,4)} offset:{KCS}")
    a("s_mov_b64 exec, -1")
    vA = 4; vB = 5; vY = 7
    a(f"v_and_b32 v22, 1, v{vL}"); a(f"v_mul_u32_u24 v{vA}, {KCS}, v22")
    a(f"v_bfe_u32 v22, v{vL}, 1, 3"); a(f"v_sub_u32 v22, v22, v{vG}"); a(f"v_add_u32 v22, 3, v22")
    a(f"v_lshl_add_u32 v{vA}, v22, 4, v{vA}"); a(f"v_add_u32 v{vA}, s{sKB}, v{vA}")
    a(f"v_mul_u32_u24 v{vB}, {UCS}, v3")
    a(f"v_bfe_u32 v22, v{vL}, 2, 2"); a(f"v_lshl_add_u32 v23, v22, 3, v{vG}")
    a(f"v_lshl_add_u32 v{vB}, v23, 4, v{vB}"); a(f"v_add_u32 v{vB}, s{sUB}, v{vB}")
    a(f"v_lshlrev_b32 v{vY}, 5, v22"); a(f"v_lshl_add_u32 v{vY}, v{vG}, 3, v{vY}"); a(f"v_add_u32 v{vY}, v{vY}, v3")
    a(f"v_lshlrev_b32 v{vY}, 2, v{vY}"); a(f"v_add_u32 v{vY}, s{sKB}, v{vY}")
    vUC = 190
    a(f"v_lshlrev_b32 v22, 2, v0")
    for c in range(4):
        for ch in range(2): a(f"v_add_u32 v{vUC+2*c+ch}, {UBASE + ch*UCH + c*UCS + UPAD - 4*(c+1)}, v22")
    ACC = 48; vSC = 60

    def setup():
        dt = PR+4
        Z = 64; C = 68; TT = 72
        a(f"v_lshlrev_b32 v{dt}, 16, v{dt}"); a(f"v_lshlrev_b32 v{TT}, 16, v{PR}"); a(f"v_and_b32 v{TT+1}, 0xffff0000, v{PR}")
        for r in (dt, TT, TT+1): a(f"v_mul_f32 v{r}, {f32(LOG2E)}, v{r}")
        for r in (dt, TT, TT+1): a(f"v_exp_f32 v{r}, v{r}")
        for k, b in ((1, Z+1), (2, C), (3, C+1)):
            a(f"v_lshlrev_b32 v{b}, 16, v{PR+k}"); a(f"v_and_b32 v{b+2}, 0xffff0000, v{PR+k}")
        a(f"v_cvt_pk_bf16_f32 v{dt}, v{dt}, v{dt}"); a(f"v_cvt_pk_bf16_f32 v{PR}, v{TT}, v{TT+1}")
        a(f"v_max3_f32 v{vSC}, |v{C}|, |v{C+1}|, |v{C+2}|"); a(f"v_max_f32 v{vSC}, |v{C+3}|, v{vSC}")
        a(f"v_lshlrev_b32 v{dt}, 16, v{dt}")
        a(f"v_lshlrev_b32 v{Z}, 16, v{PR}"); a(f"v_and_b32 v{Z+2}, 0xffff0000, v{PR}")
        red = [f"v_max_f32_dpp v{vSC}, v{vSC}, v{vSC} {m} row_mask:0xf bank_mask:0xf" for m in ("quad_perm:[1,0,3,2]", "quad_perm:[2,3,0,1]", "row_ror:4", "row_ror:8")]
        a(red[0])
        for i in range(4): a(f"v_mul_f32 v{Z+i}, v{Z+i}, v{dt}")
        a(red[1])
        for m in range(2):
            a(f"v_mul_f32 v{Z+2*m}, {f32(-LOG2E)}, v{Z+2*m}"); a(f"v_mul_f32 v{Z+2*m+1}, 0.15915494, v{Z+2*m+1}")
        a(red[2])
        names = [1, 2, 3, 4, 8, 12, 16, 20, 24, 28, 32, 64, 96, 128, 256, 512, 528, 1024, 1536, 2048, "R1", "R2", "R3"]
        E = {n: 88 + 4*i for i, n in enumerate(names)}
        AR = 76
        for i, p in enumerate((1, 32, 512)):
            for k in range(4):
                if p == 1: a(f"v_mov_b32 v{AR+4*i+k}, v{Z+k}")
                else: a(f"v_mul_f32 v{AR+4*i+k}, {f32(p)}, v{Z+k}")
            if i == 0: a(red[3])
        for i in range(6): a(f"v_fract_f32 v{AR+2*i+1}, v{AR+2*i+1}")
        for op in ("v_permlane16_swap_b32", "v_permlane32_swap_b32"):
            a(f"v_mov_b32 v{TT}, v{vSC}"); a("s_nop 1"); a(f"{op} v{TT}, v{vSC}"); a("s_nop 0"); a(f"v_max_f32 v{vSC}, v{vSC}, v{TT}")
        for i, p in enumerate((1, 32, 512)):
            for m in range(2):
                r = AR+4*i+2*m
                a(f"v_cos_f32 v{E[p]+2*m}, v{r+1}"); a(f"v_sin_f32 v{E[p]+2*m+1}, v{r+1}"); a(f"v_exp_f32 v{r}, v{r}")
        a(f"v_frexp_exp_i32_f32 v{TT}, v{vSC}")
        a(f"v_add_f32 v{dt}, v{dt}, v{dt}")
        a(f"v_ldexp_f32 v{vSC}, v{dt}, v{TT}")
        a(f"v_sub_u32 v{TT}, 0, v{TT}")
        for i, p in enumerate((1, 32, 512)):
            for m in range(2):
                a(f"v_pk_mul_f32 {vr(E[p]+2*m,2)}, {vr(E[p]+2*m,2)}, {vr(AR+4*i+2*m,2)} op_sel_hi:[1,0]")
        for k in range(4): a(f"v_ldexp_f32 v{C+k}, v{C+k}, v{TT}")
        E["C"] = C
        ent = {1: 1, 2: 2, 3: 3, 4: 5, 8: 6, 12: 7, 16: 8, 20: 9, 24: 10, 28: 11, 32: 13, 64: 14, 96: 15, "C": 16, "R1": 17, "R2": 18, "R3": 19,
               512: 20, 528: 21, 1024: 22, 1536: 23}
        wt = [0]
        def emit(n):
            if n not in ent: return
            t = AR + 2*(wt[0] % 6); wt[0] += 1
            ng = "-" if 12 <= ent[n] < 20 else ""
            for m in range(2): a(f"v_cvt_pk_f16_f32 v{t+m}, v{E[n]+2*m}, {ng}v{E[n]+2*m+1}")
            a(f"ds_write_b64 v{vTw}, {vr(t,2)} offset:{ent[n]*RS}")
        levels = [[(2,1,1), (64,32,32), (1024,512,512)], [(3,2,1), (4,2,2), (96,64,32), (128,64,64), (1536,1024,512), (2048,1024,1024)],
                  [(8,4,4), (256,128,128), ("R1","C",128)], [(12,8,4), (16,8,8), ("R2","C",256)],
                  [(20,16,4), (24,16,8), (28,16,12), (528,512,16), ("R3","R2",128)]]
        pend = [1, 32, 512, "C"]
        for lv in levels:
            for d, x, y in lv:
                for m in range(2): a(f"v_pk_mul_f32 {vr(E[d]+2*m,2)}, {vr(E[x]+2*m,2)}, {vr(E[y]+2*m,2)} op_sel_hi:[0,1]")
            for d, x, y in lv:
                for m in range(2):
                    a(f"v_pk_fma_f32 {vr(E[d]+2*m,2)}, {vr(E[x]+2*m,2)}, {vr(E[y]+2*m,2)}, {vr(E[d]+2*m,2)} op_sel:[1,1,0] op_sel_hi:[1,0,1] neg_lo:[0,1,0]")
            for n in pend: emit(n)
            pend = [d for d, x, y in lv]
        for n in pend: emit(n)
        e = E[2048]
        a(f"v_mul_f32 v61, v{e}, v{C}"); a(f"v_fma_f32 v61, -v{e+1}, v{C+1}, v61")
        a(f"v_fma_f32 v61, v{e+2}, v{C+2}, v61"); a(f"v_fma_f32 v61, -v{e+3}, v{C+3}, v61")
        wave_sum(a, 61, 62, 1)
        a(f"v_mul_f32 v61, v61, v{vSC}")
        a("v_cvt_pk_bf16_f32 v61, v61, v61")
        a(f"v_mov_b32 v62, s{sTB}")
        a(f"ds_write_b32 v62, v61 offset:1536")

    FB = 64
    srcs = [(vTa, 4), (vTa, 8), (vTb, 0), (vTa, 16), (vTb, 12), (vTa, 20), (vTc, 4)]
    def rdf(step):
        return [f"ds_read_b128 {vr(FB+28*(step&1)+4*i,4)}, v{r} offset:{e*RS+16*step}" for i, (r, e) in enumerate(srcs)]
    OB = 120
    def kstep(step, bg):
        f = FB + 28*(step & 1); o = OB + 16*(step & 1)
        a("s_waitcnt lgkmcnt(0)")
        nxt = rdf(step+1) if step < 7 else []
        prods = [(o, f+12, f+16), (o+4, f, f+8), (o+8, f+4, f+8), (o+12, f+20, f+24)]
        for d, x, y in prods:
            for m in range(4): a(f"v_pk_mul_f16 v{d+m}, v{x+m}, v{y+m} op_sel_hi:[0,1]")
            for _ in range(2):
                if nxt: a(nxt.pop(0))
        for grp in bg:
            for ins, tag in grp:
                a(ins)
                if tag: vm.add(tag)
        for i, (d, x, y) in enumerate(prods):
            for m in range(4): a(f"v_pk_fma_f16 v{d+m}, v{x+m}, v{y+m}, v{d+m} op_sel:[1,1,0] op_sel_hi:[1,0,1] neg_lo:[0,1,0]")
            if i >= 2:
                c = "0" if step == 0 else vr(ACC+4*(i-2),4)
                a(f"v_mfma_f32_16x16x32_f16 {vr(ACC+4*(i-2),4)}, {vr(o+4*(i-1),4)}, {vr(o,4)}, {c}")
        a("s_nop 0")
        c = "0" if step == 0 else vr(ACC+8,4)
        a(f"v_mfma_f32_16x16x32_f16 {vr(ACC+8,4)}, {vr(o+12,4)}, {vr(o,4)}, {c}")

    def ln1():
        a(f"s_lshl_b32 s{sT}, s{sWave}, 20"); a(f"s_lshl_b32 s{sT+1}, s2, 6"); a(f"s_add_u32 s{sT}, s{sT}, s{sT+1}")
        a(f"s_mov_b32 s{sT+2}, 0x05040100"); a(f"s_mov_b32 s{sT+3}, 0x07060302")
        a(f"s_and_b32 s{sT+6}, s2, 3"); a(f"s_lshl_b32 s{sT+6}, s{sT+6}, 6")
        a(f"v_mov_b32 v63, {KBASE + KCH - 16}")
        a(f"s_waitcnt vmcnt({vm.wait_for('X')})")
        g.stamp()
        T = 64; W = 152; XP = 200
        nl = a.label("nl")
        a(f"s_cmp_lg_u32 s{sWave}, 0"); a(f"s_cbranch_scc1 {nl}")
        a(f"buffer_load_dwordx2 v[22:23], v1, {sr(sDB,4)}, s{sT+6} offen sc1")
        a(f"{nl}:")
        for q in range(4):
            for k in range(4*q, 4*q+4): a(f"v_perm_b32 v{XP+k}, v{XD+8+(k>>1)}, v{XD+(k>>1)}, s{sT+2+(k&1)}")
            a(f"s_add_u32 s{sT+1}, s{sT}, {((q>>1)*32 + (q&1))*16384}")
            a(f"buffer_store_dwordx4 {vr(XP+4*q,4)}, v6, {sr(sU2,4)}, s{sT+1} offen {SC}"); vm.add("U")
        def pre():
            if KMID:
                for ins in rdf(0): a(ins)
                for st_ in range(KMID): kstep(st_, [])
            a(f"s_waitcnt vmcnt(0)")
            gn = a.label("gn"); gn2 = a.label("gn2"); gn3 = a.label("gn3")
            a(f"s_cmp_lg_u32 s{sWave}, 0"); a(f"s_cbranch_scc1 {gn3}")
            a(f"s_mov_b32 s{sTO}, 0")
            a(f"{gn}:")
            a(f"v_readfirstlane_b32 s{sNON}, v22")
            a(f"s_cmp_lg_u32 s{sNON}, 0"); a(f"s_cbranch_scc1 {gn2}")
            a(f"buffer_load_dwordx2 v[22:23], v1, {sr(sDB,4)}, s{sT+6} offen sc1")
            a("s_waitcnt vmcnt(0)")
            a(f"s_add_u32 s{sTO}, s{sTO}, 1"); a(f"s_cmp_lt_u32 s{sTO}, {TIMEOUT}"); a(f"s_cbranch_scc1 {gn}")
            a(f"{gn2}:")
            a(f"ds_write_b64 v63, v[22:23]")
            a(f"{gn3}:")
        ln_stats8(a, [(XD+k, XD+8+k) for k in range(8)], T, W, pre)
        sk = a.label("sg")
        a(f"ds_read_b64 v[32:33], v63")
        a(f"s_cmp_lg_u32 s{sWave}, 0"); a(f"s_cbranch_scc1 {sk}")
        a(f"v_mov_b32 v{W+6}, v22"); a(f"v_mov_b32 v{W+7}, v23")
        a(f"s_lshl_b32 s{sT}, s2, 6")
        a("s_mov_b64 exec, 0xf")
        a(f"buffer_store_dwordx4 {vr(W+4,4)}, v{vR}, {sr(sFLG,4)}, s{sT} offen {SC}")
        a("s_mov_b64 exec, -1")
        a(f"{sk}:")
        g.stamp()

    if ORDER[0] == "S":
        a(f"s_waitcnt vmcnt({vm.wait_for('P')})")
        g.stamp()
        setup()
    else: assert KMID == 0
    ln1()
    for grp in take(DSET):
        for ins, tag in grp: a(ins)
    if ORDER[0] != "S":
        setup()
        g.stamp()
    if KMID == 0:
        for ins in rdf(0): a(ins)
    step = KMID
    while step < 8:
        n = min(DPS, DPOST); DPOST -= n
        kstep(step, take(n)); step += 1
        if step == KMID + 1:
            a(f"v_readfirstlane_b32 s{sNON}, v32"); a(f"v_readfirstlane_b32 s{sNON+1}, v33")
    Eb = 72
    a(f"v_lshlrev_b32 v16, 4, v{vL}"); a(f"v_add_u32 v16, s{sTB}, v16"); a(f"v_subrev_u32 v17, 4, v16")
    a(f"v_add_u32 v2, s{sTB}, v2")
    s00 = sT; s11 = sT+1; s10 = sT+2; s21 = sT+3
    a(f"s_mov_b32 s{s00}, 0x01000100"); a(f"s_mov_b32 s{s11}, 0x03020302"); a(f"s_mov_b32 s{s10}, 0x01000302"); a(f"s_mov_b32 s{s21}, 0x03020504")
    for t in (0, 1, 2):
        for e in range(2): a(f"v_pk_mul_f32 {vr(ACC+4*t+2*e,2)}, {vr(ACC+4*t+2*e,2)}, {vr(vSC,2)} op_sel_hi:[1,0]")
        a(f"v_cvt_pk_bf16_f32 v{64+2*t}, v{ACC+4*t}, v{ACC+4*t+1}")
        a(f"v_cvt_pk_bf16_f32 v{65+2*t}, v{ACC+4*t+2}, v{ACC+4*t+3}")
    a(f"ds_write_b64 v{vO1}, v[64:65]"); a(f"ds_write_b64 v{vO1}, v[66:67] offset:32"); a(f"ds_write_b64 v{vO2}, v[68:69]")
    a(f"ds_read_b128 {vr(Eb,4)}, v16"); a(f"ds_read_b32 v{Eb+4}, v16 offset:16"); a(f"ds_read_b32 v{Eb-1}, v17")
    a(f"ds_read_b32 v78, v2 offset:1024"); a(f"ds_read_b32 v79, v2 offset:1028")
    a(f"ds_read_b32 v80, v2 offset:1280"); a(f"ds_read_b32 v81, v2 offset:1284")
    a("s_mov_b64 exec, 0x1ffffff")
    for c in range(4): a(f"ds_write_b128 v{vZ}, {vr(ZR,4)} offset:{c*UCS}")
    a("s_mov_b64 exec, -1")
    SG = 160
    for i in range(1, 4): a(f"s_mov_b32 s{36+i}, {4096*i}")
    def ld_sg():
        for i in range(4): a(f"buffer_load_dwordx4 {vr(SG+4*i,4)}, v{vR}, {sr(sFLG,4)}, {'s%d' % (36+i) if i else '0'} offen {SC}")
    ld_sg()
    a("s_waitcnt lgkmcnt(0)")
    O = 84
    for d, s0, s1, sl in ((0,3,2,2),(1,2,1,3),(2,1,0,2),(3,0,-1,4),(4,4,3,1),(5,2,2,0),(6,2,1,1),(7,0,0,0)):
        a(f"v_perm_b32 v{O+d}, v{Eb+s0}, v{Eb+s1}, v{SA+sl}")
    a(f"ds_write_b128 v{vK}, {vr(O,4)} offset:{KPAD}")
    a(f"ds_write_b128 v{vK}, {vr(O+4,4)} offset:{KPAD+KCS}")
    def mk(dst, kind, p01, p2):
        if kind == "00": a(f"v_perm_b32 v{dst}, v{p01}, v{p01}, s{s00}")
        elif kind == "11": a(f"v_perm_b32 v{dst}, v{p01}, v{p01}, s{s11}")
        elif kind == "22": a(f"v_perm_b32 v{dst}, v{p2}, v{p2}, s{s00}")
        elif kind == "10": a(f"v_perm_b32 v{dst}, v{p01}, v{p01}, s{s10}")
        elif kind == "21": a(f"v_perm_b32 v{dst}, v{p2}, v{p01}, s{s21}")
    chunks = [(78, ["21","11","00","00"], vK, KPAD + 1024), (78, ["22","11","10","00"], vK, KPAD + 1024 + KCS),
              (80, ["11","00","00","00"], vK2, KPAD + 2048), (80, ["22","21","11","11"], vK2, KPAD + 2048 + 16),
              (80, ["11","10","00","00"], vK2, KPAD + 2048 + KCS), (80, ["22","22","11","11"], vK2, KPAD + 2048 + KCS + 16)]
    for ci, (p, kinds, ad, off) in enumerate(chunks):
        b = O + 8 + 4*ci
        for e, kd in enumerate(kinds): mk(b+e, kd, p, p+1)
        a(f"ds_write_b128 v{ad}, {vr(b,4)} offset:{off}")
    g.stamp()
    sCGo = sT+7
    a(f"s_lshl_b32 s{sCGo}, s{sCG}, 14")
    lp = a.label("p1"); dn = a.label("p1d")
    a(f"s_mov_b32 s{sTO}, 0")
    a(f"{lp}:")
    a("s_waitcnt vmcnt(0)")
    a(f"v_cmp_ne_u64 vcc, {sr(sNON,2)}, {vr(SG+2,2)}")
    for i in range(1, 4):
        a(f"v_cmp_ne_u64 {sr(sT,2)}, {sr(sNON,2)}, {vr(SG+4*i+2,2)}"); a(f"s_or_b64 vcc, vcc, {sr(sT,2)}")
    a(f"s_cbranch_vccz {dn}")
    a("s_mov_b64 exec, vcc")
    ld_sg()
    a(f"s_add_u32 s{sTO}, s{sTO}, 1"); a(f"s_cmp_lt_u32 s{sTO}, {TIMEOUT}"); a(f"s_cbranch_scc1 {lp}")
    a(f"{dn}:")
    a("s_mov_b64 exec, -1")
    g.stamp()
    UR = 32; XG = 48; XU = 128; TD = 96
    for i in range(4):
        a(f"s_add_u32 s{sT}, s{sCGo}, {4096*i}")
        a(f"buffer_load_dwordx4 {vr(XG+4*i,4)}, v{vR}, {sr(sU2,4)}, s{sT} offen {SC}")
    def rdA(st, p, q): return f"ds_read_b128 {ar(64*st+4*p,4)}, v{vA} offset:{(8*p+q)*64}"
    def rdB(st, r, q): return f"ds_read_b128 {ar(64*st+32+4*r,4)}, v{vB} offset:{(8*r-q+7)*64}"
    for i in range(8): a(rdA(0, i, 0))
    for i in range(4):
        b = SG+4*i
        a(f"v_lshlrev_b32 v{b+2}, 16, v{b+1}"); a(f"v_and_b32 v{b+3}, 0xffff0000, v{b+1}")
        a(f"v_and_b32 v{b+1}, 0xffff0000, v{b}"); a(f"v_lshlrev_b32 v{b}, 16, v{b}")
        a(f"v_rcp_f32 v{b+2}, v{b+2}"); a(f"v_rcp_f32 v{b+3}, v{b+3}")
    a("s_barrier")
    for ii in range(4):
        a(f"s_waitcnt vmcnt({3-ii})")
        x = XU+8*ii; t = TD+8*ii; u = UR+4*ii
        for ch in range(4):
            a(f"v_lshlrev_b32 v{x+2*ch}, 16, v{XG+4*ii+ch}"); a(f"v_and_b32 v{x+2*ch+1}, 0xffff0000, v{XG+4*ii+ch}")
        for ch in range(4): a(f"v_pk_add_f32 {vr(t+2*ch,2)}, {vr(x+2*ch,2)}, {vr(SG+4*ii,2)} neg_lo:[0,1] neg_hi:[0,1]")
        for ch in range(4): a(f"v_cvt_pk_bf16_f32 v{u+ch}, v{t+2*ch}, v{t+2*ch+1}")
        for ch in range(4):
            a(f"v_lshlrev_b32 v{t+2*ch}, 16, v{u+ch}"); a(f"v_and_b32 v{t+2*ch+1}, 0xffff0000, v{u+ch}")
        for ch in range(4): a(f"v_pk_mul_f32 {vr(t+2*ch,2)}, {vr(t+2*ch,2)}, {vr(SG+4*ii+2,2)}")
        for ch in range(4): a(f"v_cvt_pk_bf16_f32 v{u+ch}, v{t+2*ch}, v{t+2*ch+1}")
        for c in range(4):
            for ch in range(2):
                a(f"ds_write2st64_b32 v{vUC+2*c+ch}, v{UR+4*ii+ch}, v{UR+4*ii+ch+2} offset0:{4*ii} offset1:{4*ii+141}")
    a("s_waitcnt lgkmcnt(0)")
    a("s_barrier")
    g.stamp()
    CA = 64
    for i in range(8): a(rdB(0, i, 0))
    fill = []
    F = fill.append
    TD = 96; XU = 128
    F(f"s_lshl_b32 s{sT}, s58, 16"); F(f"s_and_b32 s{sT+1}, s58, 0xffff0000"); F(f"s_lshl_b32 s{sT+2}, s59, 16"); F(f"s_and_b32 s{sT+3}, s59, 0xffff0000")
    for i in range(4):
        for ch in range(4):
            u = UR+4*i+ch; d = TD+8*i+2*ch
            F(f"v_lshlrev_b32 v{d}, 16, v{u}"); F(f"v_and_b32 v{d+1}, 0xffff0000, v{u}")
            F(f"v_mul_f32 v{d}, s{sT+ch}, v{d}"); F(f"v_mul_f32 v{d+1}, s{sT+ch}, v{d+1}")
            F(f"v_cvt_pk_bf16_f32 v{u}, v{d}, v{d+1}")
            F(f"v_lshlrev_b32 v{d}, 16, v{u}"); F(f"v_and_b32 v{d+1}, 0xffff0000, v{u}")
    F(f"v_lshlrev_b32 v16, 2, v0"); F(f"v_add_u32 v16, {KBASE}, v16")
    fill2 = []
    sched = {}
    nb = len(bgl)
    for n in range(nb):
        pos = n * DSP + 9
        sched[(pos // 36, pos % 36)] = [ins for ins, tag in bgl[n]]
    fi = 0
    npre = max(0, len(fill) - (7*20 - nb))
    for ins in fill[:npre]: a(ins)
    fill = fill[npre:]
    for q in range(8):
        st = q & 1
        a("s_waitcnt lgkmcnt(0)")
        nxt = []
        if q < 7:
            for i in range(8): nxt += [rdA(1-st, i, q+1), rdB(1-st, i, q+1)]
        else:
            assert fi == len(fill), (fi, len(fill))
            fill = fill2; fi = 0
        k = 0
        for p in range(8):
            for r in range(8 - p):
                t = p + r
                c = "0" if (q == 0 and p == 0) else vr(CA+4*t, 4)
                a(f"v_mfma_f32_16x16x32_bf16 {vr(CA+4*t,4)}, {ar(64*st+4*p,4)}, {ar(64*st+32+4*r,4)}, {c}")
                if (q, k) in sched:
                    for ins in sched.pop((q, k)): a(ins)
                elif nxt and (k % 2 == 0 or (k < 8)): a(nxt.pop(0))
                elif fi < len(fill): a(fill[fi]); fi += 1
                k += 1
        assert not nxt
    assert fi == len(fill) and not sched, (fi, len(fill), sched)
    for t in range(8):
        a(f"v_cvt_pk_bf16_f32 v{168+2*t}, v{CA+4*t}, v{CA+4*t+1}")
        a(f"v_cvt_pk_bf16_f32 v{169+2*t}, v{CA+4*t+2}, v{CA+4*t+3}")
        a(f"ds_write2_b32 v{vY}, v{168+2*t}, v{169+2*t} offset0:{128*(t&1)} offset1:{128*(t&1)+4}")
        if t & 1 and t < 7: a(f"v_add_u32 v{vY}, 1024, v{vY}")
    a("s_waitcnt vmcnt(0) lgkmcnt(0)")
    g.stamp()
    a("s_barrier")
    Y = 64; YU = 160
    for i in range(4):
        for ch in (0, 2):
            a(f"ds_read2st64_b32 {vr(Y+4*i+ch,2)}, v16 offset0:{4*i+33*ch} offset1:{4*i+33*(ch+1)}")
    for i in range(4):
        a(f"s_waitcnt lgkmcnt({6-2*i})")
        for ch in range(4):
            a(f"v_lshlrev_b32 v{YU+2*ch}, 16, v{Y+4*i+ch}"); a(f"v_and_b32 v{YU+2*ch+1}, 0xffff0000, v{Y+4*i+ch}")
        b = TD+8*i
        for ch in range(4): a(f"v_pk_add_f32 {vr(b+2*ch,2)}, {vr(b+2*ch,2)}, {vr(YU+2*ch,2)}")
        for ch in range(4): a(f"v_cvt_pk_bf16_f32 v{YU+ch}, v{b+2*ch}, v{b+2*ch+1}")
        for ch in range(4):
            a(f"v_lshlrev_b32 v{b+2*ch}, 16, v{YU+ch}"); a(f"v_and_b32 v{b+2*ch+1}, 0xffff0000, v{YU+ch}")
        for ch in range(4): a(f"v_pk_add_f32 {vr(b+2*ch,2)}, {vr(b+2*ch,2)}, {vr(XU+8*i+2*ch,2)}")
        for e in range(2):
            for hp in range(2):
                a(f"v_cvt_pk_bf16_f32 v{Y+4*i+2*e+hp}, v{b+4*hp+e}, v{b+4*hp+2+e}")
        a(f"s_add_u32 s{sT}, s{sCGo}, {4096*i}")
        a(f"buffer_store_dwordx4 {vr(Y+4*i,4)}, v{vR}, {sr(sH,4)}, s{sT} offen {SC}")
    g.stamp()

M_XCH = 0x1b00000
XSL = 16384; XWG = 3*XSL; SZ_XCH = 256*XWG
s2_TM = sT+4; s2_TN = sT+5; s2_KQ = sT+6
def g2_dma_addr(sM0):
    return [f"s_bfe_u32 s{s2_KQ}, s2, 0x20001",
        f"s_and_b32 s{s2_TM}, s2, 1", f"s_lshl_b32 s{s2_TM}, s{s2_TM}, 2", f"s_bfe_u32 s{sT}, s2, 0x20003", f"s_add_u32 s{s2_TM}, s{s2_TM}, s{sT}",
        f"s_lshr_b32 s{s2_TN}, s2, 5",
        f"v_lshrrev_b32 v2, 4, v{vL}", f"s_mul_i32 s{sT}, s{s2_KQ}, 896", f"s_lshl_b32 s{sT+1}, s{sWave}, 4", f"s_add_u32 s{sT}, s{sT}, s{sT+1}",
        f"v_add_u32 v1, s{sT}, v2", f"v_lshlrev_b32 v1, 11, v1",
        f"v_lshlrev_b32 v2, 2, v2", f"v_and_b32 v3, 15, v{vL}", f"v_xor_b32 v2, v2, v3",
        f"v_lshl_add_u32 v1, v2, 4, v1", f"s_lshl_b32 s{sT}, s{s2_TN}, 8", f"v_add_u32 v1, s{sT}, v1", f"s_lshl_b32 s{sM0}, s{sWave}, 12"]
G2_STG = 64*2048; G2_I = 4*2048 - 1024
def g2_dma(stage, i, sM0=24, sW=12):
    grp = []
    if i == 0: grp.append(f"s_add_u32 m0, s{sM0}, {(stage % 10)*16384}")
    grp.append(f"s_mov_b32 s{sT+1}, {stage*G2_STG + i*G2_I}")
    grp.append(f"buffer_load_dwordx4 v1, {sr(sW,4)}, s{sT+1} offen offset:{1024*i} lds")
    return grp

def phase_gemm2(g, PRE1, LA=8, TAIL=16, XSLEEP=4, OF='nt'):
    a = g.a
    ACC = 32
    def acc(j, t): return ACC + (t*2 + j)*16
    HR = 160; IN = 176; XR = 0; WF = 192; NX = 24
    vX = 2; vW = 4; vO = 16; vI = 17; vH = 18; vFl = 19; vT = 232; vM = 20
    sX = 8; sH = 44; sO = 4; sIB = 36
    sOX = 20; sM = 26; sN = 27; sI = 31; sFo = 33
    a(f"s_lshl_b32 s{sM}, s{s2_TM}, 8"); a(f"s_lshl_b32 s{sT}, s{sWave}, 6"); a(f"s_add_u32 s{sM}, s{sM}, s{sT}")
    a(f"s_lshl_b32 s{sN}, s{s2_TN}, 7"); a(f"s_lshl_b32 s{sT}, s{s2_KQ}, 5"); a(f"s_add_u32 s{sN}, s{sN}, s{sT}")
    a(f"v_and_b32 v{vT}, 31, v{vL}"); a(f"v_add_u32 v{vT}, s{sM}, v{vT}")
    a(f"v_lshrrev_b32 v{vT+1}, 5, v{vL}")
    a(f"v_lshl_add_u32 v{vX}, v{vT+1}, 11, v{vT}"); a(f"v_lshlrev_b32 v{vX}, 4, v{vX}")
    a(f"s_mul_i32 s{sOX}, s{s2_KQ}, {112*32768}")
    a(f"v_lshlrev_b32 v{vH}, 3, v{vT}"); a(f"v_lshl_add_u32 v{vH}, v{vT+1}, 15, v{vH}")
    a(f"s_lshl_b32 s{sT}, s{sN}, 12"); a(f"v_add_u32 v{vH}, s{sT}, v{vH}")
    a(f"v_lshlrev_b32 v{vO}, 11, v{vT}"); a(f"v_lshl_add_u32 v{vO}, v{vT+1}, 4, v{vO}")
    a(f"s_lshl_b32 s{sT}, s{sN}, 1"); a(f"v_add_u32 v{vO}, s{sT}, v{vO}")
    a(f"v_bfe_u32 v{vT+3}, v{vL}, 2, 2"); a(f"v_lshl_add_u32 v{vT+4}, v{vT+1}, 3, v{vT+3}"); a(f"v_lshlrev_b32 v{vW}, 8, v{vT+4}")
    a(f"v_xor_b32 v{vT+3}, s{s2_KQ}, v{vT+3}"); a(f"v_lshl_add_u32 v{vW}, v{vT+3}, 6, v{vW}")
    a(f"v_bfe_u32 v{vT+3}, v{vL}, 4, 1"); a(f"v_lshl_add_u32 v{vW}, v{vT+3}, 5, v{vW}")
    a(f"v_and_b32 v{vT+3}, 1, v{vL}"); a(f"v_lshl_add_u32 v{vW}, v{vT+3}, 4, v{vW}")
    a(f"v_bfe_u32 v{vT+3}, v{vL}, 1, 1"); a(f"v_lshl_add_u32 v{vW}, v{vT+3}, 3, v{vW}")
    for t in range(1, 4): a(f"v_xor_b32 v{vW+t}, {64*t}, v{vW}")
    for b in range(1, 3):
        for t in range(4): a(f"v_add_u32 v{vW+4*b+t}, {65536*b}, v{vW+t}")
    a(f"v_lshlrev_b32 v{vI}, 4, v{vL}"); a(f"s_lshl_b32 s{sT}, s{sWave}, 12"); a(f"v_add_u32 v{vI}, s{sT}, v{vI}"); a(f"v_mov_b32 v{vM}, -2")
    srd(a, sO, pOUT, 2048*1024*2); srd(a, sIB, pWS, SZ_XCH, M_XCH)
    a(f"s_mul_i32 s{sI}, s2, {XWG}")
    for t in range(1, 4):
        a(f"s_xor_b32 s{27+t}, s2, {2*t}"); a(f"s_mul_i32 s{27+t}, s{27+t}, {XWG}"); a(f"s_add_u32 s{27+t}, s{27+t}, {XSL*(t-1)}")
    a(f"v_bfe_u32 v{vT+4}, v{vL}, 2, 1"); a(f"v_and_b32 v{vT+3}, 3, v{vL}"); a(f"v_lshl_add_u32 v{vT+4}, v{vT+3}, 6, v{vT+4}")
    a(f"s_lshl_b32 s{sT}, s{s2_TM}, 2"); a(f"s_add_u32 s{sT}, s{sT}, s{s2_KQ}"); a(f"s_lshl_b32 s{sT}, s{sT}, 1")
    a(f"v_add_u32 v{vT+4}, s{sT}, v{vT+4}")
    a(f"v_lshlrev_b32 v{vT+3}, 1, v{vT+3}"); a(f"v_xor_b32 v{vT+3}, s2, v{vT+3}")
    a(f"v_and_b32 v{vT+2}, 8, v{vL}"); a(f"v_cmp_eq_u32 vcc, 0, v{vT+2}"); a("s_nop 1")
    a(f"v_cndmask_b32 v{vFl}, v{vT+3}, v{vT+4}, vcc"); a(f"v_lshlrev_b32 v{vFl}, 6, v{vFl}")
    a(f"s_mov_b32 s{sFo}, {2*16384}")
    a("s_waitcnt vmcnt(0)")
    a("s_barrier")
    set_flag(g, 2, 22)
    g.stamp()
    def wread(st, f, t, step, j):
        off = ((step >> 2) % 10)*16384 + (step & 3)*4096 + j*1024
        return f"ds_read_b64_tr_b16 {ar(WF+st*16+f*4+j*2,2)}, v{vW + 4*(off >> 16) + t} offset:{off & 0xffff}"
    T0 = 56 - TAIL; TG = TAIL // 4
    sup = [[(t, s) for t in range(4)] for s in range(T0)]
    for t in (1, 2, 3, 0):
        for hf in range(TG): sup.append([(t, T0 + 4*hf + k) for k in range(4)])
    SEND = [T0 + TG*k for k in (1, 2, 3)]
    def need_of(n): return max(s for t, s in sup[min(n, 55)])
    def reads(n):
        return [wread(n & 1, f, t, s, j) for f, (t, s) in enumerate(sup[n]) for j in range(2)]
    for ins in reads(0): a(ins)
    for stg in range(PRE1, 10):
        for i in range(4):
            for ins in g2_dma(stg, i): a(ins)
    poll_flags(g, vFl, sFo, 22)
    g.stamp()
    vm = VM()
    def xload(x):
        return [f"buffer_load_dwordx4 {ar(XR+(x % NX)*8+j*4,4)}, v{vX}, {sr(sX,4)}, s{sOX} offen offset:{512*j} {SC}" for j in range(2)]
    xadv = f"s_add_u32 s{sOX}, s{sOX}, 65536"
    nx = 0
    for x in range(4):
        for ins in xload(x): a(ins); vm.add(f"X{x}")
        a(xadv); nx += 1
    dl = [(stg, i) for stg in range(10, 14) for i in range(4)]
    started = set()
    send = []
    for n, fr in enumerate(sup):
        need = max(s for t, s in fr)
        w = vm.wait_for(f"X{need}")
        if n == 39:
            assert not dl
            w = min(w, vm.wait_for("D"))
        a(f"s_waitcnt vmcnt({w}) lgkmcnt(0)")
        if n in (min(4*PRE1 - 1, 15), 15, 39): a("s_barrier")
        gaps = {k: [] for k in range(8)}; tags = {k: [] for k in range(8)}
        if n + 1 < len(sup):
            for k, ins in enumerate(reads(n + 1)): gaps[k // 2].append(ins)
        gi = 4
        for rep in range(2):
            if nx < 56 and nx <= max(need_of(k_) for k_ in range(n, n + LA + 1)) and gi <= 6:
                for j, ins in enumerate(xload(nx)): gaps[gi+j].append(ins); tags[gi+j].append(f"X{nx}")
                gaps[gi+1].append(xadv); nx += 1; gi += 2
        if n >= 15 and dl and gi <= 6:
            grp = g2_dma(*dl.pop(0))
            gaps[gi] += grp[:-1]; gaps[gi+1].append(grp[-1]); tags[gi+1].append("D")
        if n in (34, 35, 36, 37):
            for e in range(2):
                i = 2*(n-34) + e
                gj, gq = (i >> 2), (i >> 1) & 1
                gaps[6+e] += [f"s_mov_b32 s{sT}, {(4*gq + e)*16384}", f"buffer_load_dwordx2 {vr(HR+2*i,2)}, v{vH}, {sr(sH,4)}, s{sT} offen offset:{256*gj} {SC}"]
                tags[6+e].append("R")
        if n in SEND:
            t = sup[n-1][0][0]; b = acc(0, t)
            send = []
            for i in range(4):
                send += [f"v_cvt_pk_bf16_f32 v{b+4*i+e}, v{b+8*i+2*e}, v{b+8*i+2*e+1}" for e in range(4)]
                send += [f"v_min_u32 v{b+4*i+e}, v{b+4*i+e}, v{vM}" for e in range(4)]
                send += [f"buffer_store_dwordx4 {vr(b+4*i,4)}, v{vI}, {sr(sIB,4)}, s{27+t} offen offset:{1024*i} {SC}"]
        k = 0
        for f, (t, s) in enumerate(fr):
            for j in ((0, 1) if f % 2 == 0 else (1, 0)):
                c = vr(acc(j,t),16) if (j, t) in started else "0"
                started.add((j, t))
                a(f"v_mfma_f32_32x32x16_bf16 {vr(acc(j,t),16)}, {ar(WF+(n&1)*16+f*4,4)}, {ar(XR+(s % NX)*8+j*4,4)}, {c}")
                for ins in gaps[k]: a(ins)
                for tg in tags[k]: vm.add(tg)
                if send and not (n in SEND and k < 4):
                    for _ in range(4 if k >= 4 or n == 55 else 2):
                        if send:
                            ins = send.pop(0); a(ins)
                            if ins.startswith("buffer"): vm.add("S")
                k += 1
        if n - 1 in SEND: assert not send, len(send)
    assert nx == 56 and not dl
    g.stamp()
    P = acc(0, 1)
    a(f"s_add_u32 s28, s{sI}, {XSL}"); a(f"s_add_u32 s29, s{sI}, {2*XSL}")
    def ld_slot(sl):
        for i in range(4): a(f"buffer_load_dwordx4 {vr(IN+16*sl+4*i,4)}, v{vI}, {sr(sIB,4)}, s{(sI, 28, 29)[sl]} offen offset:{1024*i} {SC}")
    a(f"s_waitcnt vmcnt({vm.wait_for('R')})")
    for sl in range(3): ld_slot(sl)
    for k in range(16):
        a(f"v_lshlrev_b32 v{P+2*k}, 16, v{HR+k}"); a(f"v_and_b32 v{P+2*k+1}, 0xffff0000, v{HR+k}")
    a(f"s_mov_b32 s{sTO}, 0")
    Q = acc(0, 2); B = acc(0, 0)
    for sl in range(3):
        lp = a.label("xp"); dn = a.label("xd")
        a(f"s_waitcnt vmcnt({8-4*sl})")
        a(f"{lp}:")
        I = IN + 16*sl
        a(f"v_max3_u32 v21, v{I}, v{I+1}, v{I+2}"); a(f"v_max3_u32 v22, v{I+3}, v{I+4}, v{I+5}")
        for k in range(6, 16, 2): a(f"v_max3_u32 v{21 + ((k>>1)&1)}, v{21 + ((k>>1)&1)}, v{I+k}, v{I+k+1}")
        a(f"v_max_u32 v21, v21, v22")
        a(f"v_cmp_eq_u32 vcc, -1, v21")
        a(f"s_cbranch_vccz {dn}")
        a(f"s_sleep {XSLEEP}")
        ld_slot(sl)
        a(f"s_add_u32 s{sTO}, s{sTO}, 1"); a(f"s_cmp_lt_u32 s{sTO}, {TIMEOUT}")
        a("s_waitcnt vmcnt(0)")
        a(f"s_cbranch_scc1 {lp}")
        a(f"{dn}:")
        if sl == 2: break
        for k in range(16):
            a(f"v_lshlrev_b32 v{Q+2*k}, 16, v{I+k}"); a(f"v_and_b32 v{Q+2*k+1}, 0xffff0000, v{I+k}")
        for k in range(16): a(f"v_pk_add_f32 {vr(B+2*k,2)}, {vr(B+2*k,2)}, {vr(Q+2*k,2)}")
    g.stamp()
    a(f"s_mov_b32 s{sT}, 65536")
    for i in range(4):
        b = B + 8*i
        for e in range(4):
            a(f"v_lshlrev_b32 v{Q+2*e}, 16, v{IN+32+4*i+e}"); a(f"v_and_b32 v{Q+2*e+1}, 0xffff0000, v{IN+32+4*i+e}")
        for e in range(4): a(f"v_pk_add_f32 {vr(b+2*e,2)}, {vr(b+2*e,2)}, {vr(Q+2*e,2)}")
        for e in range(4): a(f"v_cvt_pk_bf16_f32 v{Q+e}, v{b+2*e}, v{b+2*e+1}")
        for e in range(4):
            a(f"v_lshlrev_b32 v{b+2*e}, 16, v{Q+e}"); a(f"v_and_b32 v{b+2*e+1}, 0xffff0000, v{Q+e}")
        for e in range(4): a(f"v_pk_add_f32 {vr(b+2*e,2)}, {vr(b+2*e,2)}, {vr(P+8*i+2*e,2)}")
        for e in range(4): a(f"v_cvt_pk_bf16_f32 v{HR+4*i+e}, v{b+2*e}, v{b+2*e+1}")
        so = f"s{sT}" if i >= 2 else "0"
        a(f"buffer_store_dwordx4 {vr(HR+4*i,4)}, v{vO}, {sr(sO,4)}, {so} offen offset:{32*(i&1)} {OF}")

def phase_gemm1(g, PRE1, XF=SC, LA=7, X0=3, TU=3, PU=(0,2,6), EXP='', WNT=''):
    a = g.a
    SLOT = SLOT1
    ACC = 32
    def acc(j, t): return ACC + (j*7 + t)*16
    XR = 0; WF = 64; CSF = 120
    vDMA = 1; vX = 8; vST = 9; vWc = 10; vWn = 11; vS = 12; vO = 28; vFl = 20; vC = 22; vF2 = 23
    sX = 44; sACT = 8; sST = 36; sCS = 40; sW2 = 12
    sOX = 20; sOX2 = 21; sBase = 23; sIt = 25; sA = 28; sB = 29; sNS = 30; sCSo = 32
    sOW = sG_OW; sM0 = sG_M0
    vm = VM()
    for i in range(4): vm.add("H")
    def pro_dma(stage, idxs):
        for i in idxs:
            if i in (0, 4): a(f"s_add_u32 m0, s{sM0}, {stage*SLOT + (4096 if i else 0)}"); a("s_nop 0")
            a(g1_dma(pDMA, i, WNT)); vm.add(f"D{stage}")
            if i == 6:
                for ins in g1_wadv("odd" if stage & 1 else "even"): a(ins)
    a(f"v_and_b32 v160, 31, v{vL}"); a(f"v_mov_b32 v161, 0x3f803f80")
    for t in range(7):
        a(f"v_cmp_eq_u32 vcc, {t}, v160"); a("s_nop 1")
        for e in range(4): a(f"v_cndmask_b32 v{96+4*t+e}, 0, v161, vcc")
    for i in range(7): a(f"v_mov_b32 v{vDMA+i}, v{pDMA+i}")
    for d, s_ in ((vX, pX), (vST, pST), (vWc, pWc), (vO, pO)): a(f"v_mov_b32 v{d}, v{s_}")
    a(f"v_add_u32 v{vWn}, {2*SLOT}, v{vWc}")
    srd(a, sACT, pWS, SZ_ACT, M_ACT); srd(a, sST, pWS, 2048*16, M_ST2); srd(a, sCS, pWS, 32*224*32, M_CS)
    srd(a, sW2, pWD, SZ_W)
    a(f"s_mul_i32 s16, s2, 28672")
    a(f"v_mov_b32 v27, v{pSR}")
    for e in range(4): a(f"v_accvgpr_write_b32 a{208+e}, -1")
    srd(a, 52, pWS, SZ_XCH, M_XCH)
    a(f"s_mul_i32 s51, s2, {XWG}"); a(f"s_add_u32 s54, s51, {XWG}")
    a(f"s_mul_i32 s{sCSo}, s{sG_TN}, {224*32}")
    a(f"v_lshrrev_b32 v163, 5, v{vL}")
    a(f"s_lshl_b32 s{sOX}, s{sG_TM}, 19"); a(f"s_add_u32 s{sOX2}, s{sOX}, 16384")
    a(f"s_mov_b32 s17, s{sOX}"); a(f"s_add_u32 s26, s{sOX}, {1 << 19}")
    a(f"s_mov_b32 s{sBase}, 0"); a(f"s_mov_b32 s{sIt}, 3"); a(f"s_mov_b32 s{sNS}, 3")
    a(f"s_lshr_b32 s{sT}, s{sWave}, 1"); a(f"s_mul_i32 s{sT}, s{sT}, {SLOT}")
    a(f"s_and_b32 s{sT+1}, s{sWave}, 1"); a(f"s_mul_i32 s{sT+1}, s{sT+1}, {2*3584}"); a(f"s_add_u32 s{sT}, s{sT}, s{sT+1}")
    a(f"v_add_u32 v164, s{sT}, v{vWc}")
    a(f"s_mul_i32 s{sT}, s{sWave}, 896"); a(f"s_add_u32 s{sT}, s{sT}, {PBASE}")
    a(f"v_lshlrev_b32 v165, 7, v160"); a(f"v_lshl_add_u32 v165, v163, 4, v165"); a(f"v_add_u32 v165, s{sT}, v165")
    def wread(st, t, j, reg, imm0):
        return f"ds_read_b64_tr_b16 {ar(WF+st*28+t*4+j*2,2)}, v{reg} offset:{imm0 + 4*j*224 + 32*t}"
    for st in range(2):
        for t in range(7):
            for j in range(2): a(wread(st, t, j, 164, st*3584))
    a(f"s_waitcnt vmcnt({vm.wait_for('H')})")
    a("s_barrier")
    set_flag(g, 1, 174)
    g.stamp()
    a("s_waitcnt lgkmcnt(0)")
    for st in range(2):
        for t in range(7):
            c = "0" if (st == 0 and t == 0) else "v[128:143]"
            a(f"v_mfma_f32_32x32x16_bf16 v[128:143], {ar(WF+st*28+t*4,4)}, {vr(96+4*t,4)}, {c}")
            pro_dma(2 + st, [t])
    for t in range(7):
        for j in range(2): a(wread(0, t, j, vWc, 0))
    a(f"v_cmp_gt_u32 vcc, 7, v160")
    a("s_and_saveexec_b64 s[56:57], vcc")
    for q in range(4): a(f"ds_write_b128 v165, {vr(128+4*q,4)} offset:{32*q}")
    a("s_mov_b64 exec, -1")
    a(f"s_mov_b32 s{sT+1}, 16384")
    a("s_waitcnt lgkmcnt(0)")
    g.stamp()
    poll_flags(g, 29, sT+1, 166)
    a("s_barrier")
    g.stamp()
    vm = VM()
    SD = 64
    def xload(slot, k):
        j, hf = k >> 1, k & 1
        return f"buffer_load_dwordx2 {ar(XR+slot*8+j*4+hf*2,2)}, v{vX}, {sr(sX,4)}, s{sOX2 if hf else sOX} offen offset:{256*j} {XF}"
    xadv = [f"s_add_u32 s{sOX}, s{sOX}, 65536", f"s_add_u32 s{sOX2}, s{sOX}, 16384"]
    def xadv_pair(own):
        return [f"s_mov_b32 s{sOX}, 0" if own else xadv[0], f"s_cmp_eq_u32 s{sOX}, s17", f"s_cselect_b32 s{sOX}, s26, s{sOX}", xadv[1]]
    RD = 148
    def pro_x(x):
        for k in range(4): a(xload(x, k)); vm.add(f"X{x}")
        for ins in xadv: a(ins)
    for x in range(X0): pro_x(x)
    nxt_x = [X0]
    a(f"v_lshlrev_b32 v168, 2, v0"); a(f"v_add_u32 v168, {PBASE}, v168")
    for w in range(4): a(f"ds_read_b32 v{170+w}, v168 offset:{896*w}")
    a(f"v_lshlrev_b32 v169, 5, v0")
    a(f"s_lshl_b32 s{sT}, s{sG_TM}, 2"); a(f"s_add_u32 s{sT}, s{sT}, s{sCSo}")
    a(f"v_cmp_gt_u32 vcc, 224, v0")
    a(f"v_and_b32 v29, 3, v{vL}"); a(f"v_lshlrev_b32 v29, 4, v29"); a(f"s_lshl_b32 s{sT+1}, s{sWave}, 6"); a(f"s_add_u32 s{sT+1}, s{sT+1}, {SBASE}")
    a(f"v_add_u32 v29, s{sT+1}, v29")
    a("s_waitcnt lgkmcnt(0)")
    a("v_add_f32 v170, v170, v171"); a("v_add_f32 v172, v172, v173"); a("v_add_f32 v170, v170, v172")
    a("v_cvt_pk_bf16_f32 v171, v170, v170"); a("v_lshlrev_b32 v171, 16, v171")
    a("v_sub_f32 v170, v170, v171")
    a("v_cvt_pk_bf16_f32 v170, v171, v170")
    a("s_and_saveexec_b64 s[56:57], vcc")
    a(f"buffer_store_dword v170, v169, {sr(sCS,4)}, s{sT} offen {SC}"); vm.add("C")
    a("s_mov_b64 exec, -1")
    g.stamp()
    accu = []
    for k in range(8):
        r0 = RD+4*(k>>1)+(k&1); r1 = r0+2
        accu += [f"v_accvgpr_read_b32 v16, a{r0}", f"v_accvgpr_read_b32 v17, a{r1}",
                 "v_lshlrev_b32 v18, 16, v16", "v_lshlrev_b32 v19, 16, v17", "v_and_b32 v16, 0xffff0000, v16", "v_and_b32 v17, 0xffff0000, v17"]
        if k == 0:
            accu += ["v_add_f32 v12, v18, v16", "v_add_f32 v13, v19, v17", "v_mul_f32 v14, v18, v18", "v_mul_f32 v15, v19, v19"]
        else:
            accu += ["v_add_f32 v12, v12, v18", "v_add_f32 v13, v13, v19", "v_fmac_f32 v14, v18, v18", "v_fmac_f32 v15, v19, v19",
                     "v_add_f32 v12, v12, v16", "v_add_f32 v13, v13, v17"]
        accu += ["v_fmac_f32 v14, v16, v16", "v_fmac_f32 v15, v17, v17"]
    n3 = (len(accu) + 3) // 4
    FILL = {0: accu[:n3], 1: accu[n3:2*n3], 2: accu[2*n3:3*n3], 3: accu[3*n3:],
            4: red4(12, 16) + ["ds_write_b128 v29, v[12:15]"],
            5: [f"ds_read_b128 {vr(16+4*w,4)}, v29 offset:{64*(w+1)}" for w in range(3)],
            6: [f"v_add_f32 v{12+e}, v{12+e}, v{16+e}" for e in range(4)] + [f"v_add_f32 v{20+e}, v{20+e}, v{24+e}" for e in range(4)]
               + [f"v_add_f32 v{12+e}, v{12+e}, v{20+e}" for e in range(4)] + stats_final(12, 16),
            7: [f"v_cmp_gt_u32 vcc, 4, v{vL}", f"v_and_b32 v29, 3, v{vL}", "v_lshlrev_b32 v29, 5, v29", f"v_bfe_u32 v21, v{vL}, 2, 1", "v_lshl_add_u32 v29, v21, 4, v29",
                "v_cndmask_b32 v16, v13, v12, vcc", "v_cndmask_b32 v17, v15, v14, vcc", "v_cmp_gt_u32 vcc, 8, v0",
                f"v_mov_b32 v18, s{sNON}", f"v_mov_b32 v19, s{sNON+1}", "v_mov_b32 v21, 0x7fff0000", "v_cndmask_b32 v29, v21, v29, vcc",
                f"s_lshl_b32 s{sT}, s{sG_R}, 4", f"buffer_store_dwordx4 v[16:19], v29, {sr(sST,4)}, s{sT} offen {SC}", "v_lshlrev_b32 v26, 4, v0"]}
    LFILL = [f"v_and_b32 v{vC}, 31, v{vL}", f"v_lshlrev_b32 v{vC}, 5, v{vC}", f"v_lshrrev_b32 v{vF2}, 5, v{vL}", f"v_lshl_add_u32 v{vC}, v{vF2}, 4, v{vC}",
             f"v_and_b32 v{vF2}, 7, v{vL}", f"v_lshlrev_b32 v{vF2}, 9, v{vF2}",
             f"s_and_b32 s{sT}, s2, 0xc7", f"s_lshl_b32 s{sT}, s{sT}, 6", f"s_add_u32 s{sT}, s{sT}, {3*16384}", f"v_add_u32 v{vF2}, s{sT}, v{vF2}"]
    def ld_flags_stats():
        return [f"buffer_load_dwordx2 {vr(vFl,2)}, v{vF2}, {sr(sFLG,4)}, 0 offen {SC}",
                f"buffer_load_dwordx4 {vr(vS,4)}, v{vST}, {sr(sST,4)}, 0 offen {SC}",
                f"buffer_load_dwordx4 {vr(vS+4,4)}, v{vST}, {sr(sST,4)}, 0 offen offset:512 {SC}"]
    def ld_cs(t):
        if t < 4: return f"buffer_load_dwordx4 {ar(CSF+4*t,4)}, v{vC}, {sr(sCS,4)}, s{sCSo} offen offset:{1024*t} {SC}"
        return f"buffer_load_dwordx4 {ar(CSF+4*t,4)}, v{vC}, {sr(sCS,4)}, s{sNS} offen offset:{1024*(t-4)} {SC}"
    DM = {3: [0, 1], 0: [2, 3], 1: [4, 5], 2: [6]}
    def body(kind, base_step):
        first = kind == "first"; last = kind == "last"; second = kind == "second"; mid = kind == "mid"
        for u in range(8):
            s = u % 4; st = u & 1
            w = vm.wait_for(f'X{base_step+u}')
            if second and u == 0: w = min(w, vm.wait_for("R"))
            if last and u == 2: w = min(w, vm.wait_for("S"))
            a(f"s_waitcnt vmcnt({w}) lgkmcnt(0)")
            if (s == 3 and not (last and u == 7)) or (second and u == 5): a("s_barrier")
            if first and u == 7: set_flag(g, 3, 22)
            gaps = {k: [] for k in range(14)}
            tags = {k: [] for k in range(14)}
            nu = (u + 1) % 8
            reg = vWn if u == 7 else vWc
            imm0 = (nu // 4) * SLOT + (nu % 4) * 16 * 224
            k = 0
            if not (last and u == 7):
                for t in range(7):
                    for j in range(2):
                        gaps[k // 2].append(wread(1 - st, t, j, reg, imm0)); k += 1
            xl = []
            while nxt_x[0] <= base_step + u + LA and len(xl) < 2 and not (last and nxt_x[0] >= base_step + 8):
                xl.append(nxt_x[0]); nxt_x[0] += 1
            g0 = 6 if len(xl) == 1 else 2
            for x in xl:
                for k in range(4):
                    gaps[g0+k].append(xload(x % 8, k)); tags[g0+k].append(f"X{x}")
                gaps[g0+3] += xadv_pair(x == 7) if x % 8 == 7 else xadv
                g0 += 4
            gi = 11
            if not last:
                for i in ([] if first and u < 3 else DM[s]):
                    if i in (0, 4):
                        e = 4096 if i else 0
                        if u in (3, 4, 5, 6): ins = f"s_add_u32 m0, s{sA}, {e}"
                        elif u == 7: ins = f"s_add_u32 m0, s{sA}, {SLOT + e}"
                        else: ins = f"s_add_u32 m0, s{sB}, {SLOT + e}"
                        gaps[gi-2].append(ins)
                    gaps[gi].append(g1_dma(vDMA, i, WNT)); tags[gi].append("D")
                    if i == 6:
                        gaps[gi+1] += g1_wadv("odd" if u == 2 else "even")
                    gi += 1
                if u == 0:
                    gaps[0].insert(0, f"s_add_u32 s{sA}, s{sM0}, s{sBase}")
                    gaps[1].insert(0, f"s_sub_u32 s{sBase}, {2*SLOT}, s{sBase}")
                    gaps[2].insert(0, f"s_add_u32 s{sB}, s{sM0}, s{sBase}")
                if mid and u in PU:
                    gaps[13] += [f"buffer_store_dwordx4 a[208:211], v26, s[52:55], s51 offen {SC}", f"s_add_u32 s51, s51, 4096"]; tags[13].append("P")
                if first and u in (2, 3, 4, 5):
                    gaps[13] += [f"buffer_load_dwordx4 {ar(RD+4*(u-2),4)}, v27, {sr(sX,4)}, s{sG_SR} offen {SC}", f"s_add_u32 s{sG_SR}, s{sG_SR}, {16*16384}"]; tags[13].append("R")
                if u == 7:
                    gaps[8].append(f"v_swap_b32 v{vWc}, v{vWn}")
                    if mid:
                        gaps[13].append(f"s_add_u32 s{sIt}, s{sIt}, 1"); gaps[13].append(f"s_cmp_lt_u32 s{sIt}, 8")
            else:
                if u == 0:
                    for n, ins in enumerate(LFILL): gaps[n].append(ins)
                    for n, ins in enumerate(ld_flags_stats()): gaps[11+n].append(ins); tags[11+n].append("S")
                if u == 1: gaps[8].append(f"s_add_u32 s{sNS}, s{sCSo}, 4096")
                if u == 2:
                    for t in range(7): gaps[7+t].append(ld_cs(t)); tags[7+t].append('CS')
                if u == TU:
                    for t in range(7):
                        gaps[7+t] += [f"buffer_load_dwordx4 a[200:203], v26, {sr(sW2,4)}, s16 offen", f"s_add_u32 s16, s16, 4096"]; tags[7+t].append("T")
                if u == 6:
                    pre = g2_dma_addr(sM0)
                    for n, ins in enumerate(pre): gaps[7 + n*7//len(pre)].append(ins)
                if u == 7:
                    gaps[0].append("s_barrier")
            if second and u in FILL:
                fl = FILL[u]
                for n, ins in enumerate(fl): gaps[n*14//len(fl) if len(fl) > 7 else 7+n].append(ins)
            k = 0
            for t in range(7):
                for j in range(2):
                    c = "0" if (first and u == 0) else vr(acc(j,t),16)
                    if mid and 'm' in EXP:
                        d0 = acc(j,t) + 8*(u & 1)
                        a(f"v_mfma_f32_16x16x32_bf16 {vr(d0,4)}, {ar(WF+st*28+t*4,4)}, {ar(XR+u*8+j*4,4)}, {vr(d0,4)}")
                        hl = len(gaps[k]) // 2
                        if not any(x.startswith("s_c") for x in gaps[k]):
                            for ins in gaps[k][:hl]: a(ins)
                            gaps[k] = gaps[k][hl:]
                        a(f"v_mfma_f32_16x16x32_bf16 {vr(d0+4,4)}, {ar(WF+st*28+t*4,4)}, {ar(XR+((u+1)%8)*8+j*4,4)}, {vr(d0+4,4)}")
                    else:
                        a(f"v_mfma_f32_32x32x16_bf16 {vr(acc(j,t),16)}, {ar(WF+st*28+t*4,4)}, {ar(XR+u*8+j*4,4)}, {c}")
                    for ins in gaps[k]:
                        if mid and 'x' in EXP and ins.startswith("buffer_load_dwordx2 a"): continue
                        if mid and 'd' in EXP and ins.endswith("lds"): continue
                        if mid and 'l' in EXP and ins.startswith("ds_read") : continue
                        if mid and 'h' in EXP and ins.startswith("ds_read") and k % 2: continue
                        a(ins)
                    for tg in tags[k]: vm.add(tg)
                    k += 1
    body("first", 0)
    g.stamp()
    body("second", 8)
    loop = a.label("g1loop")
    a(f"{loop}:")
    if g.dbg:
        a("s_memrealtime s[98:99]"); a("s_memtime s[100:101]"); a(f"s_add_u32 s97, s{sIt}, {g.nst-3}"); a("s_waitcnt lgkmcnt(0)")
        a("s_mov_b32 s99, m0"); a("s_mov_b32 m0, s97"); a("s_nop 1")
        a(f"v_writelane_b32 v{vSTAMP}, s98, m0"); a("s_add_u32 m0, m0, 32"); a("s_nop 1"); a(f"v_writelane_b32 v{vSTAMP}, s100, m0"); a("s_mov_b32 m0, s99")
        g.nst += 5
    body("mid", 16)
    a(f"s_cbranch_scc1 {loop}")
    g.stamp()
    body("last", 24)
    g.stamp()
    poll = a.label("sp"); ok = a.label("sok")
    a(f"s_mov_b32 s{sTO}, 0")
    a(f"{poll}:")
    a(f"v_cmp_ne_u64 vcc, {sr(sNON,2)}, {vr(vS+2,2)}")
    a(f"v_cmp_ne_u64 {sr(sT,2)}, {sr(sNON,2)}, {vr(vS+6,2)}")
    a(f"s_or_b64 vcc, vcc, {sr(sT,2)}")
    a(f"v_cmp_ne_u64 {sr(sT,2)}, {sr(sNON,2)}, {vr(vFl,2)}")
    a(f"s_or_b64 vcc, vcc, {sr(sT,2)}")
    a(f"s_cbranch_vccz {ok}")
    for ins in ld_flags_stats(): a(ins)
    a("s_waitcnt vmcnt(0)")
    for t in range(7): a(ld_cs(t))
    a("s_waitcnt vmcnt(0)")
    a(f"s_add_u32 s{sTO}, s{sTO}, 1"); a(f"s_cmp_lt_u32 s{sTO}, {TIMEOUT}"); a(f"s_cbranch_scc1 {poll}")
    a(f"{ok}:")
    for j in range(2):
        b = 20 + 4*j
        a(f"v_xor_b32 v{b+1}, 0x80000000, v{vS+4*j}")
        a(f"v_lshrrev_b32 v{b}, 16, v{b+1}")
        a(f"v_or_b32 v{b}, v{b}, v{b+1}")
        for e in range(1, 4): a(f"v_mov_b32 v{b+e}, v{b}")
    a(f"s_waitcnt vmcnt({7 if TU < 8 else 0})")
    a("s_nop 0")
    K0 = -2.0 * 0.7978845608028654 * LOG2E
    K1 = K0 * 0.044715
    C = {0: 2, 1: 6}
    cst = []
    for j in range(2):
        s_ = vS + 4*j + 1; c = C[j]
        cst += [f"v_mul_f32 v{c}, {f32(K0)}, v{s_}", f"v_mul_f32 v{c+2}, v{s_}, v{s_}", f"v_mul_f32 v{c+1}, v{c+2}, v{s_}",
                f"v_mul_f32 v{c+1}, {f32(K1)}, v{c+1}", f"v_rcp_f32 v{c+2}, v{c+2}"]
    for j in range(2):
        for t in range(7):
            a(f"v_mfma_f32_32x32x16_bf16 {vr(acc(j,t),16)}, {ar(CSF+t*4,4)}, {vr(20+4*j,4)}, {vr(acc(j,t),16)}")
            if cst: a(cst.pop(0))
    w2 = [g2_dma(stg, i) for stg in range(PRE1) for i in range(4)]
    def W2():
        if w2:
            for ins in w2.pop(0): a(ins)
    T = 12
    for j in range(2):
        c = C[j]
        for t in range(7):
            b = acc(j, t)
            prs = [(b, b+4), (b+2, b+6), (b+8, b+12), (b+10, b+14)]
            for i, (gt, u_) in enumerate(prs): a(f"v_pk_mul_f32 {vr(T+2*i,2)}, {vr(gt,2)}, {vr(gt,2)}")
            for i, (gt, u_) in enumerate(prs): a(f"v_pk_fma_f32 {vr(T+2*i,2)}, {vr(T+2*i,2)}, {vr(c,2)}, {vr(c,2)} op_sel:[0,1,0] op_sel_hi:[1,1,0]")
            for i, (gt, u_) in enumerate(prs): a(f"v_pk_mul_f32 {vr(T+2*i,2)}, {vr(T+2*i,2)}, {vr(gt,2)}")
            W2()
            for i in range(8): a(f"v_exp_f32 v{T+i}, v{T+i}")
            for i, (gt, u_) in enumerate(prs): a(f"v_pk_mul_f32 {vr(u_,2)}, {vr(u_,2)}, {vr(gt,2)}")
            for i, (gt, u_) in enumerate(prs): a(f"v_pk_fma_f32 {vr(T+2*i,2)}, {vr(T+2*i,2)}, {vr(c+2,2)}, {vr(c+2,2)} op_sel_hi:[1,0,0]")
            W2()
            for i in range(8): a(f"v_rcp_f32 v{T+i}, v{T+i}")
            a(f"s_mov_b32 s{sT}, {t*65536}")
            for i, (gt, u_) in enumerate(prs): a(f"v_pk_mul_f32 {vr(u_,2)}, {vr(u_,2)}, {vr(T+2*i,2)}")
            for i, (gt, u_) in enumerate(prs): a(f"v_cvt_pk_bf16_f32 v{b+i}, v{u_}, v{u_+1}")
            a(f"buffer_store_dwordx4 {vr(b,4)}, v{vO}, {sr(sACT,4)}, s{sT} offen offset:{512*j} {SC}")
    assert not w2
    g.stamp()

def gen_mega(dbg=False, as_list=False, p01={}, g1={}, g2={}, PRE1=6):
    g = G(dbg); a = g.a
    end = a.label("end")
    a(f"s_cmp_ge_u32 s2, 256"); a(f"s_cbranch_scc1 {end}")
    phase01(g, **p01); phase_gemm1(g, PRE1, **g1); phase_gemm2(g, PRE1, **g2)
    if dbg:
        g.stamp()
        a("s_waitcnt vmcnt(0)")
        g.stamp()
        srd(a, 4, pWS, 1 << 19, M_DBG)
        a(f"v_lshlrev_b32 v1, 2, v{vL}")
        a(f"s_lshl_b32 s{sT}, s2, 2"); a(f"s_add_u32 s{sT}, s{sT}, s{sWave}"); a(f"s_lshl_b32 s{sT}, s{sT}, 8")
        a(f"buffer_store_dword v{vSTAMP}, v1, s[4:7], s{sT} offen")
    a(f"{end}:")
    a("s_endpgm")
    k = f"kernel={NAME} " if as_list else ""
    launch = f"; @launch {k}grid=(256,1,1) block=(256,1,1) lds=163840\n"
    body = a.text()
    import subprocess, tempfile, os
    with tempfile.TemporaryDirectory() as td:
        open(td + "/x.s", "w").write('.amdgcn_target "amdgcn-amd-amdhsa--gfx950"\n.text\n' + body.replace("CODE_BYTES", "0x1234"))
        subprocess.run(["clang", "-x", "assembler", "-target", "amdgcn-amd-amdhsa", "-mcpu=gfx950", "-c", td + "/x.s", "-o", td + "/x.o"], check=True)
        subprocess.run(["llvm-objcopy", "-O", "binary", "-j", ".text", td + "/x.o", td + "/x.bin"], check=True)
        n = os.path.getsize(td + "/x.bin")
    assert n < 65536
    body = body.replace("CODE_BYTES", str((n - 768) & ~63))
    return launch, kernel_header(NAME) + body, kernel_desc(NAME, 512, 256)

if __name__ == "__main__":
    from mk import *
    mk([gen_mega(dbg=True, as_list=True)], 'mega_dbg.s')
    mk([gen_mega(dbg=True, as_list=True, g1=dict(EXP='m'))], 'mega_b.s')
    assemble([gen_mega()], 'm1.s')
```

```python
from common import *
LOG2E = 1.4426950408889634
NAME = "sequential_preLN__ssm_conv_s4d__geglu_ffn__prompt_kernel"

M_H4  = 0x0000000
M_ACT = 0x0400000
M_ST2 = 0x1200000
M_FLG = 0x1210000
M_CS  = 0x1220000
M_DBG = 0x1280000
M_U2  = 0x1300000
M_END = 0x1b00000

pU, pLOGA, pAIM, pCRE, pCIM, pLOGDT, pDSKIP, pBX, pWG, pWU, pWD, pOUT, pDBG, pWS = [64 + 2*i for i in range(14)]
sNON = 92; sWave = 94; sCG = 95; sTO = 96
sFLG = 60
sT = 48
vL = 30; vSTAMP = 31
SC = "sc1"

SLOT1 = 28800; UPOFF = 14464
UCS = 4512; UCH = 4*UCS; UPAD = 400
KCS = 4224; KCH = 8448; KPAD = 112
UBASE = 2*SLOT1
KBASE = UBASE + 4*UCH
SBASE = KBASE + 4*KCH
PBASE = 4*SLOT1
RS = 528; TOFF = 24*RS + 16
NBASE = SBASE + 240
assert SBASE + 256 <= 163840

class G:
    def __init__(self, dbg):
        self.a = Asm("mk"); self.dbg = dbg; self.nst = 0
    def stamp(self):
        if not self.dbg: return
        a = self.a
        a("s_memrealtime s[98:99]"); a("s_memtime s[100:101]"); a("s_waitcnt lgkmcnt(0)")
        a(f"v_writelane_b32 v{vSTAMP}, s98, {self.nst}"); a(f"v_writelane_b32 v{vSTAMP}, s100, {32+self.nst}")
        self.nst += 1

def cmul(a, d, x, y, conj_out=False):
    n1 = " neg_hi:[0,1]" if conj_out else ""
    n2 = " neg_hi:[0,1,0]" if conj_out else ""
    a(f"v_pk_mul_f32 {vr(d,2)}, {vr(x,2)}, {vr(y,2)} op_sel_hi:[0,1]{n1}")
    a(f"v_pk_fma_f32 {vr(d,2)}, {vr(x,2)}, {vr(y,2)}, {vr(d,2)} op_sel:[1,1,0] op_sel_hi:[1,0,1] neg_lo:[0,1,0]{n2}")

def red4(v, t):
    o = []
    for d in (4, 8):
        o += [f"v_add_f32_dpp v{v+e}, v{v+e}, v{v+e} row_ror:{d} row_mask:0xf bank_mask:0xf" for e in range(4)]
    for op in ("v_permlane16_swap_b32", "v_permlane32_swap_b32"):
        o += [f"v_mov_b32 v{t+e}, v{v+e}" for e in range(4)]
        o += [f"{op} v{t+e}, v{v+e}" for e in range(4)]
        o += [f"v_add_f32 v{v+e}, v{v+e}, v{t+e}" for e in range(4)]
    return o

def stats_final(W, t, packed=False):
    o = [f"v_mul_f32 v{W+e}, {f32(1/1024)}, v{W+e}" for e in range(4)]
    o += [f"v_fma_f32 v{W+2+e}, -v{W+e}, v{W+e}, v{W+2+e}" for e in range(2)]
    o += [f"v_max_f32 v{W+2+e}, 0, v{W+2+e}" for e in range(2)]
    def rnd(b): return [f"v_cvt_pk_bf16_f32 v{t}, v{b}, v{b+1}", f"v_lshlrev_b32 v{b}, 16, v{t}", f"v_and_b32 v{b+1}, 0xffff0000, v{t}"]
    o += rnd(W+2)
    o += [f"v_add_f32 v{W+2+e}, {f32(1e-5)}, v{W+2+e}" for e in range(2)]
    o += rnd(W+2)
    o += [f"v_sqrt_f32 v{W+2+e}, v{W+2+e}" for e in range(2)]
    if packed:
        return o + [f"v_cvt_pk_bf16_f32 v{t}, v{W}, v{W+1}", f"v_cvt_pk_bf16_f32 v{t+1}, v{W+2}, v{W+3}"]
    o += rnd(W)
    o += rnd(W+2)
    o += [f"v_rcp_f32 v{W+2+e}, v{W+2+e}" for e in range(2)]
    o += ["s_nop 0"]
    return o

def ln_stats8(a, pairs, T, W, pre_barrier):
    for k, (r0, r1) in enumerate(pairs):
        a(f"v_lshlrev_b32 v{T+4*k}, 16, v{r0}"); a(f"v_lshlrev_b32 v{T+4*k+1}, 16, v{r1}")
        a(f"v_and_b32 v{T+4*k+2}, 0xffff0000, v{r0}"); a(f"v_and_b32 v{T+4*k+3}, 0xffff0000, v{r1}")
    a(f"v_pk_add_f32 {vr(W,2)}, {vr(T,2)}, {vr(T+4,2)}"); a(f"v_pk_mul_f32 {vr(W+2,2)}, {vr(T,2)}, {vr(T,2)}")
    a(f"v_pk_add_f32 {vr(W+4,2)}, {vr(T+2,2)}, {vr(T+6,2)}"); a(f"v_pk_mul_f32 {vr(W+6,2)}, {vr(T+2,2)}, {vr(T+2,2)}")
    for k in range(2, 16):
        b = W + 4*(k & 1)
        if k >= 4: a(f"v_pk_add_f32 {vr(b,2)}, {vr(b,2)}, {vr(T+2*k,2)}")
        a(f"v_pk_fma_f32 {vr(b+2,2)}, {vr(T+2*k,2)}, {vr(T+2*k,2)}, {vr(b+2,2)}")
    a(f"v_pk_add_f32 {vr(W,2)}, {vr(W,2)}, {vr(W+4,2)}"); a(f"v_pk_add_f32 {vr(W+2,2)}, {vr(W+2,2)}, {vr(W+6,2)}")
    a(f"v_and_b32 v{W+24}, 3, v{vL}"); a(f"v_lshlrev_b32 v{W+24}, 4, v{W+24}"); a(f"v_add_u32 v{W+24}, {SBASE}, v{W+24}")
    a(f"s_lshl_b32 s{sT}, s{sWave}, 6"); a(f"v_add_u32 v{W+25}, s{sT}, v{W+24}")
    for ins in red4(W, W+4): a(ins)
    a(f"ds_write_b128 v{W+25}, {vr(W,4)}")
    pre_barrier()
    a("s_waitcnt lgkmcnt(0)"); a("s_barrier")
    E = W + 8
    for w in range(4): a(f"ds_read_b128 {vr(E+4*w,4)}, v{W+24} offset:{64*w}")
    a("s_waitcnt lgkmcnt(0)")
    a(f"v_pk_add_f32 {vr(W,2)}, {vr(E,2)}, {vr(E+4,2)}"); a(f"v_pk_add_f32 {vr(W+4,2)}, {vr(E+8,2)}, {vr(E+12,2)}")
    a(f"v_pk_add_f32 {vr(W+2,2)}, {vr(E+2,2)}, {vr(E+6,2)}"); a(f"v_pk_add_f32 {vr(W+6,2)}, {vr(E+10,2)}, {vr(E+14,2)}")
    a(f"v_pk_add_f32 {vr(W,2)}, {vr(W,2)}, {vr(W+4,2)}"); a(f"v_pk_add_f32 {vr(W+2,2)}, {vr(W+2,2)}, {vr(W+6,2)}")
    for ins in stats_final(W, W+4, True): a(ins)

TIMEOUT = 400000
def set_flag(g, which, tmp):
    a = g.a
    sk = a.label("fl")
    a(f"s_cmp_lg_u32 s{sWave}, 0"); a(f"s_cbranch_scc1 {sk}")
    a(f"s_lshl_b32 s{sT}, s2, 6"); a(f"s_add_u32 s{sT}, s{sT}, {which*16384}")
    a(f"v_mov_b32 v{tmp}, s{sNON}"); a(f"v_mov_b32 v{tmp+1}, s{sNON+1}"); a(f"v_mov_b32 v{tmp+2}, 0")
    a("s_mov_b64 exec, 1")
    a(f"buffer_store_dwordx2 {vr(tmp,2)}, v{tmp+2}, {sr(sFLG,4)}, s{sT} offen {SC}")
    a("s_mov_b64 exec, -1")
    a(f"{sk}:")

def poll_flags(g, voff, soff, tmp, preloaded=False):
    a = g.a
    lp = a.label("poll"); dn = a.label("pdone"); pre = a.label("ppre")
    a(f"s_mov_b32 s{sTO}, 0")
    if preloaded: a(f"s_branch {pre}")
    a(f"{lp}:")
    a(f"buffer_load_dwordx2 {vr(tmp,2)}, v{voff}, {sr(sFLG,4)}, s{soff} offen {SC}")
    if preloaded: a(f"{pre}:")
    a("s_waitcnt vmcnt(0)")
    a(f"v_cmp_ne_u64 vcc, {sr(sNON,2)}, {vr(tmp,2)}")
    a(f"s_cbranch_vccz {dn}")
    a("s_mov_b64 exec, vcc")
    a(f"s_add_u32 s{sTO}, s{sTO}, 1"); a(f"s_cmp_lt_u32 s{sTO}, {TIMEOUT}"); a(f"s_cbranch_scc1 {lp}")
    a(f"{dn}:")
    a("s_mov_b64 exec, -1")

class VM:
    def __init__(self): self.ops = []
    def add(self, tag): self.ops.append(tag)
    def wait_for(self, tag):
        idx = max(i for i, t in enumerate(self.ops) if t == tag)
        n = len(self.ops) - 1 - idx
        assert n <= 63, n
        return n


pDMA = 224
pX = 231; pST = 232; pWc = 233; pO = 234; pSR = 235; pTch = 236
sG_W = 4
sG_OW = 22; sG_M0 = 24; sG_F = 27; sG_R = 31; sG_SR = 35; sG_TN = 34; sG_TM = 33

def g1_dma(reg, i, fl=""):
    return f"buffer_load_dwordx4 v{reg+i}, {sr(sG_W,4)}, s{sG_OW} offen offset:{(i & 3)*1024} {fl} lds"
sG_OWN = 19; sG_OWN2 = 18
def g1_wadv(kind):
    if kind == "even": return [f"s_add_u32 s{sG_OW}, s{sG_OW}, {64*7168}"]
    first = f"s_mov_b32 s{sG_OW}, 0" if kind == "own" else f"s_add_u32 s{sG_OW}, s{sG_OW}, {64*7168}"
    return [first, f"s_cmp_eq_u32 s{sG_OW}, s{sG_OWN}", f"s_cselect_b32 s{sG_OW}, s{sG_OWN2}, s{sG_OW}"]

def gemm1_addr(g, part):
    a = g.a if part == 0 else (lambda x: None)
    t0 = 240; sM = 26
    a(f"s_and_b32 s{sT}, s2, 7")
    a(f"s_bfe_u32 s{sG_TM}, s2, 0x30003")
    a(f"s_lshl_b32 s{sG_TN}, s{sT}, 2"); a(f"s_lshr_b32 s{sT+2}, s2, 6"); a(f"s_add_u32 s{sG_TN}, s{sG_TN}, s{sT+2}")
    a(f"s_lshl_b32 s{sM}, s{sG_TM}, 8")
    a(f"s_lshl_b32 s{sG_R}, s{sG_TN}, 3"); a(f"s_add_u32 s{sG_R}, s{sG_R}, s{sM}")
    a(f"s_mul_i32 s{sG_F}, s{sG_TN}, 112")
    a(f"s_cmp_ge_u32 s{sWave}, 2")
    a(f"s_cselect_b32 s{sG_W}, s{pWU}, s{pWG}"); a(f"s_cselect_b32 s{sG_W+1}, s{pWU+1}, s{pWG+1}")
    a(f"s_mov_b32 s{sG_W+2}, {SZ_W}"); a(f"s_mov_b32 s{sG_W+3}, 0x20000")
    a(f"s_and_b32 s{sT}, s{sWave}, 1"); a(f"s_mul_i32 s{sT+1}, s{sT}, 448"); a(f"s_lshl_b32 s{sT+2}, s{sG_F}, 1")
    for i in range(7):
        imm = (i & 3) * 1024
        a(f"v_add_u32 v{t0}, s{sT+1}, v{vL}")
        if i: a(f"v_add_u32 v{t0}, {64*i}, v{t0}")
        a(f"v_mul_u32_u24 v{t0+1}, 4682, v{t0}"); a(f"v_lshrrev_b32 v{t0+1}, 16, v{t0+1}")
        a(f"v_mul_u32_u24 v{t0+1}, {7168-224}, v{t0+1}")
        a(f"v_lshl_add_u32 v{t0+1}, v{t0}, 4, v{t0+1}")
        a(f"v_add_u32 v{pDMA+i}, s{sT+2}, v{t0+1}")
        if imm: a(f"v_subrev_u32 v{pDMA+i}, {imm}, v{pDMA+i}")
    a(f"v_and_b32 v{t0+3}, 3, v{vL}")
    a(f"s_mul_i32 s{sG_M0}, s{sT}, 7168"); a(f"s_lshr_b32 s{sT}, s{sWave}, 1"); a(f"s_mul_i32 s{sT}, s{sT}, {UPOFF}")
    a(f"s_add_u32 s{sG_M0}, s{sG_M0}, s{sT}")
    a(f"s_mul_i32 s{sG_OW}, s{sG_TM}, {128*7168}")
    a(f"s_mov_b32 s{sG_OWN}, s{sG_OW}"); a(f"s_add_u32 s{sG_OWN2}, s{sG_OW}, {128*7168}")
    a = g.a if part == 1 else (lambda x: None)
    a(f"s_lshl_b32 s{sT}, s{sWave}, 6"); a(f"s_add_u32 s{sM}, s{sM}, s{sT}")
    a(f"v_and_b32 v{t0}, 31, v{vL}"); a(f"v_add_u32 v{t0}, s{sM}, v{t0}"); a(f"v_lshlrev_b32 v{t0}, 4, v{t0}")
    a(f"v_lshrrev_b32 v{t0+1}, 5, v{vL}")
    a(f"v_lshl_add_u32 v{pO}, v{t0+1}, 15, v{t0}"); a(f"s_lshl_b32 s{sT}, s{sG_F}, 12"); a(f"v_add_u32 v{pO}, s{sT}, v{pO}")
    a(f"v_and_b32 v{t0}, 15, v{vL}"); a(f"v_add_u32 v{t0}, s{sM}, v{t0}")
    a(f"v_lshlrev_b32 v{pST}, 4, v{t0}")
    a(f"v_lshrrev_b32 v{t0+1}, 4, v{vL}")
    a(f"v_lshlrev_b32 v{pX}, 3, v{t0}"); a(f"v_lshl_add_u32 v{pX}, v{t0+1}, 14, v{pX}")
    a(f"v_lshrrev_b32 v{t0+2}, 2, v{vL}"); a(f"v_mul_u32_u24 v{pWc}, 224, v{t0+2}")
    a(f"v_lshl_add_u32 v{pWc}, v{t0+3}, 3, v{pWc}")
    a(f"v_lshrrev_b32 v{pSR}, 2, v{vL}"); a(f"v_lshlrev_b32 v{pSR}, 14, v{pSR}"); a(f"v_lshl_add_u32 v{pSR}, v{t0+3}, 4, v{pSR}")
    a(f"s_lshl_b32 s{sG_SR}, s{sWave}, 20"); a(f"s_lshl_b32 s{sT}, s{sG_R}, 3"); a(f"s_add_u32 s{sG_SR}, s{sG_SR}, s{sT}")

def phase01(g, ORDER="S", KMID=2, DPOST=0, XNT="nt", TOUCH=False, DNT="", DSP=18, CPF=True, DSTART=0, CT=0, DPS=2, DSET=7):
    a = g.a
    vm = VM()
    a(f"s_memrealtime {sr(sT+2,2)}")
    a("s_load_dwordx16 s[64:79], s[0:1], 0")
    a("s_load_dwordx8 s[80:87], s[0:1], 64")
    a("s_load_dwordx4 s[88:91], s[0:1], 96")
    a(f"v_lshrrev_b32 v2, 6, v0")
    a(f"v_and_b32 v{vL}, 63, v0")
    a(f"v_readfirstlane_b32 s{sWave}, v2")
    a(f"s_and_b32 s{sT}, s2, 7"); a(f"s_lshl_b32 s{sT}, s{sT}, 5")
    a(f"s_lshr_b32 s{sCG}, s2, 3"); a(f"s_add_u32 s{sCG}, s{sCG}, s{sT}")
    if g.dbg: a(f"v_mov_b32 v{vSTAMP}, 0")
    a(f"v_and_b32 v3, 3, v{vL}"); a(f"v_lshrrev_b32 v4, 2, v{vL}")
    a(f"v_lshlrev_b32 v5, 12, v3"); a(f"v_lshl_add_u32 v5, v4, 4, v5")
    a(f"s_lshl_b32 s{sT}, s2, 14"); a(f"s_lshl_b32 s{sT+1}, s{sWave}, 9"); a(f"s_add_u32 s{sT}, s{sT}, s{sT+1}")
    a(f"v_mov_b32 v1, 0")
    sD = 97
    a(f"s_lshl_b32 s{sD}, s{sCG}, 2"); a(f"s_add_u32 s{sD}, s{sD}, s{sWave}")
    a(f"s_lshl_b32 s{sT+4}, s{sD}, 8"); a(f"v_lshlrev_b32 v2, 2, v{vL}")
    a(f"s_lshl_b32 s{sT+5}, s{sD}, 1")
    vF = 29; vR = 8
    a(f"v_lshlrev_b32 v{vF}, 6, v0"); a(f"v_lshlrev_b32 v{vR}, 4, v0")
    if CPF:
        a("s_getpc_b64 s[36:37]"); a("s_and_b32 s36, s36, 0xffffff00"); a(f"s_mov_b32 s38, CODE_BYTES"); a("s_mov_b32 s39, 0x20000")
        a(f"s_lshr_b32 s{sT+1}, s2, 3"); a(f"s_and_b32 s{sT+1}, s{sT+1}, 3"); a(f"s_lshl_b32 s{sT+1}, s{sT+1}, 14")
        a(f"buffer_load_dword a204, v{vF}, s[36:39], s{sT+1} offen"); vm.add("T")
    a("s_waitcnt lgkmcnt(0)")
    pass
    g.stamp()
    sX = 36; sDB = 8; sU2 = 40; sH = 44; sP = 12
    srd(a, sDB, pDBG, 256)
    nn = a.label("nn")
    a(f"s_or_b32 s{sT+1}, s2, s{sWave}"); a(f"s_cmp_lg_u32 s{sT+1}, 0"); a(f"s_cbranch_scc1 {nn}")
    a(f"s_or_b32 s{sT+2}, s{sT+2}, 1")
    a(f"v_mov_b32 v6, s{sT+2}"); a(f"v_mov_b32 v7, s{sT+3}")
    a("s_mov_b64 exec, 0xf")
    a(f"buffer_store_dwordx2 v[6:7], v{vF}, {sr(sDB,4)}, 0 offen {SC}")
    a("s_mov_b64 exec, -1")
    a(f"{nn}:")
    PR = 24; XD = 32
    def ld_params():
        for i, p in enumerate((pLOGA, pAIM, pCRE, pCIM)):
            srd(a, sP+4*i, p, 1024*256)
            a(f"buffer_load_dword v{PR+i}, v2, {sr(sP+4*i,4)}, s{sT+4} offen"); vm.add("P")
        srd(a, 28, pLOGDT, 2048)
        a(f"buffer_load_ushort v{PR+4}, v1, s[28:31], s{sT+5} offen"); vm.add("P")
    def ld_x():
        srd(a, sX, pU, 2048*2048)
        for e in range(2):
            for i in range(2):
                a(f"buffer_load_dwordx4 {vr(XD+8*e+4*i,4)}, v5, {sr(sX,4)}, s{sT} offen offset:{2048*e+256*i} {XNT}"); vm.add("X")
    if ORDER[0] == "S": ld_params(); ld_x()
    else: ld_x(); ld_params()
    if TOUCH:
        sh = TOUCH
        a(f"v_lshlrev_b32 v6, {sh}, v0")
        for n, (p, sz) in enumerate(((pWS, M_XCH + SZ_XCH), (pOUT, 4 << 20), (pWG, SZ_W), (pWU, SZ_W), (pWD, SZ_W))):
            srd(a, sX, p, sz)
            for o in range(0, sz, 256 << sh):
                a(f"s_mov_b32 s{sT+1}, {o}")
                a(f"buffer_load_dword a{205+n}, v6, {sr(sX,4)}, s{sT+1} offen"); vm.add("T")
        a(f"buffer_load_dword a212, v1, {sr(sDB,4)}, 0 offen sc1"); vm.add("T")
    gemm1_addr(g, 0)
    bgl = []
    for stg in range(2):
        for i in range(7):
            grp = []
            if i in (0, 4): grp += [(f"s_add_u32 m0, s{sG_M0}, {stg*SLOT1 + (4096 if i else 0)}", None), ("s_nop 0", None)]
            grp.append((g1_dma(pDMA, i, DNT), "D"))
            if i == 6: grp += [(x, None) for x in g1_wadv('own' if stg else 'even')]
            bgl.append(grp)
    if CT:
        a(f"s_lshl_b32 s16, s2, 1"); a(f"s_and_b32 s17, s{sWave}, 1"); a(f"s_add_u32 s16, s16, s17"); a(f"s_mul_i32 s16, s16, 14336")
        a(f"v_lshlrev_b32 v237, 4, v{vL}")
        tl = []
        for i in range(14):
            grp = [(f"buffer_load_dwordx4 a[200:203], v237, {sr(sG_W,4)}, s16 offen offset:{1024*(i&3)}", "T")]
            if i & 3 == 3: grp.append((f"s_add_u32 s16, s16, 4096", None))
            tl.append(grp)
        bgl = tl + bgl
    def take(n):
        out = bgl[:n]; del bgl[:n]; return out
    for grp in take(DSTART):
        for ins, tag in grp:
            a(ins)
            if tag: vm.add(tag)
    gemm1_addr(g, 1)
    srd(a, sFLG, pWS, 4*16384, M_FLG)
    srd(a, sU2, pWS, 4 << 20, M_U2); srd(a, sH, pWS, 4 << 20, M_H4)
    a(f"s_lshl_b32 s{sT+1}, s{sCG}, 3")
    a(f"s_load_dwordx2 s[58:59], {sr(pDSKIP,2)}, s{sT+1}")
    a(f"v_lshlrev_b32 v6, 15, v4"); a(f"v_lshl_add_u32 v6, v3, 4, v6")
    nu = 9; vG = 19
    a(f"v_and_b32 v{nu}, 15, v{vL}"); a(f"v_lshrrev_b32 v{vG}, 4, v{vL}")
    sUB = sT+8; sKB = sT+9; sTB = sT+7
    a(f"s_mul_i32 s{sUB}, s{sWave}, {UCH}"); a(f"s_add_u32 s{sUB}, s{sUB}, {UBASE}")
    a(f"s_mul_i32 s{sKB}, s{sWave}, {KCH}"); a(f"s_add_u32 s{sKB}, s{sKB}, {KBASE}")
    a(f"s_add_u32 s{sTB}, s{sUB}, {TOFF}")
    vTa = 10; vTb = 11; vTc = 12; vTw = 13; vO1 = 15; vO2 = 18
    a(f"v_lshlrev_b32 v16, 7, v{vG}"); a(f"v_add_u32 v16, s{sUB}, v16")
    a(f"v_bfe_u32 v17, v{vL}, 2, 2"); a(f"v_mul_u32_u24 v{vTa}, {RS}, v17"); a(f"v_add_u32 v{vTa}, v{vTa}, v16")
    a(f"v_mul_u32_u24 v{vTb}, {RS}, v3")
    a(f"v_bfe_u32 v17, v{vL}, 3, 1"); a(f"v_lshlrev_b32 v{vTc}, v17, v{vTb}")
    a(f"v_add_u32 v{vTb}, v{vTb}, v16"); a(f"v_add_u32 v{vTc}, v{vTc}, v16")
    a(f"v_lshlrev_b32 v{vTw}, 3, v{vL}"); a(f"v_add_u32 v{vTw}, s{sUB}, v{vTw}")
    a(f"v_mov_b32 v16, 0x3c00"); a(f"v_mov_b32 v17, 0x3c00")
    for e in (0, 4, 12): a(f"ds_write_b64 v{vTw}, v[16:17] offset:{e*RS}")
    a(f"v_lshlrev_b32 v{vO1}, 6, v{nu}"); a(f"v_lshl_add_u32 v{vO1}, v{vG}, 3, v{vO1}"); a(f"v_add_u32 v{vO1}, s{sTB}, v{vO1}")
    a(f"v_lshlrev_b32 v22, 4, v{nu}"); a(f"v_lshl_add_u32 v22, v{vG}, 3, v22"); a(f"v_add_u32 v22, 1024, v22")
    a(f"v_lshlrev_b32 v23, 3, v{nu}"); a(f"v_lshl_add_u32 v23, v{vG}, 7, v23"); a(f"v_add_u32 v23, {1280-256}, v23")
    a(f"v_cmp_gt_u32 vcc, 32, v{vL}"); a("s_nop 1")
    a(f"v_cndmask_b32 v{vO2}, v23, v22, vcc"); a(f"v_add_u32 v{vO2}, s{sTB}, v{vO2}")
    SA = 184
    def sel(dst, lo32, hi32):
        a(f"v_mov_b32 v{dst}, {hi32:#x}"); a(f"v_mov_b32 v22, {lo32:#x}"); a(f"v_cndmask_b32 v{dst}, v{dst}, v22, vcc")
    sel(SA, 0x01000302, 0x01000100); sel(SA+1, 0x01000302, 0x01000504); sel(SA+2, 0x03020504, 0x01000504); sel(SA+3, 0x03020504, 0x05040504)
    a(f"v_mov_b32 v{SA+4}, v{SA+3}")
    a(f"s_mov_b32 s{sT+3}, 0x03020504"); a(f"v_writelane_b32 v{SA+4}, s{sT+3}, 32")
    a(f"s_mov_b32 s{sT+2}, 0x0c0c0504"); a(f"v_writelane_b32 v{SA+4}, s{sT+2}, 0")
    vK = 20; vK2 = 21; vZ = 14
    a(f"v_lshlrev_b32 v22, 4, v{vL}"); a(f"v_add_u32 v{vK}, s{sKB}, v22"); a(f"v_add_u32 v{vK2}, v{vK}, v22")
    a(f"v_add_u32 v{vZ}, s{sUB}, v22")
    ZR = 180
    for r in range(ZR, ZR+4): a(f"v_mov_b32 v{r}, 0")
    a("s_mov_b64 exec, 0x7f")
    a(f"ds_write_b128 v{vK}, {vr(ZR,4)}"); a(f"ds_write_b128 v{vK}, {vr(ZR,4)} offset:{KCS}")
    a("s_mov_b64 exec, -1")
    vA = 4; vB = 5; vY = 7
    a(f"v_and_b32 v22, 1, v{vL}"); a(f"v_mul_u32_u24 v{vA}, {KCS}, v22")
    a(f"v_bfe_u32 v22, v{vL}, 1, 3"); a(f"v_sub_u32 v22, v22, v{vG}"); a(f"v_add_u32 v22, 3, v22")
    a(f"v_lshl_add_u32 v{vA}, v22, 4, v{vA}"); a(f"v_add_u32 v{vA}, s{sKB}, v{vA}")
    a(f"v_mul_u32_u24 v{vB}, {UCS}, v3")
    a(f"v_bfe_u32 v22, v{vL}, 2, 2"); a(f"v_lshl_add_u32 v23, v22, 3, v{vG}")
    a(f"v_lshl_add_u32 v{vB}, v23, 4, v{vB}"); a(f"v_add_u32 v{vB}, s{sUB}, v{vB}")
    a(f"v_lshlrev_b32 v{vY}, 5, v22"); a(f"v_lshl_add_u32 v{vY}, v{vG}, 3, v{vY}"); a(f"v_add_u32 v{vY}, v{vY}, v3")
    a(f"v_lshlrev_b32 v{vY}, 2, v{vY}"); a(f"v_add_u32 v{vY}, s{sKB}, v{vY}")
    vUC = 190
    a(f"v_lshlrev_b32 v22, 2, v0")
    for c in range(4):
        for ch in range(2): a(f"v_add_u32 v{vUC+2*c+ch}, {UBASE + ch*UCH + c*UCS + UPAD - 4*(c+1)}, v22")
    ACC = 48; vSC = 60

    def setup():
        dt = PR+4
        Z = 64; C = 68; TT = 72
        a(f"v_lshlrev_b32 v{dt}, 16, v{dt}"); a(f"v_lshlrev_b32 v{TT}, 16, v{PR}"); a(f"v_and_b32 v{TT+1}, 0xffff0000, v{PR}")
        for r in (dt, TT, TT+1): a(f"v_mul_f32 v{r}, {f32(LOG2E)}, v{r}")
        for r in (dt, TT, TT+1): a(f"v_exp_f32 v{r}, v{r}")
        for k, b in ((1, Z+1), (2, C), (3, C+1)):
            a(f"v_lshlrev_b32 v{b}, 16, v{PR+k}"); a(f"v_and_b32 v{b+2}, 0xffff0000, v{PR+k}")
        a(f"v_cvt_pk_bf16_f32 v{dt}, v{dt}, v{dt}"); a(f"v_cvt_pk_bf16_f32 v{PR}, v{TT}, v{TT+1}")
        a(f"v_max3_f32 v{vSC}, |v{C}|, |v{C+1}|, |v{C+2}|"); a(f"v_max_f32 v{vSC}, |v{C+3}|, v{vSC}")
        a(f"v_lshlrev_b32 v{dt}, 16, v{dt}")
        a(f"v_lshlrev_b32 v{Z}, 16, v{PR}"); a(f"v_and_b32 v{Z+2}, 0xffff0000, v{PR}")
        red = [f"v_max_f32_dpp v{vSC}, v{vSC}, v{vSC} {m} row_mask:0xf bank_mask:0xf" for m in ("quad_perm:[1,0,3,2]", "quad_perm:[2,3,0,1]", "row_ror:4", "row_ror:8")]
        a(red[0])
        for i in range(4): a(f"v_mul_f32 v{Z+i}, v{Z+i}, v{dt}")
        a(red[1])
        for m in range(2):
            a(f"v_mul_f32 v{Z+2*m}, {f32(-LOG2E)}, v{Z+2*m}"); a(f"v_mul_f32 v{Z+2*m+1}, 0.15915494, v{Z+2*m+1}")
        a(red[2])
        names = [1, 2, 3, 4, 8, 12, 16, 20, 24, 28, 32, 64, 96, 128, 256, 512, 528, 1024, 1536, 2048, "R1", "R2", "R3"]
        E = {n: 88 + 4*i for i, n in enumerate(names)}
        AR = 76
        for i, p in enumerate((1, 32, 512)):
            for k in range(4):
                if p == 1: a(f"v_mov_b32 v{AR+4*i+k}, v{Z+k}")
                else: a(f"v_mul_f32 v{AR+4*i+k}, {f32(p)}, v{Z+k}")
            if i == 0: a(red[3])
        for i in range(6): a(f"v_fract_f32 v{AR+2*i+1}, v{AR+2*i+1}")
        for op in ("v_permlane16_swap_b32", "v_permlane32_swap_b32"):
            a(f"v_mov_b32 v{TT}, v{vSC}"); a("s_nop 1"); a(f"{op} v{TT}, v{vSC}"); a("s_nop 0"); a(f"v_max_f32 v{vSC}, v{vSC}, v{TT}")
        for i, p in enumerate((1, 32, 512)):
            for m in range(2):
                r = AR+4*i+2*m
                a(f"v_cos_f32 v{E[p]+2*m}, v{r+1}"); a(f"v_sin_f32 v{E[p]+2*m+1}, v{r+1}"); a(f"v_exp_f32 v{r}, v{r}")
        a(f"v_frexp_exp_i32_f32 v{TT}, v{vSC}")
        a(f"v_add_f32 v{dt}, v{dt}, v{dt}")
        a(f"v_ldexp_f32 v{vSC}, v{dt}, v{TT}")
        a(f"v_sub_u32 v{TT}, 0, v{TT}")
        for i, p in enumerate((1, 32, 512)):
            for m in range(2):
                a(f"v_pk_mul_f32 {vr(E[p]+2*m,2)}, {vr(E[p]+2*m,2)}, {vr(AR+4*i+2*m,2)} op_sel_hi:[1,0]")
        for k in range(4): a(f"v_ldexp_f32 v{C+k}, v{C+k}, v{TT}")
        E["C"] = C
        ent = {1: 1, 2: 2, 3: 3, 4: 5, 8: 6, 12: 7, 16: 8, 20: 9, 24: 10, 28: 11, 32: 13, 64: 14, 96: 15, "C": 16, "R1": 17, "R2": 18, "R3": 19,
               512: 20, 528: 21, 1024: 22, 1536: 23}
        wt = [0]
        def emit(n):
            if n not in ent: return
            t = AR + 2*(wt[0] % 6); wt[0] += 1
            ng = "-" if 12 <= ent[n] < 20 else ""
            for m in range(2): a(f"v_cvt_pk_f16_f32 v{t+m}, v{E[n]+2*m}, {ng}v{E[n]+2*m+1}")
            a(f"ds_write_b64 v{vTw}, {vr(t,2)} offset:{ent[n]*RS}")
        levels = [[(2,1,1), (64,32,32), (1024,512,512)], [(3,2,1), (4,2,2), (96,64,32), (128,64,64), (1536,1024,512), (2048,1024,1024)],
                  [(8,4,4), (256,128,128), ("R1","C",128)], [(12,8,4), (16,8,8), ("R2","C",256)],
                  [(20,16,4), (24,16,8), (28,16,12), (528,512,16), ("R3","R2",128)]]
        pend = [1, 32, 512, "C"]
        for lv in levels:
            for d, x, y in lv:
                for m in range(2): a(f"v_pk_mul_f32 {vr(E[d]+2*m,2)}, {vr(E[x]+2*m,2)}, {vr(E[y]+2*m,2)} op_sel_hi:[0,1]")
            for d, x, y in lv:
                for m in range(2):
                    a(f"v_pk_fma_f32 {vr(E[d]+2*m,2)}, {vr(E[x]+2*m,2)}, {vr(E[y]+2*m,2)}, {vr(E[d]+2*m,2)} op_sel:[1,1,0] op_sel_hi:[1,0,1] neg_lo:[0,1,0]")
            for n in pend: emit(n)
            pend = [d for d, x, y in lv]
        for n in pend: emit(n)
        e = E[2048]
        a(f"v_mul_f32 v61, v{e}, v{C}"); a(f"v_fma_f32 v61, -v{e+1}, v{C+1}, v61")
        a(f"v_fma_f32 v61, v{e+2}, v{C+2}, v61"); a(f"v_fma_f32 v61, -v{e+3}, v{C+3}, v61")
        wave_sum(a, 61, 62, 1)
        a(f"v_mul_f32 v61, v61, v{vSC}")
        a("v_cvt_pk_bf16_f32 v61, v61, v61")
        a(f"v_mov_b32 v62, s{sTB}")
        a(f"ds_write_b32 v62, v61 offset:1536")

    FB = 64
    srcs = [(vTa, 4), (vTa, 8), (vTb, 0), (vTa, 16), (vTb, 12), (vTa, 20), (vTc, 4)]
    def rdf(step):
        return [f"ds_read_b128 {vr(FB+28*(step&1)+4*i,4)}, v{r} offset:{e*RS+16*step}" for i, (r, e) in enumerate(srcs)]
    OB = 120
    def kstep(step, bg):
        f = FB + 28*(step & 1); o = OB + 16*(step & 1)
        a("s_waitcnt lgkmcnt(0)")
        nxt = rdf(step+1) if step < 7 else []
        prods = [(o, f+12, f+16), (o+4, f, f+8), (o+8, f+4, f+8), (o+12, f+20, f+24)]
        for d, x, y in prods:
            for m in range(4): a(f"v_pk_mul_f16 v{d+m}, v{x+m}, v{y+m} op_sel_hi:[0,1]")
            for _ in range(2):
                if nxt: a(nxt.pop(0))
        for grp in bg:
            for ins, tag in grp:
                a(ins)
                if tag: vm.add(tag)
        for i, (d, x, y) in enumerate(prods):
            for m in range(4): a(f"v_pk_fma_f16 v{d+m}, v{x+m}, v{y+m}, v{d+m} op_sel:[1,1,0] op_sel_hi:[1,0,1] neg_lo:[0,1,0]")
            if i >= 2:
                c = "0" if step == 0 else vr(ACC+4*(i-2),4)
                a(f"v_mfma_f32_16x16x32_f16 {vr(ACC+4*(i-2),4)}, {vr(o+4*(i-1),4)}, {vr(o,4)}, {c}")
        a("s_nop 0")
        c = "0" if step == 0 else vr(ACC+8,4)
        a(f"v_mfma_f32_16x16x32_f16 {vr(ACC+8,4)}, {vr(o+12,4)}, {vr(o,4)}, {c}")

    def ln1():
        a(f"s_lshl_b32 s{sT}, s{sWave}, 20"); a(f"s_lshl_b32 s{sT+1}, s2, 6"); a(f"s_add_u32 s{sT}, s{sT}, s{sT+1}")
        a(f"s_mov_b32 s{sT+2}, 0x05040100"); a(f"s_mov_b32 s{sT+3}, 0x07060302")
        a(f"s_and_b32 s{sT+6}, s2, 3"); a(f"s_lshl_b32 s{sT+6}, s{sT+6}, 6")
        a(f"v_mov_b32 v63, {KBASE + KCH - 16}")
        a(f"s_waitcnt vmcnt({vm.wait_for('X')})")
        g.stamp()
        T = 64; W = 152; XP = 200
        nl = a.label("nl")
        a(f"s_cmp_lg_u32 s{sWave}, 0"); a(f"s_cbranch_scc1 {nl}")
        a(f"buffer_load_dwordx2 v[22:23], v1, {sr(sDB,4)}, s{sT+6} offen sc1")
        a(f"{nl}:")
        for q in range(4):
            for k in range(4*q, 4*q+4): a(f"v_perm_b32 v{XP+k}, v{XD+8+(k>>1)}, v{XD+(k>>1)}, s{sT+2+(k&1)}")
            a(f"s_add_u32 s{sT+1}, s{sT}, {((q>>1)*32 + (q&1))*16384}")
            a(f"buffer_store_dwordx4 {vr(XP+4*q,4)}, v6, {sr(sU2,4)}, s{sT+1} offen {SC}"); vm.add("U")
        def pre():
            if KMID:
                for ins in rdf(0): a(ins)
                for st_ in range(KMID): kstep(st_, [])
            a(f"s_waitcnt vmcnt(0)")
            gn = a.label("gn"); gn2 = a.label("gn2"); gn3 = a.label("gn3")
            a(f"s_cmp_lg_u32 s{sWave}, 0"); a(f"s_cbranch_scc1 {gn3}")
            a(f"s_mov_b32 s{sTO}, 0")
            a(f"{gn}:")
            a(f"v_readfirstlane_b32 s{sNON}, v22")
            a(f"s_cmp_lg_u32 s{sNON}, 0"); a(f"s_cbranch_scc1 {gn2}")
            a(f"buffer_load_dwordx2 v[22:23], v1, {sr(sDB,4)}, s{sT+6} offen sc1")
            a("s_waitcnt vmcnt(0)")
            a(f"s_add_u32 s{sTO}, s{sTO}, 1"); a(f"s_cmp_lt_u32 s{sTO}, {TIMEOUT}"); a(f"s_cbranch_scc1 {gn}")
            a(f"{gn2}:")
            a(f"ds_write_b64 v63, v[22:23]")
            a(f"{gn3}:")
        ln_stats8(a, [(XD+k, XD+8+k) for k in range(8)], T, W, pre)
        sk = a.label("sg")
        a(f"ds_read_b64 v[32:33], v63")
        a(f"s_cmp_lg_u32 s{sWave}, 0"); a(f"s_cbranch_scc1 {sk}")
        a(f"v_mov_b32 v{W+6}, v22"); a(f"v_mov_b32 v{W+7}, v23")
        a(f"s_lshl_b32 s{sT}, s2, 6")
        a("s_mov_b64 exec, 0xf")
        a(f"buffer_store_dwordx4 {vr(W+4,4)}, v{vR}, {sr(sFLG,4)}, s{sT} offen {SC}")
        a("s_mov_b64 exec, -1")
        a(f"{sk}:")
        g.stamp()

    if ORDER[0] == "S":
        a(f"s_waitcnt vmcnt({vm.wait_for('P')})")
        g.stamp()
        setup()
    else: assert KMID == 0
    ln1()
    for grp in take(DSET):
        for ins, tag in grp: a(ins)
    if ORDER[0] != "S":
        setup()
        g.stamp()
    if KMID == 0:
        for ins in rdf(0): a(ins)
    step = KMID
    while step < 8:
        n = min(DPS, DPOST); DPOST -= n
        kstep(step, take(n)); step += 1
        if step == KMID + 1:
            a(f"v_readfirstlane_b32 s{sNON}, v32"); a(f"v_readfirstlane_b32 s{sNON+1}, v33")
    Eb = 72
    a(f"v_lshlrev_b32 v16, 4, v{vL}"); a(f"v_add_u32 v16, s{sTB}, v16"); a(f"v_subrev_u32 v17, 4, v16")
    a(f"v_add_u32 v2, s{sTB}, v2")
    s00 = sT; s11 = sT+1; s10 = sT+2; s21 = sT+3
    a(f"s_mov_b32 s{s00}, 0x01000100"); a(f"s_mov_b32 s{s11}, 0x03020302"); a(f"s_mov_b32 s{s10}, 0x01000302"); a(f"s_mov_b32 s{s21}, 0x03020504")
    for t in (0, 1, 2):
        for e in range(2): a(f"v_pk_mul_f32 {vr(ACC+4*t+2*e,2)}, {vr(ACC+4*t+2*e,2)}, {vr(vSC,2)} op_sel_hi:[1,0]")
        a(f"v_cvt_pk_bf16_f32 v{64+2*t}, v{ACC+4*t}, v{ACC+4*t+1}")
        a(f"v_cvt_pk_bf16_f32 v{65+2*t}, v{ACC+4*t+2}, v{ACC+4*t+3}")
    a(f"ds_write_b64 v{vO1}, v[64:65]"); a(f"ds_write_b64 v{vO1}, v[66:67] offset:32"); a(f"ds_write_b64 v{vO2}, v[68:69]")
    a(f"ds_read_b128 {vr(Eb,4)}, v16"); a(f"ds_read_b32 v{Eb+4}, v16 offset:16"); a(f"ds_read_b32 v{Eb-1}, v17")
    a(f"ds_read_b32 v78, v2 offset:1024"); a(f"ds_read_b32 v79, v2 offset:1028")
    a(f"ds_read_b32 v80, v2 offset:1280"); a(f"ds_read_b32 v81, v2 offset:1284")
    a("s_mov_b64 exec, 0x1ffffff")
    for c in range(4): a(f"ds_write_b128 v{vZ}, {vr(ZR,4)} offset:{c*UCS}")
    a("s_mov_b64 exec, -1")
    SG = 160
    for i in range(1, 4): a(f"s_mov_b32 s{36+i}, {4096*i}")
    def ld_sg():
        for i in range(4): a(f"buffer_load_dwordx4 {vr(SG+4*i,4)}, v{vR}, {sr(sFLG,4)}, {'s%d' % (36+i) if i else '0'} offen {SC}")
    ld_sg()
    a("s_waitcnt lgkmcnt(0)")
    O = 84
    for d, s0, s1, sl in ((0,3,2,2),(1,2,1,3),(2,1,0,2),(3,0,-1,4),(4,4,3,1),(5,2,2,0),(6,2,1,1),(7,0,0,0)):
        a(f"v_perm_b32 v{O+d}, v{Eb+s0}, v{Eb+s1}, v{SA+sl}")
    a(f"ds_write_b128 v{vK}, {vr(O,4)} offset:{KPAD}")
    a(f"ds_write_b128 v{vK}, {vr(O+4,4)} offset:{KPAD+KCS}")
    def mk(dst, kind, p01, p2):
        if kind == "00": a(f"v_perm_b32 v{dst}, v{p01}, v{p01}, s{s00}")
        elif kind == "11": a(f"v_perm_b32 v{dst}, v{p01}, v{p01}, s{s11}")
        elif kind == "22": a(f"v_perm_b32 v{dst}, v{p2}, v{p2}, s{s00}")
        elif kind == "10": a(f"v_perm_b32 v{dst}, v{p01}, v{p01}, s{s10}")
        elif kind == "21": a(f"v_perm_b32 v{dst}, v{p2}, v{p01}, s{s21}")
    chunks = [(78, ["21","11","00","00"], vK, KPAD + 1024), (78, ["22","11","10","00"], vK, KPAD + 1024 + KCS),
              (80, ["11","00","00","00"], vK2, KPAD + 2048), (80, ["22","21","11","11"], vK2, KPAD + 2048 + 16),
              (80, ["11","10","00","00"], vK2, KPAD + 2048 + KCS), (80, ["22","22","11","11"], vK2, KPAD + 2048 + KCS + 16)]
    for ci, (p, kinds, ad, off) in enumerate(chunks):
        b = O + 8 + 4*ci
        for e, kd in enumerate(kinds): mk(b+e, kd, p, p+1)
        a(f"ds_write_b128 v{ad}, {vr(b,4)} offset:{off}")
    g.stamp()
    sCGo = sT+7
    a(f"s_lshl_b32 s{sCGo}, s{sCG}, 14")
    lp = a.label("p1"); dn = a.label("p1d")
    a(f"s_mov_b32 s{sTO}, 0")
    a(f"{lp}:")
    a("s_waitcnt vmcnt(0)")
    a(f"v_cmp_ne_u64 vcc, {sr(sNON,2)}, {vr(SG+2,2)}")
    for i in range(1, 4):
        a(f"v_cmp_ne_u64 {sr(sT,2)}, {sr(sNON,2)}, {vr(SG+4*i+2,2)}"); a(f"s_or_b64 vcc, vcc, {sr(sT,2)}")
    a(f"s_cbranch_vccz {dn}")
    a("s_mov_b64 exec, vcc")
    ld_sg()
    a(f"s_add_u32 s{sTO}, s{sTO}, 1"); a(f"s_cmp_lt_u32 s{sTO}, {TIMEOUT}"); a(f"s_cbranch_scc1 {lp}")
    a(f"{dn}:")
    a("s_mov_b64 exec, -1")
    g.stamp()
    UR = 32; XG = 48; XU = 128; TD = 96
    for i in range(4):
        a(f"s_add_u32 s{sT}, s{sCGo}, {4096*i}")
        a(f"buffer_load_dwordx4 {vr(XG+4*i,4)}, v{vR}, {sr(sU2,4)}, s{sT} offen {SC}")
    def rdA(st, p, q): return f"ds_read_b128 {ar(64*st+4*p,4)}, v{vA} offset:{(8*p+q)*64}"
    def rdB(st, r, q): return f"ds_read_b128 {ar(64*st+32+4*r,4)}, v{vB} offset:{(8*r-q+7)*64}"
    for i in range(8): a(rdA(0, i, 0))
    for i in range(4):
        b = SG+4*i
        a(f"v_lshlrev_b32 v{b+2}, 16, v{b+1}"); a(f"v_and_b32 v{b+3}, 0xffff0000, v{b+1}")
        a(f"v_and_b32 v{b+1}, 0xffff0000, v{b}"); a(f"v_lshlrev_b32 v{b}, 16, v{b}")
        a(f"v_rcp_f32 v{b+2}, v{b+2}"); a(f"v_rcp_f32 v{b+3}, v{b+3}")
    a("s_barrier")
    for ii in range(4):
        a(f"s_waitcnt vmcnt({3-ii})")
        x = XU+8*ii; t = TD+8*ii; u = UR+4*ii
        for ch in range(4):
            a(f"v_lshlrev_b32 v{x+2*ch}, 16, v{XG+4*ii+ch}"); a(f"v_and_b32 v{x+2*ch+1}, 0xffff0000, v{XG+4*ii+ch}")
        for ch in range(4): a(f"v_pk_add_f32 {vr(t+2*ch,2)}, {vr(x+2*ch,2)}, {vr(SG+4*ii,2)} neg_lo:[0,1] neg_hi:[0,1]")
        for ch in range(4): a(f"v_cvt_pk_bf16_f32 v{u+ch}, v{t+2*ch}, v{t+2*ch+1}")
        for ch in range(4):
            a(f"v_lshlrev_b32 v{t+2*ch}, 16, v{u+ch}"); a(f"v_and_b32 v{t+2*ch+1}, 0xffff0000, v{u+ch}")
        for ch in range(4): a(f"v_pk_mul_f32 {vr(t+2*ch,2)}, {vr(t+2*ch,2)}, {vr(SG+4*ii+2,2)}")
        for ch in range(4): a(f"v_cvt_pk_bf16_f32 v{u+ch}, v{t+2*ch}, v{t+2*ch+1}")
        for c in range(4):
            for ch in range(2):
                a(f"ds_write2st64_b32 v{vUC+2*c+ch}, v{UR+4*ii+ch}, v{UR+4*ii+ch+2} offset0:{4*ii} offset1:{4*ii+141}")
    a("s_waitcnt lgkmcnt(0)")
    a("s_barrier")
    g.stamp()
    CA = 64
    for i in range(8): a(rdB(0, i, 0))
    fill = []
    F = fill.append
    TD = 96; XU = 128
    F(f"s_lshl_b32 s{sT}, s58, 16"); F(f"s_and_b32 s{sT+1}, s58, 0xffff0000"); F(f"s_lshl_b32 s{sT+2}, s59, 16"); F(f"s_and_b32 s{sT+3}, s59, 0xffff0000")
    for i in range(4):
        for ch in range(4):
            u = UR+4*i+ch; d = TD+8*i+2*ch
            F(f"v_lshlrev_b32 v{d}, 16, v{u}"); F(f"v_and_b32 v{d+1}, 0xffff0000, v{u}")
            F(f"v_mul_f32 v{d}, s{sT+ch}, v{d}"); F(f"v_mul_f32 v{d+1}, s{sT+ch}, v{d+1}")
            F(f"v_cvt_pk_bf16_f32 v{u}, v{d}, v{d+1}")
            F(f"v_lshlrev_b32 v{d}, 16, v{u}"); F(f"v_and_b32 v{d+1}, 0xffff0000, v{u}")
    F(f"v_lshlrev_b32 v16, 2, v0"); F(f"v_add_u32 v16, {KBASE}, v16")
    fill2 = []
    sched = {}
    nb = len(bgl)
    for n in range(nb):
        pos = n * DSP + 9
        sched[(pos // 36, pos % 36)] = [ins for ins, tag in bgl[n]]
    fi = 0
    npre = max(0, len(fill) - (7*20 - nb))
    for ins in fill[:npre]: a(ins)
    fill = fill[npre:]
    for q in range(8):
        st = q & 1
        a("s_waitcnt lgkmcnt(0)")
        nxt = []
        if q < 7:
            for i in range(8): nxt += [rdA(1-st, i, q+1), rdB(1-st, i, q+1)]
        else:
            assert fi == len(fill), (fi, len(fill))
            fill = fill2; fi = 0
        k = 0
        for p in range(8):
            for r in range(8 - p):
                t = p + r
                c = "0" if (q == 0 and p == 0) else vr(CA+4*t, 4)
                a(f"v_mfma_f32_16x16x32_bf16 {vr(CA+4*t,4)}, {ar(64*st+4*p,4)}, {ar(64*st+32+4*r,4)}, {c}")
                if (q, k) in sched:
                    for ins in sched.pop((q, k)): a(ins)
                elif nxt and (k % 2 == 0 or (k < 8)): a(nxt.pop(0))
                elif fi < len(fill): a(fill[fi]); fi += 1
                k += 1
        assert not nxt
    assert fi == len(fill) and not sched, (fi, len(fill), sched)
    for t in range(8):
        a(f"v_cvt_pk_bf16_f32 v{168+2*t}, v{CA+4*t}, v{CA+4*t+1}")
        a(f"v_cvt_pk_bf16_f32 v{169+2*t}, v{CA+4*t+2}, v{CA+4*t+3}")
        a(f"ds_write2_b32 v{vY}, v{168+2*t}, v{169+2*t} offset0:{128*(t&1)} offset1:{128*(t&1)+4}")
        if t & 1 and t < 7: a(f"v_add_u32 v{vY}, 1024, v{vY}")
    a("s_waitcnt vmcnt(0) lgkmcnt(0)")
    g.stamp()
    a("s_barrier")
    Y = 64; YU = 160
    for i in range(4):
        for ch in (0, 2):
            a(f"ds_read2st64_b32 {vr(Y+4*i+ch,2)}, v16 offset0:{4*i+33*ch} offset1:{4*i+33*(ch+1)}")
    for i in range(4):
        a(f"s_waitcnt lgkmcnt({6-2*i})")
        for ch in range(4):
            a(f"v_lshlrev_b32 v{YU+2*ch}, 16, v{Y+4*i+ch}"); a(f"v_and_b32 v{YU+2*ch+1}, 0xffff0000, v{Y+4*i+ch}")
        b = TD+8*i
        for ch in range(4): a(f"v_pk_add_f32 {vr(b+2*ch,2)}, {vr(b+2*ch,2)}, {vr(YU+2*ch,2)}")
        for ch in range(4): a(f"v_cvt_pk_bf16_f32 v{YU+ch}, v{b+2*ch}, v{b+2*ch+1}")
        for ch in range(4):
            a(f"v_lshlrev_b32 v{b+2*ch}, 16, v{YU+ch}"); a(f"v_and_b32 v{b+2*ch+1}, 0xffff0000, v{YU+ch}")
        for ch in range(4): a(f"v_pk_add_f32 {vr(b+2*ch,2)}, {vr(b+2*ch,2)}, {vr(XU+8*i+2*ch,2)}")
        for e in range(2):
            for hp in range(2):
                a(f"v_cvt_pk_bf16_f32 v{Y+4*i+2*e+hp}, v{b+4*hp+e}, v{b+4*hp+2+e}")
        a(f"s_add_u32 s{sT}, s{sCGo}, {4096*i}")
        a(f"buffer_store_dwordx4 {vr(Y+4*i,4)}, v{vR}, {sr(sH,4)}, s{sT} offen {SC}")
    g.stamp()

M_XCH = 0x1b00000
XSL = 16384; XWG = 3*XSL; SZ_XCH = 256*XWG
s2_TM = sT+4; s2_TN = sT+5; s2_KQ = sT+6
def g2_dma_addr(sM0, tv=2):
    return [f"s_bfe_u32 s{s2_KQ}, s2, 0x20001",
        f"s_and_b32 s{s2_TM}, s2, 1", f"s_lshl_b32 s{s2_TM}, s{s2_TM}, 2", f"s_bfe_u32 s{sT}, s2, 0x20003", f"s_add_u32 s{s2_TM}, s{s2_TM}, s{sT}",
        f"s_lshr_b32 s{s2_TN}, s2, 5",
        f"v_lshrrev_b32 v{tv}, 4, v{vL}", f"s_mul_i32 s{sT}, s{s2_KQ}, 896", f"s_lshl_b32 s{sT+1}, s{sWave}, 4", f"s_add_u32 s{sT}, s{sT}, s{sT+1}",
        f"v_add_u32 v1, s{sT}, v{tv}", f"v_lshlrev_b32 v1, 11, v1",
        f"v_lshlrev_b32 v{tv}, 1, v{tv}", f"v_and_b32 v{tv+1}, 15, v{vL}", f"v_xor_b32 v{tv}, v{tv}, v{tv+1}",
        f"v_lshl_add_u32 v1, v{tv}, 4, v1", f"s_lshl_b32 s{sT}, s{s2_TN}, 8", f"v_add_u32 v1, s{sT}, v1", f"s_lshl_b32 s{sM0}, s{sWave}, 12", "v_xor_b32 v0, 128, v1"]
G2_STG = 64*2048; G2_I = 4*2048 - 1024
G2_SLOT = [0, 1, 2, 8, 9, 3, 4, 5, 6, 7, 0, 1, 2, 8]
def g2_dma(stage, i, sM0=24, sW=12):
    grp = []
    if i == 0: grp.append(f"s_add_u32 m0, s{sM0}, {G2_SLOT[stage]*16384}")
    grp.append(f"s_mov_b32 s{sT+1}, {stage*G2_STG + i*G2_I}")
    grp.append(f"buffer_load_dwordx4 v{1 if i < 2 else 0}, {sr(sW,4)}, s{sT+1} offen offset:{1024*i} lds")
    return grp

def phase_gemm2(g, PRE1=6, LA=8, TAIL=16, XSLEEP=4, OF='nt'):
    a = g.a
    ACC = 32
    MF = "v_mfma_f32_16x16x32_bf16"
    def acc4(j, tt): return ACC + (tt >> 1)*32 + ((j >> 1)*2 + (tt & 1))*8 + (j & 1)*4
    def acc(j, t): return ACC + t*32
    HR = 160; IN = 176; XR = 0; WF = 192; NX = 12
    vX = 2; vW = 224; vO = 16; vI = 17; vH = 18; vFl = 19; vT = 4; vM = 20
    sX = 8; sH = 44; sO = 4; sIB = 36
    sOX = 20; sM = 26; sN = 27; sI = 31; sFo = 33
    a(f"s_lshl_b32 s{sM}, s{s2_TM}, 8"); a(f"s_lshl_b32 s{sT}, s{sWave}, 6"); a(f"s_add_u32 s{sM}, s{sM}, s{sT}")
    a(f"s_lshl_b32 s{sN}, s{s2_TN}, 7"); a(f"s_lshl_b32 s{sT}, s{s2_KQ}, 5"); a(f"s_add_u32 s{sN}, s{sN}, s{sT}")
    a(f"v_and_b32 v{vT}, 31, v{vL}"); a(f"v_add_u32 v{vT}, s{sM}, v{vT}")
    a(f"v_lshrrev_b32 v{vT+1}, 5, v{vL}")
    a(f"v_lshlrev_b32 v{vO}, 11, v{vT}"); a(f"v_lshl_add_u32 v{vO}, v{vT+1}, 4, v{vO}")
    a(f"s_lshl_b32 s{sT}, s{sN}, 1"); a(f"v_add_u32 v{vO}, s{sT}, v{vO}")
    a(f"v_and_b32 v{vT}, 15, v{vL}"); a(f"v_add_u32 v{vT}, s{sM}, v{vT}")
    a(f"v_lshrrev_b32 v{vT+1}, 4, v{vL}")
    a(f"v_lshl_add_u32 v{vX}, v{vT+1}, 11, v{vT}"); a(f"v_lshlrev_b32 v{vH}, 3, v{vX}"); a(f"v_lshlrev_b32 v{vX}, 4, v{vX}")
    a(f"s_mul_i32 s{sOX}, s{s2_KQ}, {112*32768}")
    a(f"s_lshl_b32 s{sT}, s{sN}, 12"); a(f"v_add_u32 v{vH}, s{sT}, v{vH}")
    a(f"v_bfe_u32 v{vT+3}, v{vL}, 2, 2"); a(f"v_lshl_add_u32 v{vT+4}, v{vT+1}, 3, v{vT+3}"); a(f"v_lshlrev_b32 v{vT+5}, 8, v{vT+4}")
    a(f"v_bfe_u32 v{vT+3}, v{vL}, 2, 3"); a(f"s_lshl_b32 s{sT}, s{s2_KQ}, 1"); a(f"v_xor_b32 v{vT+3}, s{sT}, v{vT+3}")
    a(f"v_lshl_add_u32 v{vT+5}, v{vT+3}, 5, v{vT+5}")
    a(f"v_and_b32 v{vT+3}, 3, v{vL}"); a(f"v_lshl_add_u32 v{vT+5}, v{vT+3}, 3, v{vT+5}")
    a(f"v_lshlrev_b32 v{vI}, 4, v{vL}"); a(f"s_lshl_b32 s{sT}, s{sWave}, 12"); a(f"v_add_u32 v{vI}, s{sT}, v{vI}"); a(f"v_mov_b32 v{vM}, -2")
    for b in range(3):
        for tt in range(8): a(f"v_xor_b32 v{vW+8*b+tt}, {65536*b + 32*tt}, v{vT+5}")
    srd(a, sO, pOUT, 2048*1024*2); srd(a, sIB, pWS, SZ_XCH, M_XCH)
    a(f"s_mul_i32 s{sI}, s2, {XWG}")
    for t in range(1, 4):
        a(f"s_xor_b32 s{27+t}, s2, {2*t}"); a(f"s_mul_i32 s{27+t}, s{27+t}, {XWG}"); a(f"s_add_u32 s{27+t}, s{27+t}, {XSL*(t-1)}")
    a(f"v_bfe_u32 v{vT+4}, v{vL}, 2, 1"); a(f"v_lshl_add_u32 v{vT+4}, v{vT+3}, 6, v{vT+4}")
    a(f"s_lshl_b32 s{sT}, s{s2_TM}, 2"); a(f"s_add_u32 s{sT}, s{sT}, s{s2_KQ}"); a(f"s_lshl_b32 s{sT}, s{sT}, 1")
    a(f"v_add_u32 v{vT+4}, s{sT}, v{vT+4}")
    a(f"v_lshlrev_b32 v{vT+3}, 1, v{vT+3}"); a(f"v_xor_b32 v{vT+3}, s2, v{vT+3}")
    a(f"v_and_b32 v{vT+2}, 8, v{vL}"); a(f"v_cmp_eq_u32 vcc, 0, v{vT+2}"); a("s_nop 1")
    a(f"v_cndmask_b32 v{vFl}, v{vT+3}, v{vT+4}, vcc"); a(f"v_lshlrev_b32 v{vFl}, 6, v{vFl}")
    a(f"s_mov_b32 s{sFo}, {2*16384}")
    a("s_waitcnt vmcnt(0)")
    a("s_barrier")
    set_flag(g, 2, 22)
    g.stamp()
    def wread(st, f, tt, ks, jj):
        off = G2_SLOT[ks >> 1]*16384 + (ks & 1)*8192 + jj*1024
        return f"ds_read_b64_tr_b16 {ar(WF+st*16+f*4+jj*2,2)}, v{vW + 8*(off >> 16) + tt} offset:{off & 0xffff}"
    T0 = 56 - TAIL; TG = TAIL // 4
    sup = [[(4*(n & 1) + k, n >> 1) for k in range(4)] for n in range(T0)]
    for t in (1, 2, 3, 0):
        for hf in range(TG): sup.append([(2*t + (k & 1), T0//2 + 2*hf + (k >> 1)) for k in range(4)])
    SEND = [T0 + TG*k for k in (1, 2, 3)]
    def need_of(n): return 2*max(ks for tt, ks in sup[min(n, 55)]) + 1
    def reads(n):
        return [wread(n & 1, f, tt, ks, jj) for f, (tt, ks) in enumerate(sup[n]) for jj in range(2)]
    for ins in reads(0): a(ins)
    for stg in range(PRE1, 10):
        for i in range(4):
            for ins in g2_dma(stg, i): a(ins)
    assert PRE1 >= 4
    poll_flags(g, vFl, sFo, 22)
    g.stamp()
    vm = VM()
    def xload(x):
        return [f"buffer_load_dwordx4 {ar(XR+((x>>1) % NX)*16+j*4,4)}, v{vX}, {sr(sX,4)}, s{sOX} offen offset:{256*j} {SC}" for j in (2*(x&1), 2*(x&1)+1)]
    xadv = f"s_add_u32 s{sOX}, s{sOX}, 131072"
    nx = 0
    for x in range(4):
        for ins in xload(x): a(ins); vm.add(f"X{x}")
        if x & 1: a(xadv)
        nx += 1
    dl = [(stg, i) for stg in range(10, 14) for i in range(4)]
    started = set()
    send = []
    for n, fr in enumerate(sup):
        w = vm.wait_for(f"X{need_of(n)}")
        if n == 39:
            assert not dl
            w = min(w, vm.wait_for("D"))
        a(f"s_waitcnt vmcnt({w}) lgkmcnt(0)")
        if n in (15, 39): a("s_barrier")
        gaps = {k: [] for k in range(16)}
        rpos = [0, 1, 2, 4, 5, 6, 8, 9]
        if n + 1 < len(sup):
            for k, ins in enumerate(reads(n + 1)): gaps[rpos[k]].append((ins, None))
        vq = []
        lim = max(need_of(k_) - (1 - (k_ & 1) if k_ < T0 else 0) for k_ in range(n, n + LA + 1))
        for rep in range(2):
            if nx < 56 and nx <= lim:
                xl = xload(nx)
                vq.append(([], xl[0], f"X{nx}", [])); vq.append(([], xl[1], f"X{nx}", [xadv] if nx & 1 else [])); nx += 1
        if n >= 15 and dl and len(vq) <= 2:
            grp = g2_dma(*dl.pop(0))
            vq.append((grp[:-1], grp[-1], "D", []))
        if 6 <= n < 14:
            i = n - 6
            jp, sub, jl = i >> 2, (i >> 1) & 1, i & 1
            vq.append(([f"s_mov_b32 s{sT}, {4*sub*16384}"], f"buffer_load_dwordx2 {vr(HR+2*i,2)}, v{vH}, {sr(sH,4)}, s{sT} offen offset:{128*(2*jp+jl)} {SC}", "R", []))
        vpos = [3, 7, 11, 13, 15]
        for k, (pre, ins, tag, post) in enumerate(vq):
            p = vpos[k]
            for x_ in pre: gaps[p-1].append((x_, None))
            gaps[p].append((ins, tag))
            for x_ in post: gaps[min(p+1, 15)].append((x_, None))
        if n in SEND:
            t = sup[n-1][0][0] >> 1; b = acc(0, t)
            send = []
            for i in range(4):
                send += [f"v_cvt_pk_bf16_f32 v{b+4*i+e}, v{b+8*i+2*e}, v{b+8*i+2*e+1}" for e in range(4)]
                send += [f"v_min_u32 v{b+4*i+e}, v{b+4*i+e}, v{vM}" for e in range(4)]
                send += [f"buffer_store_dwordx4 {vr(b+4*i,4)}, v{vI}, {sr(sIB,4)}, s{27+t} offen offset:{1024*i} {SC}"]
        k = 0
        for f, (tt, ks) in enumerate(fr):
            for j in ((0, 1, 2, 3) if f % 2 == 0 else (3, 2, 1, 0)):
                d = vr(acc4(j, tt), 4)
                c = d if (j, tt) in started else "0"
                started.add((j, tt))
                a(f"{MF} {d}, {ar(WF+(n&1)*16+f*4,4)}, {ar(XR+(ks % NX)*16+j*4,4)}, {c}")
                for ins, tag in gaps[k]:
                    a(ins)
                    if tag: vm.add(tag)
                if send and not (n in SEND and k < 5):
                    for _ in range(2 - min(len(gaps[k]), 1)):
                        if send:
                            ins = send.pop(0); a(ins)
                            if ins.startswith("buffer"): vm.add("S")
                k += 1
        if n + 1 in SEND or n == 55: assert not send, len(send)
    assert nx == 56 and not dl
    g.stamp()
    P = acc(0, 1)
    a(f"s_add_u32 s28, s{sI}, {XSL}"); a(f"s_add_u32 s29, s{sI}, {2*XSL}")
    def ld_slot(sl):
        for i in range(4): a(f"buffer_load_dwordx4 {vr(IN+16*sl+4*i,4)}, v{vI}, {sr(sIB,4)}, s{(sI, 28, 29)[sl]} offen offset:{1024*i} {SC}")
    for sl in range(3): ld_slot(sl)
    for k in range(16):
        a(f"v_lshlrev_b32 v{P+2*k}, 16, v{HR+k}"); a(f"v_and_b32 v{P+2*k+1}, 0xffff0000, v{HR+k}")
    a(f"s_mov_b32 s{sTO}, 0")
    Q = acc(0, 2); B = acc(0, 0)
    for sl in range(3):
        lp = a.label("xp"); dn = a.label("xd")
        a(f"s_waitcnt vmcnt({8-4*sl})")
        a(f"{lp}:")
        I = IN + 16*sl
        a(f"v_max3_u32 v21, v{I}, v{I+1}, v{I+2}"); a(f"v_max3_u32 v22, v{I+3}, v{I+4}, v{I+5}")
        for k in range(6, 16, 2): a(f"v_max3_u32 v{21 + ((k>>1)&1)}, v{21 + ((k>>1)&1)}, v{I+k}, v{I+k+1}")
        a(f"v_max_u32 v21, v21, v22")
        a(f"v_cmp_eq_u32 vcc, -1, v21")
        a(f"s_cbranch_vccz {dn}")
        a(f"s_sleep {XSLEEP}")
        ld_slot(sl)
        a(f"s_add_u32 s{sTO}, s{sTO}, 1"); a(f"s_cmp_lt_u32 s{sTO}, {TIMEOUT}")
        a("s_waitcnt vmcnt(0)")
        a(f"s_cbranch_scc1 {lp}")
        a(f"{dn}:")
        if sl == 2: break
        for k in range(16):
            a(f"v_lshlrev_b32 v{Q+2*k}, 16, v{I+k}"); a(f"v_and_b32 v{Q+2*k+1}, 0xffff0000, v{I+k}")
        for k in range(16): a(f"v_pk_add_f32 {vr(B+2*k,2)}, {vr(B+2*k,2)}, {vr(Q+2*k,2)}")
    g.stamp()
    a(f"s_mov_b32 s{sT}, 65536")
    for i in range(4):
        b = B + 8*i
        for e in range(4):
            a(f"v_lshlrev_b32 v{Q+2*e}, 16, v{IN+32+4*i+e}"); a(f"v_and_b32 v{Q+2*e+1}, 0xffff0000, v{IN+32+4*i+e}")
        for e in range(4): a(f"v_pk_add_f32 {vr(b+2*e,2)}, {vr(b+2*e,2)}, {vr(Q+2*e,2)}")
        for e in range(4): a(f"v_cvt_pk_bf16_f32 v{Q+e}, v{b+2*e}, v{b+2*e+1}")
        for e in range(4):
            a(f"v_lshlrev_b32 v{b+2*e}, 16, v{Q+e}"); a(f"v_and_b32 v{b+2*e+1}, 0xffff0000, v{Q+e}")
        for e in range(4): a(f"v_pk_add_f32 {vr(b+2*e,2)}, {vr(b+2*e,2)}, {vr(P+8*i+2*e,2)}")
        for e in (0, 2, 1, 3): a(f"v_cvt_pk_bf16_f32 v{HR+4*i+e}, v{b+2*e}, v{b+2*e+1}")
        a(f"v_permlane16_swap_b32 v{HR+4*i}, v{HR+4*i+2}")
        a("s_nop 0")
        a(f"v_permlane16_swap_b32 v{HR+4*i+1}, v{HR+4*i+3}")
        so = f"s{sT}" if i >= 2 else "0"
        a(f"buffer_store_dwordx4 {vr(HR+4*i,4)}, v{vO}, {sr(sO,4)}, {so} offen offset:{32*(i&1)} {OF}")

def phase_gemm1(g, XF=SC, X0=2, PU=(0,2,6), LU=8, FS=False, TK='last', TU=2, PRE1=6):
    a = g.a
    SLOT = SLOT1
    ACC = 32
    MF = "v_mfma_f32_16x16x32_bf16"
    def acc(j, mt, t): return ACC + ((t*2 + (j >> 1))*4 + (j & 1)*2 + mt)*4
    XR = 0; WF = 64; CSF = 120; RD = 176; MB = 192
    vDMA = 1; vX = 8; vST = 9; vWc = 10; vWn = 11; vS = 12; vO = 28; vFl = 2; vC = 4; vF2 = 5
    sX = 44; sACT = 8; sST = 36; sCS = 40; sW2 = 12
    sOX = 20; sOX2 = 21; sBase = 23; sIt = 25; sA = 28; sB = 29; sNS = 30; sCSo = 32
    sOW = sG_OW; sM0 = sG_M0
    vm = VM()
    for i in range(4): vm.add("H")
    def pro_dma(stage, idxs):
        for i in idxs:
            if i in (0, 4): a(f"s_add_u32 m0, s{sM0}, {stage*SLOT + (4096 if i else 0)}"); a("s_nop 0")
            a(g1_dma(pDMA, i)); vm.add(f"D{stage}")
            if i == 6:
                for ins in g1_wadv("odd" if stage & 1 else "even"): a(ins)
    def wread(st, t, jj, reg, imm0):
        return f"ds_read_b64_tr_b16 {ar(WF+st*28+t*4+jj*2,2)}, v{reg} offset:{imm0 + st*UPOFF + 16*jj*224 + 32*t}"
    a(f"s_lshr_b32 s{sT}, s{sWave}, 1"); a(f"s_mul_i32 s{sT}, s{sT}, {SLOT}")
    a(f"s_and_b32 s{sT+1}, s{sWave}, 1"); a(f"s_mul_i32 s{sT+1}, s{sT+1}, {32*224}"); a(f"s_add_u32 s{sT}, s{sT}, s{sT+1}")
    a(f"v_add_u32 v164, s{sT}, v{pWc}")
    for st in range(2):
        for t in range(7):
            for jj in range(2): a(wread(st, t, jj, 164, 0))
    a(f"v_and_b32 v160, 15, v{vL}"); a(f"v_mov_b32 v161, 0x3f803f80")
    for i in range(7): a(f"v_mov_b32 v{vDMA+i}, v{pDMA+i}")
    for d, s_ in ((vX, pX), (vST, pST), (vWc, pWc), (vO, pO)): a(f"v_mov_b32 v{d}, v{s_}")
    a(f"v_add_u32 v{vWn}, {2*SLOT}, v{vWc}")
    srd(a, sACT, pWS, SZ_ACT, M_ACT); srd(a, sST, pWS, 2048*16, M_ST2); srd(a, sCS, pWS, 32*8192, M_CS)
    srd(a, sW2, pWD, SZ_W)
    a(f"s_mul_i32 s16, s2, 28672")
    a(f"v_mov_b32 v27, v{pSR}")
    for e in range(4): a(f"v_accvgpr_write_b32 a{208+e}, -1")
    srd(a, 52, pWS, SZ_XCH, M_XCH)
    a(f"s_mul_i32 s51, s2, {XWG}"); a(f"s_add_u32 s54, s51, {XWG}")
    a(f"s_lshl_b32 s{sCSo}, s{sG_TN}, 13")
    a(f"s_lshl_b32 s{sOX}, s{sG_TM}, 19"); a(f"s_add_u32 s{sOX2}, s{sOX}, 65536")
    a(f"s_mov_b32 s17, s{sOX}"); a(f"s_add_u32 s26, s{sOX}, {1 << 19}")
    a(f"s_mov_b32 s{sBase}, 0"); a(f"s_mov_b32 s{sIt}, 3")
    a(f"s_mul_i32 s{sT}, s{sWave}, 896"); a(f"s_add_u32 s{sT}, s{sT}, {PBASE}")
    a(f"v_lshrrev_b32 v163, 4, v{vL}")
    a(f"v_lshlrev_b32 v165, 6, v160"); a(f"v_lshl_add_u32 v165, v163, 4, v165"); a(f"v_add_u32 v165, s{sT}, v165")
    a(f"s_waitcnt vmcnt({vm.wait_for('H')})")
    a("s_barrier")
    set_flag(g, 1, 174)
    g.stamp()
    a("s_waitcnt lgkmcnt(0)")
    for n in range(14):
        b = 96 + 4*n
        a(f"v_cmp_eq_u32 vcc, {n}, v160")
        pro_dma(2 + n//7, [n % 7])
        a("s_nop 0")
        for e in range(4): a(f"v_cndmask_b32 v{b+e}, 0, v161, vcc")
    a("s_nop 0")
    for n in range(14):
        c = "0" if n == 0 else "v[156:159]"
        a(f"{MF} v[156:159], {ar(WF+n*4,4)}, {vr(96+4*n,4)}, {c}")
    for t in range(7):
        for jj in range(2): a(wread(0, t, jj, vWc, 0))
    a(f"v_cmp_gt_u32 vcc, 14, v160")
    a("s_and_saveexec_b64 s[56:57], vcc")
    a(f"ds_write_b128 v165, v[156:159]")
    a("s_mov_b64 exec, -1")
    a(f"s_mov_b32 s{sT+1}, 16384")
    a("s_waitcnt lgkmcnt(0)")
    g.stamp()
    poll_flags(g, 29, sT+1, 166)
    a("s_barrier")
    g.stamp()
    vm = VM()
    def xslot(x): return XR + ((x>>1)&3)*16
    def xload(x, k):
        j, hf = 2*(x & 1) + (k >> 1), k & 1
        return f"buffer_load_dwordx2 {ar(xslot(x)+j*4+hf*2,2)}, v{vX}, {sr(sX,4)}, s{sOX2 if hf else sOX} offen offset:{128*j} {XF}"
    def xadv(x):
        if x & 1 == 0: return []
        if x % 8 == 7:
            return [f"s_mov_b32 s{sOX}, 0" if x == 7 else f"s_add_u32 s{sOX}, s{sOX}, 131072", f"s_cmp_eq_u32 s{sOX}, s17", f"s_cselect_b32 s{sOX}, s26, s{sOX}",
                    f"s_add_u32 s{sOX2}, s{sOX}, 65536"]
        return [f"s_add_u32 s{sOX}, s{sOX}, 131072", f"s_add_u32 s{sOX2}, s{sOX}, 65536"]
    for x in range(X0):
        for k in range(4): a(xload(x, k)); vm.add(f"X{x}")
        for ins in xadv(x): a(ins)
    nxt_x = [X0]
    a(f"v_and_b32 v168, 3, v{vL}"); a(f"s_lshl_b32 s{sT}, s{sWave}, 2"); a(f"v_add_u32 v168, s{sT}, v168"); a(f"v_min_u32 v168, 13, v168")
    a(f"v_lshlrev_b32 v168, 6, v168"); a(f"v_and_b32 v169, 60, v{vL}"); a(f"v_add_u32 v168, v168, v169")
    a(f"v_add_u32 v168, {PBASE}, v168")
    for w in range(4): a(f"ds_read_b32 v{170+w}, v168 offset:{896*w}")
    a(f"v_lshlrev_b32 v169, 2, v0")
    a(f"s_lshl_b32 s{sT}, s{sG_TM}, 10"); a(f"s_add_u32 s{sT}, s{sT}, s{sCSo}")
    a(f"v_and_b32 v29, 3, v{vL}"); a(f"v_lshlrev_b32 v29, 4, v29"); a(f"s_lshl_b32 s{sT+1}, s{sWave}, 6"); a(f"s_add_u32 s{sT+1}, s{sT+1}, {SBASE}")
    a(f"v_add_u32 v29, s{sT+1}, v29")
    a("s_waitcnt lgkmcnt(0)")
    a("v_add_f32 v170, v170, v171"); a("v_add_f32 v172, v172, v173"); a("v_add_f32 v170, v170, v172")
    a("v_cvt_pk_bf16_f32 v171, v170, v170"); a("v_lshlrev_b32 v171, 16, v171")
    a("v_sub_f32 v170, v170, v171")
    a("v_cvt_pk_bf16_f32 v170, v171, v170")
    a(f"buffer_store_dword v170, v169, {sr(sCS,4)}, s{sT} offen {SC}"); vm.add("C")
    g.stamp()
    accu = []
    for k in range(8):
        r0 = RD+4*(k>>1)+(k&1); r1 = r0+2
        accu += [f"v_accvgpr_read_b32 v16, a{r0}", f"v_accvgpr_read_b32 v17, a{r1}",
                 "v_lshlrev_b32 v18, 16, v16", "v_lshlrev_b32 v19, 16, v17", "v_and_b32 v16, 0xffff0000, v16", "v_and_b32 v17, 0xffff0000, v17"]
        if k == 0:
            accu += ["v_add_f32 v12, v18, v16", "v_add_f32 v13, v19, v17", "v_mul_f32 v14, v18, v18", "v_mul_f32 v15, v19, v19"]
        else:
            accu += ["v_add_f32 v12, v12, v18", "v_add_f32 v13, v13, v19", "v_fmac_f32 v14, v18, v18", "v_fmac_f32 v15, v19, v19",
                     "v_add_f32 v12, v12, v16", "v_add_f32 v13, v13, v17"]
        accu += ["v_fmac_f32 v14, v16, v16", "v_fmac_f32 v15, v17, v17"]
    n3 = (len(accu) + 3) // 4
    FILL = {0: accu[:n3], 1: accu[n3:2*n3], 2: accu[2*n3:3*n3], 3: accu[3*n3:],
            4: red4(12, 16) + ["ds_write_b128 v29, v[12:15]"],
            5: [f"ds_read_b128 {vr(16+4*w,4)}, v29 offset:{64*(w+1)}" for w in range(3)],
            6: [f"v_add_f32 v{12+e}, v{12+e}, v{16+e}" for e in range(4)] + [f"v_add_f32 v{20+e}, v{20+e}, v{24+e}" for e in range(4)]
               + [f"v_add_f32 v{12+e}, v{12+e}, v{20+e}" for e in range(4)] + stats_final(12, 16),
            7: [f"v_cmp_gt_u32 vcc, 4, v{vL}", f"v_and_b32 v29, 3, v{vL}", "v_lshlrev_b32 v29, 5, v29", f"v_bfe_u32 v21, v{vL}, 2, 1", "v_lshl_add_u32 v29, v21, 4, v29",
                "v_cndmask_b32 v16, v13, v12, vcc", "v_cndmask_b32 v17, v15, v14, vcc", "v_cmp_gt_u32 vcc, 8, v0",
                f"v_mov_b32 v18, s{sNON}", f"v_mov_b32 v19, s{sNON+1}", "v_mov_b32 v21, 0x7fff0000", "v_cndmask_b32 v21, v21, v29, vcc",
                f"s_lshl_b32 s{sT}, s{sG_R}, 4", f"buffer_store_dwordx4 v[16:19], v21, {sr(sST,4)}, s{sT} offen {SC}", "v_lshlrev_b32 v29, 4, v0"]}
    def lfill(vC, vF2):
        return [f"v_and_b32 v{vC}, 15, v{vL}", f"v_lshlrev_b32 v{vC}, 4, v{vC}", f"v_lshrrev_b32 v{vF2}, 4, v{vL}", f"v_lshl_add_u32 v{vC}, v{vF2}, 11, v{vC}",
             f"v_and_b32 v{vF2}, 7, v{vL}", f"v_lshlrev_b32 v{vF2}, 9, v{vF2}",
             f"s_and_b32 s{sT}, s2, 0xc7", f"s_lshl_b32 s{sT}, s{sT}, 6", f"s_add_u32 s{sT}, s{sT}, {3*16384}", f"v_add_u32 v{vF2}, s{sT}, v{vF2}"]
    FILL[7] += lfill(26, 27)
    def ld_flag(vF2): return f"buffer_load_dwordx2 a[252:253], v{vF2}, {sr(sFLG,4)}, 0 offen {SC}"
    def ld_stats():
        return [f"buffer_load_dwordx4 {vr(vS+4*j,4)}, v{vST}, {sr(sST,4)}, 0 offen offset:{256*j} {SC}" for j in range(4)]
    CSG = 120; CSF = 152 - 4
    CSG = 248 - 128
    CSF = 152
    def ld_cs(n, vC):
        return f"buffer_load_dwordx4 {ar(CSG+4*n,4)}, v{vC}, {sr(sCS,4)}, s{sCSo} offen offset:{256*n} {SC}"
    def csreg(n): return CSF + 2*n if n < 12 else 248 + 2*(n - 12)
    cs_mov = [f"v_accvgpr_mov_b32 a{csreg(n)+e}, a{CSG+16*e+n}" for n in range(14) for e in range(2)]
    w2 = [g2_dma(stg, i) for stg in range(PRE1) for i in range(4)]
    DM = {3: [0, 1], 0: [2, 3], 1: [4, 5], 2: [6]}
    def body(kind, base):
        first = kind == "first"; last = kind == "last"; second = kind == "second"; mid = kind == "mid"; pen = kind == "pen"
        for u in range(8):
            s = u % 4; st = u & 1
            w = vm.wait_for(f'X{(base+u) | 1}')
            if second and u == 0: w = min(w, vm.wait_for("R"))
            if last and u == 0: w = min(w, vm.wait_for("F"))
            if last and u == 5: w = min(w, vm.wait_for("S"))
            a(f"s_waitcnt vmcnt({w}) lgkmcnt(0)")
            if FS and first and u in (0, 2, 4, 6): g.stamp()
            if (s == 3 and not (last and u == 7)) or (second and u == 5): a("s_barrier")
            if first and u == 7: set_flag(g, 3, 22)
            gaps = {k: [] for k in range(28)}
            nu = (u + 1) % 8
            reg = vWn if u == 7 else vWc
            imm0 = (nu // 4) * SLOT + ((nu % 4) >> 1) * 32 * 224
            rpos = [0, 1, 3, 4, 6, 7, 9, 10, 12, 13, 15, 16, 18, 19]
            if not (last and u == 7):
                k = 0
                for t in range(7):
                    for jj in range(2):
                        gaps[rpos[k]].append((wread(1 - st, t, jj, reg, imm0), None)); k += 1
            vq = []
            while nxt_x[0] < 32 and ((nxt_x[0] <= ((base + u) & ~1) + 6 + (u & 1) and len(vq) < 8)):
                x = nxt_x[0]; nxt_x[0] += 1
                for k in range(4): vq.append(([], xload(x, k), f"X{x}", xadv(x) if k == 3 else []))
            extra = []
            if not last:
                for i in ([] if (first and u < 3) or (pen and u > 2) else DM[s]):
                    pre = []
                    if i in (0, 4):
                        e = 4096 if i else 0
                        if u in (3, 4, 5, 6): pre = [f"s_add_u32 m0, s{sA}, {e}"]
                        elif u == 7: pre = [f"s_add_u32 m0, s{sA}, {SLOT + e}"]
                        else: pre = [f"s_add_u32 m0, s{sB}, {SLOT + e}"]
                    vq.append((pre, g1_dma(vDMA, i), "D", g1_wadv("odd" if u == 2 else "even") if i == 6 else []))
                if u == 0:
                    extra += [f"s_add_u32 s{sA}, s{sM0}, s{sBase}", f"s_sub_u32 s{sBase}, {2*SLOT}, s{sBase}", f"s_add_u32 s{sB}, s{sM0}, s{sBase}"]
                if mid and u in PU:
                    vq.append(([], f"buffer_store_dwordx4 a[208:211], v29, s[52:55], s51 offen {SC}", "P", [f"s_add_u32 s51, s51, 4096"]))
                if mid and u == 1: vq.append(([], ld_flag(27), "F", []))
                if first and u in (2, 3, 4, 5):
                    vq.append(([], f"buffer_load_dwordx4 {ar(RD+4*(u-2),4)}, v27, {sr(sX,4)}, s{sG_SR} offen {SC}", "R", [f"s_add_u32 s{sG_SR}, s{sG_SR}, {16*16384}"]))
                if u == 7:
                    extra.append(f"v_swap_b32 v{vWc}, v{vWn}")
            else:
                if u == 0:
                    for n in range(8): vq.append(([], ld_cs(n, 26), "CS", []))
                if u == 1:
                    for ins in ld_stats(): vq.append(([], ins, "S", []))
                if u == 3:
                    for n, ins in enumerate(g2_dma_addr(sM0, 6)): gaps[8 + n].append((ins, None))
                if u >= LU:
                    for i in range(4):
                        grp = w2.pop(0)
                        vq.append((grp[:-1], grp[-1], "W", []))
                if u in (5, 6):
                    free = [k_ for k_ in range(28) if k_ not in rpos]
                    for n, ins in enumerate(cs_mov[14*(u-5):14*(u-4)]): gaps[free[n]].append((ins, None))
                if u == 7: gaps[0].append(("s_barrier", None))
            if kind == TK and u == TU:
                for t in range(7): vq.append(([], f"buffer_load_dwordx4 a[212:215], v29, {sr(sW2,4)}, s16 offen", "T", [f"s_add_u32 s16, s16, 4096"]))
            vpos = [2, 5, 8, 11, 14, 17, 20, 22, 24, 26] if len(vq) <= 10 else list(range(1, 28, 2))
            for n, (pre, ins, tag, post) in enumerate(vq):
                p = vpos[n]
                for x_ in pre: gaps[p-1].append((x_, None))
                gaps[p].append((ins, tag))
                for x_ in post: gaps[min(p+1, 27)].insert(0, None); gaps[min(p+1,27)].pop(0); gaps[min(p+1, 27)].append((x_, None))
            for n, ins in enumerate(extra): gaps[21 + 2*n].append((ins, None))
            if second and u in FILL:
                fl = FILL[u]
                for n, ins in enumerate(fl): gaps[n*28//len(fl) if len(fl) > 7 else 21+n].append((ins, None))
            if mid and u == 7:
                gaps[27] += [(f"s_add_u32 s{sIt}, s{sIt}, 1", None), (f"s_cmp_lt_u32 s{sIt}, 8", None)]
            k = 0
            for t in range(7):
                for j in ((0, 1, 2, 3) if t % 2 == 0 else (3, 2, 1, 0)):
                    d = vr(acc(j, st, t), 4)
                    c = "0" if (first and u < 2) else d
                    a(f"{MF} {d}, {ar(WF+st*28+t*4,4)}, {ar(xslot(base+u)+j*4,4)}, {c}")
                    for ins, tag in gaps[k]:
                        a(ins)
                        if tag: vm.add(tag)
                    k += 1
    body("first", 0)
    g.stamp()
    body("second", 8)
    loop = a.label("g1loop")
    a(f"{loop}:")
    if g.dbg:
        a("s_memrealtime s[98:99]"); a("s_memtime s[100:101]"); a(f"s_add_u32 s97, s{sIt}, {g.nst-3}"); a("s_waitcnt lgkmcnt(0)")
        a("s_mov_b32 s99, m0"); a("s_mov_b32 m0, s97"); a("s_nop 1")
        a(f"v_writelane_b32 v{vSTAMP}, s98, m0"); a("s_add_u32 m0, m0, 32"); a("s_nop 1"); a(f"v_writelane_b32 v{vSTAMP}, s100, m0"); a("s_mov_b32 m0, s99")
        g.nst += 5
    body("mid", 16)
    a(f"s_cbranch_scc1 {loop}")
    g.stamp()
    body("last", 24)
    g.stamp()
    poll = a.label("sp"); ok = a.label("sok")
    a(f"s_mov_b32 s{sTO}, 0")
    a(f"{poll}:")
    a(f"v_accvgpr_read_b32 v{vFl}, a252"); a(f"v_accvgpr_read_b32 v{vFl+1}, a253")
    a(f"v_cmp_ne_u64 vcc, {sr(sNON,2)}, {vr(vFl,2)}")
    for j in range(4):
        a(f"v_cmp_ne_u64 {sr(sT,2)}, {sr(sNON,2)}, {vr(vS+4*j+2,2)}"); a(f"s_or_b64 vcc, vcc, {sr(sT,2)}")
    a(f"s_cbranch_vccz {ok}")
    for ins in lfill(vC, vF2) + [ld_flag(vF2)] + ld_stats(): a(ins)
    a("s_waitcnt vmcnt(0)")
    for n in range(8): a(ld_cs(n, vC))
    a("s_waitcnt vmcnt(0)")
    for ins in cs_mov: a(ins)
    a(f"s_add_u32 s{sTO}, s{sTO}, 1"); a(f"s_cmp_lt_u32 s{sTO}, {TIMEOUT}"); a(f"s_cbranch_scc1 {poll}")
    a(f"{ok}:")
    K0 = -2.0 * 0.7978845608028654 * LOG2E
    K1 = K0 * 0.044715
    for j in range(4):
        c = vS + 4*j
        a(f"v_xor_b32 v{c+3}, 0x80000000, v{c}"); a(f"v_lshrrev_b32 v{c+2}, 16, v{c+3}"); a(f"v_or_b32 v{c+3}, v{c+2}, v{c+3}")
        a(f"v_mul_f32 v{c}, {f32(K0)}, v{c+1}"); a(f"v_mul_f32 v{c+2}, v{c+1}, v{c+1}")
        for e in range(2): a(f"v_accvgpr_write_b32 a{MB+2*j+e}, v{c+3}")
        a(f"v_mul_f32 v{c+1}, v{c+2}, v{c+1}"); a(f"v_rcp_f32 v{c+2}, v{c+2}"); a(f"v_mul_f32 v{c+1}, {f32(K1)}, v{c+1}")
    units = [(t, jp) for t in range(7) for jp in range(2)]
    def corr(n):
        t, jp = units[n]
        return [f"v_mfma_f32_16x16x16_bf16 {vr(acc(j,mt,t),4)}, {ar(csreg(7*mt+t),2)}, {ar(MB+2*j,2)}, {vr(acc(j,mt,t),4)}" for j in (2*jp, 2*jp+1) for mt in range(2)]
    for ins in corr(0) + corr(1): a(ins)
    a("s_nop 3")
    def W2():
        if w2:
            for ins in w2.pop(0): a(ins)
    T = 2
    for n, (t, jp) in enumerate(units):
        b = acc(2*jp, 0, t)
        cm = corr(n+2) if n + 2 < 14 else []
        prs = [(b, b+4, vS+8*jp), (b+2, b+6, vS+8*jp), (b+8, b+12, vS+8*jp+4), (b+10, b+14, vS+8*jp+4)]
        for i, (gt, u_, c) in enumerate(prs): a(f"v_pk_mul_f32 {vr(T+2*i,2)}, {vr(gt,2)}, {vr(gt,2)}")
        for i, (gt, u_, c) in enumerate(prs): a(f"v_pk_fma_f32 {vr(T+2*i,2)}, {vr(T+2*i,2)}, {vr(c,2)}, {vr(c,2)} op_sel:[0,1,0] op_sel_hi:[1,1,0]")
        for i, (gt, u_, c) in enumerate(prs): a(f"v_pk_mul_f32 {vr(T+2*i,2)}, {vr(T+2*i,2)}, {vr(gt,2)}")
        W2()
        for i in range(8):
            a(f"v_exp_f32 v{T+i}, v{T+i}")
            if cm and i % 2 == 0: a(cm.pop(0))
        for i, (gt, u_, c) in enumerate(prs): a(f"v_pk_mul_f32 {vr(u_,2)}, {vr(u_,2)}, {vr(gt,2)}")
        for i, (gt, u_, c) in enumerate(prs): a(f"v_pk_fma_f32 {vr(T+2*i,2)}, {vr(T+2*i,2)}, {vr(c+2,2)}, {vr(c+2,2)} op_sel_hi:[1,0,0]")
        W2()
        for i in range(8): a(f"v_rcp_f32 v{T+i}, v{T+i}")
        a(f"s_mov_b32 s{sT}, {t*65536}")
        for i, (gt, u_, c) in enumerate(prs): a(f"v_pk_mul_f32 {vr(u_,2)}, {vr(u_,2)}, {vr(T+2*i,2)}")
        for i in (0, 2, 1, 3):
            u_ = prs[i][1]
            a(f"v_cvt_pk_bf16_f32 v{b+i}, v{u_}, v{u_+1}")
        a(f"v_permlane16_swap_b32 v{b}, v{b+2}")
        a("s_nop 0")
        a(f"v_permlane16_swap_b32 v{b+1}, v{b+3}")
        a(f"buffer_store_dwordx4 {vr(b,4)}, v{vO}, {sr(sACT,4)}, s{sT} offen offset:{512*jp} {SC}")
    assert not w2
    g.stamp()

def gen_mega(dbg=False, as_list=False, p01={}, g1={}, g2={}):
    g = G(dbg); a = g.a
    end = a.label("end")
    a(f"s_cmp_ge_u32 s2, 256"); a(f"s_cbranch_scc1 {end}")
    phase01(g, **p01); phase_gemm1(g, **g1); phase_gemm2(g, **g2)
    if dbg:
        g.stamp()
        a("s_waitcnt vmcnt(0)")
        g.stamp()
        srd(a, 4, pWS, 1 << 19, M_DBG)
        a(f"v_lshlrev_b32 v1, 2, v{vL}")
        a(f"s_lshl_b32 s{sT}, s2, 2"); a(f"s_add_u32 s{sT}, s{sT}, s{sWave}"); a(f"s_lshl_b32 s{sT}, s{sT}, 8")
        a(f"buffer_store_dword v{vSTAMP}, v1, s[4:7], s{sT} offen")
    a(f"{end}:")
    a("s_endpgm")
    k = f"kernel={NAME} " if as_list else ""
    launch = f"; @launch {k}grid=(256,1,1) block=(256,1,1) lds=163840\n"
    body = a.text()
    import subprocess, tempfile, os
    with tempfile.TemporaryDirectory() as td:
        open(td + "/x.s", "w").write('.amdgcn_target "amdgcn-amd-amdhsa--gfx950"\n.text\n' + body.replace("CODE_BYTES", "0x1234"))
        subprocess.run(["clang", "-x", "assembler", "-target", "amdgcn-amd-amdhsa", "-mcpu=gfx950", "-c", td + "/x.s", "-o", td + "/x.o"], check=True)
        subprocess.run(["llvm-objcopy", "-O", "binary", "-j", ".text", td + "/x.o", td + "/x.bin"], check=True)
        n = os.path.getsize(td + "/x.bin")
    assert n < 65536
    body = body.replace("CODE_BYTES", str((n - 768) & ~63))
    return launch, kernel_header(NAME) + body, kernel_desc(NAME, 512, 256)

if __name__ == "__main__":
    from mk import *
    V = {2: {}}
    for k, v in V.items():
        mk([gen_mega(dbg=True, as_list=True, **v)], f'd{k}.s')
        assemble([gen_mega(**v)], f'm{k}.s')
```

```python
from common import *
LOG2E = 1.4426950408889634
NAME = "sequential_preLN__ssm_conv_s4d__geglu_ffn__prompt_kernel"

M_H4  = 0x0000000
M_ACT = 0x0400000
M_ST2 = 0x1200000
M_FLG = 0x1210000
M_CS  = 0x1220000
M_DBG = 0x1280000
M_U2  = 0x1300000
M_END = 0x1b00000

pU, pLOGA, pAIM, pCRE, pCIM, pLOGDT, pDSKIP, pBX, pWG, pWU, pWD, pOUT, pDBG, pWS = [64 + 2*i for i in range(14)]
sNON = 92; sWave = 94; sCG = 95; sTO = 96
sFLG = 60
sT = 48
vL = 30; vSTAMP = 31
SC = "sc1"

SLOT1 = 28800; UPOFF = 14464
UCS = 4512; UCH = 4*UCS; UPAD = 400
KCS = 4224; KCH = 8448; KPAD = 112
UBASE = 2*SLOT1
KBASE = UBASE + 4*UCH
SBASE = KBASE + 4*KCH
PBASE = 4*SLOT1
RS = 528; TOFF = 24*RS + 16
NBASE = SBASE + 240
assert SBASE + 256 <= 163840

class G:
    def __init__(self, dbg):
        self.a = Asm("mk"); self.dbg = dbg; self.nst = 0
    def stamp(self):
        if not self.dbg: return
        a = self.a
        a("s_memrealtime s[98:99]"); a("s_memtime s[100:101]"); a("s_waitcnt lgkmcnt(0)")
        a(f"v_writelane_b32 v{vSTAMP}, s98, {self.nst}"); a(f"v_writelane_b32 v{vSTAMP}, s100, {32+self.nst}")
        self.nst += 1

def cmul(a, d, x, y, conj_out=False):
    n1 = " neg_hi:[0,1]" if conj_out else ""
    n2 = " neg_hi:[0,1,0]" if conj_out else ""
    a(f"v_pk_mul_f32 {vr(d,2)}, {vr(x,2)}, {vr(y,2)} op_sel_hi:[0,1]{n1}")
    a(f"v_pk_fma_f32 {vr(d,2)}, {vr(x,2)}, {vr(y,2)}, {vr(d,2)} op_sel:[1,1,0] op_sel_hi:[1,0,1] neg_lo:[0,1,0]{n2}")

def red4(v, t):
    o = []
    for d in (4, 8):
        o += [f"v_add_f32_dpp v{v+e}, v{v+e}, v{v+e} row_ror:{d} row_mask:0xf bank_mask:0xf" for e in range(4)]
    for op in ("v_permlane16_swap_b32", "v_permlane32_swap_b32"):
        o += [f"v_mov_b32 v{t+e}, v{v+e}" for e in range(4)]
        o += [f"{op} v{t+e}, v{v+e}" for e in range(4)]
        o += [f"v_add_f32 v{v+e}, v{v+e}, v{t+e}" for e in range(4)]
    return o

def stats_final(W, t, packed=False):
    o = [f"v_mul_f32 v{W+e}, {f32(1/1024)}, v{W+e}" for e in range(4)]
    o += [f"v_fma_f32 v{W+2+e}, -v{W+e}, v{W+e}, v{W+2+e}" for e in range(2)]
    o += [f"v_max_f32 v{W+2+e}, 0, v{W+2+e}" for e in range(2)]
    def rnd(b): return [f"v_cvt_pk_bf16_f32 v{t}, v{b}, v{b+1}", f"v_lshlrev_b32 v{b}, 16, v{t}", f"v_and_b32 v{b+1}, 0xffff0000, v{t}"]
    o += rnd(W+2)
    o += [f"v_add_f32 v{W+2+e}, {f32(1e-5)}, v{W+2+e}" for e in range(2)]
    o += rnd(W+2)
    o += [f"v_sqrt_f32 v{W+2+e}, v{W+2+e}" for e in range(2)]
    if packed:
        return o + [f"v_cvt_pk_bf16_f32 v{t}, v{W}, v{W+1}", f"v_cvt_pk_bf16_f32 v{t+1}, v{W+2}, v{W+3}"]
    o += rnd(W)
    o += rnd(W+2)
    o += [f"v_rcp_f32 v{W+2+e}, v{W+2+e}" for e in range(2)]
    o += ["s_nop 0"]
    return o

def ln_stats8(a, pairs, T, W, pre_barrier):
    for k, (r0, r1) in enumerate(pairs):
        a(f"v_lshlrev_b32 v{T+4*k}, 16, v{r0}"); a(f"v_lshlrev_b32 v{T+4*k+1}, 16, v{r1}")
        a(f"v_and_b32 v{T+4*k+2}, 0xffff0000, v{r0}"); a(f"v_and_b32 v{T+4*k+3}, 0xffff0000, v{r1}")
    a(f"v_pk_add_f32 {vr(W,2)}, {vr(T,2)}, {vr(T+4,2)}"); a(f"v_pk_mul_f32 {vr(W+2,2)}, {vr(T,2)}, {vr(T,2)}")
    a(f"v_pk_add_f32 {vr(W+4,2)}, {vr(T+2,2)}, {vr(T+6,2)}"); a(f"v_pk_mul_f32 {vr(W+6,2)}, {vr(T+2,2)}, {vr(T+2,2)}")
    for k in range(2, 16):
        b = W + 4*(k & 1)
        if k >= 4: a(f"v_pk_add_f32 {vr(b,2)}, {vr(b,2)}, {vr(T+2*k,2)}")
        a(f"v_pk_fma_f32 {vr(b+2,2)}, {vr(T+2*k,2)}, {vr(T+2*k,2)}, {vr(b+2,2)}")
    a(f"v_pk_add_f32 {vr(W,2)}, {vr(W,2)}, {vr(W+4,2)}"); a(f"v_pk_add_f32 {vr(W+2,2)}, {vr(W+2,2)}, {vr(W+6,2)}")
    a(f"v_and_b32 v{W+24}, 3, v{vL}"); a(f"v_lshlrev_b32 v{W+24}, 4, v{W+24}"); a(f"v_add_u32 v{W+24}, {SBASE}, v{W+24}")
    a(f"s_lshl_b32 s{sT}, s{sWave}, 6"); a(f"v_add_u32 v{W+25}, s{sT}, v{W+24}")
    for ins in red4(W, W+4): a(ins)
    a(f"ds_write_b128 v{W+25}, {vr(W,4)}")
    pre_barrier()
    a("s_waitcnt lgkmcnt(0)"); a("s_barrier")
    E = W + 8
    for w in range(4): a(f"ds_read_b128 {vr(E+4*w,4)}, v{W+24} offset:{64*w}")
    a("s_waitcnt lgkmcnt(0)")
    a(f"v_pk_add_f32 {vr(W,2)}, {vr(E,2)}, {vr(E+4,2)}"); a(f"v_pk_add_f32 {vr(W+4,2)}, {vr(E+8,2)}, {vr(E+12,2)}")
    a(f"v_pk_add_f32 {vr(W+2,2)}, {vr(E+2,2)}, {vr(E+6,2)}"); a(f"v_pk_add_f32 {vr(W+6,2)}, {vr(E+10,2)}, {vr(E+14,2)}")
    a(f"v_pk_add_f32 {vr(W,2)}, {vr(W,2)}, {vr(W+4,2)}"); a(f"v_pk_add_f32 {vr(W+2,2)}, {vr(W+2,2)}, {vr(W+6,2)}")
    for ins in stats_final(W, W+4, True): a(ins)

TIMEOUT = 400000
def set_flag(g, which, tmp):
    a = g.a
    sk = a.label("fl")
    a(f"s_cmp_lg_u32 s{sWave}, 0"); a(f"s_cbranch_scc1 {sk}")
    a(f"s_lshl_b32 s{sT}, s2, 6"); a(f"s_add_u32 s{sT}, s{sT}, {which*16384}")
    a(f"v_mov_b32 v{tmp}, s{sNON}"); a(f"v_mov_b32 v{tmp+1}, s{sNON+1}"); a(f"v_mov_b32 v{tmp+2}, 0")
    a("s_mov_b64 exec, 1")
    a(f"buffer_store_dwordx2 {vr(tmp,2)}, v{tmp+2}, {sr(sFLG,4)}, s{sT} offen {SC}")
    a("s_mov_b64 exec, -1")
    a(f"{sk}:")

def poll_flags(g, voff, soff, tmp, preloaded=False):
    a = g.a
    lp = a.label("poll"); dn = a.label("pdone"); pre = a.label("ppre")
    a(f"s_mov_b32 s{sTO}, 0")
    if preloaded: a(f"s_branch {pre}")
    a(f"{lp}:")
    a(f"buffer_load_dwordx2 {vr(tmp,2)}, v{voff}, {sr(sFLG,4)}, s{soff} offen {SC}")
    if preloaded: a(f"{pre}:")
    a("s_waitcnt vmcnt(0)")
    a(f"v_cmp_ne_u64 vcc, {sr(sNON,2)}, {vr(tmp,2)}")
    a(f"s_cbranch_vccz {dn}")
    a("s_mov_b64 exec, vcc")
    a(f"s_add_u32 s{sTO}, s{sTO}, 1"); a(f"s_cmp_lt_u32 s{sTO}, {TIMEOUT}"); a(f"s_cbranch_scc1 {lp}")
    a(f"{dn}:")
    a("s_mov_b64 exec, -1")

class VM:
    def __init__(self): self.ops = []
    def add(self, tag): self.ops.append(tag)
    def wait_for(self, tag):
        idx = max(i for i, t in enumerate(self.ops) if t == tag)
        n = len(self.ops) - 1 - idx
        assert n <= 63, n
        return n


pDMA = 224
pX = 231; pST = 232; pWc = 233; pO = 234; pSR = 235; pTch = 236
sG_W = 4
sG_OW = 22; sG_M0 = 24; sG_F = 27; sG_R = 31; sG_SR = 35; sG_TN = 34; sG_TM = 33

def g1_dma(reg, i, fl=""):
    return f"buffer_load_dwordx4 v{reg+i}, {sr(sG_W,4)}, s{sG_OW} offen offset:{(i & 3)*1024} {fl} lds"
sG_OWN = 19; sG_OWN2 = 18
def g1_wadv(kind):
    if kind == "even": return [f"s_add_u32 s{sG_OW}, s{sG_OW}, {64*7168}"]
    first = f"s_mov_b32 s{sG_OW}, 0" if kind == "own" else f"s_add_u32 s{sG_OW}, s{sG_OW}, {64*7168}"
    return [first, f"s_cmp_eq_u32 s{sG_OW}, s{sG_OWN}", f"s_cselect_b32 s{sG_OW}, s{sG_OWN2}, s{sG_OW}"]

def gemm1_addr(g, part):
    a = g.a if part == 0 else (lambda x: None)
    t0 = 240; sM = 26
    a(f"s_and_b32 s{sT}, s2, 7")
    a(f"s_bfe_u32 s{sG_TM}, s2, 0x30003")
    a(f"s_lshl_b32 s{sG_TN}, s{sT}, 2"); a(f"s_lshr_b32 s{sT+2}, s2, 6"); a(f"s_add_u32 s{sG_TN}, s{sG_TN}, s{sT+2}")
    a(f"s_lshl_b32 s{sM}, s{sG_TM}, 8")
    a(f"s_lshl_b32 s{sG_R}, s{sG_TN}, 3"); a(f"s_add_u32 s{sG_R}, s{sG_R}, s{sM}")
    a(f"s_mul_i32 s{sG_F}, s{sG_TN}, 112")
    a(f"s_cmp_ge_u32 s{sWave}, 2")
    a(f"s_cselect_b32 s{sG_W}, s{pWU}, s{pWG}"); a(f"s_cselect_b32 s{sG_W+1}, s{pWU+1}, s{pWG+1}")
    a(f"s_mov_b32 s{sG_W+2}, {SZ_W}"); a(f"s_mov_b32 s{sG_W+3}, 0x20000")
    a(f"s_and_b32 s{sT}, s{sWave}, 1"); a(f"s_mul_i32 s{sT+1}, s{sT}, 448"); a(f"s_lshl_b32 s{sT+2}, s{sG_F}, 1")
    for i in range(7):
        imm = (i & 3) * 1024
        a(f"v_add_u32 v{t0}, s{sT+1}, v{vL}")
        if i: a(f"v_add_u32 v{t0}, {64*i}, v{t0}")
        a(f"v_mul_u32_u24 v{t0+1}, 4682, v{t0}"); a(f"v_lshrrev_b32 v{t0+1}, 16, v{t0+1}")
        a(f"v_mul_u32_u24 v{t0+1}, {7168-224}, v{t0+1}")
        a(f"v_lshl_add_u32 v{t0+1}, v{t0}, 4, v{t0+1}")
        a(f"v_add_u32 v{pDMA+i}, s{sT+2}, v{t0+1}")
        if imm: a(f"v_subrev_u32 v{pDMA+i}, {imm}, v{pDMA+i}")
    a(f"v_and_b32 v{t0+3}, 3, v{vL}")
    a(f"s_mul_i32 s{sG_M0}, s{sT}, 7168"); a(f"s_lshr_b32 s{sT}, s{sWave}, 1"); a(f"s_mul_i32 s{sT}, s{sT}, {UPOFF}")
    a(f"s_add_u32 s{sG_M0}, s{sG_M0}, s{sT}")
    a(f"s_mul_i32 s{sG_OW}, s{sG_TM}, {128*7168}")
    a(f"s_mov_b32 s{sG_OWN}, s{sG_OW}"); a(f"s_add_u32 s{sG_OWN2}, s{sG_OW}, {128*7168}")
    a = g.a if part == 1 else (lambda x: None)
    a(f"s_lshl_b32 s{sT}, s{sWave}, 6"); a(f"s_add_u32 s{sM}, s{sM}, s{sT}")
    a(f"v_and_b32 v{t0}, 31, v{vL}"); a(f"v_add_u32 v{t0}, s{sM}, v{t0}"); a(f"v_lshlrev_b32 v{t0}, 4, v{t0}")
    a(f"v_lshrrev_b32 v{t0+1}, 5, v{vL}")
    a(f"v_lshl_add_u32 v{pO}, v{t0+1}, 15, v{t0}"); a(f"s_lshl_b32 s{sT}, s{sG_F}, 12"); a(f"v_add_u32 v{pO}, s{sT}, v{pO}")
    a(f"v_and_b32 v{t0}, 15, v{vL}"); a(f"v_add_u32 v{t0}, s{sM}, v{t0}")
    a(f"v_lshlrev_b32 v{pST}, 4, v{t0}")
    a(f"v_lshrrev_b32 v{t0+1}, 4, v{vL}")
    a(f"v_lshlrev_b32 v{pX}, 3, v{t0}"); a(f"v_lshl_add_u32 v{pX}, v{t0+1}, 14, v{pX}")
    a(f"v_lshrrev_b32 v{t0+2}, 2, v{vL}"); a(f"v_mul_u32_u24 v{pWc}, 224, v{t0+2}")
    a(f"v_lshl_add_u32 v{pWc}, v{t0+3}, 3, v{pWc}")
    a(f"v_lshrrev_b32 v{pSR}, 2, v{vL}"); a(f"v_lshlrev_b32 v{pSR}, 14, v{pSR}"); a(f"v_lshl_add_u32 v{pSR}, v{t0+3}, 4, v{pSR}")
    a(f"s_lshl_b32 s{sG_SR}, s{sWave}, 20"); a(f"s_lshl_b32 s{sT}, s{sG_R}, 3"); a(f"s_add_u32 s{sG_SR}, s{sG_SR}, s{sT}")

def phase01(g, ORDER="S", KMID=2, DPOST=0, XNT="nt", TOUCH=False, DNT="", DSP=18, CPF=True, DSTART=0, CT=0, DPS=2, DSET=7):
    a = g.a
    vm = VM()
    a(f"s_memrealtime {sr(sT+2,2)}")
    a("s_load_dwordx16 s[64:79], s[0:1], 0")
    a("s_load_dwordx8 s[80:87], s[0:1], 64")
    a("s_load_dwordx4 s[88:91], s[0:1], 96")
    a(f"v_lshrrev_b32 v2, 6, v0")
    a(f"v_and_b32 v{vL}, 63, v0")
    a(f"v_readfirstlane_b32 s{sWave}, v2")
    a(f"s_and_b32 s{sT}, s2, 7"); a(f"s_lshl_b32 s{sT}, s{sT}, 5")
    a(f"s_lshr_b32 s{sCG}, s2, 3"); a(f"s_add_u32 s{sCG}, s{sCG}, s{sT}")
    if g.dbg: a(f"v_mov_b32 v{vSTAMP}, 0")
    a(f"v_and_b32 v3, 3, v{vL}"); a(f"v_lshrrev_b32 v4, 2, v{vL}")
    a(f"v_lshlrev_b32 v5, 12, v3"); a(f"v_lshl_add_u32 v5, v4, 4, v5")
    a(f"s_lshl_b32 s{sT}, s2, 14"); a(f"s_lshl_b32 s{sT+1}, s{sWave}, 9"); a(f"s_add_u32 s{sT}, s{sT}, s{sT+1}")
    a(f"v_mov_b32 v1, 0")
    sD = 97
    a(f"s_lshl_b32 s{sD}, s{sCG}, 2"); a(f"s_add_u32 s{sD}, s{sD}, s{sWave}")
    a(f"s_lshl_b32 s{sT+4}, s{sD}, 8"); a(f"v_lshlrev_b32 v2, 2, v{vL}")
    a(f"s_lshl_b32 s{sT+5}, s{sD}, 1")
    vF = 29; vR = 8
    a(f"v_lshlrev_b32 v{vF}, 6, v0"); a(f"v_lshlrev_b32 v{vR}, 4, v0")
    if CPF:
        a("s_getpc_b64 s[36:37]"); a("s_and_b32 s36, s36, 0xffffff00"); a(f"s_mov_b32 s38, CODE_BYTES"); a("s_mov_b32 s39, 0x20000")
        a(f"s_lshr_b32 s{sT+1}, s2, 3"); a(f"s_and_b32 s{sT+1}, s{sT+1}, 3"); a(f"s_lshl_b32 s{sT+1}, s{sT+1}, 14")
        a(f"buffer_load_dword a204, v{vF}, s[36:39], s{sT+1} offen"); vm.add("T")
    a("s_waitcnt lgkmcnt(0)")
    pass
    g.stamp()
    sX = 36; sDB = 8; sU2 = 40; sH = 44; sP = 12
    srd(a, sDB, pDBG, 256)
    nn = a.label("nn")
    a(f"s_or_b32 s{sT+1}, s2, s{sWave}"); a(f"s_cmp_lg_u32 s{sT+1}, 0"); a(f"s_cbranch_scc1 {nn}")
    a(f"s_or_b32 s{sT+2}, s{sT+2}, 1")
    a(f"v_mov_b32 v6, s{sT+2}"); a(f"v_mov_b32 v7, s{sT+3}")
    a("s_mov_b64 exec, 0xf")
    a(f"buffer_store_dwordx2 v[6:7], v{vF}, {sr(sDB,4)}, 0 offen {SC}")
    a("s_mov_b64 exec, -1")
    a(f"{nn}:")
    PR = 24; XD = 32
    def ld_params():
        for i, p in enumerate((pLOGA, pAIM, pCRE, pCIM)):
            srd(a, sP+4*i, p, 1024*256)
            a(f"buffer_load_dword v{PR+i}, v2, {sr(sP+4*i,4)}, s{sT+4} offen"); vm.add("P")
        srd(a, 28, pLOGDT, 2048)
        a(f"buffer_load_ushort v{PR+4}, v1, s[28:31], s{sT+5} offen"); vm.add("P")
    def ld_x():
        srd(a, sX, pU, 2048*2048)
        for e in range(2):
            for i in range(2):
                a(f"buffer_load_dwordx4 {vr(XD+8*e+4*i,4)}, v5, {sr(sX,4)}, s{sT} offen offset:{2048*e+256*i} {XNT}"); vm.add("X")
    if ORDER[0] == "S": ld_params(); ld_x()
    else: ld_x(); ld_params()
    if TOUCH:
        sh = TOUCH
        a(f"v_lshlrev_b32 v6, {sh}, v0")
        for n, (p, sz) in enumerate(((pWS, M_XCH + SZ_XCH), (pOUT, 4 << 20), (pWG, SZ_W), (pWU, SZ_W), (pWD, SZ_W))):
            srd(a, sX, p, sz)
            for o in range(0, sz, 256 << sh):
                a(f"s_mov_b32 s{sT+1}, {o}")
                a(f"buffer_load_dword a{205+n}, v6, {sr(sX,4)}, s{sT+1} offen"); vm.add("T")
        a(f"buffer_load_dword a212, v1, {sr(sDB,4)}, 0 offen sc1"); vm.add("T")
    gemm1_addr(g, 0)
    bgl = []
    for stg in range(2):
        for i in range(7):
            grp = []
            if i in (0, 4): grp += [(f"s_add_u32 m0, s{sG_M0}, {stg*SLOT1 + (4096 if i else 0)}", None), ("s_nop 0", None)]
            grp.append((g1_dma(pDMA, i, DNT), "D"))
            if i == 6: grp += [(x, None) for x in g1_wadv('own' if stg else 'even')]
            bgl.append(grp)
    if CT:
        a(f"s_lshl_b32 s16, s2, 1"); a(f"s_and_b32 s17, s{sWave}, 1"); a(f"s_add_u32 s16, s16, s17"); a(f"s_mul_i32 s16, s16, 14336")
        a(f"v_lshlrev_b32 v237, 4, v{vL}")
        tl = []
        for i in range(14):
            grp = [(f"buffer_load_dwordx4 a[200:203], v237, {sr(sG_W,4)}, s16 offen offset:{1024*(i&3)}", "T")]
            if i & 3 == 3: grp.append((f"s_add_u32 s16, s16, 4096", None))
            tl.append(grp)
        bgl = tl + bgl
    def take(n):
        out = bgl[:n]; del bgl[:n]; return out
    for grp in take(DSTART):
        for ins, tag in grp:
            a(ins)
            if tag: vm.add(tag)
    gemm1_addr(g, 1)
    srd(a, sFLG, pWS, 4*16384, M_FLG)
    srd(a, sU2, pWS, 4 << 20, M_U2); srd(a, sH, pWS, 4 << 20, M_H4)
    a(f"s_lshl_b32 s{sT+1}, s{sCG}, 3")
    a(f"s_load_dwordx2 s[58:59], {sr(pDSKIP,2)}, s{sT+1}")
    a(f"v_lshlrev_b32 v6, 15, v4"); a(f"v_lshl_add_u32 v6, v3, 4, v6")
    nu = 9; vG = 19
    a(f"v_and_b32 v{nu}, 15, v{vL}"); a(f"v_lshrrev_b32 v{vG}, 4, v{vL}")
    sUB = sT+8; sKB = sT+9; sTB = sT+7
    a(f"s_mul_i32 s{sUB}, s{sWave}, {UCH}"); a(f"s_add_u32 s{sUB}, s{sUB}, {UBASE}")
    a(f"s_mul_i32 s{sKB}, s{sWave}, {KCH}"); a(f"s_add_u32 s{sKB}, s{sKB}, {KBASE}")
    a(f"s_add_u32 s{sTB}, s{sUB}, {TOFF}")
    vTa = 10; vTb = 11; vTc = 12; vTw = 13; vO1 = 15; vO2 = 18
    a(f"v_lshlrev_b32 v16, 7, v{vG}"); a(f"v_add_u32 v16, s{sUB}, v16")
    a(f"v_bfe_u32 v17, v{vL}, 2, 2"); a(f"v_mul_u32_u24 v{vTa}, {RS}, v17"); a(f"v_add_u32 v{vTa}, v{vTa}, v16")
    a(f"v_mul_u32_u24 v{vTb}, {RS}, v3")
    a(f"v_bfe_u32 v17, v{vL}, 3, 1"); a(f"v_lshlrev_b32 v{vTc}, v17, v{vTb}")
    a(f"v_add_u32 v{vTb}, v{vTb}, v16"); a(f"v_add_u32 v{vTc}, v{vTc}, v16")
    a(f"v_lshlrev_b32 v{vTw}, 3, v{vL}"); a(f"v_add_u32 v{vTw}, s{sUB}, v{vTw}")
    a(f"v_mov_b32 v16, 0x3c00"); a(f"v_mov_b32 v17, 0x3c00")
    for e in (0, 4, 12): a(f"ds_write_b64 v{vTw}, v[16:17] offset:{e*RS}")
    a(f"v_lshlrev_b32 v{vO1}, 6, v{nu}"); a(f"v_lshl_add_u32 v{vO1}, v{vG}, 3, v{vO1}"); a(f"v_add_u32 v{vO1}, s{sTB}, v{vO1}")
    a(f"v_lshlrev_b32 v22, 4, v{nu}"); a(f"v_lshl_add_u32 v22, v{vG}, 3, v22"); a(f"v_add_u32 v22, 1024, v22")
    a(f"v_lshlrev_b32 v23, 3, v{nu}"); a(f"v_lshl_add_u32 v23, v{vG}, 7, v23"); a(f"v_add_u32 v23, {1280-256}, v23")
    a(f"v_cmp_gt_u32 vcc, 32, v{vL}"); a("s_nop 1")
    a(f"v_cndmask_b32 v{vO2}, v23, v22, vcc"); a(f"v_add_u32 v{vO2}, s{sTB}, v{vO2}")
    SA = 184
    def sel(dst, lo32, hi32):
        a(f"v_mov_b32 v{dst}, {hi32:#x}"); a(f"v_mov_b32 v22, {lo32:#x}"); a(f"v_cndmask_b32 v{dst}, v{dst}, v22, vcc")
    sel(SA, 0x01000302, 0x01000100); sel(SA+1, 0x01000302, 0x01000504); sel(SA+2, 0x03020504, 0x01000504); sel(SA+3, 0x03020504, 0x05040504)
    a(f"v_mov_b32 v{SA+4}, v{SA+3}")
    a(f"s_mov_b32 s{sT+3}, 0x03020504"); a(f"v_writelane_b32 v{SA+4}, s{sT+3}, 32")
    a(f"s_mov_b32 s{sT+2}, 0x0c0c0504"); a(f"v_writelane_b32 v{SA+4}, s{sT+2}, 0")
    vK = 20; vK2 = 21; vZ = 14
    a(f"v_lshlrev_b32 v22, 4, v{vL}"); a(f"v_add_u32 v{vK}, s{sKB}, v22"); a(f"v_add_u32 v{vK2}, v{vK}, v22")
    a(f"v_add_u32 v{vZ}, s{sUB}, v22")
    ZR = 180
    for r in range(ZR, ZR+4): a(f"v_mov_b32 v{r}, 0")
    a("s_mov_b64 exec, 0x7f")
    a(f"ds_write_b128 v{vK}, {vr(ZR,4)}"); a(f"ds_write_b128 v{vK}, {vr(ZR,4)} offset:{KCS}")
    a("s_mov_b64 exec, -1")
    vA = 4; vB = 5; vY = 7
    a(f"v_and_b32 v22, 1, v{vL}"); a(f"v_mul_u32_u24 v{vA}, {KCS}, v22")
    a(f"v_bfe_u32 v22, v{vL}, 1, 3"); a(f"v_sub_u32 v22, v22, v{vG}"); a(f"v_add_u32 v22, 3, v22")
    a(f"v_lshl_add_u32 v{vA}, v22, 4, v{vA}"); a(f"v_add_u32 v{vA}, s{sKB}, v{vA}")
    a(f"v_mul_u32_u24 v{vB}, {UCS}, v3")
    a(f"v_bfe_u32 v22, v{vL}, 2, 2"); a(f"v_lshl_add_u32 v23, v22, 3, v{vG}")
    a(f"v_lshl_add_u32 v{vB}, v23, 4, v{vB}"); a(f"v_add_u32 v{vB}, s{sUB}, v{vB}")
    a(f"v_lshlrev_b32 v{vY}, 5, v22"); a(f"v_lshl_add_u32 v{vY}, v{vG}, 3, v{vY}"); a(f"v_add_u32 v{vY}, v{vY}, v3")
    a(f"v_lshlrev_b32 v{vY}, 2, v{vY}"); a(f"v_add_u32 v{vY}, s{sKB}, v{vY}")
    vUC = 190
    a(f"v_lshlrev_b32 v22, 2, v0")
    for c in range(4):
        for ch in range(2): a(f"v_add_u32 v{vUC+2*c+ch}, {UBASE + ch*UCH + c*UCS + UPAD - 4*(c+1)}, v22")
    ACC = 48; vSC = 60

    def setup():
        dt = PR+4
        Z = 64; C = 68; TT = 72
        a(f"v_lshlrev_b32 v{dt}, 16, v{dt}"); a(f"v_lshlrev_b32 v{TT}, 16, v{PR}"); a(f"v_and_b32 v{TT+1}, 0xffff0000, v{PR}")
        for r in (dt, TT, TT+1): a(f"v_mul_f32 v{r}, {f32(LOG2E)}, v{r}")
        for r in (dt, TT, TT+1): a(f"v_exp_f32 v{r}, v{r}")
        for k, b in ((1, Z+1), (2, C), (3, C+1)):
            a(f"v_lshlrev_b32 v{b}, 16, v{PR+k}"); a(f"v_and_b32 v{b+2}, 0xffff0000, v{PR+k}")
        a(f"v_cvt_pk_bf16_f32 v{dt}, v{dt}, v{dt}"); a(f"v_cvt_pk_bf16_f32 v{PR}, v{TT}, v{TT+1}")
        a(f"v_max3_f32 v{vSC}, |v{C}|, |v{C+1}|, |v{C+2}|"); a(f"v_max_f32 v{vSC}, |v{C+3}|, v{vSC}")
        a(f"v_lshlrev_b32 v{dt}, 16, v{dt}")
        a(f"v_lshlrev_b32 v{Z}, 16, v{PR}"); a(f"v_and_b32 v{Z+2}, 0xffff0000, v{PR}")
        red = [f"v_max_f32_dpp v{vSC}, v{vSC}, v{vSC} {m} row_mask:0xf bank_mask:0xf" for m in ("quad_perm:[1,0,3,2]", "quad_perm:[2,3,0,1]", "row_ror:4", "row_ror:8")]
        a(red[0])
        for i in range(4): a(f"v_mul_f32 v{Z+i}, v{Z+i}, v{dt}")
        a(red[1])
        for m in range(2):
            a(f"v_mul_f32 v{Z+2*m}, {f32(-LOG2E)}, v{Z+2*m}"); a(f"v_mul_f32 v{Z+2*m+1}, 0.15915494, v{Z+2*m+1}")
        a(red[2])
        names = [1, 2, 3, 4, 8, 12, 16, 20, 24, 28, 32, 64, 96, 128, 256, 512, 528, 1024, 1536, 2048, "R1", "R2", "R3"]
        E = {n: 88 + 4*i for i, n in enumerate(names)}
        AR = 76
        for i, p in enumerate((1, 32, 512)):
            for k in range(4):
                if p == 1: a(f"v_mov_b32 v{AR+4*i+k}, v{Z+k}")
                else: a(f"v_mul_f32 v{AR+4*i+k}, {f32(p)}, v{Z+k}")
            if i == 0: a(red[3])
        for i in range(6): a(f"v_fract_f32 v{AR+2*i+1}, v{AR+2*i+1}")
        for op in ("v_permlane16_swap_b32", "v_permlane32_swap_b32"):
            a(f"v_mov_b32 v{TT}, v{vSC}"); a("s_nop 1"); a(f"{op} v{TT}, v{vSC}"); a("s_nop 0"); a(f"v_max_f32 v{vSC}, v{vSC}, v{TT}")
        for i, p in enumerate((1, 32, 512)):
            for m in range(2):
                r = AR+4*i+2*m
                a(f"v_cos_f32 v{E[p]+2*m}, v{r+1}"); a(f"v_sin_f32 v{E[p]+2*m+1}, v{r+1}"); a(f"v_exp_f32 v{r}, v{r}")
        a(f"v_frexp_exp_i32_f32 v{TT}, v{vSC}")
        a(f"v_add_f32 v{dt}, v{dt}, v{dt}")
        a(f"v_ldexp_f32 v{vSC}, v{dt}, v{TT}")
        a(f"v_sub_u32 v{TT}, 0, v{TT}")
        for i, p in enumerate((1, 32, 512)):
            for m in range(2):
                a(f"v_pk_mul_f32 {vr(E[p]+2*m,2)}, {vr(E[p]+2*m,2)}, {vr(AR+4*i+2*m,2)} op_sel_hi:[1,0]")
        for k in range(4): a(f"v_ldexp_f32 v{C+k}, v{C+k}, v{TT}")
        E["C"] = C
        ent = {1: 1, 2: 2, 3: 3, 4: 5, 8: 6, 12: 7, 16: 8, 20: 9, 24: 10, 28: 11, 32: 13, 64: 14, 96: 15, "C": 16, "R1": 17, "R2": 18, "R3": 19,
               512: 20, 528: 21, 1024: 22, 1536: 23}
        wt = [0]
        def emit(n):
            if n not in ent: return
            t = AR + 2*(wt[0] % 6); wt[0] += 1
            ng = "-" if 12 <= ent[n] < 20 else ""
            for m in range(2): a(f"v_cvt_pk_f16_f32 v{t+m}, v{E[n]+2*m}, {ng}v{E[n]+2*m+1}")
            a(f"ds_write_b64 v{vTw}, {vr(t,2)} offset:{ent[n]*RS}")
        levels = [[(2,1,1), (64,32,32), (1024,512,512)], [(3,2,1), (4,2,2), (96,64,32), (128,64,64), (1536,1024,512), (2048,1024,1024)],
                  [(8,4,4), (256,128,128), ("R1","C",128)], [(12,8,4), (16,8,8), ("R2","C",256)],
                  [(20,16,4), (24,16,8), (28,16,12), (528,512,16), ("R3","R2",128)]]
        pend = [1, 32, 512, "C"]
        for lv in levels:
            for d, x, y in lv:
                for m in range(2): a(f"v_pk_mul_f32 {vr(E[d]+2*m,2)}, {vr(E[x]+2*m,2)}, {vr(E[y]+2*m,2)} op_sel_hi:[0,1]")
            for d, x, y in lv:
                for m in range(2):
                    a(f"v_pk_fma_f32 {vr(E[d]+2*m,2)}, {vr(E[x]+2*m,2)}, {vr(E[y]+2*m,2)}, {vr(E[d]+2*m,2)} op_sel:[1,1,0] op_sel_hi:[1,0,1] neg_lo:[0,1,0]")
            for n in pend: emit(n)
            pend = [d for d, x, y in lv]
        for n in pend: emit(n)
        e = E[2048]
        a(f"v_mul_f32 v61, v{e}, v{C}"); a(f"v_fma_f32 v61, -v{e+1}, v{C+1}, v61")
        a(f"v_fma_f32 v61, v{e+2}, v{C+2}, v61"); a(f"v_fma_f32 v61, -v{e+3}, v{C+3}, v61")
        wave_sum(a, 61, 62, 1)
        a(f"v_mul_f32 v61, v61, v{vSC}")
        a("v_cvt_pk_bf16_f32 v61, v61, v61")
        a(f"v_mov_b32 v62, s{sTB}")
        a(f"ds_write_b32 v62, v61 offset:1536")

    FB = 64
    srcs = [(vTa, 4), (vTa, 8), (vTb, 0), (vTa, 16), (vTb, 12), (vTa, 20), (vTc, 4)]
    def rdf(step):
        return [f"ds_read_b128 {vr(FB+28*(step&1)+4*i,4)}, v{r} offset:{e*RS+16*step}" for i, (r, e) in enumerate(srcs)]
    OB = 120
    def kstep(step, bg):
        f = FB + 28*(step & 1); o = OB + 16*(step & 1)
        a("s_waitcnt lgkmcnt(0)")
        nxt = rdf(step+1) if step < 7 else []
        prods = [(o, f+12, f+16), (o+4, f, f+8), (o+8, f+4, f+8), (o+12, f+20, f+24)]
        for d, x, y in prods:
            for m in range(4): a(f"v_pk_mul_f16 v{d+m}, v{x+m}, v{y+m} op_sel_hi:[0,1]")
            for _ in range(2):
                if nxt: a(nxt.pop(0))
        for grp in bg:
            for ins, tag in grp:
                a(ins)
                if tag: vm.add(tag)
        for i, (d, x, y) in enumerate(prods):
            for m in range(4): a(f"v_pk_fma_f16 v{d+m}, v{x+m}, v{y+m}, v{d+m} op_sel:[1,1,0] op_sel_hi:[1,0,1] neg_lo:[0,1,0]")
            if i >= 2:
                c = "0" if step == 0 else vr(ACC+4*(i-2),4)
                a(f"v_mfma_f32_16x16x32_f16 {vr(ACC+4*(i-2),4)}, {vr(o+4*(i-1),4)}, {vr(o,4)}, {c}")
        a("s_nop 0")
        c = "0" if step == 0 else vr(ACC+8,4)
        a(f"v_mfma_f32_16x16x32_f16 {vr(ACC+8,4)}, {vr(o+12,4)}, {vr(o,4)}, {c}")

    def ln1():
        a(f"s_lshl_b32 s{sT}, s{sWave}, 20"); a(f"s_lshl_b32 s{sT+1}, s2, 6"); a(f"s_add_u32 s{sT}, s{sT}, s{sT+1}")
        a(f"s_mov_b32 s{sT+2}, 0x05040100"); a(f"s_mov_b32 s{sT+3}, 0x07060302")
        a(f"s_and_b32 s{sT+6}, s2, 3"); a(f"s_lshl_b32 s{sT+6}, s{sT+6}, 6")
        a(f"v_mov_b32 v63, {KBASE + KCH - 16}")
        a(f"s_waitcnt vmcnt({vm.wait_for('X')})")
        g.stamp()
        T = 64; W = 152; XP = 200
        nl = a.label("nl")
        a(f"s_cmp_lg_u32 s{sWave}, 0"); a(f"s_cbranch_scc1 {nl}")
        a(f"buffer_load_dwordx2 v[22:23], v1, {sr(sDB,4)}, s{sT+6} offen sc1")
        a(f"{nl}:")
        for q in range(4):
            for k in range(4*q, 4*q+4): a(f"v_perm_b32 v{XP+k}, v{XD+8+(k>>1)}, v{XD+(k>>1)}, s{sT+2+(k&1)}")
            a(f"s_add_u32 s{sT+1}, s{sT}, {((q>>1)*32 + (q&1))*16384}")
            a(f"buffer_store_dwordx4 {vr(XP+4*q,4)}, v6, {sr(sU2,4)}, s{sT+1} offen {SC}"); vm.add("U")
        def pre():
            if KMID:
                for ins in rdf(0): a(ins)
                for st_ in range(KMID): kstep(st_, [])
            a(f"s_waitcnt vmcnt(0)")
            gn = a.label("gn"); gn2 = a.label("gn2"); gn3 = a.label("gn3")
            a(f"s_cmp_lg_u32 s{sWave}, 0"); a(f"s_cbranch_scc1 {gn3}")
            a(f"s_mov_b32 s{sTO}, 0")
            a(f"{gn}:")
            a(f"v_readfirstlane_b32 s{sNON}, v22")
            a(f"s_cmp_lg_u32 s{sNON}, 0"); a(f"s_cbranch_scc1 {gn2}")
            a(f"buffer_load_dwordx2 v[22:23], v1, {sr(sDB,4)}, s{sT+6} offen sc1")
            a("s_waitcnt vmcnt(0)")
            a(f"s_add_u32 s{sTO}, s{sTO}, 1"); a(f"s_cmp_lt_u32 s{sTO}, {TIMEOUT}"); a(f"s_cbranch_scc1 {gn}")
            a(f"{gn2}:")
            a(f"ds_write_b64 v63, v[22:23]")
            a(f"{gn3}:")
        ln_stats8(a, [(XD+k, XD+8+k) for k in range(8)], T, W, pre)
        sk = a.label("sg")
        a(f"ds_read_b64 v[32:33], v63")
        a(f"s_cmp_lg_u32 s{sWave}, 0"); a(f"s_cbranch_scc1 {sk}")
        a(f"v_mov_b32 v{W+6}, v22"); a(f"v_mov_b32 v{W+7}, v23")
        a(f"s_lshl_b32 s{sT}, s2, 6")
        a("s_mov_b64 exec, 0xf")
        a(f"buffer_store_dwordx4 {vr(W+4,4)}, v{vR}, {sr(sFLG,4)}, s{sT} offen {SC}")
        a("s_mov_b64 exec, -1")
        a(f"{sk}:")
        g.stamp()

    if ORDER[0] == "S":
        a(f"s_waitcnt vmcnt({vm.wait_for('P')})")
        g.stamp()
        setup()
    else: assert KMID == 0
    ln1()
    for grp in take(DSET):
        for ins, tag in grp: a(ins)
    if ORDER[0] != "S":
        setup()
        g.stamp()
    if KMID == 0:
        for ins in rdf(0): a(ins)
    step = KMID
    while step < 8:
        n = min(DPS, DPOST); DPOST -= n
        kstep(step, take(n)); step += 1
        if step == KMID + 1:
            a(f"v_readfirstlane_b32 s{sNON}, v32"); a(f"v_readfirstlane_b32 s{sNON+1}, v33")
    Eb = 72
    a(f"v_lshlrev_b32 v16, 4, v{vL}"); a(f"v_add_u32 v16, s{sTB}, v16"); a(f"v_subrev_u32 v17, 4, v16")
    a(f"v_add_u32 v2, s{sTB}, v2")
    s00 = sT; s11 = sT+1; s10 = sT+2; s21 = sT+3
    a(f"s_mov_b32 s{s00}, 0x01000100"); a(f"s_mov_b32 s{s11}, 0x03020302"); a(f"s_mov_b32 s{s10}, 0x01000302"); a(f"s_mov_b32 s{s21}, 0x03020504")
    for t in (0, 1, 2):
        for e in range(2): a(f"v_pk_mul_f32 {vr(ACC+4*t+2*e,2)}, {vr(ACC+4*t+2*e,2)}, {vr(vSC,2)} op_sel_hi:[1,0]")
        a(f"v_cvt_pk_bf16_f32 v{64+2*t}, v{ACC+4*t}, v{ACC+4*t+1}")
        a(f"v_cvt_pk_bf16_f32 v{65+2*t}, v{ACC+4*t+2}, v{ACC+4*t+3}")
    a(f"ds_write_b64 v{vO1}, v[64:65]"); a(f"ds_write_b64 v{vO1}, v[66:67] offset:32"); a(f"ds_write_b64 v{vO2}, v[68:69]")
    a(f"ds_read_b128 {vr(Eb,4)}, v16"); a(f"ds_read_b32 v{Eb+4}, v16 offset:16"); a(f"ds_read_b32 v{Eb-1}, v17")
    a(f"ds_read_b32 v78, v2 offset:1024"); a(f"ds_read_b32 v79, v2 offset:1028")
    a(f"ds_read_b32 v80, v2 offset:1280"); a(f"ds_read_b32 v81, v2 offset:1284")
    a("s_mov_b64 exec, 0x1ffffff")
    for c in range(4): a(f"ds_write_b128 v{vZ}, {vr(ZR,4)} offset:{c*UCS}")
    a("s_mov_b64 exec, -1")
    SG = 160
    for i in range(1, 4): a(f"s_mov_b32 s{36+i}, {4096*i}")
    def ld_sg():
        for i in range(4): a(f"buffer_load_dwordx4 {vr(SG+4*i,4)}, v{vR}, {sr(sFLG,4)}, {'s%d' % (36+i) if i else '0'} offen {SC}")
    ld_sg()
    a("s_waitcnt lgkmcnt(0)")
    O = 84
    for d, s0, s1, sl in ((0,3,2,2),(1,2,1,3),(2,1,0,2),(3,0,-1,4),(4,4,3,1),(5,2,2,0),(6,2,1,1),(7,0,0,0)):
        a(f"v_perm_b32 v{O+d}, v{Eb+s0}, v{Eb+s1}, v{SA+sl}")
    a(f"ds_write_b128 v{vK}, {vr(O,4)} offset:{KPAD}")
    a(f"ds_write_b128 v{vK}, {vr(O+4,4)} offset:{KPAD+KCS}")
    def mk(dst, kind, p01, p2):
        if kind == "00": a(f"v_perm_b32 v{dst}, v{p01}, v{p01}, s{s00}")
        elif kind == "11": a(f"v_perm_b32 v{dst}, v{p01}, v{p01}, s{s11}")
        elif kind == "22": a(f"v_perm_b32 v{dst}, v{p2}, v{p2}, s{s00}")
        elif kind == "10": a(f"v_perm_b32 v{dst}, v{p01}, v{p01}, s{s10}")
        elif kind == "21": a(f"v_perm_b32 v{dst}, v{p2}, v{p01}, s{s21}")
    chunks = [(78, ["21","11","00","00"], vK, KPAD + 1024), (78, ["22","11","10","00"], vK, KPAD + 1024 + KCS),
              (80, ["11","00","00","00"], vK2, KPAD + 2048), (80, ["22","21","11","11"], vK2, KPAD + 2048 + 16),
              (80, ["11","10","00","00"], vK2, KPAD + 2048 + KCS), (80, ["22","22","11","11"], vK2, KPAD + 2048 + KCS + 16)]
    for ci, (p, kinds, ad, off) in enumerate(chunks):
        b = O + 8 + 4*ci
        for e, kd in enumerate(kinds): mk(b+e, kd, p, p+1)
        a(f"ds_write_b128 v{ad}, {vr(b,4)} offset:{off}")
    g.stamp()
    sCGo = sT+7
    a(f"s_lshl_b32 s{sCGo}, s{sCG}, 14")
    lp = a.label("p1"); dn = a.label("p1d")
    a(f"s_mov_b32 s{sTO}, 0")
    a(f"{lp}:")
    a("s_waitcnt vmcnt(0)")
    a(f"v_cmp_ne_u64 vcc, {sr(sNON,2)}, {vr(SG+2,2)}")
    for i in range(1, 4):
        a(f"v_cmp_ne_u64 {sr(sT,2)}, {sr(sNON,2)}, {vr(SG+4*i+2,2)}"); a(f"s_or_b64 vcc, vcc, {sr(sT,2)}")
    a(f"s_cbranch_vccz {dn}")
    a("s_mov_b64 exec, vcc")
    ld_sg()
    a(f"s_add_u32 s{sTO}, s{sTO}, 1"); a(f"s_cmp_lt_u32 s{sTO}, {TIMEOUT}"); a(f"s_cbranch_scc1 {lp}")
    a(f"{dn}:")
    a("s_mov_b64 exec, -1")
    g.stamp()
    UR = 32; XG = 48; XU = 128; TD = 96
    for i in range(4):
        a(f"s_add_u32 s{sT}, s{sCGo}, {4096*i}")
        a(f"buffer_load_dwordx4 {vr(XG+4*i,4)}, v{vR}, {sr(sU2,4)}, s{sT} offen {SC}")
    def rdA(st, p, q): return f"ds_read_b128 {ar(64*st+4*p,4)}, v{vA} offset:{(8*p+q)*64}"
    def rdB(st, r, q): return f"ds_read_b128 {ar(64*st+32+4*r,4)}, v{vB} offset:{(8*r-q+7)*64}"
    for i in range(8): a(rdA(0, i, 0))
    for i in range(4):
        b = SG+4*i
        a(f"v_lshlrev_b32 v{b+2}, 16, v{b+1}"); a(f"v_and_b32 v{b+3}, 0xffff0000, v{b+1}")
        a(f"v_and_b32 v{b+1}, 0xffff0000, v{b}"); a(f"v_lshlrev_b32 v{b}, 16, v{b}")
        a(f"v_rcp_f32 v{b+2}, v{b+2}"); a(f"v_rcp_f32 v{b+3}, v{b+3}")
    a("s_barrier")
    for ii in range(4):
        a(f"s_waitcnt vmcnt({3-ii})")
        x = XU+8*ii; t = TD+8*ii; u = UR+4*ii
        for ch in range(4):
            a(f"v_lshlrev_b32 v{x+2*ch}, 16, v{XG+4*ii+ch}"); a(f"v_and_b32 v{x+2*ch+1}, 0xffff0000, v{XG+4*ii+ch}")
        for ch in range(4): a(f"v_pk_add_f32 {vr(t+2*ch,2)}, {vr(x+2*ch,2)}, {vr(SG+4*ii,2)} neg_lo:[0,1] neg_hi:[0,1]")
        for ch in range(4): a(f"v_cvt_pk_bf16_f32 v{u+ch}, v{t+2*ch}, v{t+2*ch+1}")
        for ch in range(4):
            a(f"v_lshlrev_b32 v{t+2*ch}, 16, v{u+ch}"); a(f"v_and_b32 v{t+2*ch+1}, 0xffff0000, v{u+ch}")
        for ch in range(4): a(f"v_pk_mul_f32 {vr(t+2*ch,2)}, {vr(t+2*ch,2)}, {vr(SG+4*ii+2,2)}")
        for ch in range(4): a(f"v_cvt_pk_bf16_f32 v{u+ch}, v{t+2*ch}, v{t+2*ch+1}")
        for c in range(4):
            for ch in range(2):
                a(f"ds_write2st64_b32 v{vUC+2*c+ch}, v{UR+4*ii+ch}, v{UR+4*ii+ch+2} offset0:{4*ii} offset1:{4*ii+141}")
    a("s_waitcnt lgkmcnt(0)")
    a("s_barrier")
    g.stamp()
    CA = 64
    for i in range(8): a(rdB(0, i, 0))
    fill = []
    F = fill.append
    TD = 96; XU = 128
    F(f"s_lshl_b32 s{sT}, s58, 16"); F(f"s_and_b32 s{sT+1}, s58, 0xffff0000"); F(f"s_lshl_b32 s{sT+2}, s59, 16"); F(f"s_and_b32 s{sT+3}, s59, 0xffff0000")
    for i in range(4):
        for ch in range(4):
            u = UR+4*i+ch; d = TD+8*i+2*ch
            F(f"v_lshlrev_b32 v{d}, 16, v{u}"); F(f"v_and_b32 v{d+1}, 0xffff0000, v{u}")
            F(f"v_mul_f32 v{d}, s{sT+ch}, v{d}"); F(f"v_mul_f32 v{d+1}, s{sT+ch}, v{d+1}")
            F(f"v_cvt_pk_bf16_f32 v{u}, v{d}, v{d+1}")
            F(f"v_lshlrev_b32 v{d}, 16, v{u}"); F(f"v_and_b32 v{d+1}, 0xffff0000, v{u}")
    F(f"v_lshlrev_b32 v16, 2, v0"); F(f"v_add_u32 v16, {KBASE}, v16")
    fill2 = []
    sched = {}
    nb = len(bgl)
    for n in range(nb):
        pos = n * DSP + 9
        sched[(pos // 36, pos % 36)] = [ins for ins, tag in bgl[n]]
    fi = 0
    npre = max(0, len(fill) - (7*20 - nb))
    for ins in fill[:npre]: a(ins)
    fill = fill[npre:]
    for q in range(8):
        st = q & 1
        a("s_waitcnt lgkmcnt(0)")
        nxt = []
        if q < 7:
            for i in range(8): nxt += [rdA(1-st, i, q+1), rdB(1-st, i, q+1)]
        else:
            assert fi == len(fill), (fi, len(fill))
            fill = fill2; fi = 0
        k = 0
        for p in range(8):
            for r in range(8 - p):
                t = p + r
                c = "0" if (q == 0 and p == 0) else vr(CA+4*t, 4)
                a(f"v_mfma_f32_16x16x32_bf16 {vr(CA+4*t,4)}, {ar(64*st+4*p,4)}, {ar(64*st+32+4*r,4)}, {c}")
                if (q, k) in sched:
                    for ins in sched.pop((q, k)): a(ins)
                elif nxt and (k % 2 == 0 or (k < 8)): a(nxt.pop(0))
                elif fi < len(fill): a(fill[fi]); fi += 1
                k += 1
        assert not nxt
    assert fi == len(fill) and not sched, (fi, len(fill), sched)
    for t in range(8):
        a(f"v_cvt_pk_bf16_f32 v{168+2*t}, v{CA+4*t}, v{CA+4*t+1}")
        a(f"v_cvt_pk_bf16_f32 v{169+2*t}, v{CA+4*t+2}, v{CA+4*t+3}")
        a(f"ds_write2_b32 v{vY}, v{168+2*t}, v{169+2*t} offset0:{128*(t&1)} offset1:{128*(t&1)+4}")
        if t & 1 and t < 7: a(f"v_add_u32 v{vY}, 1024, v{vY}")
    a("s_waitcnt vmcnt(0) lgkmcnt(0)")
    g.stamp()
    a("s_barrier")
    Y = 64; YU = 160
    for i in range(4):
        for ch in (0, 2):
            a(f"ds_read2st64_b32 {vr(Y+4*i+ch,2)}, v16 offset0:{4*i+33*ch} offset1:{4*i+33*(ch+1)}")
    for i in range(4):
        a(f"s_waitcnt lgkmcnt({6-2*i})")
        for ch in range(4):
            a(f"v_lshlrev_b32 v{YU+2*ch}, 16, v{Y+4*i+ch}"); a(f"v_and_b32 v{YU+2*ch+1}, 0xffff0000, v{Y+4*i+ch}")
        b = TD+8*i
        for ch in range(4): a(f"v_pk_add_f32 {vr(b+2*ch,2)}, {vr(b+2*ch,2)}, {vr(YU+2*ch,2)}")
        for ch in range(4): a(f"v_cvt_pk_bf16_f32 v{YU+ch}, v{b+2*ch}, v{b+2*ch+1}")
        for ch in range(4):
            a(f"v_lshlrev_b32 v{b+2*ch}, 16, v{YU+ch}"); a(f"v_and_b32 v{b+2*ch+1}, 0xffff0000, v{YU+ch}")
        for ch in range(4): a(f"v_pk_add_f32 {vr(b+2*ch,2)}, {vr(b+2*ch,2)}, {vr(XU+8*i+2*ch,2)}")
        for e in range(2):
            for hp in range(2):
                a(f"v_cvt_pk_bf16_f32 v{Y+4*i+2*e+hp}, v{b+4*hp+e}, v{b+4*hp+2+e}")
        a(f"s_add_u32 s{sT}, s{sCGo}, {4096*i}")
        a(f"buffer_store_dwordx4 {vr(Y+4*i,4)}, v{vR}, {sr(sH,4)}, s{sT} offen {SC}")
    g.stamp()

M_XCH = 0x1b00000
XSL = 16384; XWG = 3*XSL; SZ_XCH = 256*XWG
s2_TM = sT+4; s2_TN = sT+5; s2_KQ = sT+6
def g2_dma_addr(sM0, tv=2):
    return [f"s_bfe_u32 s{s2_KQ}, s2, 0x20001",
        f"s_and_b32 s{s2_TM}, s2, 1", f"s_lshl_b32 s{s2_TM}, s{s2_TM}, 2", f"s_bfe_u32 s{sT}, s2, 0x20003", f"s_add_u32 s{s2_TM}, s{s2_TM}, s{sT}",
        f"s_lshr_b32 s{s2_TN}, s2, 5",
        f"v_lshrrev_b32 v{tv}, 4, v{vL}", f"s_mul_i32 s{sT}, s{s2_KQ}, 896", f"s_lshl_b32 s{sT+1}, s{sWave}, 4", f"s_add_u32 s{sT}, s{sT}, s{sT+1}",
        f"v_add_u32 v1, s{sT}, v{tv}", f"v_lshlrev_b32 v1, 11, v1",
        f"v_lshlrev_b32 v{tv}, 2, v{tv}", f"v_and_b32 v{tv+1}, 15, v{vL}", f"v_xor_b32 v{tv}, v{tv}, v{tv+1}",
        f"v_lshl_add_u32 v1, v{tv}, 4, v1", f"s_lshl_b32 s{sT}, s{s2_TN}, 8", f"v_add_u32 v1, s{sT}, v1", f"s_lshl_b32 s{sM0}, s{sWave}, 12"]
G2_STG = 64*2048; G2_I = 4*2048 - 1024
G2_SLOT = [0, 1, 2, 8, 9, 3, 4, 5, 6, 7, 0, 1, 2, 8]
def g2_dma(stage, i, sM0=24, sW=12):
    grp = []
    if i == 0: grp.append(f"s_add_u32 m0, s{sM0}, {G2_SLOT[stage]*16384}")
    grp.append(f"s_mov_b32 s{sT+1}, {stage*G2_STG + i*G2_I}")
    grp.append(f"buffer_load_dwordx4 v1, {sr(sW,4)}, s{sT+1} offen offset:{1024*i} lds")
    return grp

def phase_gemm2(g, LA=8, TAIL=16, XSLEEP=4, OF='nt'):
    a = g.a
    ACC = 32
    def acc(j, t): return ACC + (t*2 + j)*16
    HR = 160; IN = 176; XR = 0; WF = 192; NX = 24
    vX = 2; vW = 4; vO = 16; vI = 17; vH = 18; vFl = 19; vT = 232; vM = 20
    sX = 8; sH = 44; sO = 4; sIB = 36
    sOX = 20; sM = 26; sN = 27; sI = 31; sFo = 33
    a(f"s_lshl_b32 s{sM}, s{s2_TM}, 8"); a(f"s_lshl_b32 s{sT}, s{sWave}, 6"); a(f"s_add_u32 s{sM}, s{sM}, s{sT}")
    a(f"s_lshl_b32 s{sN}, s{s2_TN}, 7"); a(f"s_lshl_b32 s{sT}, s{s2_KQ}, 5"); a(f"s_add_u32 s{sN}, s{sN}, s{sT}")
    a(f"v_and_b32 v{vT}, 31, v{vL}"); a(f"v_add_u32 v{vT}, s{sM}, v{vT}")
    a(f"v_lshrrev_b32 v{vT+1}, 5, v{vL}")
    a(f"v_lshl_add_u32 v{vX}, v{vT+1}, 11, v{vT}"); a(f"v_lshlrev_b32 v{vX}, 4, v{vX}")
    a(f"s_mul_i32 s{sOX}, s{s2_KQ}, {112*32768}")
    a(f"v_lshlrev_b32 v{vH}, 3, v{vT}"); a(f"v_lshl_add_u32 v{vH}, v{vT+1}, 15, v{vH}")
    a(f"s_lshl_b32 s{sT}, s{sN}, 12"); a(f"v_add_u32 v{vH}, s{sT}, v{vH}")
    a(f"v_lshlrev_b32 v{vO}, 11, v{vT}"); a(f"v_lshl_add_u32 v{vO}, v{vT+1}, 4, v{vO}")
    a(f"s_lshl_b32 s{sT}, s{sN}, 1"); a(f"v_add_u32 v{vO}, s{sT}, v{vO}")
    a(f"v_bfe_u32 v{vT+3}, v{vL}, 2, 2"); a(f"v_lshl_add_u32 v{vT+4}, v{vT+1}, 3, v{vT+3}"); a(f"v_lshlrev_b32 v{vW}, 8, v{vT+4}")
    a(f"v_xor_b32 v{vT+3}, s{s2_KQ}, v{vT+3}"); a(f"v_lshl_add_u32 v{vW}, v{vT+3}, 6, v{vW}")
    a(f"v_bfe_u32 v{vT+3}, v{vL}, 4, 1"); a(f"v_lshl_add_u32 v{vW}, v{vT+3}, 5, v{vW}")
    a(f"v_and_b32 v{vT+3}, 1, v{vL}"); a(f"v_lshl_add_u32 v{vW}, v{vT+3}, 4, v{vW}")
    a(f"v_bfe_u32 v{vT+3}, v{vL}, 1, 1"); a(f"v_lshl_add_u32 v{vW}, v{vT+3}, 3, v{vW}")
    for t in range(1, 4): a(f"v_xor_b32 v{vW+t}, {64*t}, v{vW}")
    for b in range(1, 3):
        for t in range(4): a(f"v_add_u32 v{vW+4*b+t}, {65536*b}, v{vW+t}")
    a(f"v_lshlrev_b32 v{vI}, 4, v{vL}"); a(f"s_lshl_b32 s{sT}, s{sWave}, 12"); a(f"v_add_u32 v{vI}, s{sT}, v{vI}"); a(f"v_mov_b32 v{vM}, -2")
    srd(a, sO, pOUT, 2048*1024*2); srd(a, sIB, pWS, SZ_XCH, M_XCH)
    a(f"s_mul_i32 s{sI}, s2, {XWG}")
    for t in range(1, 4):
        a(f"s_xor_b32 s{27+t}, s2, {2*t}"); a(f"s_mul_i32 s{27+t}, s{27+t}, {XWG}"); a(f"s_add_u32 s{27+t}, s{27+t}, {XSL*(t-1)}")
    a(f"v_bfe_u32 v{vT+4}, v{vL}, 2, 1"); a(f"v_and_b32 v{vT+3}, 3, v{vL}"); a(f"v_lshl_add_u32 v{vT+4}, v{vT+3}, 6, v{vT+4}")
    a(f"s_lshl_b32 s{sT}, s{s2_TM}, 2"); a(f"s_add_u32 s{sT}, s{sT}, s{s2_KQ}"); a(f"s_lshl_b32 s{sT}, s{sT}, 1")
    a(f"v_add_u32 v{vT+4}, s{sT}, v{vT+4}")
    a(f"v_lshlrev_b32 v{vT+3}, 1, v{vT+3}"); a(f"v_xor_b32 v{vT+3}, s2, v{vT+3}")
    a(f"v_and_b32 v{vT+2}, 8, v{vL}"); a(f"v_cmp_eq_u32 vcc, 0, v{vT+2}"); a("s_nop 1")
    a(f"v_cndmask_b32 v{vFl}, v{vT+3}, v{vT+4}, vcc"); a(f"v_lshlrev_b32 v{vFl}, 6, v{vFl}")
    a(f"s_mov_b32 s{sFo}, {2*16384}")
    a("s_waitcnt vmcnt(0)")
    a("s_barrier")
    set_flag(g, 2, 22)
    g.stamp()
    def wread(st, f, t, step, j):
        off = G2_SLOT[step >> 2]*16384 + (step & 3)*4096 + j*1024
        return f"ds_read_b64_tr_b16 {ar(WF+st*16+f*4+j*2,2)}, v{vW + 4*(off >> 16) + t} offset:{off & 0xffff}"
    T0 = 56 - TAIL; TG = TAIL // 4
    sup = [[(t, s) for t in range(4)] for s in range(T0)]
    for t in (1, 2, 3, 0):
        for hf in range(TG): sup.append([(t, T0 + 4*hf + k) for k in range(4)])
    SEND = [T0 + TG*k for k in (1, 2, 3)]
    def need_of(n): return max(s for t, s in sup[min(n, 55)])
    def reads(n):
        return [wread(n & 1, f, t, s, j) for f, (t, s) in enumerate(sup[n]) for j in range(2)]
    for ins in reads(0): a(ins)
    poll_flags(g, vFl, sFo, 22)
    g.stamp()
    vm = VM()
    def xload(x):
        return [f"buffer_load_dwordx4 {ar(XR+(x % NX)*8+j*4,4)}, v{vX}, {sr(sX,4)}, s{sOX} offen offset:{512*j} {SC}" for j in range(2)]
    xadv = f"s_add_u32 s{sOX}, s{sOX}, 65536"
    nx = 0
    for x in range(4):
        for ins in xload(x): a(ins); vm.add(f"X{x}")
        a(xadv); nx += 1
    dl = [(stg, i) for stg in range(10, 14) for i in range(4)]
    started = set()
    send = []
    for n, fr in enumerate(sup):
        need = max(s for t, s in fr)
        w = vm.wait_for(f"X{need}")
        if n == 39:
            assert not dl
            w = min(w, vm.wait_for("D"))
        a(f"s_waitcnt vmcnt({w}) lgkmcnt(0)")
        if n in (15, 39): a("s_barrier")
        gaps = {k: [] for k in range(8)}; tags = {k: [] for k in range(8)}
        if n + 1 < len(sup):
            for k, ins in enumerate(reads(n + 1)): gaps[k // 2].append(ins)
        gi = 4
        for rep in range(2):
            if nx < 56 and nx <= max(need_of(k_) for k_ in range(n, n + LA + 1)) and gi <= 6:
                for j, ins in enumerate(xload(nx)): gaps[gi+j].append(ins); tags[gi+j].append(f"X{nx}")
                gaps[gi+1].append(xadv); nx += 1; gi += 2
        if n >= 15 and dl and gi <= 6:
            grp = g2_dma(*dl.pop(0))
            gaps[gi] += grp[:-1]; gaps[gi+1].append(grp[-1]); tags[gi+1].append("D")
        if n in (34, 35, 36, 37):
            for e in range(2):
                i = 2*(n-34) + e
                gj, gq = (i >> 2), (i >> 1) & 1
                gaps[6+e] += [f"s_mov_b32 s{sT}, {(4*gq + e)*16384}", f"buffer_load_dwordx2 {vr(HR+2*i,2)}, v{vH}, {sr(sH,4)}, s{sT} offen offset:{256*gj} {SC}"]
                tags[6+e].append("R")
        if n in SEND:
            t = sup[n-1][0][0]; b = acc(0, t)
            send = []
            for i in range(4):
                send += [f"v_cvt_pk_bf16_f32 v{b+4*i+e}, v{b+8*i+2*e}, v{b+8*i+2*e+1}" for e in range(4)]
                send += [f"v_min_u32 v{b+4*i+e}, v{b+4*i+e}, v{vM}" for e in range(4)]
                send += [f"buffer_store_dwordx4 {vr(b+4*i,4)}, v{vI}, {sr(sIB,4)}, s{27+t} offen offset:{1024*i} {SC}"]
        k = 0
        for f, (t, s) in enumerate(fr):
            for j in ((0, 1) if f % 2 == 0 else (1, 0)):
                c = vr(acc(j,t),16) if (j, t) in started else "0"
                started.add((j, t))
                a(f"v_mfma_f32_32x32x16_bf16 {vr(acc(j,t),16)}, {ar(WF+(n&1)*16+f*4,4)}, {ar(XR+(s % NX)*8+j*4,4)}, {c}")
                for ins in gaps[k]: a(ins)
                for tg in tags[k]: vm.add(tg)
                if send and not (n in SEND and k < 4):
                    for _ in range(4 if k >= 4 or n == 55 else 2):
                        if send:
                            ins = send.pop(0); a(ins)
                            if ins.startswith("buffer"): vm.add("S")
                k += 1
        if n - 1 in SEND: assert not send, len(send)
    assert nx == 56 and not dl
    g.stamp()
    P = acc(0, 1)
    a(f"s_add_u32 s28, s{sI}, {XSL}"); a(f"s_add_u32 s29, s{sI}, {2*XSL}")
    def ld_slot(sl):
        for i in range(4): a(f"buffer_load_dwordx4 {vr(IN+16*sl+4*i,4)}, v{vI}, {sr(sIB,4)}, s{(sI, 28, 29)[sl]} offen offset:{1024*i} {SC}")
    a(f"s_waitcnt vmcnt({vm.wait_for('R')})")
    for sl in range(3): ld_slot(sl)
    for k in range(16):
        a(f"v_lshlrev_b32 v{P+2*k}, 16, v{HR+k}"); a(f"v_and_b32 v{P+2*k+1}, 0xffff0000, v{HR+k}")
    a(f"s_mov_b32 s{sTO}, 0")
    Q = acc(0, 2); B = acc(0, 0)
    for sl in range(3):
        lp = a.label("xp"); dn = a.label("xd")
        a(f"s_waitcnt vmcnt({8-4*sl})")
        a(f"{lp}:")
        I = IN + 16*sl
        a(f"v_max3_u32 v21, v{I}, v{I+1}, v{I+2}"); a(f"v_max3_u32 v22, v{I+3}, v{I+4}, v{I+5}")
        for k in range(6, 16, 2): a(f"v_max3_u32 v{21 + ((k>>1)&1)}, v{21 + ((k>>1)&1)}, v{I+k}, v{I+k+1}")
        a(f"v_max_u32 v21, v21, v22")
        a(f"v_cmp_eq_u32 vcc, -1, v21")
        a(f"s_cbranch_vccz {dn}")
        a(f"s_sleep {XSLEEP}")
        ld_slot(sl)
        a(f"s_add_u32 s{sTO}, s{sTO}, 1"); a(f"s_cmp_lt_u32 s{sTO}, {TIMEOUT}")
        a("s_waitcnt vmcnt(0)")
        a(f"s_cbranch_scc1 {lp}")
        a(f"{dn}:")
        if sl == 2: break
        for k in range(16):
            a(f"v_lshlrev_b32 v{Q+2*k}, 16, v{I+k}"); a(f"v_and_b32 v{Q+2*k+1}, 0xffff0000, v{I+k}")
        for k in range(16): a(f"v_pk_add_f32 {vr(B+2*k,2)}, {vr(B+2*k,2)}, {vr(Q+2*k,2)}")
    g.stamp()
    a(f"s_mov_b32 s{sT}, 65536")
    for i in range(4):
        b = B + 8*i
        for e in range(4):
            a(f"v_lshlrev_b32 v{Q+2*e}, 16, v{IN+32+4*i+e}"); a(f"v_and_b32 v{Q+2*e+1}, 0xffff0000, v{IN+32+4*i+e}")
        for e in range(4): a(f"v_pk_add_f32 {vr(b+2*e,2)}, {vr(b+2*e,2)}, {vr(Q+2*e,2)}")
        for e in range(4): a(f"v_cvt_pk_bf16_f32 v{Q+e}, v{b+2*e}, v{b+2*e+1}")
        for e in range(4):
            a(f"v_lshlrev_b32 v{b+2*e}, 16, v{Q+e}"); a(f"v_and_b32 v{b+2*e+1}, 0xffff0000, v{Q+e}")
        for e in range(4): a(f"v_pk_add_f32 {vr(b+2*e,2)}, {vr(b+2*e,2)}, {vr(P+8*i+2*e,2)}")
        for e in range(4): a(f"v_cvt_pk_bf16_f32 v{HR+4*i+e}, v{b+2*e}, v{b+2*e+1}")
        so = f"s{sT}" if i >= 2 else "0"
        a(f"buffer_store_dwordx4 {vr(HR+4*i,4)}, v{vO}, {sr(sO,4)}, {so} offen offset:{32*(i&1)} {OF}")

def phase_gemm1(g, XF=SC, X0=4, PU=(0,2,6), LU=5, FS=False):
    a = g.a
    SLOT = SLOT1
    ACC = 32
    MF = "v_mfma_f32_16x16x32_bf16"
    def acc(j, mt, t): return ACC + ((t*2 + (j >> 1))*4 + (j & 1)*2 + mt)*4
    XR = 0; WF = 64; CSF = 120; RD = 176; MB = 192
    vDMA = 1; vX = 8; vST = 9; vWc = 10; vWn = 11; vS = 12; vO = 28; vFl = 2; vC = 4; vF2 = 5
    sX = 44; sACT = 8; sST = 36; sCS = 40; sW2 = 12
    sOX = 20; sOX2 = 21; sBase = 23; sIt = 25; sA = 28; sB = 29; sNS = 30; sCSo = 32
    sOW = sG_OW; sM0 = sG_M0
    vm = VM()
    for i in range(4): vm.add("H")
    def pro_dma(stage, idxs):
        for i in idxs:
            if i in (0, 4): a(f"s_add_u32 m0, s{sM0}, {stage*SLOT + (4096 if i else 0)}"); a("s_nop 0")
            a(g1_dma(pDMA, i)); vm.add(f"D{stage}")
            if i == 6:
                for ins in g1_wadv("odd" if stage & 1 else "even"): a(ins)
    def wread(st, t, jj, reg, imm0):
        return f"ds_read_b64_tr_b16 {ar(WF+st*28+t*4+jj*2,2)}, v{reg} offset:{imm0 + st*UPOFF + 16*jj*224 + 32*t}"
    a(f"s_lshr_b32 s{sT}, s{sWave}, 1"); a(f"s_mul_i32 s{sT}, s{sT}, {SLOT}")
    a(f"s_and_b32 s{sT+1}, s{sWave}, 1"); a(f"s_mul_i32 s{sT+1}, s{sT+1}, {32*224}"); a(f"s_add_u32 s{sT}, s{sT}, s{sT+1}")
    a(f"v_add_u32 v164, s{sT}, v{pWc}")
    for st in range(2):
        for t in range(7):
            for jj in range(2): a(wread(st, t, jj, 164, 0))
    a(f"v_and_b32 v160, 15, v{vL}"); a(f"v_mov_b32 v161, 0x3f803f80")
    for i in range(7): a(f"v_mov_b32 v{vDMA+i}, v{pDMA+i}")
    for d, s_ in ((vX, pX), (vST, pST), (vWc, pWc), (vO, pO)): a(f"v_mov_b32 v{d}, v{s_}")
    a(f"v_add_u32 v{vWn}, {2*SLOT}, v{vWc}")
    srd(a, sACT, pWS, SZ_ACT, M_ACT); srd(a, sST, pWS, 2048*16, M_ST2); srd(a, sCS, pWS, 32*8192, M_CS)
    srd(a, sW2, pWD, SZ_W)
    a(f"s_mul_i32 s16, s2, 28672")
    a(f"v_mov_b32 v27, v{pSR}")
    for e in range(4): a(f"v_accvgpr_write_b32 a{208+e}, -1")
    srd(a, 52, pWS, SZ_XCH, M_XCH)
    a(f"s_mul_i32 s51, s2, {XWG}"); a(f"s_add_u32 s54, s51, {XWG}")
    a(f"s_lshl_b32 s{sCSo}, s{sG_TN}, 13")
    a(f"s_lshl_b32 s{sOX}, s{sG_TM}, 19"); a(f"s_add_u32 s{sOX2}, s{sOX}, 65536")
    a(f"s_mov_b32 s17, s{sOX}"); a(f"s_add_u32 s26, s{sOX}, {1 << 19}")
    a(f"s_mov_b32 s{sBase}, 0"); a(f"s_mov_b32 s{sIt}, 4")
    a(f"s_mul_i32 s{sT}, s{sWave}, 896"); a(f"s_add_u32 s{sT}, s{sT}, {PBASE}")
    a(f"v_lshrrev_b32 v163, 4, v{vL}")
    a(f"v_lshlrev_b32 v165, 6, v160"); a(f"v_lshl_add_u32 v165, v163, 4, v165"); a(f"v_add_u32 v165, s{sT}, v165")
    a(f"s_waitcnt vmcnt({vm.wait_for('H')})")
    a("s_barrier")
    set_flag(g, 1, 174)
    g.stamp()
    a("s_waitcnt lgkmcnt(0)")
    for n in range(14):
        b = 96 + 4*n
        a(f"v_cmp_eq_u32 vcc, {n}, v160")
        pro_dma(2 + n//7, [n % 7])
        a("s_nop 0")
        for e in range(4): a(f"v_cndmask_b32 v{b+e}, 0, v161, vcc")
    a("s_nop 0")
    for n in range(14):
        c = "0" if n == 0 else "v[156:159]"
        a(f"{MF} v[156:159], {ar(WF+n*4,4)}, {vr(96+4*n,4)}, {c}")
    for t in range(7):
        for jj in range(2): a(wread(0, t, jj, vWc, 0))
    a(f"v_cmp_gt_u32 vcc, 14, v160")
    a("s_and_saveexec_b64 s[56:57], vcc")
    a(f"ds_write_b128 v165, v[156:159]")
    a("s_mov_b64 exec, -1")
    a(f"s_mov_b32 s{sT+1}, 16384")
    a("s_waitcnt lgkmcnt(0)")
    g.stamp()
    poll_flags(g, 29, sT+1, 166)
    a("s_barrier")
    g.stamp()
    vm = VM()
    def xslot(x): return (176, 192, 216, 232)[(x>>1)&3] if x >= 32 else XR + ((x>>1)&3)*16
    def xload(x, k):
        j, hf = 2*(x & 1) + (k >> 1), k & 1
        return f"buffer_load_dwordx2 {ar(xslot(x)+j*4+hf*2,2)}, v{vX}, {sr(sX,4)}, s{sOX2 if hf else sOX} offen offset:{128*j} {XF}"
    def xadv(x):
        if x & 1 == 0: return []
        if x % 8 == 7:
            return [f"s_mov_b32 s{sOX}, 0" if x == 7 else f"s_add_u32 s{sOX}, s{sOX}, 131072", f"s_cmp_eq_u32 s{sOX}, s17", f"s_cselect_b32 s{sOX}, s26, s{sOX}",
                    f"s_add_u32 s{sOX2}, s{sOX}, 65536"]
        return [f"s_add_u32 s{sOX}, s{sOX}, 131072", f"s_add_u32 s{sOX2}, s{sOX}, 65536"]
    for x in range(X0):
        for k in range(4): a(xload(x, k)); vm.add(f"X{x}")
        for ins in xadv(x): a(ins)
    nxt_x = [X0]
    a(f"v_min_u32 v168, 13, v160"); a(f"v_lshlrev_b32 v168, 6, v168"); a(f"v_lshrrev_b32 v169, 4, v0"); a(f"v_lshl_add_u32 v168, v169, 2, v168")
    a(f"v_add_u32 v168, {PBASE}, v168")
    for w in range(4): a(f"ds_read_b32 v{170+w}, v168 offset:{896*w}")
    a(f"v_lshlrev_b32 v169, 2, v0")
    a(f"s_lshl_b32 s{sT}, s{sG_TM}, 10"); a(f"s_add_u32 s{sT}, s{sT}, s{sCSo}")
    a(f"v_and_b32 v29, 3, v{vL}"); a(f"v_lshlrev_b32 v29, 4, v29"); a(f"s_lshl_b32 s{sT+1}, s{sWave}, 6"); a(f"s_add_u32 s{sT+1}, s{sT+1}, {SBASE}")
    a(f"v_add_u32 v29, s{sT+1}, v29")
    a("s_waitcnt lgkmcnt(0)")
    a("v_add_f32 v170, v170, v171"); a("v_add_f32 v172, v172, v173"); a("v_add_f32 v170, v170, v172")
    a("v_cvt_pk_bf16_f32 v171, v170, v170"); a("v_lshlrev_b32 v171, 16, v171")
    a("v_sub_f32 v170, v170, v171")
    a("v_cvt_pk_bf16_f32 v170, v171, v170")
    a(f"buffer_store_dword v170, v169, {sr(sCS,4)}, s{sT} offen {SC}"); vm.add("C")
    g.stamp()
    accu = []
    for k in range(8):
        r0 = RD+4*(k>>1)+(k&1); r1 = r0+2
        accu += [f"v_accvgpr_read_b32 v16, a{r0}", f"v_accvgpr_read_b32 v17, a{r1}",
                 "v_lshlrev_b32 v18, 16, v16", "v_lshlrev_b32 v19, 16, v17", "v_and_b32 v16, 0xffff0000, v16", "v_and_b32 v17, 0xffff0000, v17"]
        if k == 0:
            accu += ["v_add_f32 v12, v18, v16", "v_add_f32 v13, v19, v17", "v_mul_f32 v14, v18, v18", "v_mul_f32 v15, v19, v19"]
        else:
            accu += ["v_add_f32 v12, v12, v18", "v_add_f32 v13, v13, v19", "v_fmac_f32 v14, v18, v18", "v_fmac_f32 v15, v19, v19",
                     "v_add_f32 v12, v12, v16", "v_add_f32 v13, v13, v17"]
        accu += ["v_fmac_f32 v14, v16, v16", "v_fmac_f32 v15, v17, v17"]
    n3 = (len(accu) + 3) // 4
    FILL = {0: accu[:n3], 1: accu[n3:2*n3], 2: accu[2*n3:3*n3], 3: accu[3*n3:],
            4: red4(12, 16) + ["ds_write_b128 v29, v[12:15]"],
            5: [f"ds_read_b128 {vr(16+4*w,4)}, v29 offset:{64*(w+1)}" for w in range(3)],
            6: [f"v_add_f32 v{12+e}, v{12+e}, v{16+e}" for e in range(4)] + [f"v_add_f32 v{20+e}, v{20+e}, v{24+e}" for e in range(4)]
               + [f"v_add_f32 v{12+e}, v{12+e}, v{20+e}" for e in range(4)] + stats_final(12, 16),
            7: [f"v_cmp_gt_u32 vcc, 4, v{vL}", f"v_and_b32 v29, 3, v{vL}", "v_lshlrev_b32 v29, 5, v29", f"v_bfe_u32 v21, v{vL}, 2, 1", "v_lshl_add_u32 v29, v21, 4, v29",
                "v_cndmask_b32 v16, v13, v12, vcc", "v_cndmask_b32 v17, v15, v14, vcc", "v_cmp_gt_u32 vcc, 8, v0",
                f"v_mov_b32 v18, s{sNON}", f"v_mov_b32 v19, s{sNON+1}", "v_mov_b32 v21, 0x7fff0000", "v_cndmask_b32 v21, v21, v29, vcc",
                f"s_lshl_b32 s{sT}, s{sG_R}, 4", f"buffer_store_dwordx4 v[16:19], v21, {sr(sST,4)}, s{sT} offen {SC}", "v_lshlrev_b32 v29, 4, v0"]}
    LFILL = [f"v_and_b32 v{vC}, 15, v{vL}", f"v_lshlrev_b32 v{vC}, 6, v{vC}", f"v_lshrrev_b32 v{vF2}, 4, v{vL}", f"v_lshl_add_u32 v{vC}, v{vF2}, 11, v{vC}",
             f"v_and_b32 v{vF2}, 7, v{vL}", f"v_lshlrev_b32 v{vF2}, 9, v{vF2}",
             f"s_and_b32 s{sT}, s2, 0xc7", f"s_lshl_b32 s{sT}, s{sT}, 6", f"s_add_u32 s{sT}, s{sT}, {3*16384}", f"v_add_u32 v{vF2}, s{sT}, v{vF2}"]
    def ld_flags_stats():
        return [f"buffer_load_dwordx2 {vr(vFl,2)}, v{vF2}, {sr(sFLG,4)}, 0 offen {SC}"] + \
               [f"buffer_load_dwordx4 {vr(vS+4*j,4)}, v{vST}, {sr(sST,4)}, 0 offen offset:{256*j} {SC}" for j in range(4)]
    CSG = 120; CSF = 152 - 4
    CSG = 248 - 128
    CSF = 152
    def ld_cs(n):
        return f"buffer_load_dwordx4 {ar(CSG+4*n,4)}, v{vC}, {sr(sCS,4)}, s{sCSo} offen offset:{1024*(n >> 2) + 16*(n & 3)} {SC}"
    def csreg(n): return CSF + 2*n if n < 12 else 248 + 2*(n - 12)
    cs_mov = [f"v_accvgpr_mov_b32 a{csreg(n)+e}, a{CSG+16*e+n}" for n in range(14) for e in range(2)]
    w2 = [g2_dma(stg, i) for stg in range(10) for i in range(4)]
    DM = {3: [0, 1], 0: [2, 3], 1: [4, 5], 2: [6]}
    def body(kind, base):
        first = kind == "first"; last = kind == "last"; second = kind == "second"; mid = kind == "mid"; pen = kind == "pen"
        for u in range(8):
            s = u % 4; st = u & 1
            if last and u == 1: a(f"s_waitcnt vmcnt({vm.wait_for('CS')}) lgkmcnt(0)")
            elif last: a("s_waitcnt lgkmcnt(0)")
            else:
                w = vm.wait_for(f'X{(base+u) | 1}')
                if second and u == 0: w = min(w, vm.wait_for("R"))
                if pen and u == 7: w = min(w, vm.wait_for("S"))
                a(f"s_waitcnt vmcnt({w}) lgkmcnt(0)")
            if FS and first and u in (0, 2, 4, 6): g.stamp()
            if (s == 3 and not (last and u == 7)) or (second and u == 5): a("s_barrier")
            if first and u == 7: set_flag(g, 3, 22)
            gaps = {k: [] for k in range(28)}
            nu = (u + 1) % 8
            reg = vWn if u == 7 else vWc
            imm0 = (nu // 4) * SLOT + ((nu % 4) >> 1) * 32 * 224
            rpos = [0, 1, 3, 4, 6, 7, 9, 10, 12, 13, 15, 16, 18, 19]
            if not (last and u == 7):
                k = 0
                for t in range(7):
                    for jj in range(2):
                        gaps[rpos[k]].append((wread(1 - st, t, jj, reg, imm0), None)); k += 1
            vq = []
            while nxt_x[0] < 40 and ((pen and len(vq) < 8) or (nxt_x[0] <= ((base + u) & ~1) + 6 + (u & 1) and len(vq) < 8)):
                x = nxt_x[0]; nxt_x[0] += 1
                for k in range(4): vq.append(([], xload(x, k), f"X{x}", xadv(x) if k == 3 else []))
            extra = []
            if not last:
                for i in ([] if (first and u < 3) or (pen and u > 2) else DM[s]):
                    pre = []
                    if i in (0, 4):
                        e = 4096 if i else 0
                        if u in (3, 4, 5, 6): pre = [f"s_add_u32 m0, s{sA}, {e}"]
                        elif u == 7: pre = [f"s_add_u32 m0, s{sA}, {SLOT + e}"]
                        else: pre = [f"s_add_u32 m0, s{sB}, {SLOT + e}"]
                    vq.append((pre, g1_dma(vDMA, i), "D", g1_wadv("odd" if u == 2 else "even") if i == 6 else []))
                if u == 0:
                    extra += [f"s_add_u32 s{sA}, s{sM0}, s{sBase}", f"s_sub_u32 s{sBase}, {2*SLOT}, s{sBase}", f"s_add_u32 s{sB}, s{sM0}, s{sBase}"]
                if mid and u in PU:
                    vq.append(([], f"buffer_store_dwordx4 a[208:211], v29, s[52:55], s51 offen {SC}", "P", [f"s_add_u32 s51, s51, 4096"]))
                if first and u in (2, 3, 4, 5):
                    vq.append(([], f"buffer_load_dwordx4 {ar(RD+4*(u-2),4)}, v27, {sr(sX,4)}, s{sG_SR} offen {SC}", "R", [f"s_add_u32 s{sG_SR}, s{sG_SR}, {16*16384}"]))
                if u == 7:
                    extra.append(f"v_swap_b32 v{vWc}, v{vWn}")
                if pen and u == 5:
                    for ins in ld_flags_stats(): vq.append(([], ins, "S", []))
                if pen and u == 4:
                    for n, ins in enumerate(LFILL): gaps[2*n+1].append((ins, None))
                if pen and u == 6:
                    for n, ins in enumerate(g2_dma_addr(sM0, 6)): gaps[8 + n].append((ins, None))
                if pen and u == 7:
                    for n in range(8): vq.append(([], ld_cs(n), "CS", []))
            else:
                if u == 0:
                    for t in range(7): vq.append(([], f"buffer_load_dwordx4 a[212:215], v29, {sr(sW2,4)}, s16 offen", "T", [f"s_add_u32 s16, s16, 4096"]))
                if u >= LU:
                    for i in range(4):
                        grp = w2.pop(0)
                        vq.append((grp[:-1], grp[-1], "W", []))
                if u in (1, 2):
                    free = [k_ for k_ in range(28) if k_ not in rpos]
                    for n, ins in enumerate(cs_mov[14*(u-1):14*u]): gaps[free[n]].append((ins, None))
                if u == 7: gaps[0].append(("s_barrier", None))
            vpos = [2, 5, 8, 11, 14, 17, 20, 22, 24, 26] if len(vq) <= 10 else list(range(1, 28, 2))
            for n, (pre, ins, tag, post) in enumerate(vq):
                p = vpos[n]
                for x_ in pre: gaps[p-1].append((x_, None))
                gaps[p].append((ins, tag))
                for x_ in post: gaps[min(p+1, 27)].insert(0, None); gaps[min(p+1,27)].pop(0); gaps[min(p+1, 27)].append((x_, None))
            for n, ins in enumerate(extra): gaps[21 + 2*n].append((ins, None))
            if second and u in FILL:
                fl = FILL[u]
                for n, ins in enumerate(fl): gaps[n*28//len(fl) if len(fl) > 7 else 21+n].append((ins, None))
            if mid and u == 7:
                gaps[27] += [(f"s_add_u32 s{sIt}, s{sIt}, 1", None), (f"s_cmp_lt_u32 s{sIt}, 8", None)]
            k = 0
            for t in range(7):
                for j in ((0, 1, 2, 3) if t % 2 == 0 else (3, 2, 1, 0)):
                    d = vr(acc(j, st, t), 4)
                    c = "0" if (first and u < 2) else d
                    a(f"{MF} {d}, {ar(WF+st*28+t*4,4)}, {ar(xslot(base+u)+j*4,4)}, {c}")
                    for ins, tag in gaps[k]:
                        a(ins)
                        if tag: vm.add(tag)
                    k += 1
    body("first", 0)
    g.stamp()
    body("second", 8)
    loop = a.label("g1loop")
    a(f"{loop}:")
    if g.dbg:
        a("s_memrealtime s[98:99]"); a("s_memtime s[100:101]"); a(f"s_add_u32 s97, s{sIt}, {g.nst-4}"); a("s_waitcnt lgkmcnt(0)")
        a("s_mov_b32 s99, m0"); a("s_mov_b32 m0, s97"); a("s_nop 1")
        a(f"v_writelane_b32 v{vSTAMP}, s98, m0"); a("s_add_u32 m0, m0, 32"); a("s_nop 1"); a(f"v_writelane_b32 v{vSTAMP}, s100, m0"); a("s_mov_b32 m0, s99")
        g.nst += 4
    body("mid", 16)
    a(f"s_cbranch_scc1 {loop}")
    g.stamp()
    body("pen", 24)
    g.stamp()
    body("last", 32)
    g.stamp()
    poll = a.label("sp"); ok = a.label("sok")
    a(f"s_mov_b32 s{sTO}, 0")
    a(f"{poll}:")
    a(f"v_cmp_ne_u64 vcc, {sr(sNON,2)}, {vr(vFl,2)}")
    for j in range(4):
        a(f"v_cmp_ne_u64 {sr(sT,2)}, {sr(sNON,2)}, {vr(vS+4*j+2,2)}"); a(f"s_or_b64 vcc, vcc, {sr(sT,2)}")
    a(f"s_cbranch_vccz {ok}")
    for ins in ld_flags_stats(): a(ins)
    a("s_waitcnt vmcnt(0)")
    for n in range(8): a(ld_cs(n))
    a("s_waitcnt vmcnt(0)")
    for ins in cs_mov: a(ins)
    a(f"s_add_u32 s{sTO}, s{sTO}, 1"); a(f"s_cmp_lt_u32 s{sTO}, {TIMEOUT}"); a(f"s_cbranch_scc1 {poll}")
    a(f"{ok}:")
    K0 = -2.0 * 0.7978845608028654 * LOG2E
    K1 = K0 * 0.044715
    for j in range(4):
        c = vS + 4*j
        a(f"v_xor_b32 v{c+3}, 0x80000000, v{c}"); a(f"v_lshrrev_b32 v{c+2}, 16, v{c+3}"); a(f"v_or_b32 v{c+3}, v{c+2}, v{c+3}")
        a(f"v_mul_f32 v{c}, {f32(K0)}, v{c+1}"); a(f"v_mul_f32 v{c+2}, v{c+1}, v{c+1}")
        for e in range(2): a(f"v_accvgpr_write_b32 a{MB+2*j+e}, v{c+3}")
        a(f"v_mul_f32 v{c+1}, v{c+2}, v{c+1}"); a(f"v_rcp_f32 v{c+2}, v{c+2}"); a(f"v_mul_f32 v{c+1}, {f32(K1)}, v{c+1}")
    units = [(t, jp) for t in range(7) for jp in range(2)]
    def corr(n):
        t, jp = units[n]
        return [f"v_mfma_f32_16x16x16_bf16 {vr(acc(j,mt,t),4)}, {ar(csreg(7*mt+t),2)}, {ar(MB+2*j,2)}, {vr(acc(j,mt,t),4)}" for j in (2*jp, 2*jp+1) for mt in range(2)]
    for ins in corr(0) + corr(1): a(ins)
    a("s_nop 3")
    def W2():
        if w2:
            for ins in w2.pop(0): a(ins)
    T = 2
    for n, (t, jp) in enumerate(units):
        b = acc(2*jp, 0, t)
        cm = corr(n+2) if n + 2 < 14 else []
        prs = [(b, b+4, vS+8*jp), (b+2, b+6, vS+8*jp), (b+8, b+12, vS+8*jp+4), (b+10, b+14, vS+8*jp+4)]
        for i, (gt, u_, c) in enumerate(prs): a(f"v_pk_mul_f32 {vr(T+2*i,2)}, {vr(gt,2)}, {vr(gt,2)}")
        for i, (gt, u_, c) in enumerate(prs): a(f"v_pk_fma_f32 {vr(T+2*i,2)}, {vr(T+2*i,2)}, {vr(c,2)}, {vr(c,2)} op_sel:[0,1,0] op_sel_hi:[1,1,0]")
        for i, (gt, u_, c) in enumerate(prs): a(f"v_pk_mul_f32 {vr(T+2*i,2)}, {vr(T+2*i,2)}, {vr(gt,2)}")
        W2()
        for i in range(8):
            a(f"v_exp_f32 v{T+i}, v{T+i}")
            if cm and i % 2 == 0: a(cm.pop(0))
        for i, (gt, u_, c) in enumerate(prs): a(f"v_pk_mul_f32 {vr(u_,2)}, {vr(u_,2)}, {vr(gt,2)}")
        for i, (gt, u_, c) in enumerate(prs): a(f"v_pk_fma_f32 {vr(T+2*i,2)}, {vr(T+2*i,2)}, {vr(c+2,2)}, {vr(c+2,2)} op_sel_hi:[1,0,0]")
        W2()
        for i in range(8): a(f"v_rcp_f32 v{T+i}, v{T+i}")
        a(f"s_mov_b32 s{sT}, {t*65536}")
        for i, (gt, u_, c) in enumerate(prs): a(f"v_pk_mul_f32 {vr(u_,2)}, {vr(u_,2)}, {vr(T+2*i,2)}")
        for i in (0, 2, 1, 3):
            u_ = prs[i][1]
            a(f"v_cvt_pk_bf16_f32 v{b+i}, v{u_}, v{u_+1}")
        a(f"v_permlane16_swap_b32 v{b}, v{b+2}")
        a("s_nop 0")
        a(f"v_permlane16_swap_b32 v{b+1}, v{b+3}")
        a(f"buffer_store_dwordx4 {vr(b,4)}, v{vO}, {sr(sACT,4)}, s{sT} offen offset:{512*jp} {SC}")
    assert not w2
    g.stamp()

def gen_mega(dbg=False, as_list=False, p01={}, g1={}, g2={}):
    g = G(dbg); a = g.a
    end = a.label("end")
    a(f"s_cmp_ge_u32 s2, 256"); a(f"s_cbranch_scc1 {end}")
    phase01(g, **p01); phase_gemm1(g, **g1); phase_gemm2(g, **g2)
    if dbg:
        g.stamp()
        a("s_waitcnt vmcnt(0)")
        g.stamp()
        srd(a, 4, pWS, 1 << 19, M_DBG)
        a(f"v_lshlrev_b32 v1, 2, v{vL}")
        a(f"s_lshl_b32 s{sT}, s2, 2"); a(f"s_add_u32 s{sT}, s{sT}, s{sWave}"); a(f"s_lshl_b32 s{sT}, s{sT}, 8")
        a(f"buffer_store_dword v{vSTAMP}, v1, s[4:7], s{sT} offen")
    a(f"{end}:")
    a("s_endpgm")
    k = f"kernel={NAME} " if as_list else ""
    launch = f"; @launch {k}grid=(256,1,1) block=(256,1,1) lds=163840\n"
    body = a.text()
    import subprocess, tempfile, os
    with tempfile.TemporaryDirectory() as td:
        open(td + "/x.s", "w").write('.amdgcn_target "amdgcn-amd-amdhsa--gfx950"\n.text\n' + body.replace("CODE_BYTES", "0x1234"))
        subprocess.run(["clang", "-x", "assembler", "-target", "amdgcn-amd-amdhsa", "-mcpu=gfx950", "-c", td + "/x.s", "-o", td + "/x.o"], check=True)
        subprocess.run(["llvm-objcopy", "-O", "binary", "-j", ".text", td + "/x.o", td + "/x.bin"], check=True)
        n = os.path.getsize(td + "/x.bin")
    assert n < 65536
    body = body.replace("CODE_BYTES", str((n - 768) & ~63))
    return launch, kernel_header(NAME) + body, kernel_desc(NAME, 512, 256)

if __name__ == "__main__":
    from mk import *
    mk([gen_mega(dbg=True, as_list=True, g1=dict(FS=True))], 'mega_c.s')
    mk([gen_mega(dbg=True, as_list=True, g1=dict(FS=True, X0=2))], 'mega_d.s')
    assemble([gen_mega()], 'm3.s')
```

```python
from common import *
LOG2E = 1.4426950408889634
NAME = "sequential_preLN__ssm_conv_s4d__geglu_ffn__prompt_kernel"

M_H4  = 0x0000000
M_ACT = 0x0400000
M_ST2 = 0x1200000
M_FLG = 0x1210000
M_CS  = 0x1220000
M_DBG = 0x1280000
M_U2  = 0x1300000
M_END = 0x1b00000

pU, pLOGA, pAIM, pCRE, pCIM, pLOGDT, pDSKIP, pBX, pWG, pWU, pWD, pOUT, pDBG, pWS = [64 + 2*i for i in range(14)]
sNON = 92; sWave = 94; sCG = 95; sTO = 96
sFLG = 60
sT = 48
vL = 30; vSTAMP = 31
SC = "sc0 sc1"

SLOT1 = 28800; UPOFF = 14464
UCS = 4512; UCH = 4*UCS; UPAD = 400
KCS = 4224; KCH = 8448; KPAD = 112
UBASE = 2*SLOT1
KBASE = UBASE + 4*UCH
SBASE = KBASE + 4*KCH
PBASE = 4*SLOT1
RS = 528; TOFF = 24*RS + 16
NBASE = SBASE + 240
assert SBASE + 256 <= 163840

class G:
    def __init__(self, dbg):
        self.a = Asm("mk"); self.dbg = dbg; self.nst = 0
    def stamp(self):
        if not self.dbg: return
        a = self.a
        a("s_memrealtime s[98:99]"); a("s_memtime s[100:101]"); a("s_waitcnt lgkmcnt(0)")
        a(f"v_writelane_b32 v{vSTAMP}, s98, {self.nst}"); a(f"v_writelane_b32 v{vSTAMP}, s100, {32+self.nst}")
        self.nst += 1

def cmul(a, d, x, y, conj_out=False):
    n1 = " neg_hi:[0,1]" if conj_out else ""
    n2 = " neg_hi:[0,1,0]" if conj_out else ""
    a(f"v_pk_mul_f32 {vr(d,2)}, {vr(x,2)}, {vr(y,2)} op_sel_hi:[0,1]{n1}")
    a(f"v_pk_fma_f32 {vr(d,2)}, {vr(x,2)}, {vr(y,2)}, {vr(d,2)} op_sel:[1,1,0] op_sel_hi:[1,0,1] neg_lo:[0,1,0]{n2}")

def red4(v, t):
    o = []
    for d in (4, 8):
        o += [f"v_add_f32_dpp v{v+e}, v{v+e}, v{v+e} row_ror:{d} row_mask:0xf bank_mask:0xf" for e in range(4)]
    for op in ("v_permlane16_swap_b32", "v_permlane32_swap_b32"):
        o += [f"v_mov_b32 v{t+e}, v{v+e}" for e in range(4)]
        o += [f"{op} v{t+e}, v{v+e}" for e in range(4)]
        o += [f"v_add_f32 v{v+e}, v{v+e}, v{t+e}" for e in range(4)]
    return o

def stats_final(W, t, packed=False):
    o = [f"v_mul_f32 v{W+e}, {f32(1/1024)}, v{W+e}" for e in range(4)]
    o += [f"v_fma_f32 v{W+2+e}, -v{W+e}, v{W+e}, v{W+2+e}" for e in range(2)]
    o += [f"v_max_f32 v{W+2+e}, 0, v{W+2+e}" for e in range(2)]
    def rnd(b): return [f"v_cvt_pk_bf16_f32 v{t}, v{b}, v{b+1}", f"v_lshlrev_b32 v{b}, 16, v{t}", f"v_and_b32 v{b+1}, 0xffff0000, v{t}"]
    o += rnd(W+2)
    o += [f"v_add_f32 v{W+2+e}, {f32(1e-5)}, v{W+2+e}" for e in range(2)]
    o += rnd(W+2)
    o += [f"v_sqrt_f32 v{W+2+e}, v{W+2+e}" for e in range(2)]
    if packed:
        return o + [f"v_cvt_pk_bf16_f32 v{t}, v{W}, v{W+1}", f"v_cvt_pk_bf16_f32 v{t+1}, v{W+2}, v{W+3}"]
    o += rnd(W)
    o += rnd(W+2)
    o += [f"v_rcp_f32 v{W+2+e}, v{W+2+e}" for e in range(2)]
    o += ["s_nop 0"]
    return o

def ln_stats8(a, pairs, T, W, pre_barrier):
    for k, (r0, r1) in enumerate(pairs):
        a(f"v_lshlrev_b32 v{T+4*k}, 16, v{r0}"); a(f"v_lshlrev_b32 v{T+4*k+1}, 16, v{r1}")
        a(f"v_and_b32 v{T+4*k+2}, 0xffff0000, v{r0}"); a(f"v_and_b32 v{T+4*k+3}, 0xffff0000, v{r1}")
    a(f"v_pk_add_f32 {vr(W,2)}, {vr(T,2)}, {vr(T+4,2)}"); a(f"v_pk_mul_f32 {vr(W+2,2)}, {vr(T,2)}, {vr(T,2)}")
    a(f"v_pk_add_f32 {vr(W+4,2)}, {vr(T+2,2)}, {vr(T+6,2)}"); a(f"v_pk_mul_f32 {vr(W+6,2)}, {vr(T+2,2)}, {vr(T+2,2)}")
    for k in range(2, 16):
        b = W + 4*(k & 1)
        if k >= 4: a(f"v_pk_add_f32 {vr(b,2)}, {vr(b,2)}, {vr(T+2*k,2)}")
        a(f"v_pk_fma_f32 {vr(b+2,2)}, {vr(T+2*k,2)}, {vr(T+2*k,2)}, {vr(b+2,2)}")
    a(f"v_pk_add_f32 {vr(W,2)}, {vr(W,2)}, {vr(W+4,2)}"); a(f"v_pk_add_f32 {vr(W+2,2)}, {vr(W+2,2)}, {vr(W+6,2)}")
    a(f"v_and_b32 v{W+24}, 3, v{vL}"); a(f"v_lshlrev_b32 v{W+24}, 4, v{W+24}"); a(f"v_add_u32 v{W+24}, {SBASE}, v{W+24}")
    a(f"s_lshl_b32 s{sT}, s{sWave}, 6"); a(f"v_add_u32 v{W+25}, s{sT}, v{W+24}")
    for ins in red4(W, W+4): a(ins)
    a(f"ds_write_b128 v{W+25}, {vr(W,4)}")
    pre_barrier()
    a("s_waitcnt lgkmcnt(0)"); a("s_barrier")
    E = W + 8
    for w in range(4): a(f"ds_read_b128 {vr(E+4*w,4)}, v{W+24} offset:{64*w}")
    a("s_waitcnt lgkmcnt(0)")
    a(f"v_pk_add_f32 {vr(W,2)}, {vr(E,2)}, {vr(E+4,2)}"); a(f"v_pk_add_f32 {vr(W+4,2)}, {vr(E+8,2)}, {vr(E+12,2)}")
    a(f"v_pk_add_f32 {vr(W+2,2)}, {vr(E+2,2)}, {vr(E+6,2)}"); a(f"v_pk_add_f32 {vr(W+6,2)}, {vr(E+10,2)}, {vr(E+14,2)}")
    a(f"v_pk_add_f32 {vr(W,2)}, {vr(W,2)}, {vr(W+4,2)}"); a(f"v_pk_add_f32 {vr(W+2,2)}, {vr(W+2,2)}, {vr(W+6,2)}")
    for ins in stats_final(W, W+4, True): a(ins)

TIMEOUT = 400000
def set_flag(g, which, tmp):
    a = g.a
    sk = a.label("fl")
    a(f"s_cmp_lg_u32 s{sWave}, 0"); a(f"s_cbranch_scc1 {sk}")
    a(f"s_lshl_b32 s{sT}, s2, 6"); a(f"s_add_u32 s{sT}, s{sT}, {which*16384}")
    a(f"v_mov_b32 v{tmp}, s{sNON}"); a(f"v_mov_b32 v{tmp+1}, s{sNON+1}"); a(f"v_mov_b32 v{tmp+2}, 0")
    a("s_mov_b64 exec, 1")
    a(f"buffer_store_dwordx2 {vr(tmp,2)}, v{tmp+2}, {sr(sFLG,4)}, s{sT} offen {SC}")
    a("s_mov_b64 exec, -1")
    a(f"{sk}:")

def poll_flags(g, voff, soff, tmp, preloaded=False):
    a = g.a
    lp = a.label("poll"); dn = a.label("pdone"); pre = a.label("ppre")
    a(f"s_mov_b32 s{sTO}, 0")
    if preloaded: a(f"s_branch {pre}")
    a(f"{lp}:")
    a(f"buffer_load_dwordx2 {vr(tmp,2)}, v{voff}, {sr(sFLG,4)}, s{soff} offen {SC}")
    if preloaded: a(f"{pre}:")
    a("s_waitcnt vmcnt(0)")
    a(f"v_cmp_ne_u64 vcc, {sr(sNON,2)}, {vr(tmp,2)}")
    a(f"s_cbranch_vccz {dn}")
    a("s_mov_b64 exec, vcc")
    a(f"s_add_u32 s{sTO}, s{sTO}, 1"); a(f"s_cmp_lt_u32 s{sTO}, {TIMEOUT}"); a(f"s_cbranch_scc1 {lp}")
    a(f"{dn}:")
    a("s_mov_b64 exec, -1")

class VM:
    def __init__(self): self.ops = []
    def add(self, tag): self.ops.append(tag)
    def wait_for(self, tag):
        idx = max(i for i, t in enumerate(self.ops) if t == tag)
        n = len(self.ops) - 1 - idx
        assert n <= 63, n
        return n


pDMA = 224
pX = 231; pST = 232; pWc = 233; pO = 234; pSR = 235; pTch = 236
sG_W = 4
sG_OW = 22; sG_M0 = 24; sG_F = 27; sG_R = 31; sG_SR = 35; sG_TN = 34; sG_TM = 33

def g1_dma(reg, i, fl=""):
    return f"buffer_load_dwordx4 v{reg+i}, {sr(sG_W,4)}, s{sG_OW} offen offset:{(i & 3)*1024} {fl} lds"
sG_OWN = 19; sG_OWN2 = 18
def g1_wadv(kind):
    if kind == "even": return [f"s_add_u32 s{sG_OW}, s{sG_OW}, {64*7168}"]
    first = f"s_mov_b32 s{sG_OW}, 0" if kind == "own" else f"s_add_u32 s{sG_OW}, s{sG_OW}, {64*7168}"
    return [first, f"s_cmp_eq_u32 s{sG_OW}, s{sG_OWN}", f"s_cselect_b32 s{sG_OW}, s{sG_OWN2}, s{sG_OW}"]

def gemm1_addr(g, part):
    a = g.a if part == 0 else (lambda x: None)
    t0 = 240; sM = 26
    a(f"s_and_b32 s{sT}, s2, 7")
    a(f"s_bfe_u32 s{sG_TM}, s2, 0x30003")
    a(f"s_lshl_b32 s{sG_TN}, s{sT}, 2"); a(f"s_lshr_b32 s{sT+2}, s2, 6"); a(f"s_add_u32 s{sG_TN}, s{sG_TN}, s{sT+2}")
    a(f"s_lshl_b32 s{sM}, s{sG_TM}, 8")
    a(f"s_lshl_b32 s{sG_R}, s{sG_TN}, 3"); a(f"s_add_u32 s{sG_R}, s{sG_R}, s{sM}")
    a(f"s_mul_i32 s{sG_F}, s{sG_TN}, 112")
    a(f"s_cmp_ge_u32 s{sWave}, 2")
    a(f"s_cselect_b32 s{sG_W}, s{pWU}, s{pWG}"); a(f"s_cselect_b32 s{sG_W+1}, s{pWU+1}, s{pWG+1}")
    a(f"s_mov_b32 s{sG_W+2}, {SZ_W}"); a(f"s_mov_b32 s{sG_W+3}, 0x20000")
    a(f"s_and_b32 s{sT}, s{sWave}, 1"); a(f"s_mul_i32 s{sT+1}, s{sT}, 448"); a(f"s_lshl_b32 s{sT+2}, s{sG_F}, 1")
    for i in range(7):
        imm = (i & 3) * 1024
        a(f"v_add_u32 v{t0}, s{sT+1}, v{vL}")
        if i: a(f"v_add_u32 v{t0}, {64*i}, v{t0}")
        a(f"v_mul_u32_u24 v{t0+1}, 4682, v{t0}"); a(f"v_lshrrev_b32 v{t0+1}, 16, v{t0+1}")
        a(f"v_mul_u32_u24 v{t0+1}, {7168-224}, v{t0+1}")
        a(f"v_lshl_add_u32 v{t0+1}, v{t0}, 4, v{t0+1}")
        a(f"v_add_u32 v{pDMA+i}, s{sT+2}, v{t0+1}")
        if imm: a(f"v_subrev_u32 v{pDMA+i}, {imm}, v{pDMA+i}")
    a(f"v_and_b32 v{t0+3}, 3, v{vL}")
    a(f"s_mul_i32 s{sG_M0}, s{sT}, 7168"); a(f"s_lshr_b32 s{sT}, s{sWave}, 1"); a(f"s_mul_i32 s{sT}, s{sT}, {UPOFF}")
    a(f"s_add_u32 s{sG_M0}, s{sG_M0}, s{sT}")
    a(f"s_mul_i32 s{sG_OW}, s{sG_TM}, {128*7168}")
    a(f"s_mov_b32 s{sG_OWN}, s{sG_OW}"); a(f"s_add_u32 s{sG_OWN2}, s{sG_OW}, {128*7168}")
    a = g.a if part == 1 else (lambda x: None)
    a(f"s_lshl_b32 s{sT}, s{sWave}, 6"); a(f"s_add_u32 s{sM}, s{sM}, s{sT}")
    a(f"v_and_b32 v{t0}, 31, v{vL}"); a(f"v_add_u32 v{t0}, s{sM}, v{t0}"); a(f"v_lshlrev_b32 v{t0}, 4, v{t0}")
    a(f"v_lshrrev_b32 v{t0+1}, 5, v{vL}")
    a(f"v_lshl_add_u32 v{pO}, v{t0+1}, 15, v{t0}"); a(f"s_lshl_b32 s{sT}, s{sG_F}, 12"); a(f"v_add_u32 v{pO}, s{sT}, v{pO}")
    a(f"v_and_b32 v{t0}, 15, v{vL}"); a(f"v_add_u32 v{t0}, s{sM}, v{t0}")
    a(f"v_lshlrev_b32 v{pST}, 4, v{t0}")
    a(f"v_lshrrev_b32 v{t0+1}, 4, v{vL}")
    a(f"v_lshlrev_b32 v{pX}, 3, v{t0}"); a(f"v_lshl_add_u32 v{pX}, v{t0+1}, 14, v{pX}")
    a(f"v_lshrrev_b32 v{t0+2}, 2, v{vL}"); a(f"v_mul_u32_u24 v{pWc}, 224, v{t0+2}")
    a(f"v_lshl_add_u32 v{pWc}, v{t0+3}, 3, v{pWc}")
    a(f"v_lshrrev_b32 v{pSR}, 2, v{vL}"); a(f"v_lshlrev_b32 v{pSR}, 14, v{pSR}"); a(f"v_lshl_add_u32 v{pSR}, v{t0+3}, 4, v{pSR}")
    a(f"s_lshl_b32 s{sG_SR}, s{sWave}, 20"); a(f"s_lshl_b32 s{sT}, s{sG_R}, 3"); a(f"s_add_u32 s{sG_SR}, s{sG_SR}, s{sT}")

def phase01(g, ORDER="S", KMID=2, DPOST=0, XNT="nt", TOUCH=False, DNT="", DSP=18, CPF=True, DSTART=0, CT=0, DPS=2, DSET=7):
    a = g.a
    vm = VM()
    a(f"s_memrealtime {sr(sT+2,2)}")
    a("s_load_dwordx16 s[64:79], s[0:1], 0")
    a("s_load_dwordx8 s[80:87], s[0:1], 64")
    a("s_load_dwordx4 s[88:91], s[0:1], 96")
    a(f"v_lshrrev_b32 v2, 6, v0")
    a(f"v_and_b32 v{vL}, 63, v0")
    a(f"v_readfirstlane_b32 s{sWave}, v2")
    a(f"s_and_b32 s{sT}, s2, 7"); a(f"s_lshl_b32 s{sT}, s{sT}, 5")
    a(f"s_lshr_b32 s{sCG}, s2, 3"); a(f"s_add_u32 s{sCG}, s{sCG}, s{sT}")
    if g.dbg: a(f"v_mov_b32 v{vSTAMP}, 0")
    a(f"v_and_b32 v3, 3, v{vL}"); a(f"v_lshrrev_b32 v4, 2, v{vL}")
    a(f"v_lshlrev_b32 v5, 12, v3"); a(f"v_lshl_add_u32 v5, v4, 4, v5")
    a(f"s_lshl_b32 s{sT}, s2, 14"); a(f"s_lshl_b32 s{sT+1}, s{sWave}, 9"); a(f"s_add_u32 s{sT}, s{sT}, s{sT+1}")
    a(f"v_mov_b32 v1, 0")
    sD = 97
    a(f"s_lshl_b32 s{sD}, s{sCG}, 2"); a(f"s_add_u32 s{sD}, s{sD}, s{sWave}")
    a(f"s_lshl_b32 s{sT+4}, s{sD}, 8"); a(f"v_lshlrev_b32 v2, 2, v{vL}")
    a(f"s_lshl_b32 s{sT+5}, s{sD}, 1")
    vF = 29; vR = 8
    a(f"v_lshlrev_b32 v{vF}, 6, v0"); a(f"v_lshlrev_b32 v{vR}, 4, v0")
    if CPF:
        a("s_getpc_b64 s[36:37]"); a("s_and_b32 s36, s36, 0xffffff00"); a(f"s_mov_b32 s38, CODE_BYTES"); a("s_mov_b32 s39, 0x20000")
        a(f"s_lshr_b32 s{sT+1}, s2, 3"); a(f"s_and_b32 s{sT+1}, s{sT+1}, 3"); a(f"s_lshl_b32 s{sT+1}, s{sT+1}, 14")
        a(f"buffer_load_dword a204, v{vF}, s[36:39], s{sT+1} offen"); vm.add("T")
    a("s_waitcnt lgkmcnt(0)")
    if g.dbg: a(f"v_writelane_b32 v{vSTAMP}, s{sT+2}, 31")
    g.stamp()
    sX = 36; sDB = 8; sU2 = 40; sH = 44; sP = 12
    srd(a, sDB, pDBG, 256)
    nn = a.label("nn")
    a(f"s_or_b32 s{sT+1}, s2, s{sWave}"); a(f"s_cmp_lg_u32 s{sT+1}, 0"); a(f"s_cbranch_scc1 {nn}")
    a(f"s_or_b32 s{sT+2}, s{sT+2}, 1")
    a(f"v_mov_b32 v6, s{sT+2}"); a(f"v_mov_b32 v7, s{sT+3}")
    a("s_mov_b64 exec, 0xf")
    a(f"buffer_store_dwordx2 v[6:7], v{vF}, {sr(sDB,4)}, 0 offen {SC}")
    a("s_mov_b64 exec, -1")
    a(f"{nn}:")
    PR = 24; XD = 32
    def ld_params():
        for i, p in enumerate((pLOGA, pAIM, pCRE, pCIM)):
            srd(a, sP+4*i, p, 1024*256)
            a(f"buffer_load_dword v{PR+i}, v2, {sr(sP+4*i,4)}, s{sT+4} offen"); vm.add("P")
        srd(a, 28, pLOGDT, 2048)
        a(f"buffer_load_ushort v{PR+4}, v1, s[28:31], s{sT+5} offen"); vm.add("P")
    def ld_x():
        srd(a, sX, pU, 2048*2048)
        for e in range(2):
            for i in range(2):
                a(f"buffer_load_dwordx4 {vr(XD+8*e+4*i,4)}, v5, {sr(sX,4)}, s{sT} offen offset:{2048*e+256*i} {XNT}"); vm.add("X")
    if ORDER[0] == "S": ld_params(); ld_x()
    else: ld_x(); ld_params()
    if TOUCH:
        sh = TOUCH
        a(f"v_lshlrev_b32 v6, {sh}, v0")
        for n, (p, sz) in enumerate(((pWS, M_XCH + SZ_XCH), (pOUT, 4 << 20), (pWG, SZ_W), (pWU, SZ_W), (pWD, SZ_W))):
            srd(a, sX, p, sz)
            for o in range(0, sz, 256 << sh):
                a(f"s_mov_b32 s{sT+1}, {o}")
                a(f"buffer_load_dword a{205+n}, v6, {sr(sX,4)}, s{sT+1} offen"); vm.add("T")
        a(f"buffer_load_dword a212, v1, {sr(sDB,4)}, 0 offen sc1"); vm.add("T")
    gemm1_addr(g, 0)
    bgl = []
    for stg in range(2):
        for i in range(7):
            grp = []
            if i in (0, 4): grp += [(f"s_add_u32 m0, s{sG_M0}, {stg*SLOT1 + (4096 if i else 0)}", None), ("s_nop 0", None)]
            grp.append((g1_dma(pDMA, i, DNT), "D"))
            if i == 6: grp += [(x, None) for x in g1_wadv('own' if stg else 'even')]
            bgl.append(grp)
    if CT:
        a(f"s_lshl_b32 s16, s2, 1"); a(f"s_and_b32 s17, s{sWave}, 1"); a(f"s_add_u32 s16, s16, s17"); a(f"s_mul_i32 s16, s16, 14336")
        a(f"v_lshlrev_b32 v237, 4, v{vL}")
        tl = []
        for i in range(14):
            grp = [(f"buffer_load_dwordx4 a[200:203], v237, {sr(sG_W,4)}, s16 offen offset:{1024*(i&3)}", "T")]
            if i & 3 == 3: grp.append((f"s_add_u32 s16, s16, 4096", None))
            tl.append(grp)
        bgl = tl + bgl
    def take(n):
        out = bgl[:n]; del bgl[:n]; return out
    for grp in take(DSTART):
        for ins, tag in grp:
            a(ins)
            if tag: vm.add(tag)
    gemm1_addr(g, 1)
    srd(a, sFLG, pWS, 4*16384, M_FLG)
    srd(a, sU2, pWS, 4 << 20, M_U2); srd(a, sH, pWS, 4 << 20, M_H4)
    a(f"s_lshl_b32 s{sT+1}, s{sCG}, 3")
    a(f"s_load_dwordx2 s[58:59], {sr(pDSKIP,2)}, s{sT+1}")
    a(f"v_lshlrev_b32 v6, 15, v4"); a(f"v_lshl_add_u32 v6, v3, 4, v6")
    nu = 9; vG = 19
    a(f"v_and_b32 v{nu}, 15, v{vL}"); a(f"v_lshrrev_b32 v{vG}, 4, v{vL}")
    sUB = sT+8; sKB = sT+9; sTB = sT+7
    a(f"s_mul_i32 s{sUB}, s{sWave}, {UCH}"); a(f"s_add_u32 s{sUB}, s{sUB}, {UBASE}")
    a(f"s_mul_i32 s{sKB}, s{sWave}, {KCH}"); a(f"s_add_u32 s{sKB}, s{sKB}, {KBASE}")
    a(f"s_add_u32 s{sTB}, s{sUB}, {TOFF}")
    vTa = 10; vTb = 11; vTc = 12; vTw = 13; vO1 = 15; vO2 = 18
    a(f"v_lshlrev_b32 v16, 7, v{vG}"); a(f"v_add_u32 v16, s{sUB}, v16")
    a(f"v_bfe_u32 v17, v{vL}, 2, 2"); a(f"v_mul_u32_u24 v{vTa}, {RS}, v17"); a(f"v_add_u32 v{vTa}, v{vTa}, v16")
    a(f"v_mul_u32_u24 v{vTb}, {RS}, v3")
    a(f"v_bfe_u32 v17, v{vL}, 3, 1"); a(f"v_lshlrev_b32 v{vTc}, v17, v{vTb}")
    a(f"v_add_u32 v{vTb}, v{vTb}, v16"); a(f"v_add_u32 v{vTc}, v{vTc}, v16")
    a(f"v_lshlrev_b32 v{vTw}, 3, v{vL}"); a(f"v_add_u32 v{vTw}, s{sUB}, v{vTw}")
    a(f"v_mov_b32 v16, 0x3c00"); a(f"v_mov_b32 v17, 0x3c00")
    for e in (0, 4, 12): a(f"ds_write_b64 v{vTw}, v[16:17] offset:{e*RS}")
    a(f"v_lshlrev_b32 v{vO1}, 6, v{nu}"); a(f"v_lshl_add_u32 v{vO1}, v{vG}, 3, v{vO1}"); a(f"v_add_u32 v{vO1}, s{sTB}, v{vO1}")
    a(f"v_lshlrev_b32 v22, 4, v{nu}"); a(f"v_lshl_add_u32 v22, v{vG}, 3, v22"); a(f"v_add_u32 v22, 1024, v22")
    a(f"v_lshlrev_b32 v23, 3, v{nu}"); a(f"v_lshl_add_u32 v23, v{vG}, 7, v23"); a(f"v_add_u32 v23, {1280-256}, v23")
    a(f"v_cmp_gt_u32 vcc, 32, v{vL}"); a("s_nop 1")
    a(f"v_cndmask_b32 v{vO2}, v23, v22, vcc"); a(f"v_add_u32 v{vO2}, s{sTB}, v{vO2}")
    SA = 184
    def sel(dst, lo32, hi32):
        a(f"v_mov_b32 v{dst}, {hi32:#x}"); a(f"v_mov_b32 v22, {lo32:#x}"); a(f"v_cndmask_b32 v{dst}, v{dst}, v22, vcc")
    sel(SA, 0x01000302, 0x01000100); sel(SA+1, 0x01000302, 0x01000504); sel(SA+2, 0x03020504, 0x01000504); sel(SA+3, 0x03020504, 0x05040504)
    a(f"v_mov_b32 v{SA+4}, v{SA+3}")
    a(f"s_mov_b32 s{sT+3}, 0x03020504"); a(f"v_writelane_b32 v{SA+4}, s{sT+3}, 32")
    a(f"s_mov_b32 s{sT+2}, 0x0c0c0504"); a(f"v_writelane_b32 v{SA+4}, s{sT+2}, 0")
    vK = 20; vK2 = 21; vZ = 14
    a(f"v_lshlrev_b32 v22, 4, v{vL}"); a(f"v_add_u32 v{vK}, s{sKB}, v22"); a(f"v_add_u32 v{vK2}, v{vK}, v22")
    a(f"v_add_u32 v{vZ}, s{sUB}, v22")
    ZR = 180
    for r in range(ZR, ZR+4): a(f"v_mov_b32 v{r}, 0")
    a("s_mov_b64 exec, 0x7f")
    a(f"ds_write_b128 v{vK}, {vr(ZR,4)}"); a(f"ds_write_b128 v{vK}, {vr(ZR,4)} offset:{KCS}")
    a("s_mov_b64 exec, -1")
    vA = 4; vB = 5; vY = 7
    a(f"v_and_b32 v22, 1, v{vL}"); a(f"v_mul_u32_u24 v{vA}, {KCS}, v22")
    a(f"v_bfe_u32 v22, v{vL}, 1, 3"); a(f"v_sub_u32 v22, v22, v{vG}"); a(f"v_add_u32 v22, 3, v22")
    a(f"v_lshl_add_u32 v{vA}, v22, 4, v{vA}"); a(f"v_add_u32 v{vA}, s{sKB}, v{vA}")
    a(f"v_mul_u32_u24 v{vB}, {UCS}, v3")
    a(f"v_bfe_u32 v22, v{vL}, 2, 2"); a(f"v_lshl_add_u32 v23, v22, 3, v{vG}")
    a(f"v_lshl_add_u32 v{vB}, v23, 4, v{vB}"); a(f"v_add_u32 v{vB}, s{sUB}, v{vB}")
    a(f"v_lshlrev_b32 v{vY}, 5, v22"); a(f"v_lshl_add_u32 v{vY}, v{vG}, 3, v{vY}"); a(f"v_add_u32 v{vY}, v{vY}, v3")
    a(f"v_lshlrev_b32 v{vY}, 2, v{vY}"); a(f"v_add_u32 v{vY}, s{sKB}, v{vY}")
    vUC = 190
    a(f"v_lshlrev_b32 v22, 2, v0")
    for c in range(4):
        for ch in range(2): a(f"v_add_u32 v{vUC+2*c+ch}, {UBASE + ch*UCH + c*UCS + UPAD - 4*(c+1)}, v22")
    ACC = 48; vSC = 60

    def setup():
        dt = PR+4
        Z = 64; C = 68; TT = 72
        a(f"v_lshlrev_b32 v{dt}, 16, v{dt}"); a(f"v_lshlrev_b32 v{TT}, 16, v{PR}"); a(f"v_and_b32 v{TT+1}, 0xffff0000, v{PR}")
        for r in (dt, TT, TT+1): a(f"v_mul_f32 v{r}, {f32(LOG2E)}, v{r}")
        for r in (dt, TT, TT+1): a(f"v_exp_f32 v{r}, v{r}")
        for k, b in ((1, Z+1), (2, C), (3, C+1)):
            a(f"v_lshlrev_b32 v{b}, 16, v{PR+k}"); a(f"v_and_b32 v{b+2}, 0xffff0000, v{PR+k}")
        a(f"v_cvt_pk_bf16_f32 v{dt}, v{dt}, v{dt}"); a(f"v_cvt_pk_bf16_f32 v{PR}, v{TT}, v{TT+1}")
        a(f"v_max3_f32 v{vSC}, |v{C}|, |v{C+1}|, |v{C+2}|"); a(f"v_max_f32 v{vSC}, |v{C+3}|, v{vSC}")
        a(f"v_lshlrev_b32 v{dt}, 16, v{dt}")
        a(f"v_lshlrev_b32 v{Z}, 16, v{PR}"); a(f"v_and_b32 v{Z+2}, 0xffff0000, v{PR}")
        red = [f"v_max_f32_dpp v{vSC}, v{vSC}, v{vSC} {m} row_mask:0xf bank_mask:0xf" for m in ("quad_perm:[1,0,3,2]", "quad_perm:[2,3,0,1]", "row_ror:4", "row_ror:8")]
        a(red[0])
        for i in range(4): a(f"v_mul_f32 v{Z+i}, v{Z+i}, v{dt}")
        a(red[1])
        for m in range(2):
            a(f"v_mul_f32 v{Z+2*m}, {f32(-LOG2E)}, v{Z+2*m}"); a(f"v_mul_f32 v{Z+2*m+1}, 0.15915494, v{Z+2*m+1}")
        a(red[2])
        names = [1, 2, 3, 4, 8, 12, 16, 20, 24, 28, 32, 64, 96, 128, 256, 512, 528, 1024, 1536, 2048, "R1", "R2", "R3"]
        E = {n: 88 + 4*i for i, n in enumerate(names)}
        AR = 76
        for i, p in enumerate((1, 32, 512)):
            for k in range(4):
                if p == 1: a(f"v_mov_b32 v{AR+4*i+k}, v{Z+k}")
                else: a(f"v_mul_f32 v{AR+4*i+k}, {f32(p)}, v{Z+k}")
            if i == 0: a(red[3])
        for i in range(6): a(f"v_fract_f32 v{AR+2*i+1}, v{AR+2*i+1}")
        for op in ("v_permlane16_swap_b32", "v_permlane32_swap_b32"):
            a(f"v_mov_b32 v{TT}, v{vSC}"); a("s_nop 1"); a(f"{op} v{TT}, v{vSC}"); a("s_nop 0"); a(f"v_max_f32 v{vSC}, v{vSC}, v{TT}")
        for i, p in enumerate((1, 32, 512)):
            for m in range(2):
                r = AR+4*i+2*m
                a(f"v_cos_f32 v{E[p]+2*m}, v{r+1}"); a(f"v_sin_f32 v{E[p]+2*m+1}, v{r+1}"); a(f"v_exp_f32 v{r}, v{r}")
        a(f"v_frexp_exp_i32_f32 v{TT}, v{vSC}")
        a(f"v_add_f32 v{dt}, v{dt}, v{dt}")
        a(f"v_ldexp_f32 v{vSC}, v{dt}, v{TT}")
        a(f"v_sub_u32 v{TT}, 0, v{TT}")
        for i, p in enumerate((1, 32, 512)):
            for m in range(2):
                a(f"v_pk_mul_f32 {vr(E[p]+2*m,2)}, {vr(E[p]+2*m,2)}, {vr(AR+4*i+2*m,2)} op_sel_hi:[1,0]")
        for k in range(4): a(f"v_ldexp_f32 v{C+k}, v{C+k}, v{TT}")
        E["C"] = C
        ent = {1: 1, 2: 2, 3: 3, 4: 5, 8: 6, 12: 7, 16: 8, 20: 9, 24: 10, 28: 11, 32: 13, 64: 14, 96: 15, "C": 16, "R1": 17, "R2": 18, "R3": 19,
               512: 20, 528: 21, 1024: 22, 1536: 23}
        wt = [0]
        def emit(n):
            if n not in ent: return
            t = AR + 2*(wt[0] % 6); wt[0] += 1
            ng = "-" if 12 <= ent[n] < 20 else ""
            for m in range(2): a(f"v_cvt_pk_f16_f32 v{t+m}, v{E[n]+2*m}, {ng}v{E[n]+2*m+1}")
            a(f"ds_write_b64 v{vTw}, {vr(t,2)} offset:{ent[n]*RS}")
        levels = [[(2,1,1), (64,32,32), (1024,512,512)], [(3,2,1), (4,2,2), (96,64,32), (128,64,64), (1536,1024,512), (2048,1024,1024)],
                  [(8,4,4), (256,128,128), ("R1","C",128)], [(12,8,4), (16,8,8), ("R2","C",256)],
                  [(20,16,4), (24,16,8), (28,16,12), (528,512,16), ("R3","R2",128)]]
        pend = [1, 32, 512, "C"]
        for lv in levels:
            for d, x, y in lv:
                for m in range(2): a(f"v_pk_mul_f32 {vr(E[d]+2*m,2)}, {vr(E[x]+2*m,2)}, {vr(E[y]+2*m,2)} op_sel_hi:[0,1]")
            for d, x, y in lv:
                for m in range(2):
                    a(f"v_pk_fma_f32 {vr(E[d]+2*m,2)}, {vr(E[x]+2*m,2)}, {vr(E[y]+2*m,2)}, {vr(E[d]+2*m,2)} op_sel:[1,1,0] op_sel_hi:[1,0,1] neg_lo:[0,1,0]")
            for n in pend: emit(n)
            pend = [d for d, x, y in lv]
        for n in pend: emit(n)
        e = E[2048]
        a(f"v_mul_f32 v61, v{e}, v{C}"); a(f"v_fma_f32 v61, -v{e+1}, v{C+1}, v61")
        a(f"v_fma_f32 v61, v{e+2}, v{C+2}, v61"); a(f"v_fma_f32 v61, -v{e+3}, v{C+3}, v61")
        wave_sum(a, 61, 62, 1)
        a(f"v_mul_f32 v61, v61, v{vSC}")
        a("v_cvt_pk_bf16_f32 v61, v61, v61")
        a(f"v_mov_b32 v62, s{sTB}")
        a(f"ds_write_b32 v62, v61 offset:1536")

    FB = 64
    srcs = [(vTa, 4), (vTa, 8), (vTb, 0), (vTa, 16), (vTb, 12), (vTa, 20), (vTc, 4)]
    def rdf(step):
        return [f"ds_read_b128 {vr(FB+28*(step&1)+4*i,4)}, v{r} offset:{e*RS+16*step}" for i, (r, e) in enumerate(srcs)]
    OB = 120
    def kstep(step, bg):
        f = FB + 28*(step & 1); o = OB + 16*(step & 1)
        a("s_waitcnt lgkmcnt(0)")
        nxt = rdf(step+1) if step < 7 else []
        prods = [(o, f+12, f+16), (o+4, f, f+8), (o+8, f+4, f+8), (o+12, f+20, f+24)]
        for d, x, y in prods:
            for m in range(4): a(f"v_pk_mul_f16 v{d+m}, v{x+m}, v{y+m} op_sel_hi:[0,1]")
            for _ in range(2):
                if nxt: a(nxt.pop(0))
        for grp in bg:
            for ins, tag in grp:
                a(ins)
                if tag: vm.add(tag)
        for i, (d, x, y) in enumerate(prods):
            for m in range(4): a(f"v_pk_fma_f16 v{d+m}, v{x+m}, v{y+m}, v{d+m} op_sel:[1,1,0] op_sel_hi:[1,0,1] neg_lo:[0,1,0]")
            if i >= 2:
                c = "0" if step == 0 else vr(ACC+4*(i-2),4)
                a(f"v_mfma_f32_16x16x32_f16 {vr(ACC+4*(i-2),4)}, {vr(o+4*(i-1),4)}, {vr(o,4)}, {c}")
        a("s_nop 0")
        c = "0" if step == 0 else vr(ACC+8,4)
        a(f"v_mfma_f32_16x16x32_f16 {vr(ACC+8,4)}, {vr(o+12,4)}, {vr(o,4)}, {c}")

    def ln1():
        a(f"s_lshl_b32 s{sT}, s{sWave}, 20"); a(f"s_lshl_b32 s{sT+1}, s2, 6"); a(f"s_add_u32 s{sT}, s{sT}, s{sT+1}")
        a(f"s_mov_b32 s{sT+2}, 0x05040100"); a(f"s_mov_b32 s{sT+3}, 0x07060302")
        a(f"s_and_b32 s{sT+6}, s2, 3"); a(f"s_lshl_b32 s{sT+6}, s{sT+6}, 6")
        a(f"v_mov_b32 v63, {KBASE + KCH - 16}")
        a(f"s_waitcnt vmcnt({vm.wait_for('X')})")
        g.stamp()
        T = 64; W = 152; XP = 200
        nl = a.label("nl")
        a(f"s_cmp_lg_u32 s{sWave}, 0"); a(f"s_cbranch_scc1 {nl}")
        a(f"buffer_load_dwordx2 v[22:23], v1, {sr(sDB,4)}, s{sT+6} offen sc1")
        a(f"{nl}:")
        for q in range(4):
            for k in range(4*q, 4*q+4): a(f"v_perm_b32 v{XP+k}, v{XD+8+(k>>1)}, v{XD+(k>>1)}, s{sT+2+(k&1)}")
            a(f"s_add_u32 s{sT+1}, s{sT}, {((q>>1)*32 + (q&1))*16384}")
            a(f"buffer_store_dwordx4 {vr(XP+4*q,4)}, v6, {sr(sU2,4)}, s{sT+1} offen {SC}"); vm.add("U")
        def pre():
            if KMID:
                for ins in rdf(0): a(ins)
                for st_ in range(KMID): kstep(st_, [])
            a(f"s_waitcnt vmcnt(0)")
            gn = a.label("gn"); gn2 = a.label("gn2"); gn3 = a.label("gn3")
            a(f"s_cmp_lg_u32 s{sWave}, 0"); a(f"s_cbranch_scc1 {gn3}")
            a(f"s_mov_b32 s{sTO}, 0")
            a(f"{gn}:")
            a(f"v_readfirstlane_b32 s{sNON}, v22")
            a(f"s_cmp_lg_u32 s{sNON}, 0"); a(f"s_cbranch_scc1 {gn2}")
            a(f"buffer_load_dwordx2 v[22:23], v1, {sr(sDB,4)}, s{sT+6} offen sc1")
            a("s_waitcnt vmcnt(0)")
            a(f"s_add_u32 s{sTO}, s{sTO}, 1"); a(f"s_cmp_lt_u32 s{sTO}, {TIMEOUT}"); a(f"s_cbranch_scc1 {gn}")
            a(f"{gn2}:")
            a(f"ds_write_b64 v63, v[22:23]")
            a(f"{gn3}:")
        ln_stats8(a, [(XD+k, XD+8+k) for k in range(8)], T, W, pre)
        sk = a.label("sg")
        a(f"ds_read_b64 v[32:33], v63")
        a(f"s_cmp_lg_u32 s{sWave}, 0"); a(f"s_cbranch_scc1 {sk}")
        a(f"v_mov_b32 v{W+6}, v22"); a(f"v_mov_b32 v{W+7}, v23")
        a(f"s_lshl_b32 s{sT}, s2, 6")
        a("s_mov_b64 exec, 0xf")
        a(f"buffer_store_dwordx4 {vr(W+4,4)}, v{vR}, {sr(sFLG,4)}, s{sT} offen {SC}")
        a("s_mov_b64 exec, -1")
        a(f"{sk}:")
        g.stamp()

    if ORDER[0] == "S":
        a(f"s_waitcnt vmcnt({vm.wait_for('P')})")
        g.stamp()
        setup()
    else: assert KMID == 0
    ln1()
    for grp in take(DSET):
        for ins, tag in grp: a(ins)
    if ORDER[0] != "S":
        setup()
        g.stamp()
    if KMID == 0:
        for ins in rdf(0): a(ins)
    step = KMID
    while step < 8:
        n = min(DPS, DPOST); DPOST -= n
        kstep(step, take(n)); step += 1
        if step == KMID + 1:
            a(f"v_readfirstlane_b32 s{sNON}, v32"); a(f"v_readfirstlane_b32 s{sNON+1}, v33")
    Eb = 72
    a(f"v_lshlrev_b32 v16, 4, v{vL}"); a(f"v_add_u32 v16, s{sTB}, v16"); a(f"v_subrev_u32 v17, 4, v16")
    a(f"v_add_u32 v2, s{sTB}, v2")
    s00 = sT; s11 = sT+1; s10 = sT+2; s21 = sT+3
    a(f"s_mov_b32 s{s00}, 0x01000100"); a(f"s_mov_b32 s{s11}, 0x03020302"); a(f"s_mov_b32 s{s10}, 0x01000302"); a(f"s_mov_b32 s{s21}, 0x03020504")
    for t in (0, 1, 2):
        for e in range(2): a(f"v_pk_mul_f32 {vr(ACC+4*t+2*e,2)}, {vr(ACC+4*t+2*e,2)}, {vr(vSC,2)} op_sel_hi:[1,0]")
        a(f"v_cvt_pk_bf16_f32 v{64+2*t}, v{ACC+4*t}, v{ACC+4*t+1}")
        a(f"v_cvt_pk_bf16_f32 v{65+2*t}, v{ACC+4*t+2}, v{ACC+4*t+3}")
    a(f"ds_write_b64 v{vO1}, v[64:65]"); a(f"ds_write_b64 v{vO1}, v[66:67] offset:32"); a(f"ds_write_b64 v{vO2}, v[68:69]")
    a(f"ds_read_b128 {vr(Eb,4)}, v16"); a(f"ds_read_b32 v{Eb+4}, v16 offset:16"); a(f"ds_read_b32 v{Eb-1}, v17")
    a(f"ds_read_b32 v78, v2 offset:1024"); a(f"ds_read_b32 v79, v2 offset:1028")
    a(f"ds_read_b32 v80, v2 offset:1280"); a(f"ds_read_b32 v81, v2 offset:1284")
    a("s_mov_b64 exec, 0x1ffffff")
    for c in range(4): a(f"ds_write_b128 v{vZ}, {vr(ZR,4)} offset:{c*UCS}")
    a("s_mov_b64 exec, -1")
    SG = 160
    for i in range(1, 4): a(f"s_mov_b32 s{36+i}, {4096*i}")
    def ld_sg():
        for i in range(4): a(f"buffer_load_dwordx4 {vr(SG+4*i,4)}, v{vR}, {sr(sFLG,4)}, {'s%d' % (36+i) if i else '0'} offen {SC}")
    ld_sg()
    a("s_waitcnt lgkmcnt(0)")
    O = 84
    for d, s0, s1, sl in ((0,3,2,2),(1,2,1,3),(2,1,0,2),(3,0,-1,4),(4,4,3,1),(5,2,2,0),(6,2,1,1),(7,0,0,0)):
        a(f"v_perm_b32 v{O+d}, v{Eb+s0}, v{Eb+s1}, v{SA+sl}")
    a(f"ds_write_b128 v{vK}, {vr(O,4)} offset:{KPAD}")
    a(f"ds_write_b128 v{vK}, {vr(O+4,4)} offset:{KPAD+KCS}")
    def mk(dst, kind, p01, p2):
        if kind == "00": a(f"v_perm_b32 v{dst}, v{p01}, v{p01}, s{s00}")
        elif kind == "11": a(f"v_perm_b32 v{dst}, v{p01}, v{p01}, s{s11}")
        elif kind == "22": a(f"v_perm_b32 v{dst}, v{p2}, v{p2}, s{s00}")
        elif kind == "10": a(f"v_perm_b32 v{dst}, v{p01}, v{p01}, s{s10}")
        elif kind == "21": a(f"v_perm_b32 v{dst}, v{p2}, v{p01}, s{s21}")
    chunks = [(78, ["21","11","00","00"], vK, KPAD + 1024), (78, ["22","11","10","00"], vK, KPAD + 1024 + KCS),
              (80, ["11","00","00","00"], vK2, KPAD + 2048), (80, ["22","21","11","11"], vK2, KPAD + 2048 + 16),
              (80, ["11","10","00","00"], vK2, KPAD + 2048 + KCS), (80, ["22","22","11","11"], vK2, KPAD + 2048 + KCS + 16)]
    for ci, (p, kinds, ad, off) in enumerate(chunks):
        b = O + 8 + 4*ci
        for e, kd in enumerate(kinds): mk(b+e, kd, p, p+1)
        a(f"ds_write_b128 v{ad}, {vr(b,4)} offset:{off}")
    g.stamp()
    sCGo = sT+7
    a(f"s_lshl_b32 s{sCGo}, s{sCG}, 14")
    lp = a.label("p1"); dn = a.label("p1d")
    a(f"s_mov_b32 s{sTO}, 0")
    a(f"{lp}:")
    a("s_waitcnt vmcnt(0)")
    a(f"v_cmp_ne_u64 vcc, {sr(sNON,2)}, {vr(SG+2,2)}")
    for i in range(1, 4):
        a(f"v_cmp_ne_u64 {sr(sT,2)}, {sr(sNON,2)}, {vr(SG+4*i+2,2)}"); a(f"s_or_b64 vcc, vcc, {sr(sT,2)}")
    a(f"s_cbranch_vccz {dn}")
    a("s_mov_b64 exec, vcc")
    ld_sg()
    a(f"s_add_u32 s{sTO}, s{sTO}, 1"); a(f"s_cmp_lt_u32 s{sTO}, {TIMEOUT}"); a(f"s_cbranch_scc1 {lp}")
    a(f"{dn}:")
    a("s_mov_b64 exec, -1")
    g.stamp()
    UR = 32; XG = 48; XU = 128; TD = 96
    for i in range(4):
        a(f"s_add_u32 s{sT}, s{sCGo}, {4096*i}")
        a(f"buffer_load_dwordx4 {vr(XG+4*i,4)}, v{vR}, {sr(sU2,4)}, s{sT} offen {SC}")
    def rdA(st, p, q): return f"ds_read_b128 {ar(64*st+4*p,4)}, v{vA} offset:{(8*p+q)*64}"
    def rdB(st, r, q): return f"ds_read_b128 {ar(64*st+32+4*r,4)}, v{vB} offset:{(8*r-q+7)*64}"
    for i in range(8): a(rdA(0, i, 0))
    for i in range(4):
        b = SG+4*i
        a(f"v_lshlrev_b32 v{b+2}, 16, v{b+1}"); a(f"v_and_b32 v{b+3}, 0xffff0000, v{b+1}")
        a(f"v_and_b32 v{b+1}, 0xffff0000, v{b}"); a(f"v_lshlrev_b32 v{b}, 16, v{b}")
        a(f"v_rcp_f32 v{b+2}, v{b+2}"); a(f"v_rcp_f32 v{b+3}, v{b+3}")
    a("s_barrier")
    for ii in range(4):
        a(f"s_waitcnt vmcnt({3-ii})")
        x = XU+8*ii; t = TD+8*ii; u = UR+4*ii
        for ch in range(4):
            a(f"v_lshlrev_b32 v{x+2*ch}, 16, v{XG+4*ii+ch}"); a(f"v_and_b32 v{x+2*ch+1}, 0xffff0000, v{XG+4*ii+ch}")
        for ch in range(4): a(f"v_pk_add_f32 {vr(t+2*ch,2)}, {vr(x+2*ch,2)}, {vr(SG+4*ii,2)} neg_lo:[0,1] neg_hi:[0,1]")
        for ch in range(4): a(f"v_cvt_pk_bf16_f32 v{u+ch}, v{t+2*ch}, v{t+2*ch+1}")
        for ch in range(4):
            a(f"v_lshlrev_b32 v{t+2*ch}, 16, v{u+ch}"); a(f"v_and_b32 v{t+2*ch+1}, 0xffff0000, v{u+ch}")
        for ch in range(4): a(f"v_pk_mul_f32 {vr(t+2*ch,2)}, {vr(t+2*ch,2)}, {vr(SG+4*ii+2,2)}")
        for ch in range(4): a(f"v_cvt_pk_bf16_f32 v{u+ch}, v{t+2*ch}, v{t+2*ch+1}")
        for c in range(4):
            for ch in range(2):
                a(f"ds_write2st64_b32 v{vUC+2*c+ch}, v{UR+4*ii+ch}, v{UR+4*ii+ch+2} offset0:{4*ii} offset1:{4*ii+141}")
    a("s_waitcnt lgkmcnt(0)")
    a("s_barrier")
    g.stamp()
    CA = 64
    for i in range(8): a(rdB(0, i, 0))
    fill = []
    F = fill.append
    TD = 96; XU = 128
    F(f"s_lshl_b32 s{sT}, s58, 16"); F(f"s_and_b32 s{sT+1}, s58, 0xffff0000"); F(f"s_lshl_b32 s{sT+2}, s59, 16"); F(f"s_and_b32 s{sT+3}, s59, 0xffff0000")
    for i in range(4):
        for ch in range(4):
            u = UR+4*i+ch; d = TD+8*i+2*ch
            F(f"v_lshlrev_b32 v{d}, 16, v{u}"); F(f"v_and_b32 v{d+1}, 0xffff0000, v{u}")
            F(f"v_mul_f32 v{d}, s{sT+ch}, v{d}"); F(f"v_mul_f32 v{d+1}, s{sT+ch}, v{d+1}")
            F(f"v_cvt_pk_bf16_f32 v{u}, v{d}, v{d+1}")
            F(f"v_lshlrev_b32 v{d}, 16, v{u}"); F(f"v_and_b32 v{d+1}, 0xffff0000, v{u}")
    F(f"v_lshlrev_b32 v16, 2, v0"); F(f"v_add_u32 v16, {KBASE}, v16")
    fill2 = []
    sched = {}
    nb = len(bgl)
    for n in range(nb):
        pos = n * DSP + 9
        sched[(pos // 36, pos % 36)] = [ins for ins, tag in bgl[n]]
    fi = 0
    npre = max(0, len(fill) - (7*20 - nb))
    for ins in fill[:npre]: a(ins)
    fill = fill[npre:]
    for q in range(8):
        st = q & 1
        a("s_waitcnt lgkmcnt(0)")
        nxt = []
        if q < 7:
            for i in range(8): nxt += [rdA(1-st, i, q+1), rdB(1-st, i, q+1)]
        else:
            assert fi == len(fill), (fi, len(fill))
            fill = fill2; fi = 0
        k = 0
        for p in range(8):
            for r in range(8 - p):
                t = p + r
                c = "0" if (q == 0 and p == 0) else vr(CA+4*t, 4)
                a(f"v_mfma_f32_16x16x32_bf16 {vr(CA+4*t,4)}, {ar(64*st+4*p,4)}, {ar(64*st+32+4*r,4)}, {c}")
                if (q, k) in sched:
                    for ins in sched.pop((q, k)): a(ins)
                elif nxt and (k % 2 == 0 or (k < 8)): a(nxt.pop(0))
                elif fi < len(fill): a(fill[fi]); fi += 1
                k += 1
        assert not nxt
    assert fi == len(fill) and not sched, (fi, len(fill), sched)
    for t in range(8):
        a(f"v_cvt_pk_bf16_f32 v{168+2*t}, v{CA+4*t}, v{CA+4*t+1}")
        a(f"v_cvt_pk_bf16_f32 v{169+2*t}, v{CA+4*t+2}, v{CA+4*t+3}")
        a(f"ds_write2_b32 v{vY}, v{168+2*t}, v{169+2*t} offset0:{128*(t&1)} offset1:{128*(t&1)+4}")
        if t & 1 and t < 7: a(f"v_add_u32 v{vY}, 1024, v{vY}")
    a("s_waitcnt vmcnt(0) lgkmcnt(0)")
    g.stamp()
    a("s_barrier")
    Y = 64; YU = 160
    for i in range(4):
        for ch in (0, 2):
            a(f"ds_read2st64_b32 {vr(Y+4*i+ch,2)}, v16 offset0:{4*i+33*ch} offset1:{4*i+33*(ch+1)}")
    for i in range(4):
        a(f"s_waitcnt lgkmcnt({6-2*i})")
        for ch in range(4):
            a(f"v_lshlrev_b32 v{YU+2*ch}, 16, v{Y+4*i+ch}"); a(f"v_and_b32 v{YU+2*ch+1}, 0xffff0000, v{Y+4*i+ch}")
        b = TD+8*i
        for ch in range(4): a(f"v_pk_add_f32 {vr(b+2*ch,2)}, {vr(b+2*ch,2)}, {vr(YU+2*ch,2)}")
        for ch in range(4): a(f"v_cvt_pk_bf16_f32 v{YU+ch}, v{b+2*ch}, v{b+2*ch+1}")
        for ch in range(4):
            a(f"v_lshlrev_b32 v{b+2*ch}, 16, v{YU+ch}"); a(f"v_and_b32 v{b+2*ch+1}, 0xffff0000, v{YU+ch}")
        for ch in range(4): a(f"v_pk_add_f32 {vr(b+2*ch,2)}, {vr(b+2*ch,2)}, {vr(XU+8*i+2*ch,2)}")
        for e in range(2):
            for hp in range(2):
                a(f"v_cvt_pk_bf16_f32 v{Y+4*i+2*e+hp}, v{b+4*hp+e}, v{b+4*hp+2+e}")
        a(f"s_add_u32 s{sT}, s{sCGo}, {4096*i}")
        a(f"buffer_store_dwordx4 {vr(Y+4*i,4)}, v{vR}, {sr(sH,4)}, s{sT} offen {SC}")
    g.stamp()

M_XCH = 0x1b00000
XSL = 16384; XWG = 3*XSL; SZ_XCH = 256*XWG
s2_TM = sT+4; s2_TN = sT+5; s2_KQ = sT+6
def g2_dma_addr(sM0, tv=2):
    return [f"s_bfe_u32 s{s2_KQ}, s2, 0x20001",
        f"s_and_b32 s{s2_TM}, s2, 1", f"s_lshl_b32 s{s2_TM}, s{s2_TM}, 2", f"s_bfe_u32 s{sT}, s2, 0x20003", f"s_add_u32 s{s2_TM}, s{s2_TM}, s{sT}",
        f"s_lshr_b32 s{s2_TN}, s2, 5",
        f"v_lshrrev_b32 v{tv}, 4, v{vL}", f"s_mul_i32 s{sT}, s{s2_KQ}, 896", f"s_lshl_b32 s{sT+1}, s{sWave}, 4", f"s_add_u32 s{sT}, s{sT}, s{sT+1}",
        f"v_add_u32 v1, s{sT}, v{tv}", f"v_lshlrev_b32 v1, 11, v1",
        f"v_lshlrev_b32 v{tv}, 2, v{tv}", f"v_and_b32 v{tv+1}, 15, v{vL}", f"v_xor_b32 v{tv}, v{tv}, v{tv+1}",
        f"v_lshl_add_u32 v1, v{tv}, 4, v1", f"s_lshl_b32 s{sT}, s{s2_TN}, 8", f"v_add_u32 v1, s{sT}, v1", f"s_lshl_b32 s{sM0}, s{sWave}, 12"]
G2_STG = 64*2048; G2_I = 4*2048 - 1024
def g2_dma(stage, i, sM0=24, sW=12):
    grp = []
    if i == 0: grp.append(f"s_add_u32 m0, s{sM0}, {(stage % 10)*16384}")
    grp.append(f"s_mov_b32 s{sT+1}, {stage*G2_STG + i*G2_I}")
    grp.append(f"buffer_load_dwordx4 v1, {sr(sW,4)}, s{sT+1} offen offset:{1024*i} lds")
    return grp

def phase_gemm2(g, PRE1, LA=8, TAIL=16, XSLEEP=4, OF='nt'):
    a = g.a
    ACC = 32
    def acc(j, t): return ACC + (t*2 + j)*16
    HR = 160; IN = 176; XR = 0; WF = 192; NX = 24
    vX = 2; vW = 4; vO = 16; vI = 17; vH = 18; vFl = 19; vT = 232; vM = 20
    sX = 8; sH = 44; sO = 4; sIB = 36
    sOX = 20; sM = 26; sN = 27; sI = 31; sFo = 33
    a(f"s_lshl_b32 s{sM}, s{s2_TM}, 8"); a(f"s_lshl_b32 s{sT}, s{sWave}, 6"); a(f"s_add_u32 s{sM}, s{sM}, s{sT}")
    a(f"s_lshl_b32 s{sN}, s{s2_TN}, 7"); a(f"s_lshl_b32 s{sT}, s{s2_KQ}, 5"); a(f"s_add_u32 s{sN}, s{sN}, s{sT}")
    a(f"v_and_b32 v{vT}, 31, v{vL}"); a(f"v_add_u32 v{vT}, s{sM}, v{vT}")
    a(f"v_lshrrev_b32 v{vT+1}, 5, v{vL}")
    a(f"v_lshl_add_u32 v{vX}, v{vT+1}, 11, v{vT}"); a(f"v_lshlrev_b32 v{vX}, 4, v{vX}")
    a(f"s_mul_i32 s{sOX}, s{s2_KQ}, {112*32768}")
    a(f"v_lshlrev_b32 v{vH}, 3, v{vT}"); a(f"v_lshl_add_u32 v{vH}, v{vT+1}, 15, v{vH}")
    a(f"s_lshl_b32 s{sT}, s{sN}, 12"); a(f"v_add_u32 v{vH}, s{sT}, v{vH}")
    a(f"v_lshlrev_b32 v{vO}, 11, v{vT}"); a(f"v_lshl_add_u32 v{vO}, v{vT+1}, 4, v{vO}")
    a(f"s_lshl_b32 s{sT}, s{sN}, 1"); a(f"v_add_u32 v{vO}, s{sT}, v{vO}")
    a(f"v_bfe_u32 v{vT+3}, v{vL}, 2, 2"); a(f"v_lshl_add_u32 v{vT+4}, v{vT+1}, 3, v{vT+3}"); a(f"v_lshlrev_b32 v{vW}, 8, v{vT+4}")
    a(f"v_xor_b32 v{vT+3}, s{s2_KQ}, v{vT+3}"); a(f"v_lshl_add_u32 v{vW}, v{vT+3}, 6, v{vW}")
    a(f"v_bfe_u32 v{vT+3}, v{vL}, 4, 1"); a(f"v_lshl_add_u32 v{vW}, v{vT+3}, 5, v{vW}")
    a(f"v_and_b32 v{vT+3}, 1, v{vL}"); a(f"v_lshl_add_u32 v{vW}, v{vT+3}, 4, v{vW}")
    a(f"v_bfe_u32 v{vT+3}, v{vL}, 1, 1"); a(f"v_lshl_add_u32 v{vW}, v{vT+3}, 3, v{vW}")
    for t in range(1, 4): a(f"v_xor_b32 v{vW+t}, {64*t}, v{vW}")
    for b in range(1, 3):
        for t in range(4): a(f"v_add_u32 v{vW+4*b+t}, {65536*b}, v{vW+t}")
    a(f"v_lshlrev_b32 v{vI}, 4, v{vL}"); a(f"s_lshl_b32 s{sT}, s{sWave}, 12"); a(f"v_add_u32 v{vI}, s{sT}, v{vI}"); a(f"v_mov_b32 v{vM}, -2")
    srd(a, sO, pOUT, 2048*1024*2); srd(a, sIB, pWS, SZ_XCH, M_XCH)
    a(f"s_mul_i32 s{sI}, s2, {XWG}")
    for t in range(1, 4):
        a(f"s_xor_b32 s{27+t}, s2, {2*t}"); a(f"s_mul_i32 s{27+t}, s{27+t}, {XWG}"); a(f"s_add_u32 s{27+t}, s{27+t}, {XSL*(t-1)}")
    a(f"v_bfe_u32 v{vT+4}, v{vL}, 2, 1"); a(f"v_and_b32 v{vT+3}, 3, v{vL}"); a(f"v_lshl_add_u32 v{vT+4}, v{vT+3}, 6, v{vT+4}")
    a(f"s_lshl_b32 s{sT}, s{s2_TM}, 2"); a(f"s_add_u32 s{sT}, s{sT}, s{s2_KQ}"); a(f"s_lshl_b32 s{sT}, s{sT}, 1")
    a(f"v_add_u32 v{vT+4}, s{sT}, v{vT+4}")
    a(f"v_lshlrev_b32 v{vT+3}, 1, v{vT+3}"); a(f"v_xor_b32 v{vT+3}, s2, v{vT+3}")
    a(f"v_and_b32 v{vT+2}, 8, v{vL}"); a(f"v_cmp_eq_u32 vcc, 0, v{vT+2}"); a("s_nop 1")
    a(f"v_cndmask_b32 v{vFl}, v{vT+3}, v{vT+4}, vcc"); a(f"v_lshlrev_b32 v{vFl}, 6, v{vFl}")
    a(f"s_mov_b32 s{sFo}, {2*16384}")
    a("s_waitcnt vmcnt(0)")
    a("s_barrier")
    set_flag(g, 2, 22)
    g.stamp()
    def wread(st, f, t, step, j):
        off = ((step >> 2) % 10)*16384 + (step & 3)*4096 + j*1024
        return f"ds_read_b64_tr_b16 {ar(WF+st*16+f*4+j*2,2)}, v{vW + 4*(off >> 16) + t} offset:{off & 0xffff}"
    T0 = 56 - TAIL; TG = TAIL // 4
    sup = [[(t, s) for t in range(4)] for s in range(T0)]
    for t in (1, 2, 3, 0):
        for hf in range(TG): sup.append([(t, T0 + 4*hf + k) for k in range(4)])
    SEND = [T0 + TG*k for k in (1, 2, 3)]
    def need_of(n): return max(s for t, s in sup[min(n, 55)])
    def reads(n):
        return [wread(n & 1, f, t, s, j) for f, (t, s) in enumerate(sup[n]) for j in range(2)]
    for ins in reads(0): a(ins)
    for stg in range(PRE1, 10):
        for i in range(4):
            for ins in g2_dma(stg, i): a(ins)
    poll_flags(g, vFl, sFo, 22)
    g.stamp()
    vm = VM()
    def xload(x):
        return [f"buffer_load_dwordx4 {ar(XR+(x % NX)*8+j*4,4)}, v{vX}, {sr(sX,4)}, s{sOX} offen offset:{512*j} {SC}" for j in range(2)]
    xadv = f"s_add_u32 s{sOX}, s{sOX}, 65536"
    nx = 0
    for x in range(4):
        for ins in xload(x): a(ins); vm.add(f"X{x}")
        a(xadv); nx += 1
    dl = [(stg, i) for stg in range(10, 14) for i in range(4)]
    started = set()
    send = []
    for n, fr in enumerate(sup):
        need = max(s for t, s in fr)
        w = vm.wait_for(f"X{need}")
        if n == 39:
            assert not dl
            w = min(w, vm.wait_for("D"))
        a(f"s_waitcnt vmcnt({w}) lgkmcnt(0)")
        if n in (min(4*PRE1 - 1, 15), 15, 39): a("s_barrier")
        gaps = {k: [] for k in range(8)}; tags = {k: [] for k in range(8)}
        if n + 1 < len(sup):
            for k, ins in enumerate(reads(n + 1)): gaps[k // 2].append(ins)
        gi = 4
        for rep in range(2):
            if nx < 56 and nx <= max(need_of(k_) for k_ in range(n, n + LA + 1)) and gi <= 6:
                for j, ins in enumerate(xload(nx)): gaps[gi+j].append(ins); tags[gi+j].append(f"X{nx}")
                gaps[gi+1].append(xadv); nx += 1; gi += 2
        if n >= 15 and dl and gi <= 6:
            grp = g2_dma(*dl.pop(0))
            gaps[gi] += grp[:-1]; gaps[gi+1].append(grp[-1]); tags[gi+1].append("D")
        if n in (34, 35, 36, 37):
            for e in range(2):
                i = 2*(n-34) + e
                gj, gq = (i >> 2), (i >> 1) & 1
                gaps[6+e] += [f"s_mov_b32 s{sT}, {(4*gq + e)*16384}", f"buffer_load_dwordx2 {vr(HR+2*i,2)}, v{vH}, {sr(sH,4)}, s{sT} offen offset:{256*gj} {SC}"]
                tags[6+e].append("R")
        if n in SEND:
            t = sup[n-1][0][0]; b = acc(0, t)
            send = []
            for i in range(4):
                send += [f"v_cvt_pk_bf16_f32 v{b+4*i+e}, v{b+8*i+2*e}, v{b+8*i+2*e+1}" for e in range(4)]
                send += [f"v_min_u32 v{b+4*i+e}, v{b+4*i+e}, v{vM}" for e in range(4)]
                send += [f"buffer_store_dwordx4 {vr(b+4*i,4)}, v{vI}, {sr(sIB,4)}, s{27+t} offen offset:{1024*i} {SC}"]
        k = 0
        for f, (t, s) in enumerate(fr):
            for j in ((0, 1) if f % 2 == 0 else (1, 0)):
                c = vr(acc(j,t),16) if (j, t) in started else "0"
                started.add((j, t))
                a(f"v_mfma_f32_32x32x16_bf16 {vr(acc(j,t),16)}, {ar(WF+(n&1)*16+f*4,4)}, {ar(XR+(s % NX)*8+j*4,4)}, {c}")
                for ins in gaps[k]: a(ins)
                for tg in tags[k]: vm.add(tg)
                if send and not (n in SEND and k < 4):
                    for _ in range(4 if k >= 4 or n == 55 else 2):
                        if send:
                            ins = send.pop(0); a(ins)
                            if ins.startswith("buffer"): vm.add("S")
                k += 1
        if n - 1 in SEND: assert not send, len(send)
    assert nx == 56 and not dl
    g.stamp()
    P = acc(0, 1)
    a(f"s_add_u32 s28, s{sI}, {XSL}"); a(f"s_add_u32 s29, s{sI}, {2*XSL}")
    def ld_slot(sl):
        for i in range(4): a(f"buffer_load_dwordx4 {vr(IN+16*sl+4*i,4)}, v{vI}, {sr(sIB,4)}, s{(sI, 28, 29)[sl]} offen offset:{1024*i} {SC}")
    a(f"s_waitcnt vmcnt({vm.wait_for('R')})")
    for sl in range(3): ld_slot(sl)
    for k in range(16):
        a(f"v_lshlrev_b32 v{P+2*k}, 16, v{HR+k}"); a(f"v_and_b32 v{P+2*k+1}, 0xffff0000, v{HR+k}")
    a(f"s_mov_b32 s{sTO}, 0")
    Q = acc(0, 2); B = acc(0, 0)
    for sl in range(3):
        lp = a.label("xp"); dn = a.label("xd")
        a(f"s_waitcnt vmcnt({8-4*sl})")
        a(f"{lp}:")
        I = IN + 16*sl
        a(f"v_max3_u32 v21, v{I}, v{I+1}, v{I+2}"); a(f"v_max3_u32 v22, v{I+3}, v{I+4}, v{I+5}")
        for k in range(6, 16, 2): a(f"v_max3_u32 v{21 + ((k>>1)&1)}, v{21 + ((k>>1)&1)}, v{I+k}, v{I+k+1}")
        a(f"v_max_u32 v21, v21, v22")
        a(f"v_cmp_eq_u32 vcc, -1, v21")
        a(f"s_cbranch_vccz {dn}")
        a(f"s_sleep {XSLEEP}")
        ld_slot(sl)
        a(f"s_add_u32 s{sTO}, s{sTO}, 1"); a(f"s_cmp_lt_u32 s{sTO}, {TIMEOUT}")
        a("s_waitcnt vmcnt(0)")
        a(f"s_cbranch_scc1 {lp}")
        a(f"{dn}:")
        if sl == 2: break
        for k in range(16):
            a(f"v_lshlrev_b32 v{Q+2*k}, 16, v{I+k}"); a(f"v_and_b32 v{Q+2*k+1}, 0xffff0000, v{I+k}")
        for k in range(16): a(f"v_pk_add_f32 {vr(B+2*k,2)}, {vr(B+2*k,2)}, {vr(Q+2*k,2)}")
    g.stamp()
    a(f"s_mov_b32 s{sT}, 65536")
    for i in range(4):
        b = B + 8*i
        for e in range(4):
            a(f"v_lshlrev_b32 v{Q+2*e}, 16, v{IN+32+4*i+e}"); a(f"v_and_b32 v{Q+2*e+1}, 0xffff0000, v{IN+32+4*i+e}")
        for e in range(4): a(f"v_pk_add_f32 {vr(b+2*e,2)}, {vr(b+2*e,2)}, {vr(Q+2*e,2)}")
        for e in range(4): a(f"v_cvt_pk_bf16_f32 v{Q+e}, v{b+2*e}, v{b+2*e+1}")
        for e in range(4):
            a(f"v_lshlrev_b32 v{b+2*e}, 16, v{Q+e}"); a(f"v_and_b32 v{b+2*e+1}, 0xffff0000, v{Q+e}")
        for e in range(4): a(f"v_pk_add_f32 {vr(b+2*e,2)}, {vr(b+2*e,2)}, {vr(P+8*i+2*e,2)}")
        for e in range(4): a(f"v_cvt_pk_bf16_f32 v{HR+4*i+e}, v{b+2*e}, v{b+2*e+1}")
        so = f"s{sT}" if i >= 2 else "0"
        a(f"buffer_store_dwordx4 {vr(HR+4*i,4)}, v{vO}, {sr(sO,4)}, {so} offen offset:{32*(i&1)} {OF}")

def phase_gemm1(g, PRE1, XF=SC, X0=4, TU=3, PU=(0,2,6)):
    a = g.a
    SLOT = SLOT1
    ACC = 32
    MF = "v_mfma_f32_16x16x32_bf16"
    def acc(j, mt, t): return ACC + ((t*2 + (j >> 1))*4 + (j & 1)*2 + mt)*4
    XR = 0; WF = 64; CSF = 120; RD = 176; MB = 192
    vDMA = 1; vX = 8; vST = 9; vWc = 10; vWn = 11; vS = 12; vO = 28; vFl = 2; vC = 4; vF2 = 5
    sX = 44; sACT = 8; sST = 36; sCS = 40; sW2 = 12
    sOX = 20; sOX2 = 21; sBase = 23; sIt = 25; sA = 28; sB = 29; sNS = 30; sCSo = 32
    sOW = sG_OW; sM0 = sG_M0
    vm = VM()
    for i in range(4): vm.add("H")
    def pro_dma(stage, idxs):
        for i in idxs:
            if i in (0, 4): a(f"s_add_u32 m0, s{sM0}, {stage*SLOT + (4096 if i else 0)}"); a("s_nop 0")
            a(g1_dma(pDMA, i)); vm.add(f"D{stage}")
            if i == 6:
                for ins in g1_wadv("odd" if stage & 1 else "even"): a(ins)
    def wread(st, t, jj, reg, imm0):
        return f"ds_read_b64_tr_b16 {ar(WF+st*28+t*4+jj*2,2)}, v{reg} offset:{imm0 + st*UPOFF + 16*jj*224 + 32*t}"
    a(f"s_lshr_b32 s{sT}, s{sWave}, 1"); a(f"s_mul_i32 s{sT}, s{sT}, {SLOT}")
    a(f"s_and_b32 s{sT+1}, s{sWave}, 1"); a(f"s_mul_i32 s{sT+1}, s{sT+1}, {32*224}"); a(f"s_add_u32 s{sT}, s{sT}, s{sT+1}")
    a(f"v_add_u32 v164, s{sT}, v{pWc}")
    for st in range(2):
        for t in range(7):
            for jj in range(2): a(wread(st, t, jj, 164, 0))
    a(f"v_and_b32 v160, 15, v{vL}"); a(f"v_mov_b32 v161, 0x3f803f80")
    for i in range(7): a(f"v_mov_b32 v{vDMA+i}, v{pDMA+i}")
    for d, s_ in ((vX, pX), (vST, pST), (vWc, pWc), (vO, pO)): a(f"v_mov_b32 v{d}, v{s_}")
    a(f"v_add_u32 v{vWn}, {2*SLOT}, v{vWc}")
    srd(a, sACT, pWS, SZ_ACT, M_ACT); srd(a, sST, pWS, 2048*16, M_ST2); srd(a, sCS, pWS, 32*224*32, M_CS)
    srd(a, sW2, pWD, SZ_W)
    a(f"s_mul_i32 s16, s2, 28672")
    a(f"v_mov_b32 v27, v{pSR}")
    for e in range(4): a(f"v_accvgpr_write_b32 a{208+e}, -1")
    srd(a, 52, pWS, SZ_XCH, M_XCH)
    a(f"s_mul_i32 s51, s2, {XWG}"); a(f"s_add_u32 s54, s51, {XWG}")
    a(f"s_mul_i32 s{sCSo}, s{sG_TN}, {224*32}")
    a(f"s_lshl_b32 s{sOX}, s{sG_TM}, 19"); a(f"s_add_u32 s{sOX2}, s{sOX}, 65536")
    a(f"s_mov_b32 s17, s{sOX}"); a(f"s_add_u32 s26, s{sOX}, {1 << 19}")
    a(f"s_mov_b32 s{sBase}, 0"); a(f"s_mov_b32 s{sIt}, 3")
    a(f"s_mul_i32 s{sT}, s{sWave}, 896"); a(f"s_add_u32 s{sT}, s{sT}, {PBASE}")
    a(f"v_lshrrev_b32 v163, 4, v{vL}")
    a(f"v_lshlrev_b32 v165, 6, v160"); a(f"v_lshl_add_u32 v165, v163, 4, v165"); a(f"v_add_u32 v165, s{sT}, v165")
    a(f"s_waitcnt vmcnt({vm.wait_for('H')})")
    a("s_barrier")
    set_flag(g, 1, 174)
    g.stamp()
    a("s_waitcnt lgkmcnt(0)")
    for n in range(14):
        b = 96 + 4*n
        a(f"v_cmp_eq_u32 vcc, {n}, v160")
        pro_dma(2 + n//7, [n % 7])
        a("s_nop 0")
        for e in range(4): a(f"v_cndmask_b32 v{b+e}, 0, v161, vcc")
    a("s_nop 0")
    for n in range(14):
        c = "0" if n == 0 else "v[156:159]"
        a(f"{MF} v[156:159], {ar(WF+n*4,4)}, {vr(96+4*n,4)}, {c}")
    for t in range(7):
        for jj in range(2): a(wread(0, t, jj, vWc, 0))
    a(f"v_cmp_gt_u32 vcc, 14, v160")
    a("s_and_saveexec_b64 s[56:57], vcc")
    a(f"ds_write_b128 v165, v[156:159]")
    a("s_mov_b64 exec, -1")
    a(f"s_mov_b32 s{sT+1}, 16384")
    a("s_waitcnt lgkmcnt(0)")
    g.stamp()
    poll_flags(g, 29, sT+1, 166)
    a("s_barrier")
    g.stamp()
    vm = VM()
    def xload(x, k):
        j, hf = 2*(x & 1) + (k >> 1), k & 1
        return f"buffer_load_dwordx2 {ar(XR+((x>>1)&3)*16+j*4+hf*2,2)}, v{vX}, {sr(sX,4)}, s{sOX2 if hf else sOX} offen offset:{128*j} {XF}"
    def xadv(x):
        if x & 1 == 0: return []
        if x % 8 == 7:
            return [f"s_mov_b32 s{sOX}, 0" if x == 7 else f"s_add_u32 s{sOX}, s{sOX}, 131072", f"s_cmp_eq_u32 s{sOX}, s17", f"s_cselect_b32 s{sOX}, s26, s{sOX}",
                    f"s_add_u32 s{sOX2}, s{sOX}, 65536"]
        return [f"s_add_u32 s{sOX}, s{sOX}, 131072", f"s_add_u32 s{sOX2}, s{sOX}, 65536"]
    for x in range(X0):
        for k in range(4): a(xload(x, k)); vm.add(f"X{x}")
        for ins in xadv(x): a(ins)
    nxt_x = [X0]
    a(f"v_lshlrev_b32 v168, 2, v0"); a(f"v_add_u32 v168, {PBASE}, v168")
    for w in range(4): a(f"ds_read_b32 v{170+w}, v168 offset:{896*w}")
    a(f"v_lshlrev_b32 v169, 5, v0")
    a(f"s_lshl_b32 s{sT}, s{sG_TM}, 2"); a(f"s_add_u32 s{sT}, s{sT}, s{sCSo}")
    a(f"v_cmp_gt_u32 vcc, 224, v0")
    a(f"v_and_b32 v29, 3, v{vL}"); a(f"v_lshlrev_b32 v29, 4, v29"); a(f"s_lshl_b32 s{sT+1}, s{sWave}, 6"); a(f"s_add_u32 s{sT+1}, s{sT+1}, {SBASE}")
    a(f"v_add_u32 v29, s{sT+1}, v29")
    a("s_waitcnt lgkmcnt(0)")
    a("v_add_f32 v170, v170, v171"); a("v_add_f32 v172, v172, v173"); a("v_add_f32 v170, v170, v172")
    a("v_cvt_pk_bf16_f32 v171, v170, v170"); a("v_lshlrev_b32 v171, 16, v171")
    a("v_sub_f32 v170, v170, v171")
    a("v_cvt_pk_bf16_f32 v170, v171, v170")
    a("s_and_saveexec_b64 s[56:57], vcc")
    a(f"buffer_store_dword v170, v169, {sr(sCS,4)}, s{sT} offen {SC}"); vm.add("C")
    a("s_mov_b64 exec, -1")
    g.stamp()
    accu = []
    for k in range(8):
        r0 = RD+4*(k>>1)+(k&1); r1 = r0+2
        accu += [f"v_accvgpr_read_b32 v16, a{r0}", f"v_accvgpr_read_b32 v17, a{r1}",
                 "v_lshlrev_b32 v18, 16, v16", "v_lshlrev_b32 v19, 16, v17", "v_and_b32 v16, 0xffff0000, v16", "v_and_b32 v17, 0xffff0000, v17"]
        if k == 0:
            accu += ["v_add_f32 v12, v18, v16", "v_add_f32 v13, v19, v17", "v_mul_f32 v14, v18, v18", "v_mul_f32 v15, v19, v19"]
        else:
            accu += ["v_add_f32 v12, v12, v18", "v_add_f32 v13, v13, v19", "v_fmac_f32 v14, v18, v18", "v_fmac_f32 v15, v19, v19",
                     "v_add_f32 v12, v12, v16", "v_add_f32 v13, v13, v17"]
        accu += ["v_fmac_f32 v14, v16, v16", "v_fmac_f32 v15, v17, v17"]
    n3 = (len(accu) + 3) // 4
    FILL = {0: accu[:n3], 1: accu[n3:2*n3], 2: accu[2*n3:3*n3], 3: accu[3*n3:],
            4: red4(12, 16) + ["ds_write_b128 v29, v[12:15]"],
            5: [f"ds_read_b128 {vr(16+4*w,4)}, v29 offset:{64*(w+1)}" for w in range(3)],
            6: [f"v_add_f32 v{12+e}, v{12+e}, v{16+e}" for e in range(4)] + [f"v_add_f32 v{20+e}, v{20+e}, v{24+e}" for e in range(4)]
               + [f"v_add_f32 v{12+e}, v{12+e}, v{20+e}" for e in range(4)] + stats_final(12, 16),
            7: [f"v_cmp_gt_u32 vcc, 4, v{vL}", f"v_and_b32 v29, 3, v{vL}", "v_lshlrev_b32 v29, 5, v29", f"v_bfe_u32 v21, v{vL}, 2, 1", "v_lshl_add_u32 v29, v21, 4, v29",
                "v_cndmask_b32 v16, v13, v12, vcc", "v_cndmask_b32 v17, v15, v14, vcc", "v_cmp_gt_u32 vcc, 8, v0",
                f"v_mov_b32 v18, s{sNON}", f"v_mov_b32 v19, s{sNON+1}", "v_mov_b32 v21, 0x7fff0000", "v_cndmask_b32 v21, v21, v29, vcc",
                f"s_lshl_b32 s{sT}, s{sG_R}, 4", f"buffer_store_dwordx4 v[16:19], v21, {sr(sST,4)}, s{sT} offen {SC}", "v_lshlrev_b32 v29, 4, v0"]}
    LFILL = [f"v_and_b32 v{vC}, 15, v{vL}", f"v_lshlrev_b32 v{vC}, 5, v{vC}", f"v_and_b32 v{vF2}, 16, v{vL}", f"v_add_u32 v{vC}, v{vF2}, v{vC}",
             f"v_and_b32 v{vF2}, 7, v{vL}", f"v_lshlrev_b32 v{vF2}, 9, v{vF2}",
             f"s_and_b32 s{sT}, s2, 0xc7", f"s_lshl_b32 s{sT}, s{sT}, 6", f"s_add_u32 s{sT}, s{sT}, {3*16384}", f"v_add_u32 v{vF2}, s{sT}, v{vF2}",
             f"s_add_u32 s{sNS}, s{sCSo}, 3584"]
    def ld_flags_stats():
        return [f"buffer_load_dwordx2 {vr(vFl,2)}, v{vF2}, {sr(sFLG,4)}, 0 offen {SC}"] + \
               [f"buffer_load_dwordx4 {vr(vS+4*j,4)}, v{vST}, {sr(sST,4)}, 0 offen offset:{256*j} {SC}" for j in range(4)]
    def ld_cs(n):
        return f"buffer_load_dwordx4 {ar(CSF+4*n,4)}, v{vC}, {sr(sCS,4)}, s{sCSo if n < 7 else sNS} offen offset:{512*(n % 7)} {SC}"
    DM = {3: [0, 1], 0: [2, 3], 1: [4, 5], 2: [6]}
    def body(kind, base):
        first = kind == "first"; last = kind == "last"; second = kind == "second"; mid = kind == "mid"
        for u in range(8):
            s = u % 4; st = u & 1
            w = vm.wait_for(f'X{(base+u) | 1}')
            if second and u == 0: w = min(w, vm.wait_for("R"))
            if last and u == 2: w = min(w, vm.wait_for("S"))
            a(f"s_waitcnt vmcnt({w}) lgkmcnt(0)")
            if (s == 3 and not (last and u == 7)) or (second and u == 5): a("s_barrier")
            if first and u == 7: set_flag(g, 3, 22)
            gaps = {k: [] for k in range(28)}
            nu = (u + 1) % 8
            reg = vWn if u == 7 else vWc
            imm0 = (nu // 4) * SLOT + ((nu % 4) >> 1) * 32 * 224
            rpos = [0, 1, 3, 4, 6, 7, 9, 10, 12, 13, 15, 16, 18, 19]
            if not (last and u == 7):
                k = 0
                for t in range(7):
                    for jj in range(2):
                        gaps[rpos[k]].append((wread(1 - st, t, jj, reg, imm0), None)); k += 1
            vq = []
            while nxt_x[0] <= ((base + u) & ~1) + 6 + (u & 1) and len(vq) < 8 and not (last and nxt_x[0] >= base + 8):
                x = nxt_x[0]; nxt_x[0] += 1
                for k in range(4): vq.append(([], xload(x, k), f"X{x}", xadv(x) if k == 3 else []))
            extra = []
            if not last:
                for i in ([] if first and u < 3 else DM[s]):
                    pre = []
                    if i in (0, 4):
                        e = 4096 if i else 0
                        if u in (3, 4, 5, 6): pre = [f"s_add_u32 m0, s{sA}, {e}"]
                        elif u == 7: pre = [f"s_add_u32 m0, s{sA}, {SLOT + e}"]
                        else: pre = [f"s_add_u32 m0, s{sB}, {SLOT + e}"]
                    vq.append((pre, g1_dma(vDMA, i), "D", g1_wadv("odd" if u == 2 else "even") if i == 6 else []))
                if u == 0:
                    extra += [f"s_add_u32 s{sA}, s{sM0}, s{sBase}", f"s_sub_u32 s{sBase}, {2*SLOT}, s{sBase}", f"s_add_u32 s{sB}, s{sM0}, s{sBase}"]
                if mid and u in PU:
                    vq.append(([], f"buffer_store_dwordx4 a[208:211], v29, s[52:55], s51 offen {SC}", "P", [f"s_add_u32 s51, s51, 4096"]))
                if first and u in (2, 3, 4, 5):
                    vq.append(([], f"buffer_load_dwordx4 {ar(RD+4*(u-2),4)}, v27, {sr(sX,4)}, s{sG_SR} offen {SC}", "R", [f"s_add_u32 s{sG_SR}, s{sG_SR}, {16*16384}"]))
                if u == 7:
                    extra.append(f"v_swap_b32 v{vWc}, v{vWn}")
            else:
                if u == 0:
                    for n, ins in enumerate(LFILL): gaps[n].append((ins, None))
                    for ins in ld_flags_stats(): vq.append(([], ins, "S", []))
                if u == 2:
                    for n in range(14): vq.append(([], ld_cs(n), "CS", []))
                if u == TU:
                    for t in range(7): vq.append(([], f"buffer_load_dwordx4 a[212:215], v29, {sr(sW2,4)}, s16 offen", "T", [f"s_add_u32 s16, s16, 4096"]))
                if u == 6:
                    for n, ins in enumerate(g2_dma_addr(sM0, 6)): gaps[8 + n].append((ins, None))
                if u == 7: gaps[0].append(("s_barrier", None))
            vpos = [2, 5, 8, 11, 14, 17, 20, 22, 24, 26] if len(vq) <= 10 else list(range(1, 28, 2))
            for n, (pre, ins, tag, post) in enumerate(vq):
                p = vpos[n]
                for x_ in pre: gaps[p-1].append((x_, None))
                gaps[p].append((ins, tag))
                for x_ in post: gaps[min(p+1, 27)].insert(0, None); gaps[min(p+1,27)].pop(0); gaps[min(p+1, 27)].append((x_, None))
            for n, ins in enumerate(extra): gaps[21 + 2*n].append((ins, None))
            if second and u in FILL:
                fl = FILL[u]
                for n, ins in enumerate(fl): gaps[n*28//len(fl) if len(fl) > 7 else 21+n].append((ins, None))
            if mid and u == 7:
                gaps[27] += [(f"s_add_u32 s{sIt}, s{sIt}, 1", None), (f"s_cmp_lt_u32 s{sIt}, 8", None)]
            k = 0
            for t in range(7):
                for j in ((0, 1, 2, 3) if t % 2 == 0 else (3, 2, 1, 0)):
                    d = vr(acc(j, st, t), 4)
                    c = "0" if (first and u < 2) else d
                    a(f"{MF} {d}, {ar(WF+st*28+t*4,4)}, {ar(XR+(u>>1)*16+j*4,4)}, {c}")
                    for ins, tag in gaps[k]:
                        a(ins)
                        if tag: vm.add(tag)
                    k += 1
    body("first", 0)
    g.stamp()
    body("second", 8)
    loop = a.label("g1loop")
    a(f"{loop}:")
    if g.dbg:
        a("s_memrealtime s[98:99]"); a("s_memtime s[100:101]"); a(f"s_add_u32 s97, s{sIt}, {g.nst-3}"); a("s_waitcnt lgkmcnt(0)")
        a("s_mov_b32 s99, m0"); a("s_mov_b32 m0, s97"); a("s_nop 1")
        a(f"v_writelane_b32 v{vSTAMP}, s98, m0"); a("s_add_u32 m0, m0, 32"); a("s_nop 1"); a(f"v_writelane_b32 v{vSTAMP}, s100, m0"); a("s_mov_b32 m0, s99")
        g.nst += 5
    body("mid", 16)
    a(f"s_cbranch_scc1 {loop}")
    g.stamp()
    body("last", 24)
    g.stamp()
    poll = a.label("sp"); ok = a.label("sok")
    a(f"s_mov_b32 s{sTO}, 0")
    a(f"{poll}:")
    a(f"v_cmp_ne_u64 vcc, {sr(sNON,2)}, {vr(vFl,2)}")
    for j in range(4):
        a(f"v_cmp_ne_u64 {sr(sT,2)}, {sr(sNON,2)}, {vr(vS+4*j+2,2)}"); a(f"s_or_b64 vcc, vcc, {sr(sT,2)}")
    a(f"s_cbranch_vccz {ok}")
    for ins in ld_flags_stats(): a(ins)
    a("s_waitcnt vmcnt(0)")
    for n in range(14): a(ld_cs(n))
    a("s_waitcnt vmcnt(0)")
    a(f"s_add_u32 s{sTO}, s{sTO}, 1"); a(f"s_cmp_lt_u32 s{sTO}, {TIMEOUT}"); a(f"s_cbranch_scc1 {poll}")
    a(f"{ok}:")
    K0 = -2.0 * 0.7978845608028654 * LOG2E
    K1 = K0 * 0.044715
    a(f"v_cmp_gt_u32 vcc, 32, v{vL}")
    for j in range(4):
        c = vS + 4*j
        a(f"v_xor_b32 v{c+3}, 0x80000000, v{c}"); a(f"v_lshrrev_b32 v{c+2}, 16, v{c+3}"); a(f"v_or_b32 v{c+3}, v{c+2}, v{c+3}")
        a(f"v_cndmask_b32 v{c+3}, 0, v{c+3}, vcc")
        a(f"v_mul_f32 v{c}, {f32(K0)}, v{c+1}"); a(f"v_mul_f32 v{c+2}, v{c+1}, v{c+1}")
        for e in range(4): a(f"v_accvgpr_write_b32 a{MB+4*j+e}, v{c+3}")
        a(f"v_mul_f32 v{c+1}, v{c+2}, v{c+1}"); a(f"v_rcp_f32 v{c+2}, v{c+2}"); a(f"v_mul_f32 v{c+1}, {f32(K1)}, v{c+1}")
    a(f"s_waitcnt vmcnt({7 if TU < 8 else 0})")
    units = [(t, jp) for t in range(7) for jp in range(2)]
    def corr(n):
        t, jp = units[n]
        return [f"{MF} {vr(acc(j,mt,t),4)}, {ar(CSF+4*(7*mt+t),4)}, {ar(MB+4*j,4)}, {vr(acc(j,mt,t),4)}" for j in (2*jp, 2*jp+1) for mt in range(2)]
    for ins in corr(0) + corr(1): a(ins)
    a("s_nop 3")
    w2 = [g2_dma(stg, i) for stg in range(PRE1) for i in range(4)]
    def W2():
        if w2:
            for ins in w2.pop(0): a(ins)
    T = 2
    for n, (t, jp) in enumerate(units):
        b = acc(2*jp, 0, t)
        cm = corr(n+2) if n + 2 < 14 else []
        prs = [(b, b+4, vS+8*jp), (b+2, b+6, vS+8*jp), (b+8, b+12, vS+8*jp+4), (b+10, b+14, vS+8*jp+4)]
        for i, (gt, u_, c) in enumerate(prs): a(f"v_pk_mul_f32 {vr(T+2*i,2)}, {vr(gt,2)}, {vr(gt,2)}")
        for i, (gt, u_, c) in enumerate(prs): a(f"v_pk_fma_f32 {vr(T+2*i,2)}, {vr(T+2*i,2)}, {vr(c,2)}, {vr(c,2)} op_sel:[0,1,0] op_sel_hi:[1,1,0]")
        for i, (gt, u_, c) in enumerate(prs): a(f"v_pk_mul_f32 {vr(T+2*i,2)}, {vr(T+2*i,2)}, {vr(gt,2)}")
        W2()
        for i in range(8):
            a(f"v_exp_f32 v{T+i}, v{T+i}")
            if cm and i % 2 == 0: a(cm.pop(0))
        for i, (gt, u_, c) in enumerate(prs): a(f"v_pk_mul_f32 {vr(u_,2)}, {vr(u_,2)}, {vr(gt,2)}")
        for i, (gt, u_, c) in enumerate(prs): a(f"v_pk_fma_f32 {vr(T+2*i,2)}, {vr(T+2*i,2)}, {vr(c+2,2)}, {vr(c+2,2)} op_sel_hi:[1,0,0]")
        W2()
        for i in range(8): a(f"v_rcp_f32 v{T+i}, v{T+i}")
        a(f"s_mov_b32 s{sT}, {t*65536}")
        for i, (gt, u_, c) in enumerate(prs): a(f"v_pk_mul_f32 {vr(u_,2)}, {vr(u_,2)}, {vr(T+2*i,2)}")
        for i in (0, 2, 1, 3):
            u_ = prs[i][1]
            a(f"v_cvt_pk_bf16_f32 v{b+i}, v{u_}, v{u_+1}")
        a(f"v_permlane16_swap_b32 v{b}, v{b+2}")
        a("s_nop 0")
        a(f"v_permlane16_swap_b32 v{b+1}, v{b+3}")
        a(f"buffer_store_dwordx4 {vr(b,4)}, v{vO}, {sr(sACT,4)}, s{sT} offen offset:{512*jp} {SC}")
    assert not w2
    g.stamp()

def gen_mega(dbg=False, as_list=False, p01={}, g1={}, g2={}, PRE1=6):
    g = G(dbg); a = g.a
    end = a.label("end")
    a(f"s_cmp_ge_u32 s2, 256"); a(f"s_cbranch_scc1 {end}")
    phase01(g, **p01); phase_gemm1(g, PRE1, **g1); phase_gemm2(g, PRE1, **g2)
    if dbg:
        g.stamp()
        a("s_waitcnt vmcnt(0)")
        g.stamp()
        srd(a, 4, pWS, 1 << 19, M_DBG)
        a(f"v_lshlrev_b32 v1, 2, v{vL}")
        a(f"s_lshl_b32 s{sT}, s2, 2"); a(f"s_add_u32 s{sT}, s{sT}, s{sWave}"); a(f"s_lshl_b32 s{sT}, s{sT}, 8")
        a(f"buffer_store_dword v{vSTAMP}, v1, s[4:7], s{sT} offen")
    a(f"{end}:")
    a("s_endpgm")
    k = f"kernel={NAME} " if as_list else ""
    launch = f"; @launch {k}grid=(256,1,1) block=(256,1,1) lds=163840\n"
    body = a.text()
    import subprocess, tempfile, os
    with tempfile.TemporaryDirectory() as td:
        open(td + "/x.s", "w").write('.amdgcn_target "amdgcn-amd-amdhsa--gfx950"\n.text\n' + body.replace("CODE_BYTES", "0x1234"))
        subprocess.run(["clang", "-x", "assembler", "-target", "amdgcn-amd-amdhsa", "-mcpu=gfx950", "-c", td + "/x.s", "-o", td + "/x.o"], check=True)
        subprocess.run(["llvm-objcopy", "-O", "binary", "-j", ".text", td + "/x.o", td + "/x.bin"], check=True)
        n = os.path.getsize(td + "/x.bin")
    assert n < 65536
    body = body.replace("CODE_BYTES", str((n - 768) & ~63))
    return launch, kernel_header(NAME) + body, kernel_desc(NAME, 512, 256)

if __name__ == "__main__":
    from mk import *
    mk([gen_mega(dbg=True, as_list=True)], 'mega_b.s')
    assemble([gen_mega()], 'm2.s')
```
